```python
import torch

def _softmax(x, axis=-1):
    return torch.softmax(x, dim=axis)
def _gelu(x):
    return torch.nn.functional.gelu(x, approximate="tanh")
def _silu(x):
    return torch.nn.functional.silu(x)
def _sigmoid(x):
    return torch.sigmoid(x)
def _layernorm(x, axis=-1, eps=1e-5):
    m = x.mean(dim=axis, keepdim=True)
    v = x.var(dim=axis, keepdim=True, unbiased=False)
    return (x - m) / torch.sqrt(v + eps)
def _scatter_add(tgt, idx, src, axis=0):
    return tgt.clone().index_add_(axis, idx, src)
def _segment_sum(src, seg, n):
    out = torch.zeros((n,) + src.shape[1:], dtype=src.dtype)
    return out.index_add_(0, seg, src)
def _pad(x, pw):
    flat = tuple(v for pair in reversed(pw) for v in pair)
    return torch.nn.functional.pad(x, flat)

kernel_name = 'concat_heads__gqa_block_cached__gqa_block_cached__near_ridge'

def setup_inputs():

    _w = (lambda a: (lambda t: t.to(torch.bfloat16) if t.is_floating_point() else t)(torch.as_tensor(a)))
    def _A_setup():
        B, Sq, D = 16, 96, 576
        Hq, Hkv, Sk, Dh = 32, 16, 1024, 128
        assert Hq % Hkv == 0, (Hq, Hkv)
        return {
            "x": _w((lambda *s: torch.randn(*s, dtype=torch.bfloat16) * 0.8)(B, Sq, D)),
            "k_cache": _w((lambda *s: torch.randn(*s, dtype=torch.bfloat16) * 0.8)(B, Hkv, Sk, Dh)),
            "v_cache": _w((lambda *s: torch.randn(*s, dtype=torch.bfloat16) * 0.05)(B, Hkv, Sk, Dh)),
            "wq": _w((lambda *s: torch.randn(*s, dtype=torch.bfloat16) * 0.8)(D, Hq * Dh) * (D ** -0.5)),
            "wo": _w((lambda *s: torch.randn(*s, dtype=torch.bfloat16) * 0.05)(Hq * Dh, D) * ((Hq * Dh) ** -0.5)),
        }
    _A_in = _A_setup()

    def _B_setup():
        B, Sq, D = 16, 96, 576
        Hq, Hkv, Sk, Dh = 32, 16, 1024, 128
        assert Hq % Hkv == 0, (Hq, Hkv)
        return {
            "x": _w((lambda *s: torch.randn(*s, dtype=torch.bfloat16) * 0.8)(B, Sq, D)),
            "k_cache": _w((lambda *s: torch.randn(*s, dtype=torch.bfloat16) * 0.8)(B, Hkv, Sk, Dh)),
            "v_cache": _w((lambda *s: torch.randn(*s, dtype=torch.bfloat16) * 0.05)(B, Hkv, Sk, Dh)),
            "wq": _w((lambda *s: torch.randn(*s, dtype=torch.bfloat16) * 0.8)(D, Hq * Dh) * (D ** -0.5)),
            "wo": _w((lambda *s: torch.randn(*s, dtype=torch.bfloat16) * 0.05)(Hq * Dh, D) * ((Hq * Dh) ** -0.5)),
        }
    _B_in = _B_setup()

    return {
        "A_x": _A_in["x"],
        "A_k_cache": _A_in["k_cache"],
        "A_v_cache": _A_in["v_cache"],
        "A_wq": _A_in["wq"],
        "A_wo": _A_in["wo"],
        "B_x": _B_in["x"],
        "B_k_cache": _B_in["k_cache"],
        "B_v_cache": _B_in["v_cache"],
        "B_wq": _B_in["wq"],
        "B_wo": _B_in["wo"],
    }

def reference(A_x, A_k_cache, A_v_cache, A_wq, A_wo, B_x, B_k_cache, B_v_cache, B_wq, B_wo):
    def _A_ref(x, k_cache, v_cache, wq, wo):
        B, Sq, D = x.shape
        Hq, Dh = 32, 128
        Hkv = k_cache.shape[1]
        rep = Hq // Hkv
        q = (lambda x, *d: x.permute(*d))((x @ wq).reshape(B, Sq, Hq, Dh), 0, 2, 1, 3)
        k = (lambda x, n, axis: torch.repeat_interleave(x, n, dim=axis))(k_cache, rep, axis=1)
        v = (lambda x, n, axis: torch.repeat_interleave(x, n, dim=axis))(v_cache, rep, axis=1)
        scores = torch.einsum("bhqd,bhkd->bhqk", q, k) * (Dh ** -0.5)
        p = _softmax(scores, axis=-1)
        o = torch.einsum("bhqk,bhkd->bhqd", p, v)
        return (lambda x, *d: x.permute(*d))(o, 0, 2, 1, 3).reshape(B, Sq, Hq * Dh) @ wo

    def _B_ref(x, k_cache, v_cache, wq, wo):
        B, Sq, D = x.shape
        Hq, Dh = 32, 128
        Hkv = k_cache.shape[1]
        rep = Hq // Hkv
        q = (lambda x, *d: x.permute(*d))((x @ wq).reshape(B, Sq, Hq, Dh), 0, 2, 1, 3)
        k = (lambda x, n, axis: torch.repeat_interleave(x, n, dim=axis))(k_cache, rep, axis=1)
        v = (lambda x, n, axis: torch.repeat_interleave(x, n, dim=axis))(v_cache, rep, axis=1)
        scores = torch.einsum("bhqd,bhkd->bhqk", q, k) * (Dh ** -0.5)
        p = _softmax(scores, axis=-1)
        o = torch.einsum("bhqk,bhkd->bhqd", p, v)
        return (lambda x, *d: x.permute(*d))(o, 0, 2, 1, 3).reshape(B, Sq, Hq * Dh) @ wo

    a = _A_ref(A_x, A_k_cache, A_v_cache, A_wq, A_wo)
    b = _B_ref(B_x, B_k_cache, B_v_cache, B_wq, B_wo)
    return torch.concatenate([a, b], axis=-1)
```

```python
import re

REG_RE = re.compile(r'^(-|\|)?(v|a|s)(\d+)\|?$')
RNG_RE = re.compile(r'^(-|\|)?(v|a|s)\[(\d+):(\d+)\]\|?$')
TRANS = ('v_exp_f32', 'v_log_f32', 'v_rcp_f32', 'v_rsq_f32', 'v_sqrt_f32', 'v_sin_f32', 'v_cos_f32')


def regs_of(tok):
    tok = tok.strip()
    m = REG_RE.match(tok)
    if m:
        return [(m.group(2), int(m.group(3)))]
    m = RNG_RE.match(tok)
    if m:
        return [(m.group(2), i) for i in range(int(m.group(3)), int(m.group(4)) + 1)]
    if tok in ('vcc', 'vcc_lo', 'vcc_hi'):
        return [('x', 'vcc')]
    if tok == 'm0':
        return [('x', 'm0')]
    if tok in ('exec', 'exec_lo', 'exec_hi'):
        return [('x', 'exec')]
    return []


class I:
    __slots__ = ('text', 'op', 'kind', 'rd', 'wr', 'srcc', 'ab', 'cost', 'tag', 'passes', 'key')

    def __init__(self, text, tag=None, cost=None, key=None):
        self.text = text
        self.tag = tag
        self.key = key
        self.srcc = []
        self.ab = []
        self.passes = 0
        t = text.split(';')[0].strip()
        if t.endswith(':'):
            self.op = 'label'; self.kind = 'label'; self.rd = []; self.wr = []; self.cost = 0
            return
        if t.startswith('.') or t == '':
            self.op = 'dir'; self.kind = 'dir'; self.rd = []; self.wr = []; self.cost = 0
            return
        parts = t.split(None, 1)
        op = parts[0]
        self.op = op
        rest = parts[1] if len(parts) > 1 else ''
        toks = [x.strip() for x in rest.split(',')] if rest else []
        mods = []
        if toks:
            lt = toks[-1].split()
            toks[-1] = lt[0] if lt else ''
            mods = lt[1:]
        R = [regs_of(x) for x in toks]
        flat = lambda l: [r for x in l for r in x]
        rd, wr = [], []
        kind = None
        c = 4
        if op.startswith('v_mfma'):
            kind = 'mfma'
            wr = R[0]; rd = flat(R[1:]); self.srcc = R[3]; self.ab = R[1] + R[2]
            self.passes = 8 if '32x32' in op else 4
            c = 8
        elif op.startswith('buffer_load') or op.startswith('global_load'):
            if 'lds' in mods or '_lds_' in op:
                kind = 'dma'; rd = flat(R) + [('x', 'm0')]
            else:
                kind = 'vld'; wr = R[0]; rd = flat(R[1:])
        elif op.startswith('buffer_store') or op.startswith('global_store'):
            kind = 'vst'; rd = flat(R)
        elif op.startswith('buffer_atomic') or op.startswith('global_atomic'):
            kind = 'vst'; rd = flat(R)
            if 'sc0' in mods:
                kind = 'vld'; wr = R[0]
        elif op.startswith('buffer_inv') or op.startswith('buffer_wbl2'):
            kind = 'vst'
        elif op.startswith('ds_read') or op.startswith('ds_bpermute') or op.startswith('ds_swizzle'):
            kind = 'dsr'; wr = R[0]; rd = flat(R[1:])
        elif op.startswith('ds_write') or op.startswith('ds_add'):
            kind = 'dsw'; rd = flat(R)
        elif op.startswith('s_load') or op.startswith('s_memtime') or op.startswith('s_memrealtime'):
            kind = 'smem'; wr = R[0]; rd = flat(R[1:])
        elif op == 's_waitcnt':
            kind = 'wait'
        elif op == 's_barrier':
            kind = 'barrier'
        elif op == 's_nop':
            kind = 'nop'; c = 4 * (int(toks[0], 0) + 1)
        elif op in ('s_endpgm', 's_sleep', 's_setprio'):
            kind = 'salu'
        elif op.startswith('s_cbranch') or op == 's_branch':
            kind = 'branch'
            if 'vcc' in op: rd = [('x', 'vcc')]
            if 'scc' in op: rd = [('x', 'scc')]
            if 'exec' in op: rd = [('x', 'exec')]
        elif op in ('s_call_b64', 's_swappc_b64'):
            kind = 'branch'; wr = R[0]
        elif op == 's_setpc_b64':
            kind = 'branch'; rd = R[0]
        elif op.startswith('s_cmp') or op.startswith('s_bitcmp'):
            kind = 'salu'; rd = flat(R); wr = [('x', 'scc')]
        elif op.startswith('s_'):
            kind = 'salu'; wr = list(R[0]); rd = flat(R[1:])
            if 'saveexec' in op:
                wr += [('x', 'exec')]; rd += [('x', 'exec')]
            if op.startswith('s_cselect') or op.startswith('s_addc') or op.startswith('s_subb'):
                rd += [('x', 'scc')]
            if not (op.startswith('s_mov') or op.startswith('s_cselect') or op.startswith('s_mul') or op.startswith('s_getreg')):
                wr += [('x', 'scc')]
            if op in ('s_addk_i32', 's_mulk_i32'):
                rd += R[0]
        elif op.startswith('v_'):
            kind = 'valu'
            base = op.replace('_e32', '').replace('_e64', '')
            if base in TRANS:
                kind = 'trans'; c = 8
            if op.startswith('v_permlane') and 'swap' in op:
                wr = flat(R); rd = flat(R)
            elif op.startswith('v_swap'):
                wr = flat(R); rd = flat(R)
            elif op.startswith('v_add_co') or op.startswith('v_sub_co'):
                wr = R[0] + R[1]; rd = flat(R[2:])
            elif op.startswith('v_addc_co'):
                wr = R[0] + R[1]; rd = flat(R[2:])
            else:
                wr = list(R[0]); rd = flat(R[1:])
                if op.startswith('v_fmac') or op.startswith('v_dot2c') or op.startswith('v_writelane'):
                    rd += R[0]
                if op.startswith('v_cmpx'):
                    wr += [('x', 'exec')]
        else:
            raise ValueError('unknown instruction: ' + text)
        self.kind = kind
        self.rd = rd
        self.wr = wr
        self.cost = c if cost is None else cost

    def __repr__(self):
        return self.text


def mk(x):
    return x if isinstance(x, I) else I(x)


def states(ins):
    if ins.kind in ('label', 'dir'):
        return 0
    if ins.kind == 'nop':
        return ins.cost // 4
    return 1


VALU_LIKE = ('valu', 'trans')
MEM_LIKE = ('vld', 'vst', 'dma', 'dsr', 'dsw')


def required(p, c):
    need = 0
    pw = set(p.wr); cr = set(c.rd); cw = set(c.wr)
    pv = {r for r in pw if r[0] in 'va'}
    ps = {r for r in pw if r[0] == 's' or r == ('x', 'vcc')}
    if p.kind in VALU_LIKE:
        if c.kind == 'mfma' and pv & cr:
            need = max(need, 2)
        if c.op.startswith('v_permlane') and pv & cr:
            need = max(need, 2)
        if ('dpp' in c.text or 'row_' in c.text) and pv & cr:
            need = max(need, 2)
        if (c.op.startswith('v_readlane') or c.op.startswith('v_readfirstlane')) and pv & cr:
            need = max(need, 1)
        if p.kind == 'trans' and c.kind == 'valu' and pv & cr:
            need = max(need, 1)
        if ps & cr:
            if c.kind in VALU_LIKE:
                need = max(need, 4 if c.op.startswith('v_readlane') or c.op.startswith('v_writelane') else 2)
            if c.kind in ('vld', 'vst', 'dma'):
                need = max(need, 5)
            if c.kind in ('salu', 'smem'):
                need = max(need, 2)
        if ('x', 'exec') in pw:
            if c.kind == 'mfma' or c.op.startswith('v_permlane') or c.op.startswith('v_read'):
                need = max(need, 4)
    if p.kind == 'salu' and ('x', 'm0') in pw and c.kind == 'dma':
        need = max(need, 1)
    if p.kind == 'mfma':
        big = 12 if p.passes == 8 else 8
        mid = 10 if p.passes == 8 else 6
        war = 7 if p.passes == 8 else 3
        if c.kind == 'mfma':
            if pw & set(c.ab):
                need = max(need, big)
            if pw & set(c.srcc):
                if not (list(p.wr) == list(c.srcc) and p.passes == c.passes):
                    need = max(need, mid)
            elif pw & cw:
                need = max(need, mid)
        elif c.kind in VALU_LIKE:
            if pw & (cr | cw):
                need = max(need, big)
            if set(p.srcc) & cw:
                need = max(need, war)
        elif c.kind in MEM_LIKE:
            if pw & (cr | cw):
                need = max(need, big)
            if set(p.srcc) & cw:
                need = max(need, war)
    if p.kind == 'vst' and ('x4' in p.op or 'x3' in p.op):
        data = set(regs_of(p.text.split(None, 1)[1].split(',')[0].strip())) if p.op.startswith('buffer') else set(p.rd)
        if data & cw:
            need = max(need, 2)
    return need


def pad_hazards(seq, history=None, report=None):
    out = list(history or [])
    h = len(out)
    for ins in seq:
        if ins.kind not in ('label', 'dir'):
            dist = 0
            short = 0
            culprit = None
            for k in range(len(out) - 1, -1, -1):
                p = out[k]
                need = required(p, ins) if p.kind not in ('label', 'dir', 'nop', 'wait', 'barrier') else 0
                if need - dist > short:
                    short = need - dist; culprit = p
                dist += states(p)
                if dist >= 13:
                    break
            if short > 0:
                if report is not None:
                    report.append((short, culprit.text, ins.text))
                out.append(I(f's_nop {short - 1}'))
        out.append(ins)
    return out[h:]


def auto_lgkm(seq, pending=None, maxout=15):
    q = [set(x) for x in (pending or [])]
    out = []
    for ins in seq:
        if ins.kind == 'wait':
            m = re.search(r'lgkmcnt\((\d+)\)', ins.text)
            if m:
                n = int(m.group(1))
                q = q[len(q) - n:] if n < len(q) else q
                if n == 0: q = []
            out.append(ins); continue
        if ins.kind == 'smem':
            assert not q, 'smem with LDS ops outstanding: ' + ins.text
            out.append(ins); continue
        touched = set(ins.rd) | set(ins.wr)
        idx = -1
        for k, d in enumerate(q):
            if d & touched:
                idx = k
        if idx >= 0:
            n = len(q) - 1 - idx
            assert n <= 15
            out.append(I(f's_waitcnt lgkmcnt({n})'))
            q = q[idx + 1:]
        if ins.kind in ('dsr', 'dsw'):
            if len(q) >= maxout:
                n = maxout - 1
                out.append(I(f's_waitcnt lgkmcnt({n})'))
                q = q[len(q) - n:]
            q.append(set(ins.wr))
        out.append(ins)
    return out, q


class Filler:
    def __init__(self, ins, rel=0, dl=10**9, stream=None, cost=None, pos=None):
        self.ins = [mk(x) for x in (ins if isinstance(ins, (list, tuple)) else [ins])]
        self.rel = rel; self.dl = dl; self.stream = stream
        self.cost = sum(x.cost for x in self.ins) if cost is None else cost
        self.pos = rel + 0.5 if pos is None else pos


def interleave(mfmas, fillers, budget=24, verbose=False, name=''):
    items = [(g, 0, k, [m]) for k, (g, m) in enumerate(enumerate(mfmas))]
    items += [(f.pos, 1, k, f.ins) for k, f in enumerate(fillers)]
    items.sort(key=lambda x: (x[0], x[1], x[2]))
    ref = [i for it in items for i in it[3]]
    preds = {}
    lastw = {}
    readers = {}
    skip = (('x', 'scc'),)
    for ins in ref:
        p = set()
        for r in ins.rd:
            if r in lastw and r not in skip: p.add(lastw[r])
        for r in ins.wr:
            if r in skip: continue
            if r in lastw: p.add(lastw[r])
            p.update(readers.get(r, ()))
        p.discard(id(ins))
        preds[id(ins)] = p
        for r in ins.rd:
            readers.setdefault(r, []).append(id(ins))
        for r in ins.wr:
            lastw[r] = id(ins); readers[r] = []
    streams = {}
    for k, f in enumerate(fillers):
        streams.setdefault(f.stream if f.stream is not None else ('_', k), []).append(f)
    for s in streams.values():
        for k in range(len(s) - 2, -1, -1):
            s[k].dl = min(s[k].dl, s[k + 1].dl)
        for k in range(1, len(s)):
            s[k].rel = max(s[k].rel, s[k - 1].rel)
    heads = {k: 0 for k in streams}
    out = []
    done = set()
    n = len(mfmas)
    loads = []
    total = sum(f.cost for f in fillers)
    late = []

    def ready(f):
        own = {id(x) for x in f.ins}
        return all(preds[id(x)] <= (done | own) for x in f.ins)

    for g in range(-1, n):
        if g >= 0:
            missing = preds[id(mfmas[g])] - done
            assert not missing, (name, g, mfmas[g].text, [x.text for x in ref if id(x) in missing])
            out.append(mfmas[g]); done.add(id(mfmas[g]))
        used = 0
        while True:
            cand = [(s[heads[k]].dl, k) for k, s in streams.items()
                    if heads[k] < len(s) and s[heads[k]].rel <= g and ready(s[heads[k]])]
            if not cand:
                break
            cand.sort(key=lambda x: x[0])
            placed = False
            for dl, k in cand:
                f = streams[k][heads[k]]
                b = 0 if g < 0 else budget
                if dl <= g or g == n - 1 or used + f.cost <= b:
                    if dl < g: late.append((g, dl, f.ins[0].text))
                    out.extend(f.ins); done.update(id(x) for x in f.ins)
                    used += f.cost; heads[k] += 1; placed = True
                    break
            if not placed:
                break
        loads.append(used)
    for k, s in streams.items():
        assert heads[k] == len(s), f'unplaced fillers in stream {k}: {s[heads[k]].ins}'
    check_dataflow(ref, out)
    if verbose:
        print(f'[{name}] total filler cost {total}, gap loads {loads}')
        for x in late[:10]: print('   late:', x)
    return out


def check_dataflow(ref, sched):
    def producers(seq):
        last = {}
        res = {}
        for ins in seq:
            res[id(ins)] = {r: last.get(r) for r in ins.rd}
            for r in ins.wr:
                last[r] = id(ins)
        return res, last
    ids = {id(x) for x in ref}
    s2 = [x for x in sched if id(x) in ids]
    assert len(s2) == len(ref), (len(s2), len(ref))
    a, la = producers(ref)
    b, lb = producers(s2)
    byid = {id(x): x for x in ref}
    bad = 0
    for k in a:
        if a[k] != b[k]:
            for r in a[k]:
                if a[k][r] != b[k][r] and r != ('x', 'scc') and r != ('x', 'm0'):
                    print('DATAFLOW MISMATCH', byid[k].text, r, '| ref:', byid.get(a[k][r]), '| sched:', byid.get(b[k][r]))
                    bad += 1
    for r in la:
        if la[r] != lb[r] and r not in (('x', 'scc'), ('x', 'm0')):
            print('LAST WRITER MISMATCH', r, byid[la[r]].text, byid[lb[r]].text)
            bad += 1
    assert bad == 0


def v(n, c=1):
    return f'v{n}' if c == 1 else f'v[{n}:{n + c - 1}]'


def a(n, c=1):
    return f'a{n}' if c == 1 else f'a[{n}:{n + c - 1}]'


def s(n, c=1):
    return f's{n}' if c == 1 else f's[{n}:{n + c - 1}]'
```

```python
import sys, math, struct
from asmlib import *

NAME = 'concat_heads__gqa_block_cached__gqa_block_cached__near_ridge'
K1 = NAME + '_kernel'
K2 = 'reduce_partials_kernel'


def f2u(x):
    return struct.unpack('<I', struct.pack('<f', x))[0]


class Cfg:
    stamps = False
    dma_cost = 16
    budget = 24
    rot = True
    warm = False
    kv_nt = ' nt'
    w_nt = ''
    st_mod = ''
    ld_mod = ''
    thr = 8.0
    verbose = False
    kvpre_step = -1

    def __init__(self, **kw):
        for k, x in kw.items():
            assert hasattr(self, k), k
            setattr(self, k, x)


TS = 8704
RING = 4 * TS
XB = 4 * RING
OB = 65536
PART = 122880
STAMP_OFF = 256 * PART

sW = 3
SRD_KV, SRD_WQ, SRD_X, SRD_WO, SRD_WS = 8, 12, 16, 20, 24
sRING = 28
sOFF, sOFF2 = 29, 30
sHH = 31
sLOOP = 32
sT0, sT1, sT2, sT3 = 33, 34, 35, 60
sWQL = 61
sXL = 62
sSO = 63
sC = 64
sTHR = 66
sRET = 68
sWOL = 70
sK0, sK1 = 71, 72
sCT = 73
sPS = 74
sSTAMP = 76

S_ = [0, 48]
NM = 96
P_ = 144
FR = 168
vL = 184
vMX = 187
vT = 189
vKA = 192
vVA = 194
vKV = 198
vLANE = 199
Q2 = 200
QA = 200
QB = 216
vWA = 240
vXA = 244
vWV = 248
vXV = 252
OACC = [0, 48]
OA_ = 96
OPK = 112
vOV = 120
vOA = 124
vBL, vBH = 125, 126
vPS = 127
OBV = 128
vR = 184
vOW = 190
vPS2 = 191


def Sreg(buf, t, i=0, c=16):
    return v(S_[buf] + 16 * t + i, c)


def Qfrag(t, ks):
    return a(192 + 32 * t + 4 * ks, 4) if t < 2 else v(Q2 + 4 * ks, 4)


def Oacc(dt, t):
    return (dt * 3 + t) * 16


def Bfrag(phi):
    return a(4 * phi, 4) if phi < 64 else v(OBV + 4 * (phi - 64), 4)


MF = 'v_mfma_f32_32x32x16_bf16'


class Gen:
    def __init__(self, cfg):
        self.c = cfg
        self.out = []
        self.lg = []
        self.vm = []
        self.nops = []
        self.nstamp = 0

    def emit(self, seq, name=''):
        seq = [mk(x) for x in seq]
        seq, self.lg = auto_lgkm(seq, self.lg)
        seq = self.resolve_vm(seq)
        rep = []
        seq = pad_hazards(seq, history=self.out[-40:], report=rep)
        if rep and self.c.verbose:
            for r in rep:
                print(f'  nop[{name}]', r)
        self.out.extend(seq)

    def resolve_vm(self, seq):
        out = []
        for ins in seq:
            if ins.kind == 'wait' and 'vmcnt(?)' in ins.text:
                tags = ins.tag if isinstance(ins.tag, list) else [ins.tag]
                idx = -1
                for k, t in enumerate(self.vm):
                    if t in tags:
                        idx = k
                if idx < 0:
                    continue
                n = len(self.vm) - 1 - idx
                n = min(n, 63)
                self.vm = self.vm[len(self.vm) - n:] if n else []
                out.append(I(f's_waitcnt vmcnt({n})'))
                continue
            if ins.kind == 'wait':
                m = re.search(r'vmcnt\((\d+)\)', ins.text)
                if m:
                    n = int(m.group(1))
                    if n < len(self.vm):
                        self.vm = self.vm[len(self.vm) - n:] if n else []
            if ins.kind in ('dma', 'vld', 'vst'):
                self.vm.append(ins.tag)
            out.append(ins)
        return out

    def wvm(self, tags):
        return I('s_waitcnt vmcnt(?)', tag=tags)

    def dma(self, vreg, srd, soff, imm, mod, tag):
        o = f' offset:{imm}' if imm else ''
        return I(f'buffer_load_dwordx4 {v(vreg)}, {s(srd, 4)}, {soff} offen{o}{mod} lds', tag=tag, cost=self.c.dma_cost)

    def stamp(self):
        if not self.c.stamps:
            return
        k = self.nstamp
        self.nstamp += 1
        assert k < 11
        self.emit(['s_waitcnt lgkmcnt(0)', f's_memtime {s(sSTAMP + 2 * k, 2)}', 's_waitcnt lgkmcnt(0)'])

    def kv_groups(self, sb, base, tag):
        m0 = lambda n: f's_add_u32 m0, {s(sb)}, {base + 1088 * n - 1024 * (n & 3)}'
        groups = [[m0(0)]]
        for n in range(8):
            g = [self.dma(vKV, SRD_KV, s(sOFF if n < 4 else sOFF2), 1024 * (n & 3), self.c.kv_nt, tag)]
            if n < 7:
                g.append(m0(n + 1))
            groups.append(g)
        groups.append([f's_add_u32 {s(sOFF)}, {s(sOFF)}, 8192', f's_and_b32 {s(sOFF)}, {s(sOFF)}, 0x3ffff',
                       f's_add_u32 {s(sOFF2)}, {s(sOFF)}, 4096'])
        return groups

    def kv_tile(self, slot, tag):
        return self.kv_groups(sRING, slot * TS, tag)

    def setup(self):
        c = self.c
        e = []
        e += ['s_cmp_ge_u32 s2, 256', 's_cbranch_scc1 L_end']
        if c.stamps:
            e += [f's_memrealtime {s(98, 2)}', f's_memtime {s(sSTAMP, 2)}']
            self.nstamp = 1
        e += ['s_load_dwordx8 s[36:43], s[0:1], 0', 's_load_dwordx2 s[44:45], s[0:1], 32',
              's_load_dwordx8 s[48:55], s[0:1], 40', 's_load_dwordx2 s[56:57], s[0:1], 72',
              's_load_dwordx2 s[58:59], s[0:1], 96']
        e += ['v_lshrrev_b32 v1, 6, v0', f'v_and_b32 {v(vLANE)}, 63, v0', f'v_readfirstlane_b32 {s(sW)}, v1']
        e += ['s_lshr_b32 s7, s2, 3', 's_and_b32 s4, s7, 15', 's_lshr_b32 s5, s7, 4', 's_and_b32 s6, s2, 3',
              's_lshl_b32 s6, s6, 1', 's_add_u32 s5, s5, s6', 's_bfe_u32 s6, s2, 0x10002']
        e += [f's_and_b32 {s(sHH)}, {s(sW)}, 1', f's_lshr_b32 {s(sT0)}, {s(sW)}, 1']
        e += [f's_lshl_b32 {s(sT1)}, {s(sHH)}, 1', f's_add_u32 {s(sT1)}, {s(sT1)}, {s(sT0)}',
              f's_mul_i32 {s(sRING)}, {s(sT1)}, {RING}', f's_add_u32 {s(sWQL)}, {s(sRING)}, {2 * TS}',
              f's_lshl_b32 {s(sXL)}, {s(sW)}, 10', f's_add_u32 {s(sXL)}, {s(sXL)}, {XB}',
              f's_lshl_b32 {s(sWOL)}, {s(sW)}, 14']
        if c.rot:
            e += [f's_and_b32 {s(sOFF)}, s7, 31', f's_lshl_b32 {s(sOFF)}, {s(sOFF)}, 13']
        else:
            e += [f's_mov_b32 {s(sOFF)}, 0']
        e += [f's_add_u32 {s(sOFF2)}, {s(sOFF)}, 4096']
        L = v(vLANE)
        e += [f'v_lshrrev_b32 v1, 4, {L}',
              f'v_and_b32 v2, 15, {L}',
              f'v_lshrrev_b32 v3, 5, {L}',
              f'v_and_b32 v4, 1, v1',
              f'v_lshrrev_b32 v5, 2, v2',
              f'v_and_b32 v6, 3, {L}',
              f'v_lshlrev_b32 v7, 1, v6', 'v_and_b32 v7, 2, v7', 'v_lshrrev_b32 v8, 1, v6', 'v_or_b32 v7, v7, v8',
              ]
        e += [f'v_lshrrev_b32 v8, 3, {L}', f'v_and_b32 v9, 7, {L}',
              'v_lshrrev_b32 v10, 1, v8', 'v_xor_b32 v9, v9, v10',
              f's_lshl_b32 {s(sT1)}, {s(sHH)}, 2', f'v_xor_b32 v9, {s(sT1)}, v9', 'v_lshlrev_b32 v9, 4, v9',
              f's_lshl_b32 {s(sT1)}, {s(sW)}, 3', f'v_add_u32 v8, {s(sT1)}, v8', 'v_mul_u32_u24 v8, 1152, v8',
              f'v_add_u32 {v(vXV)}, v8, v9']
        e += ['v_lshlrev_b32 v8, 2, v1', 'v_xor_b32 v8, v2, v8', 'v_lshlrev_b32 v8, 4, v8',
              'v_lshlrev_b32 v9, 13, v1', 'v_add_u32 v9, v9, v8',
              f's_lshl_b32 {s(sT1)}, s5, 2', f's_add_u32 {s(sT1)}, {s(sT1)}, {s(sW)}', f's_lshl_b32 {s(sT1)}, {s(sT1)}, 8',
              f'v_add_u32 {v(vWV)}, {s(sT1)}, v9']
        for n in range(1, 4):
            e += [f'v_add_u32 {v(vWV + n)}, {31744 * n}, {v(vWV)}']
        e += [f's_lshl_b32 {s(sT1)}, {s(sHH)}, 1', f'v_lshlrev_b32 v8, {s(sT1)}, v1', 'v_xor_b32 v8, v2, v8',
              'v_lshlrev_b32 v8, 4, v8', f'v_lshl_add_u32 {v(vKV)}, v1, 8, v8']
        e += ['s_waitcnt lgkmcnt(0)']
        e += ['s_cmp_eq_u32 s6, 0']
        for d, (x, y) in enumerate([(36, 48), (37, 49), (38, 50), (39, 51), (40, 52), (41, 53), (42, 54), (43, 55), (44, 56), (45, 57)]):
            e += [f's_cselect_b32 s{36 + d}, s{x}, s{y}']
        e += [f's_mul_i32 {s(sT1)}, s4, 110592', f's_add_u32 {s(SRD_X)}, s36, {s(sT1)}', f's_addc_u32 {s(SRD_X + 1)}, s37, 0',
              f's_mov_b32 {s(SRD_X + 2)}, 110592', f's_mov_b32 {s(SRD_X + 3)}, 0x20000']
        e += [f's_mov_b32 {s(SRD_WQ)}, s42', f's_mov_b32 {s(SRD_WQ + 1)}, s43', f's_mov_b32 {s(SRD_WQ + 2)}, 4718592',
              f's_mov_b32 {s(SRD_WQ + 3)}, 0x20000']
        e += [f's_cmp_eq_u32 {s(sHH)}, 0', 's_cselect_b32 s46, s38, s40', 's_cselect_b32 s47, s39, s41',
              f's_lshl_b32 {s(sT1)}, s4, 4', f's_lshl_b32 {s(sT2)}, s5, 1', f's_add_u32 {s(sT1)}, {s(sT1)}, {s(sT2)}',
              f's_add_u32 {s(sT1)}, {s(sT1)}, {s(sT0)}', f's_lshl_b32 {s(sT1)}, {s(sT1)}, 18',
              f's_add_u32 {s(SRD_KV)}, s46, {s(sT1)}', f's_addc_u32 {s(SRD_KV + 1)}, s47, 0',
              f's_mov_b32 {s(SRD_KV + 2)}, 262144', f's_mov_b32 {s(SRD_KV + 3)}, 0x20000']
        self.emit(e, 'setup')
        self.late_setup = []
        e = self.late_setup
        e += [f's_mul_i32 {s(sT1)}, s5, 589824', f's_add_u32 {s(SRD_WO)}, s44, {s(sT1)}', f's_addc_u32 {s(SRD_WO + 1)}, s45, 0',
              f's_mov_b32 {s(SRD_WO + 2)}, 589824', f's_mov_b32 {s(SRD_WO + 3)}, 0x20000']
        e += [f's_lshl_b32 {s(sT1)}, s6, 4', f's_add_u32 {s(sT1)}, {s(sT1)}, s4', f's_lshl_b32 {s(sT1)}, {s(sT1)}, 3',
              f's_add_u32 {s(sT1)}, {s(sT1)}, s5', f's_mul_i32 {s(sT1)}, {s(sT1)}, {PART}',
              f's_add_u32 {s(SRD_WS)}, s58, {s(sT1)}', f's_addc_u32 {s(SRD_WS + 1)}, s59, 0',
              f's_mov_b32 {s(SRD_WS + 2)}, {PART}', f's_mov_b32 {s(SRD_WS + 3)}, 0x20000']
        cs = f2u(math.log2(math.e) / math.sqrt(128.0))
        e += [f's_mov_b32 {s(sC)}, {cs:#x}', f's_mov_b32 {s(sC + 1)}, {cs:#x}', f's_mov_b32 {s(sTHR)}, {f2u(c.thr):#x}']
        e += [f's_mul_i32 {s(sK0)}, {s(sHH)}, {16 * 18432}', f's_sub_u32 {s(sK1)}, {16 * 18432}, {s(sK0)}']
        e += ['v_lshlrev_b32 v8, 11, v3', 'v_lshl_add_u32 v8, v5, 8, v8', 'v_lshl_add_u32 v8, v4, 5, v8',
              'v_lshl_add_u32 v8, v7, 3, v8', f'v_add_u32 v8, {s(sWQL)}, v8']
        for ct in range(4):
            e += [f'v_xor_b32 v9, {ct}, v5', f'v_lshl_add_u32 {v(vWA + ct)}, v9, 6, v8']
        e += [f'v_and_b32 v8, 31, {L}', 'v_lshrrev_b32 v9, 3, v8', 'v_and_b32 v10, 7, v8',
              'v_lshlrev_b32 v11, 10, v9', 'v_lshl_add_u32 v11, v10, 7, v11', f'v_add_u32 v11, {XB}, v11',
              'v_lshrrev_b32 v10, 1, v10', 'v_and_b32 v9, 1, v9', 'v_lshlrev_b32 v9, 2, v9', 'v_xor_b32 v10, v10, v9',
              'v_xor_b32 v10, v10, v3']
        for k in range(4):
            e += [f'v_xor_b32 v9, {2 * k}, v10', f'v_lshl_add_u32 {v(vXA + k)}, v9, 4, v11']
        e += [f's_mul_i32 {s(sT1)}, {s(sT0)}, {RING}',
              'v_lshrrev_b32 v9, 2, v8', 'v_mul_u32_u24 v9, 1088, v9', 'v_lshl_add_u32 v9, v6, 8, v9', f'v_add_u32 v9, {s(sT1)}, v9',
              'v_xor_b32 v10, v3, v6', f'v_lshl_add_u32 {v(vKA)}, v10, 4, v9',
              'v_xor_b32 v10, 2, v10', f'v_lshl_add_u32 {v(vKA + 1)}, v10, 4, v9']
        e += [f's_add_u32 {s(sT1)}, {s(sT1)}, {2 * RING}',
              'v_mul_u32_u24 v9, 1088, v3', 'v_lshl_add_u32 v9, v5, 8, v9', 'v_lshl_add_u32 v9, v4, 5, v9',
              'v_lshl_add_u32 v9, v6, 3, v9', f'v_add_u32 v9, {s(sT1)}, v9']
        for dt in range(4):
            e += [f'v_xor_b32 v10, {dt}, v5', f'v_lshl_add_u32 {v(vVA + dt)}, v10, 6, v9']

    def wq_unit(self, st):
        g = [[f's_add_u32 m0, {s(sWQL)}, {4096 * (st & 3)}', f's_mov_b32 {s(sSO)}, {131072 * st}',
              self.dma(vWV, SRD_WQ, s(sSO), 0, self.c.w_nt, ('U', st))]]
        for n in range(1, 4):
            g.append([self.dma(vWV + n, SRD_WQ, s(sSO), 1024 * n, self.c.w_nt, ('U', st))])
        return g

    def x_chunk(self, kc):
        g = []
        for m in range(3):
            g.append([f's_add_u32 m0, {s(sXL)}, {12288 * (kc & 1) + 4096 * m}', f's_mov_b32 {s(sSO)}, {128 * kc + 36864 * m}',
                      self.dma(vXV, SRD_X, s(sSO), 0, self.c.w_nt, ('X', kc))])
        return g

    def a_reads(self, st, ct):
        r = QA + 4 * ct
        return [f'ds_read_b64_tr_b16 {v(r + 2 * e_, 2)}, {v(vWA + ct)} offset:{4096 * (st & 3) + 1024 * e_}' for e_ in range(2)]

    def b_read(self, st, t):
        kc = st >> 2
        return f'ds_read_b128 {v(QB + 12 * (st & 1) + 4 * t, 4)}, {v(vXA + (st & 3))} offset:{12288 * (kc & 1) + 4096 * t}'

    def qproj(self):
        c = self.c
        flat = lambda gs: [x for g in gs for x in g]
        e = flat(self.x_chunk(0)) + flat(self.wq_unit(0)) + flat(self.wq_unit(1)) + flat(self.x_chunk(1)) + \
            flat(self.wq_unit(2)) + flat(self.wq_unit(3))
        if c.kvpre_step < 0:
            e += flat(self.kv_tile(0, ('T', 0))) + flat(self.kv_tile(1, ('T', 1)))
        e += self.late_setup
        e += [self.wvm([('X', 0), ('U', 0)]), 's_barrier']
        for t in range(3):
            e.append(self.b_read(0, t))
        for ct in range(4):
            e += self.a_reads(0, ct)
        self.emit(e, 'qpre')
        self.stamp()
        mf = []
        fl = []
        NS = 36
        for st in range(NS):
            g0 = 12 * st
            for ct in range(4):
                for t in range(3):
                    acc = v((ct * 3 + t) * 16, 16)
                    mf.append(I(f'{MF} {acc}, {v(QA + 4 * ct, 4)}, {v(QB + 12 * (st & 1) + 4 * t, 4)}, {acc if st else 0}'))
            if st + 1 < NS:
                fl.append(Filler(self.wvm(('U', st + 1)), rel=g0 + 1, dl=g0 + 1, stream='a'))
                for ct in range(4):
                    r = self.a_reads(st + 1, ct)
                    fl.append(Filler(r, rel=g0 + 3 * ct + 2, dl=g0 + 3 * ct + 4, stream='a', pos=g0 + 12 + 3 * ct - 0.5))
                if st & 3 == 3:
                    kc = st >> 2
                    fl.append(Filler([self.wvm(('X', kc + 1)), 's_barrier'], rel=g0 + 2, dl=g0 + 3, stream='b'))
                    if kc + 2 <= 8:
                        for k, g in enumerate(self.x_chunk(kc + 2)):
                            fl.append(Filler(g, rel=g0 + 4 + k, dl=g0 + 8, stream='dma'))
                for t in range(3):
                    fl.append(Filler(self.b_read(st + 1, t), rel=g0 + 3 + t, dl=g0 + 7 + t, stream='b', pos=g0 + 11.5))
            if st == c.kvpre_step:
                for k, g in enumerate(self.kv_tile(0, ('T', 0)) + self.kv_tile(1, ('T', 1))):
                    fl.append(Filler(g, rel=g0, dl=g0 + 9 + 12, stream='dma2'))
            if st + 4 < NS:
                for k, g in enumerate(self.wq_unit(st + 4)):
                    fl.append(Filler(g, rel=g0 + 9 + k, dl=g0 + 12 + k, stream='dma'))
        for i in range(192):
            fl.append(Filler(f'v_accvgpr_write_b32 {a(i)}, 0', rel=12 + 2 * i, dl=430, stream='z'))
        if c.kvpre_step >= 0:
            d = [f for f in fl if f.stream in ('dma', 'dma2')]
            rest = [f for f in fl if f.stream not in ('dma', 'dma2')]
            d.sort(key=lambda f: f.rel)
            for f in d: f.stream = 'dma'
            fl = rest + d
        seq = interleave(mf, fl, c.budget, c.verbose, 'qproj')
        self.emit(seq, 'qproj')
        e = flat(self.kv_tile(2, ('T', 2)))
        e += [f's_cmp_lg_u32 {s(sHH)}, 0', 's_cbranch_scc1 L_skip_t3']
        self.emit(e)
        vm_save = list(self.vm)
        self.emit(flat(self.kv_tile(3, ('T', 3))) + ['L_skip_t3:'])
        self.vm_k = list(self.vm)
        self.vm = vm_save
        self.stamp()
        e = []
        for t in (2, 0, 1):
            for ct in range(4):
                base = (ct * 3 + t) * 16
                for i in range(0, 16, 2):
                    e.append(f'v_pk_mul_f32 {v(base + i, 2)}, {v(base + i, 2)}, {s(sC, 2)}')
                for i in range(8):
                    ks = 2 * ct + (i >> 2)
                    if t == 2:
                        e.append(f'v_cvt_pk_bf16_f32 {v(Q2 + 4 * ks + (i & 3))}, {v(base + 2 * i)}, {v(base + 2 * i + 1)}')
                    else:
                        e.append(f'v_cvt_pk_bf16_f32 {v(base + i)}, {v(base + 2 * i)}, {v(base + 2 * i + 1)}')
                if t < 2:
                    for i in range(8):
                        ks = 2 * ct + (i >> 2)
                        e.append(f'v_accvgpr_write_b32 {a(192 + 32 * t + 4 * ks + (i & 3))}, {v(base + i)}')
        self.emit(e, 'qconv')

    def frag_reads(self, phi, kslot, vslot):
        r = FR + 4 * (phi & 3)
        if phi < 8:
            return [f'ds_read_b128 {v(r, 4)}, {v(vKA + (phi & 1))} offset:{kslot * TS + 64 * (phi >> 1)}']
        u, dt = (phi - 8) >> 2, phi & 3
        return [f'ds_read_b64_tr_b16 {v(r + 2 * e_, 2)}, {v(vVA + dt)} offset:{vslot * TS + (4 * u + 2 * e_) * 1088}' for e_ in range(2)]

    def qk_mfmas(self, buf, czero=False):
        mf = []
        for ks in range(8):
            for t in range(3):
                cc = Sreg(buf, t) if ks else ('0' if czero else v(NM + 16 * t, 16))
                mf.append(I(f'{MF} {Sreg(buf, t)}, {v(FR + 4 * (ks & 3), 4)}, {Qfrag(t, ks)}, {cc}'))
        return mf

    def pv_mfmas(self):
        mf = []
        for u in range(2):
            for dt in range(4):
                for t in range(3):
                    o = a(Oacc(dt, t), 16)
                    mf.append(I(f'{MF} {o}, {v(FR + 4 * dt, 4)}, {v(P_ + 8 * t + 4 * u, 4)}, {o}'))
        return mf

    def attn_pre(self):
        c = self.c
        e = [f's_cmp_lg_u32 {s(sHH)}, 0', 's_cbranch_scc1 L_w1', 's_waitcnt vmcnt(16)', 's_branch L_w2', 'L_w1:', 's_waitcnt vmcnt(8)', 'L_w2:', 's_barrier']
        self.out.extend(mk(x) for x in e)
        self.emit(self.frag_reads(0, 0, 0) + self.frag_reads(1, 0, 0))
        fl = []
        for phi in range(2, 8):
            fl.append(Filler(self.frag_reads(phi, 0, 0), rel=max(3 * phi - 10, -1), dl=3 * phi - 5, stream='fr', pos=3 * phi - 0.5))
        for phi in range(2):
            fl.append(Filler(self.frag_reads(phi, 1, 0), rel=3 * (phi + 8) - 7, dl=3 * (phi + 8) - 4, stream='fr', pos=30))
        for t in range(3):
            fl.append(Filler(f'v_mov_b32 {v(vL + t)}, 0', rel=0, dl=20))
        seq = interleave(self.qk_mfmas(0, True), fl, c.budget, c.verbose, 'qk0')
        self.emit(seq, 'qk0')
        e = []
        for t in range(3):
            m, m2 = v(vT), v(vT + 1)
            b = S_[0] + 16 * t
            e.append(f'v_max3_f32 {m}, {v(b)}, {v(b + 1)}, {v(b + 2)}')
            for i in range(3, 15, 2):
                e.append(f'v_max3_f32 {m}, {m}, {v(b + i)}, {v(b + i + 1)}')
            e += [f'v_max_f32 {m}, {m}, {v(b + 15)}', f'v_mov_b32 {m2}, {m}', f'v_permlane32_swap_b32 {m}, {m2}',
                  f'v_max_f32 {m}, {m}, {m2}']
            for i in range(16):
                e.append(f'v_sub_f32 {v(NM + 16 * t + i)}, 0, {m}')
                e.append(f'v_sub_f32 {v(b + i)}, {v(b + i)}, {m}')
        e += ['s_waitcnt vmcnt(8)', 's_barrier']
        self.emit(e, 'max0')
        self.vm = []

    def softmax_fillers(self, cur, dl0, dl1, rel0=0):
        fl = []
        for u in range(2):
            dl = (dl0, dl1)[u]
            for ii in range(4):
                for t in range(3):
                    i = 8 * u + 2 * ii
                    b = S_[cur] + 16 * t + i
                    fl.append(Filler(f'v_exp_f32 {v(b)}, {v(b)}', rel=rel0, dl=dl + t - 3, stream='e', pos=-3))
                    fl.append(Filler(f'v_exp_f32 {v(b + 1)}, {v(b + 1)}', rel=rel0, dl=dl + t - 3, stream='e', pos=-3))
                    fl.append(('cvt', u, ii, t))
        res = []
        pend = []
        for f in fl:
            if isinstance(f, tuple):
                pend.append(f)
                if len(pend) > 1:
                    res.append(self._cvt(cur, pend.pop(0), dl0, dl1, rel0))
            else:
                res.append(f)
        res.append(self._cvt(cur, pend.pop(0), dl0, dl1, rel0))
        return res

    def _cvt(self, cur, f, dl0, dl1, rel0):
        _, u, ii, t = f
        b = S_[cur] + 16 * t + 8 * u + 2 * ii
        return Filler(f'v_cvt_pk_bf16_f32 {v(P_ + 8 * t + 4 * u + ii)}, {v(b)}, {v(b + 1)}', rel=rel0, dl=(dl0, dl1)[u] + t - 2, stream='e', pos=-2.5)

    def add_fillers(self, cur, rels, dl):
        fl = []
        for u in range(2):
            for i in range(8):
                for t in range(3):
                    b = S_[cur] + 16 * t + 8 * u + i
                    fl.append(Filler(f'v_add_f32 {v(vL + t)}, {v(vL + t)}, {v(b)}', rel=rels[u], dl=dl, stream='s', pos=-2))
        return fl

    def attn_iter(self, j, dma='kv', xwait='s_waitcnt vmcnt(8)', nextk=True, site=None):
        c = self.c
        cur, new = j & 1, (j + 1) & 1
        mf = self.qk_mfmas(new) + self.pv_mfmas()
        fl = []
        for phi in range(2, 18):
            if phi >= 16:
                if not nextk: continue
                r = self.frag_reads(phi - 16, (j + 2) & 3, 0)
            else:
                r = self.frag_reads(phi, (j + 1) & 3, j & 3)
            fl.append(Filler(r, rel=max(3 * phi - 7, 0), dl=3 * phi - 5, stream='fr', pos=3 * phi - 0.5))
        fl += self.softmax_fillers(cur, 24, 36)
        fl += self.add_fillers(cur, (22, 34), 47)
        regs = [S_[new] + 16 * t + i for t in range(3) for i in range(16)]
        m = v(vMX)
        fl.append(Filler(f'v_max3_f32 {m}, {v(regs[0])}, {v(regs[1])}, {v(regs[2])}', rel=25, dl=45, stream='m', pos=50))
        k = 3
        while k < 48:
            r2 = regs[k + 1] if k + 1 < 48 else regs[k]
            fl.append(Filler(f'v_max3_f32 {m}, {m}, {v(regs[k])}, {v(r2)}', rel=25 + (k + 1) // 16, dl=45, stream='m', pos=50))
            k += 2
        fl.append(Filler(f'v_cmp_lt_f32 vcc, {s(sTHR)}, {m}', rel=40, dl=46, stream='m', pos=50))
        if dma == 'kv':
            for k, g in enumerate(self.kv_tile_iter(j)):
                fl.append(Filler(g, rel=max(5 * k - 4, 0), dl=min(3 + 5 * k, 44), stream='dma'))
        fl.append(Filler([xwait, 's_barrier'] if isinstance(xwait, str) else xwait + ['s_barrier'], rel=45, dl=45, stream='x'))
        seq = interleave(mf, fl, c.budget, c.verbose, f'iter{j}')
        seq.append(I(f's_cbranch_vccnz L_rare_{site}'))
        seq.append(I(f'L_back_{site}:'))
        self.sites.append((site, new))
        return seq

    def kv_tile_iter(self, j):
        return self.kv_groups(40 + (j & 3), 0, None)

    def attention(self):
        c = self.c
        self.sites = []
        e = []
        for k in range(4):
            e += [f's_sub_u32 {s(sT1)}, {k}, {s(sHH)}', f's_and_b32 {s(sT1)}, {s(sT1)}, 3', f's_mul_i32 {s(sT1)}, {s(sT1)}, {TS}',
                  f's_add_u32 {s(40 + k)}, {s(sRING)}, {s(sT1)}']
        e += [f's_mov_b32 {s(sLOOP)}, 7']
        self.emit(e)
        self.attn_pre()
        self.stamp_lgkeep()
        entry = [set(x) for x in self.lg]
        self.out.append(I('.p2align 3'))
        self.out.append(I('L_loop:'))
        start = len(self.out)
        for j in range(4):
            self.emit(self.attn_iter(j, site=j), f'iter{j}')
        assert [set(x) for x in self.lg] == entry, (self.lg, entry)
        self.emit([f's_sub_u32 {s(sLOOP)}, {s(sLOOP)}, 1', f's_cmp_lg_u32 {s(sLOOP)}, 0', 's_cbranch_scc1 L_loop'])
        rep = []
        pad_hazards(self.out[start:start + 40], history=self.out[-40:], report=rep)
        assert not rep, rep
        self.vm = []
        e = [f's_cmp_eq_u32 {s(sHH)}, 0', 's_cbranch_scc1 L_skip_v31']
        e += [x for g in self.kv_tile_iter(28) for x in g]
        e += ['L_skip_v31:']
        self.emit(e)
        xw = [f's_cmp_lg_u32 {s(sHH)}, 0', 's_cbranch_scc1 L_w3', 's_waitcnt vmcnt(0)', 'L_w3:', 's_waitcnt vmcnt(8)']
        self.emit(self.attn_iter(28, dma=None, xwait=xw, site=28), 'iter28')
        self.emit(self.attn_iter(29, dma=None, xwait='s_waitcnt vmcnt(8)', site=29), 'iter29')
        self.emit(self.attn_iter(30, dma=None, xwait='s_waitcnt vmcnt(0)', nextk=False, site=30), 'iter30')
        self.vm = []
        self.stamp()
        self.attn_last()

    def stamp_lgkeep(self):
        if not self.c.stamps:
            return
        keep = [set(x) for x in self.lg]
        self.stamp()
        self.lg = keep

    def oproj_setup(self):
        L = v(vLANE)
        t0, t1, t2 = v(OA_), v(OA_ + 1), v(OA_ + 2)
        e = [f'v_lshrrev_b32 {t0}, 2, {L}', f'v_mul_u32_u24 {t0}, 1152, {t0}', f'v_and_b32 {t1}, 3, {L}',
             f'v_lshl_add_u32 {v(vOV)}, {t1}, 4, {t0}']
        for n in range(1, 4):
            e.append(f'v_add_u32 {v(vOV + n)}, {17408 * n}, {v(vOV)}')
        e += [f'v_lshlrev_b32 {t0}, 1, {t1}', f'v_and_b32 {t0}, 2, {t0}', f'v_lshrrev_b32 {t1}, 1, {t1}', f'v_or_b32 {t0}, {t0}, {t1}',
              f'v_lshlrev_b32 {t0}, 3, {t0}',
              f'v_bfe_u32 {t1}, {L}, 4, 1', f'v_lshl_add_u32 {t0}, {t1}, 5, {t0}',
              f'v_bfe_u32 {t1}, {L}, 2, 2', f'v_lshl_add_u32 {t0}, {t1}, 6, {t0}',
              f'v_lshrrev_b32 {t1}, 5, {L}', f'v_lshl_add_u32 {t0}, {t1}, 8, {t0}',
              f'v_add_u32 {v(vOA)}, {s(sWOL)}, {t0}']
        e += [f'v_lshlrev_b32 {v(vPS)}, 4, {L}', f's_mul_i32 {s(sT1)}, {s(sHH)}, 49152', f's_add_u32 {s(sT2)}, {s(sT1)}, {OB}',
              f'v_add_u32 {v(vBL)}, {s(sT2)}, {v(vPS)}', f's_sub_u32 {s(sT2)}, {OB + 49152}, {s(sT1)}',
              f'v_add_u32 {v(vBH)}, {s(sT2)}, {v(vPS)}',
              f's_mul_i32 {s(sT1)}, {s(sW)}, 24576', f's_add_u32 {s(sT1)}, {s(sT1)}, {OB}', f'v_add_u32 {v(vOW)}, {s(sT1)}, {v(vPS)}']
        return e

    def osteps(self):
        st = [(0, kk) for kk in range(16)]
        for ti in range(1, 5):
            st += [(ti, kk) for kk in range(32)]
        return st

    def wo_group(self, gi):
        ti, kk = self.osteps()[4 * gi]
        g = []
        pre = []
        if kk == 0:
            if ti == 0:
                pre += [f's_lshr_b32 {s(sCT)}, {s(sW)}, 1', f's_add_u32 {s(sCT)}, {s(sCT)}, 16', f's_lshl_b32 {s(sCT)}, {s(sCT)}, 6']
            elif ti == 1:
                pre += [f's_lshl_b32 {s(sCT)}, {s(sW)}, 6']
            else:
                pre += [f's_add_u32 {s(sCT)}, {s(sCT)}, 256']
        if kk % 16 == 0:
            pre += [f's_add_u32 {s(sSO)}, {s(sK0 if kk == 0 else sK1)}, {s(sCT)}']
        else:
            pre += [f's_add_u32 {s(sSO)}, {s(sSO)}, {4 * 18432}']
        pre += [f's_add_u32 m0, {s(sWOL)}, {4096 * (gi & 3)}']
        pre = [pre[-1]] + pre[:-1]
        g.append(pre + [self.dma(vOV, SRD_WO, s(sSO), 0, self.c.w_nt, ('O', 4 * gi))])
        for n in range(1, 4):
            g.append([self.dma(vOV + n, SRD_WO, s(sSO), 1024 * n, self.c.w_nt, ('O', 4 * gi + n))])
        return g

    def attn_last(self):
        c = self.c
        cur = 1
        e = self.frag_reads(8, 0, 3) + self.frag_reads(9, 0, 3)
        e += self.oproj_setup()
        self.emit(e, 'last0')
        fl = []
        for phi in range(10, 16):
            fl.append(Filler(self.frag_reads(phi, 0, 3), rel=max(3 * (phi - 8) - 9, -1), dl=3 * (phi - 8) - 5, stream='fr', pos=3 * (phi - 8) - 0.5))
        fl += self.softmax_fillers(cur, 0, 12, rel0=-1)
        fl += self.add_fillers(cur, (0, 10), 20)
        k = 0
        for gi in range(4):
            for g in self.wo_group(gi):
                fl.append(Filler(g, rel=k, dl=k + 6, stream='dma')); k += 1
        fl.append(Filler('s_barrier', rel=21, dl=21, stream='x'))
        for t in range(3):
            r = v(vR + 2 * t)
            fl.append(Filler([f'v_mov_b32 {v(t)}, {v(vL + t)}', f'v_mov_b32 {v(4 + t)}, {v(vL + t)}'], rel=20, dl=22, stream='s'))
        for t in range(3):
            fl.append(Filler([f'v_permlane32_swap_b32 {v(t)}, {v(4 + t)}'], rel=20, dl=23, stream='s'))
        for t in range(3):
            fl.append(Filler([f'v_add_f32 {v(t)}, {v(t)}, {v(4 + t)}'], rel=20, dl=23, stream='s'))
        for t in range(3):
            fl.append(Filler([f'v_rcp_f32 {v(vR + 2 * t)}, {v(t)}'], rel=20, dl=23, stream='s'))
        seq = interleave(self.pv_mfmas(), fl, c.budget, c.verbose, 'last')
        self.emit(seq, 'last')
        self.stamp()
        e = []
        k = 0
        for dt in range(4):
            for t in range(3):
                tb = 8 + 16 * (k & 3); pb = 72 + 8 * (k & 1); k += 1
                for i in range(16):
                    e.append(f'v_accvgpr_read_b32 {v(tb + i)}, {a(Oacc(dt, t) + i)}')
                for i in range(0, 16, 2):
                    e.append(f'v_pk_mul_f32 {v(tb + i, 2)}, {v(tb + i, 2)}, {v(vR + 2 * t, 2)} op_sel_hi:[1,0]')
                for i in range(8):
                    e.append(f'v_cvt_pk_bf16_f32 {v(tb + i)}, {v(tb + 2 * i)}, {v(tb + 2 * i + 1)}')
                for u in range(2):
                    e.append(f'ds_write_b128 {v(vOW)}, {v(tb + 4 * u, 4)} offset:{1024 * (3 * (2 * dt + u) + t)}')
        e += [f'v_add_u32 {v(vPS2)}, 4096, {v(vPS)}'] if False else []
        e += ['s_waitcnt lgkmcnt(0)', 's_barrier']
        self.emit(e, 'onorm')
        self.stamp()

    def oproj(self):
        c = self.c
        steps = self.osteps()
        NS = len(steps)

        def aread(n):
            r = OA_ + 4 * (n & 3)
            return [f'ds_read_b64_tr_b16 {v(r + 2 * e_, 2)}, {v(vOA)} offset:{1024 * (n & 15) + 512 * e_}' for e_ in range(2)]

        def bread(kk, t):
            phi = 3 * kk + t
            return f'ds_read_b128 {Bfrag(phi)}, {v(vBL if kk < 16 else vBH)} offset:{1024 * (phi % 48)}'

        def needs_b(n):
            ti, kk = steps[n]
            return ti == 0 or (ti == 1 and kk >= 16)

        e = [self.wvm(('O', 1))] + [bread(0, t) for t in range(3)] + aread(0) + [bread(1, t) for t in range(3)] + aread(1)
        self.emit(e, 'opre')
        mf = []
        fl = []
        for n, (ti, kk) in enumerate(steps):
            g0 = 3 * n
            for t in range(3):
                acc = v(OACC[ti & 1] + 16 * t, 16)
                mf.append(I(f'{MF} {acc}, {v(OA_ + 4 * (n & 3), 4)}, {Bfrag(3 * kk + t)}, {acc if kk else 0}'))
            m = n + 2
            if m < NS:
                fl.append(Filler([self.wvm(('O', m))] + aread(m), rel=g0 - 1, dl=g0 + 1, stream='a', pos=3 * m - 0.5))
                if needs_b(m):
                    for t in range(3):
                        fl.append(Filler(bread(steps[m][1], t), rel=g0 - 1 + t, dl=g0 + 2, stream='b', pos=3 * m - 0.5))
            if n % 4 == 3:
                gi = n // 4 + 4
                if 4 * gi < NS:
                    for k, g in enumerate(self.wo_group(gi)):
                        fl.append(Filler(g, rel=g0 + 3 * k, dl=g0 + 3 * k + 2, stream='dma'))
            last = (n + 1 == NS) or steps[n + 1][0] != ti
            if last:
                if ti == 0:
                    pre = [f's_add_u32 {s(sPS)}, {s(sW)}, 16', f's_mul_i32 {s(sPS)}, {s(sPS)}, 6144']
                elif ti == 1:
                    pre = [f's_mul_i32 {s(sPS)}, {s(sW)}, 6144']
                else:
                    pre = [f's_add_u32 {s(sPS)}, {s(sPS)}, {4 * 6144 - 4096}']
                fl.append(Filler(pre, rel=g0, dl=g0 + 30, stream='st', pos=g0 + 2.5))
                for t in range(3):
                    b = OACC[ti & 1] + 16 * t
                    if t == 2:
                        fl.append(Filler(f's_add_u32 {s(sPS)}, {s(sPS)}, 4096', rel=g0, dl=g0 + 40, stream='st', pos=g0 + 2.5))
                    for u in range(2):
                        pk = OPK + 4 * u
                        for i in range(4):
                            fl.append(Filler(f'v_cvt_pk_bf16_f32 {v(pk + i)}, {v(b + 8 * u + 2 * i)}, {v(b + 8 * u + 2 * i + 1)}',
                                             rel=g0 + 6 + t, dl=g0 + 40, stream='st', pos=g0 + 2.5))
                        off = (2048 * t + 1024 * u) & 4095
                        o = f' offset:{off}' if off else ''
                        fl.append(Filler(I(f'buffer_store_dwordx4 {v(pk, 4)}, {v(vPS)}, {s(SRD_WS, 4)}, {s(sPS)} offen{o}{c.st_mod}',
                                           tag=('P', ti), cost=c.dma_cost), rel=g0 + 6 + t, dl=g0 + 40, stream='st', pos=g0 + 2.5))
        for f in fl:
            f.rel = min(f.rel, len(mf) - 1)
        seq = interleave(mf, fl, c.budget, c.verbose, 'oproj')
        self.emit(seq, 'oproj')

    def rare_paths(self):
        for site, new in self.sites:
            self.out += [I(f'L_rare_{site}:'), I(f's_call_b64 {s(sRET, 2)}, L_rescale_{new}'), I(f's_branch L_back_{site}')]
        for new in range(2):
            e = []
            self.out += [I(f'L_rescale_{new}:'), I('s_nop 15')]
            m, m2, f = v(vT), v(vT + 1), v(vT + 2)
            for t in range(3):
                b = S_[new] + 16 * t
                e.append(f'v_max3_f32 {m}, {v(b)}, {v(b + 1)}, {v(b + 2)}')
                for i in range(3, 15, 2):
                    e.append(f'v_max3_f32 {m}, {m}, {v(b + i)}, {v(b + i + 1)}')
                e += [f'v_max3_f32 {m}, {m}, {v(b + 15)}, 0', f'v_mov_b32 {m2}, {m}', f'v_permlane32_swap_b32 {m}, {m2}',
                      f'v_max_f32 {m}, {m}, {m2}', f'v_exp_f32 {f}, -{m}']
                for i in range(16):
                    e.append(f'v_sub_f32 {v(NM + 16 * t + i)}, {v(NM + 16 * t + i)}, {m}')
                    e.append(f'v_sub_f32 {v(b + i)}, {v(b + i)}, {m}')
                e.append(f'v_mul_f32 {v(vL + t)}, {v(vL + t)}, {f}')
                for dt in range(4):
                    for i in range(0, 16, 2):
                        o = Oacc(dt, t) + i
                        e += [f'v_accvgpr_read_b32 {v(vMX)}, {a(o)}', f'v_accvgpr_read_b32 {v(vMX + 1)}, {a(o + 1)}',
                              f'v_mul_f32 {v(vMX)}, {v(vMX)}, {f}', f'v_mul_f32 {v(vMX + 1)}, {v(vMX + 1)}, {f}',
                              f'v_accvgpr_write_b32 {a(o)}, {v(vMX)}', f'v_accvgpr_write_b32 {a(o + 1)}, {v(vMX + 1)}']
            e += ['s_nop 1', f's_setpc_b64 {s(sRET, 2)}']
            self.out += pad_hazards([mk(x) for x in e])

    def finish(self):
        c = self.c
        if c.stamps:
            self.emit(['s_waitcnt vmcnt(0)'])
            self.stamp()
            e = ['s_waitcnt lgkmcnt(0)', f's_memrealtime {s(100, 2)}', 's_waitcnt lgkmcnt(0)',
                 f's_add_u32 s12, s58, {STAMP_OFF}', 's_addc_u32 s13, s59, 0', 's_mov_b32 s14, 0x100000', 's_mov_b32 s15, 0x20000',
                 f's_lshl_b32 s4, s2, 2', f's_add_u32 s4, s4, {s(sW)}', 's_lshl_b32 s4, s4, 7', 'v_mov_b32 v40, s4']
            for i in range(26):
                e.append(f'v_mov_b32 v{i}, s{sSTAMP + i}')
            e += [f'v_cmp_eq_u32 vcc, 0, {v(vLANE)}'] if False else []
            e += ['s_mov_b64 exec, 1']
            for i in range(6):
                e.append(f'buffer_store_dwordx4 v[{4 * i}:{4 * i + 3}], v40, s[12:15], 0 offen offset:{16 * i}')
            e.append('buffer_store_dwordx2 v[24:25], v40, s[12:15], 0 offen offset:96')
            self.emit(e)
        self.out += [I('L_end:'), I('s_endpgm')]

    def kernel1(self):
        self.setup()
        self.qproj()
        self.attention()
        self.oproj()
        self.finish()
        self.rare_paths()
        return self.out


def kernel2(cfg):
    e = []
    e += ['s_cmp_ge_u32 s2, 864', 's_cbranch_scc1 L2_end',
          's_load_dwordx2 s[4:5], s[0:1], 96', 's_load_dwordx2 s[6:7], s[0:1], 80',
          'v_lshrrev_b32 v1, 6, v0', 'v_and_b32 v2, 63, v0', 's_nop 0', 'v_readfirstlane_b32 s3, v1',
          's_nop 1',
          's_lshl_b32 s8, s2, 2', 's_add_u32 s8, s8, s3',
          f's_mul_hi_u32 s9, s8, {(2**32 + 107) // 108}',
          's_mul_i32 s10, s9, 108', 's_sub_u32 s10, s8, s10',
          's_and_b32 s11, s10, 1', 's_lshr_b32 s10, s10, 1',
          f's_mul_hi_u32 s20, s10, {(2**32 + 2) // 3}',
          's_mul_i32 s21, s20, 3', 's_sub_u32 s21, s10, s21',
          's_sub_u32 s22, s20, 16', 's_lshl_b32 s22, s22, 1', 's_add_u32 s22, s22, 16',
          's_cmp_lt_u32 s20, 16', 's_cselect_b32 s22, s20, s22',
          's_mul_i32 s22, s22, 6144', 's_lshl_b32 s23, s21, 11', 's_add_u32 s22, s22, s23',
          's_lshl_b32 s23, s11, 10', 's_add_u32 s22, s22, s23',
          f's_mul_i32 s23, s9, {8 * PART}',
          'v_lshlrev_b32 v3, 4, v2',
          's_waitcnt lgkmcnt(0)',
          's_add_u32 s12, s4, s23', 's_addc_u32 s13, s5, 0', f's_mov_b32 s14, {8 * PART}', 's_mov_b32 s15, 0x20000',
          's_mov_b32 s16, s6', 's_mov_b32 s17, s7', 's_mov_b32 s18, 3538944', 's_mov_b32 s19, 0x20000']
    for j in range(8):
        e += [f'buffer_load_dwordx4 v[{8 + 4 * j}:{11 + 4 * j}], v3, s[12:15], s22 offen{cfg.ld_mod}']
        if j < 7:
            e += [f's_add_u32 s22, s22, {PART}']
    e += ['s_cmp_lt_u32 s20, 16', 's_cbranch_scc1 L2_no2', f's_sub_u32 s22, s22, {7 * PART - 6144}']
    for j in range(8):
        e += [f'buffer_load_dwordx4 v[{40 + 4 * j}:{43 + 4 * j}], v3, s[12:15], s22 offen{cfg.ld_mod}']
        if j < 7:
            e += [f's_add_u32 s22, s22, {PART}']
    e += ['L2_no2:']
    e += ['s_and_b32 s24, s9, 15', 's_lshr_b32 s25, s9, 4', 's_mul_i32 s24, s24, 96', 's_lshl_b32 s26, s21, 5', 's_add_u32 s24, s24, s26',
          'v_and_b32 v4, 31, v2', 'v_add_u32 v4, s24, v4', 'v_mul_u32_u24 v4, 2304, v4',
          's_mul_i32 s25, s25, 1152', 's_lshl_b32 s26, s20, 6', 's_add_u32 s25, s25, s26', 's_lshl_b32 s26, s11, 5', 's_add_u32 s25, s25, s26',
          'v_lshrrev_b32 v5, 5, v2', 'v_lshl_add_u32 v4, v5, 4, v4', 'v_add_u32 v4, s25, v4', 's_mov_b32 s27, 0xffff0000']

    def acc(base, first):
        r = []
        for d in range(4):
            if first:
                r += [f'v_lshlrev_b32 v{72 + 2 * d}, 16, v{base + d}', f'v_and_b32 v{73 + 2 * d}, s27, v{base + d}']
            else:
                r += [f'v_lshlrev_b32 v6, 16, v{base + d}', f'v_and_b32 v7, s27, v{base + d}',
                      f'v_add_f32 v{72 + 2 * d}, v{72 + 2 * d}, v6', f'v_add_f32 v{73 + 2 * d}, v{73 + 2 * d}, v7']
        return r
    e += ['s_waitcnt vmcnt(0)']
    for j in range(8):
        e += acc(8 + 4 * j, j == 0)
    e += ['s_cmp_lt_u32 s20, 16', 's_cbranch_scc1 L2_fin']
    for j in range(8):
        e += acc(40 + 4 * j, False)
    e += ['L2_fin:']
    for d in range(4):
        e += [f'v_cvt_pk_bf16_f32 v{8 + d}, v{72 + 2 * d}, v{73 + 2 * d}']
    e += ['buffer_store_dwordx4 v[8:11], v4, s[16:19], 0 offen', 'L2_end:', 's_endpgm']
    return pad_hazards([mk(x) for x in e])


def descriptor(name, vg, acc, sg=102):
    d = ['.section .rodata,"a"', '.p2align 6', f'.amdhsa_kernel {name}']
    for k, x in dict(next_free_vgpr=vg, next_free_sgpr=sg, accum_offset=acc, group_segment_fixed_size=0, kernarg_size=104,
                     user_sgpr_count=2, user_sgpr_kernarg_segment_ptr=1, system_sgpr_workgroup_id_x=1).items():
        d.append(f'  .amdhsa_{k} {x}')
    d.append('.end_amdhsa_kernel')
    return d


def build(cfg, path):
    g = Gen(cfg)
    k1 = g.kernel1()
    k2 = kernel2(cfg)
    L = [f'; @launch kernel={K1} grid=(256,1,1) block=(256,1,1) lds=163840',
         f'; @launch kernel={K2} grid=(864,1,1) block=(256,1,1) lds=0',
         '; Fused GQA block x2: Q projection + flash attention + O projection partials, then a reduce kernel.',
         '.amdgcn_target "amdgcn-amd-amdhsa--gfx950"', '.text']
    for name, body in ((K1, k1), (K2, k2)):
        L += [f'.globl {name}', '.p2align 8', f'.type {name},@function', f'{name}:']
        L += [('' if x.kind in ('label', 'dir') else '    ') + x.text for x in body]
    L += descriptor(K1, 512, 256)
    L += descriptor(K2, 80, 80, 32)
    open(path, 'w').write('\n'.join(L) + '\n')
    return g


if __name__ == '__main__':
    kw = {}
    path = sys.argv[1]
    for x in sys.argv[2:]:
        k, val = x.split('=', 1)
        try:
            val = eval(val)
        except Exception:
            pass
        kw[k] = val
    build(Cfg(**kw), path)
```

```python
import re

REG_RE = re.compile(r'^(-|\|)?(v|a|s)(\d+)\|?$')
RNG_RE = re.compile(r'^(-|\|)?(v|a|s)\[(\d+):(\d+)\]\|?$')
TRANS = ('v_exp_f32', 'v_log_f32', 'v_rcp_f32', 'v_rsq_f32', 'v_sqrt_f32', 'v_sin_f32', 'v_cos_f32')


def regs_of(tok):
    tok = tok.strip()
    m = REG_RE.match(tok)
    if m:
        return [(m.group(2), int(m.group(3)))]
    m = RNG_RE.match(tok)
    if m:
        return [(m.group(2), i) for i in range(int(m.group(3)), int(m.group(4)) + 1)]
    if tok in ('vcc', 'vcc_lo', 'vcc_hi'):
        return [('x', 'vcc')]
    if tok == 'm0':
        return [('x', 'm0')]
    if tok in ('exec', 'exec_lo', 'exec_hi'):
        return [('x', 'exec')]
    return []


class I:
    __slots__ = ('text', 'op', 'kind', 'rd', 'wr', 'srcc', 'ab', 'cost', 'tag', 'passes', 'key')

    def __init__(self, text, tag=None, cost=None, key=None):
        self.text = text
        self.tag = tag
        self.key = key
        self.srcc = []
        self.ab = []
        self.passes = 0
        t = text.split(';')[0].strip()
        if t.endswith(':'):
            self.op = 'label'; self.kind = 'label'; self.rd = []; self.wr = []; self.cost = 0
            return
        if t.startswith('.') or t == '':
            self.op = 'dir'; self.kind = 'dir'; self.rd = []; self.wr = []; self.cost = 0
            return
        parts = t.split(None, 1)
        op = parts[0]
        self.op = op
        rest = parts[1] if len(parts) > 1 else ''
        toks = [x.strip() for x in rest.split(',')] if rest else []
        mods = []
        if toks:
            lt = toks[-1].split()
            toks[-1] = lt[0] if lt else ''
            mods = lt[1:]
        R = [regs_of(x) for x in toks]
        flat = lambda l: [r for x in l for r in x]
        rd, wr = [], []
        kind = None
        c = 4
        if op.startswith('v_mfma'):
            kind = 'mfma'
            wr = R[0]; rd = flat(R[1:]); self.srcc = R[3]; self.ab = R[1] + R[2]
            self.passes = 8 if '32x32' in op else 4
            c = 8
        elif op.startswith('buffer_load') or op.startswith('global_load'):
            if 'lds' in mods or '_lds_' in op:
                kind = 'dma'; rd = flat(R) + [('x', 'm0')]
            else:
                kind = 'vld'; wr = R[0]; rd = flat(R[1:])
        elif op.startswith('buffer_store') or op.startswith('global_store'):
            kind = 'vst'; rd = flat(R)
        elif op.startswith('buffer_atomic') or op.startswith('global_atomic'):
            kind = 'vst'; rd = flat(R)
            if 'sc0' in mods:
                kind = 'vld'; wr = R[0]
        elif op.startswith('buffer_inv') or op.startswith('buffer_wbl2'):
            kind = 'vst'
        elif op.startswith('ds_read') or op.startswith('ds_bpermute') or op.startswith('ds_swizzle'):
            kind = 'dsr'; wr = R[0]; rd = flat(R[1:])
        elif op.startswith('ds_write') or op.startswith('ds_add'):
            kind = 'dsw'; rd = flat(R)
        elif op.startswith('s_load') or op.startswith('s_memtime') or op.startswith('s_memrealtime'):
            kind = 'smem'; wr = R[0]; rd = flat(R[1:])
        elif op == 's_waitcnt':
            kind = 'wait'
        elif op == 's_barrier':
            kind = 'barrier'
        elif op == 's_nop':
            kind = 'nop'; c = 4 * (int(toks[0], 0) + 1)
        elif op in ('s_endpgm', 's_sleep', 's_setprio'):
            kind = 'salu'
        elif op.startswith('s_cbranch') or op == 's_branch':
            kind = 'branch'
            if 'vcc' in op: rd = [('x', 'vcc')]
            if 'scc' in op: rd = [('x', 'scc')]
            if 'exec' in op: rd = [('x', 'exec')]
        elif op in ('s_call_b64', 's_swappc_b64'):
            kind = 'branch'; wr = R[0]
        elif op == 's_setpc_b64':
            kind = 'branch'; rd = R[0]
        elif op.startswith('s_cmp') or op.startswith('s_bitcmp'):
            kind = 'salu'; rd = flat(R); wr = [('x', 'scc')]
        elif op.startswith('s_'):
            kind = 'salu'; wr = list(R[0]); rd = flat(R[1:])
            if 'saveexec' in op:
                wr += [('x', 'exec')]; rd += [('x', 'exec')]
            if op.startswith('s_cselect') or op.startswith('s_addc') or op.startswith('s_subb'):
                rd += [('x', 'scc')]
            if not (op.startswith('s_mov') or op.startswith('s_cselect') or op.startswith('s_mul') or op.startswith('s_getreg')):
                wr += [('x', 'scc')]
            if op in ('s_addk_i32', 's_mulk_i32'):
                rd += R[0]
        elif op.startswith('v_'):
            kind = 'valu'
            base = op.replace('_e32', '').replace('_e64', '')
            if base in TRANS:
                kind = 'trans'; c = 8
            if op.startswith('v_permlane') and 'swap' in op:
                wr = flat(R); rd = flat(R)
            elif op.startswith('v_swap'):
                wr = flat(R); rd = flat(R)
            elif op.startswith('v_add_co') or op.startswith('v_sub_co'):
                wr = R[0] + R[1]; rd = flat(R[2:])
            elif op.startswith('v_addc_co'):
                wr = R[0] + R[1]; rd = flat(R[2:])
            else:
                wr = list(R[0]); rd = flat(R[1:])
                if op.startswith('v_fmac') or op.startswith('v_dot2c') or op.startswith('v_writelane'):
                    rd += R[0]
                if op.startswith('v_cmpx'):
                    wr += [('x', 'exec')]
        else:
            raise ValueError('unknown instruction: ' + text)
        self.kind = kind
        self.rd = rd
        self.wr = wr
        self.cost = c if cost is None else cost

    def __repr__(self):
        return self.text


def mk(x):
    return x if isinstance(x, I) else I(x)


def states(ins):
    if ins.kind in ('label', 'dir'):
        return 0
    if ins.kind == 'nop':
        return ins.cost // 4
    return 1


VALU_LIKE = ('valu', 'trans')
MEM_LIKE = ('vld', 'vst', 'dma', 'dsr', 'dsw')


def required(p, c):
    need = 0
    pw = set(p.wr); cr = set(c.rd); cw = set(c.wr)
    pv = {r for r in pw if r[0] in 'va'}
    ps = {r for r in pw if r[0] == 's' or r == ('x', 'vcc')}
    if p.kind in VALU_LIKE:
        if c.kind == 'mfma' and pv & cr:
            need = max(need, 2)
        if c.op.startswith('v_permlane') and pv & cr:
            need = max(need, 2)
        if ('dpp' in c.text or 'row_' in c.text) and pv & cr:
            need = max(need, 2)
        if (c.op.startswith('v_readlane') or c.op.startswith('v_readfirstlane')) and pv & cr:
            need = max(need, 1)
        if p.kind == 'trans' and c.kind == 'valu' and pv & cr:
            need = max(need, 1)
        if ps & cr:
            if c.kind in VALU_LIKE:
                need = max(need, 4 if c.op.startswith('v_readlane') or c.op.startswith('v_writelane') else 2)
            if c.kind in ('vld', 'vst', 'dma'):
                need = max(need, 5)
            if c.kind in ('salu', 'smem'):
                need = max(need, 2)
        if ('x', 'exec') in pw:
            if c.kind == 'mfma' or c.op.startswith('v_permlane') or c.op.startswith('v_read'):
                need = max(need, 4)
    if p.kind == 'salu' and ('x', 'm0') in pw and c.kind == 'dma':
        need = max(need, 1)
    if p.kind == 'mfma':
        big = 12 if p.passes == 8 else 8
        mid = 10 if p.passes == 8 else 6
        war = 7 if p.passes == 8 else 3
        if c.kind == 'mfma':
            if pw & set(c.ab):
                need = max(need, big)
            if pw & set(c.srcc):
                if not (list(p.wr) == list(c.srcc) and p.passes == c.passes):
                    need = max(need, mid)
            elif pw & cw:
                need = max(need, mid)
        elif c.kind in VALU_LIKE:
            if pw & (cr | cw):
                need = max(need, big)
            if set(p.srcc) & cw:
                need = max(need, war)
        elif c.kind in MEM_LIKE:
            if pw & (cr | cw):
                need = max(need, big)
            if set(p.srcc) & cw:
                need = max(need, war)
    if p.kind == 'vst' and ('x4' in p.op or 'x3' in p.op):
        data = set(regs_of(p.text.split(None, 1)[1].split(',')[0].strip())) if p.op.startswith('buffer') else set(p.rd)
        if data & cw:
            need = max(need, 2)
    return need


def pad_hazards(seq, history=None, report=None):
    out = list(history or [])
    h = len(out)
    for ins in seq:
        if ins.kind not in ('label', 'dir'):
            dist = 0
            short = 0
            culprit = None
            for k in range(len(out) - 1, -1, -1):
                p = out[k]
                need = required(p, ins) if p.kind not in ('label', 'dir', 'nop', 'wait', 'barrier') else 0
                if need - dist > short:
                    short = need - dist; culprit = p
                dist += states(p)
                if dist >= 13:
                    break
            if short > 0:
                if report is not None:
                    report.append((short, culprit.text, ins.text))
                out.append(I(f's_nop {short - 1}'))
        out.append(ins)
    return out[h:]


def auto_lgkm(seq, pending=None, maxout=15):
    q = [set(x) for x in (pending or [])]
    out = []
    for ins in seq:
        if ins.kind == 'wait':
            m = re.search(r'lgkmcnt\((\d+)\)', ins.text)
            if m:
                n = int(m.group(1))
                q = q[len(q) - n:] if n < len(q) else q
                if n == 0: q = []
            out.append(ins); continue
        if ins.kind == 'smem':
            assert not q, 'smem with LDS ops outstanding: ' + ins.text
            out.append(ins); continue
        touched = set(ins.rd) | set(ins.wr)
        idx = -1
        for k, d in enumerate(q):
            if d & touched:
                idx = k
        if idx >= 0:
            n = len(q) - 1 - idx
            assert n <= 15
            out.append(I(f's_waitcnt lgkmcnt({n})'))
            q = q[idx + 1:]
        if ins.kind in ('dsr', 'dsw'):
            if len(q) >= maxout:
                n = maxout - 1
                out.append(I(f's_waitcnt lgkmcnt({n})'))
                q = q[len(q) - n:]
            q.append(set(ins.wr))
        out.append(ins)
    return out, q


class Filler:
    def __init__(self, ins, rel=0, dl=10**9, stream=None, cost=None, pos=None):
        self.ins = [mk(x) for x in (ins if isinstance(ins, (list, tuple)) else [ins])]
        self.rel = rel; self.dl = dl; self.stream = stream
        self.cost = sum(x.cost for x in self.ins) if cost is None else cost
        self.pos = rel + 0.5 if pos is None else pos


def interleave(mfmas, fillers, budget=24, verbose=False, name='', rate=None, cap=None):
    items = [(g, 0, k, [m]) for k, (g, m) in enumerate(enumerate(mfmas))]
    items += [(f.pos, 1, k, f.ins) for k, f in enumerate(fillers)]
    items.sort(key=lambda x: (x[0], x[1], x[2]))
    ref = [i for it in items for i in it[3]]
    preds = {}
    lastw = {}
    readers = {}
    skip = (('x', 'scc'),)
    for ins in ref:
        p = set()
        for r in ins.rd:
            if r in lastw and r not in skip: p.add(lastw[r])
        for r in ins.wr:
            if r in skip: continue
            if r in lastw: p.add(lastw[r])
            p.update(readers.get(r, ()))
        p.discard(id(ins))
        preds[id(ins)] = p
        for r in ins.rd:
            readers.setdefault(r, []).append(id(ins))
        for r in ins.wr:
            lastw[r] = id(ins); readers[r] = []
    streams = {}
    for k, f in enumerate(fillers):
        streams.setdefault(f.stream if f.stream is not None else ('_', k), []).append(f)
    for s in streams.values():
        for k in range(len(s) - 2, -1, -1):
            s[k].dl = min(s[k].dl, s[k + 1].dl)
        for k in range(1, len(s)):
            s[k].rel = max(s[k].rel, s[k - 1].rel)
    heads = {k: 0 for k in streams}
    out = []
    done = set()
    n = len(mfmas)
    loads = []
    total = sum(f.cost for f in fillers)
    late = []
    cum = 0.0

    def ready(f):
        own = {id(x) for x in f.ins}
        return all(preds[id(x)] <= (done | own) for x in f.ins)

    for g in range(-1, n):
        if g >= 0:
            missing = preds[id(mfmas[g])] - done
            assert not missing, (name, g, mfmas[g].text, [x.text for x in ref if id(x) in missing])
            out.append(mfmas[g]); done.add(id(mfmas[g]))
        used = 0
        while True:
            cand = [(s[heads[k]].dl, k) for k, s in streams.items()
                    if heads[k] < len(s) and s[heads[k]].rel <= g and ready(s[heads[k]])]
            if not cand:
                break
            cand.sort(key=lambda x: x[0])
            placed = False
            for dl, k in cand:
                f = streams[k][heads[k]]
                b = 0 if g < 0 else budget
                if rate is not None:
                    ok = g >= 0 and cum + used + f.cost / 2.0 <= (g + 1) * rate and (cap is None or used == 0 or used + f.cost <= cap)
                else:
                    ok = used + f.cost <= b
                if dl <= g or g == n - 1 or ok:
                    if dl < g: late.append((g, dl, f.ins[0].text))
                    out.extend(f.ins); done.update(id(x) for x in f.ins)
                    used += f.cost; heads[k] += 1; placed = True
                    break
            if not placed:
                break
        loads.append(used)
        if g >= 0:
            cum += used
            if rate is not None:
                cum = max(cum, (g + 1) * rate - 2 * rate)
    for k, s in streams.items():
        assert heads[k] == len(s), f'unplaced fillers in stream {k}: {s[heads[k]].ins}'
    check_dataflow(ref, out)
    if verbose:
        print(f'[{name}] total filler cost {total}, gap loads {loads}')
        for x in late[:10]: print('   late:', x)
    return out


def check_dataflow(ref, sched):
    def producers(seq):
        last = {}
        res = {}
        for ins in seq:
            res[id(ins)] = {r: last.get(r) for r in ins.rd}
            for r in ins.wr:
                last[r] = id(ins)
        return res, last
    ids = {id(x) for x in ref}
    s2 = [x for x in sched if id(x) in ids]
    assert len(s2) == len(ref), (len(s2), len(ref))
    a, la = producers(ref)
    b, lb = producers(s2)
    byid = {id(x): x for x in ref}
    bad = 0
    for k in a:
        if a[k] != b[k]:
            for r in a[k]:
                if a[k][r] != b[k][r] and r != ('x', 'scc') and r != ('x', 'm0'):
                    print('DATAFLOW MISMATCH', byid[k].text, r, '| ref:', byid.get(a[k][r]), '| sched:', byid.get(b[k][r]))
                    bad += 1
    for r in la:
        if la[r] != lb[r] and r not in (('x', 'scc'), ('x', 'm0')):
            print('LAST WRITER MISMATCH', r, byid[la[r]].text, byid[lb[r]].text)
            bad += 1
    assert bad == 0


def v(n, c=1):
    return f'v{n}' if c == 1 else f'v[{n}:{n + c - 1}]'


def a(n, c=1):
    return f'a{n}' if c == 1 else f'a[{n}:{n + c - 1}]'


def s(n, c=1):
    return f's{n}' if c == 1 else f's[{n}:{n + c - 1}]'
```

```python
import sys, math, struct
from asmlib import *

NAME = 'concat_heads__gqa_block_cached__gqa_block_cached__near_ridge'
K1 = NAME + '_kernel'
K2 = 'reduce_partials_kernel'


def f2u(x):
    return struct.unpack('<I', struct.pack('<f', x))[0]


class Cfg:
    trace = False
    dma_cost = 20
    rot = True
    krot = True
    warm_wo = True
    warm_stride = 128
    kv_nt = ' nt'
    w_nt = ' nt'
    x_nt = ' nt'
    wo_nt = ''
    st_mod = ' sc1'
    fl_mod = ' sc1'
    d_mod = ' sc1'
    out_mod = ''
    thr = 8.0
    lthr = 2.0 ** 40
    verbose = False
    kv_from = 28
    kv_sp = 6
    kv_gap = 0
    put_q = 8
    win = 4
    win2 = None
    fake_kv = False
    mode = 'fast'
    force_fb = False
    q_rate = 8.0
    a_rate = 8.3
    o_rate = 8.0
    npart1 = 30
    oring = 10
    sig = (102, 102, 60)
    poll_at = (3, 30)
    dbg_at = (2, 30, 3, 18)
    spin_max = 20000
    no_stage = False
    red_off = False
    st_off = False
    warm_nt = ''
    warm_at = (6, 14, 22)
    init_u = 4
    fake_w = False

    def __init__(self, **kw):
        for k, x in kw.items():
            assert hasattr(self, k), k
            setattr(self, k, x)


TS = 8704
RING = 4 * TS
XB = 4 * RING
OB = 65536
GRP = 9 * 8 * 12288
FL_OFF = 32 * GRP
STAMP_OFF = 256 * 122880
assert FL_OFF + 32 * 32768 <= STAMP_OFF
OOB = 0x7ffffff0

sW = 3
sB, sJ, sBLK = 4, 5, 6
SRD_KV, SRD_WQ, SRD_X, SRD_WO, SRD_WS = 8, 12, 16, 20, 24
SRD_FL, SRD_DBG, SRD_OUT = 60, 64, 68
sRING = 28
sOFF, sOFF2 = 29, 30
sHH = 31
sLOOP = 32
sT0, sT1, sT2 = 33, 34, 35
sTB = 40
sH = 44
sWK, sXK = 48, 49
sOFF0 = 50
sSAFE = 51
sTR = 52
sSPIN = 53
sTM = 54
sXL, sSO = 72, 73
sC = 74
sTHR, sLTHR = 76, 77
sRET = 78
sWOL, sCG, sPS, sPSB, sKL, sFA, sDA, sT3, sGRP, sOO = 80, 81, 82, 83, 84, 85, 86, 87, 88, 89

S_ = [0, 48]
NM = 96
L_ = 120
P_ = 144
FR = 168
ONES = 184
vT = 188
vKA = 192
vVA = 193
vKV = 197
vLANE = 198
vKW = 199
Q45 = 200
vMX = 232
vDB = 242
vTRa, vTRb = 254, 255
QA = 200
vWA = 216
vXA = 218
vWV = 220
vXV = 224
vH = 226
QB = 192
OACC = [0, 24]
OA_ = 48
OPK = 64
RR = 76
vR = 80
LDB = 100
vBA = 100
vOW = 104
vOV, vOA, vOA2, vPS, vF, vOO, vL0, vOA3 = 112, 113, 114, 115, 116, 117, 118, 119
SEL = 120
OBV = 128

MF = 'v_mfma_f32_16x16x32_bf16'


def Sr(buf, c, t):
    return S_[buf] + (c * 6 + t) * 4


def Qfrag(t, ks):
    return a(192 + 16 * t + 4 * ks, 4) if t < 4 else v(Q45 + 16 * (t - 4) + 4 * ks, 4)


def Oacc(dt, t):
    return (dt * 6 + t) * 4


def Bfrag(phi):
    return a(4 * phi, 4) if phi < 64 else v(OBV + 4 * (phi - 64), 4)


flat = lambda gs: [x for g in gs for x in g]


class Gen:
    def __init__(self, cfg):
        self.c = cfg
        self.out = []
        self.lg = []
        self.vm = []
        self.spins = []
        self.sites = []
        self.ntr = 0
        self.trreg = (vTRa, vTRb)
        self.trnames = []
        self.plan_wo()

    def emit(self, seq, name=''):
        seq = [mk(x) for x in seq]
        seq, self.lg = auto_lgkm(seq, self.lg)
        seq = self.resolve_vm(seq)
        rep = []
        seq = pad_hazards(seq, history=self.out[-40:], report=rep)
        if rep and self.c.verbose:
            for r in rep:
                if 'm0' not in r[1]:
                    print(f'  nop[{name}]', r)
        self.out.extend(seq)

    def raw(self, seq):
        self.out.extend(mk(x) for x in seq)

    def resolve_vm(self, seq):
        out = []
        for ins in seq:
            if ins.kind == 'wait' and 'vmcnt(?)' in ins.text:
                tags = ins.tag if isinstance(ins.tag, list) else [ins.tag]
                idx = -1
                for k, t in enumerate(self.vm):
                    if t in tags:
                        idx = k
                if idx < 0:
                    continue
                n = min(len(self.vm) - 1 - idx, 63)
                self.vm = self.vm[len(self.vm) - n:] if n else []
                out.append(I(f's_waitcnt vmcnt({n})'))
                continue
            if ins.kind == 'wait':
                m = re.search(r'vmcnt\((\d+)\)', ins.text)
                if m:
                    n = int(m.group(1))
                    if n < len(self.vm):
                        self.vm = self.vm[len(self.vm) - n:] if n else []
            if ins.kind in ('dma', 'vld', 'vst'):
                self.vm.append(ins.tag)
            out.append(ins)
        return out

    def wvm(self, tags):
        return I('s_waitcnt vmcnt(?)', tag=tags)

    def dma(self, vreg, srd, soff, imm, mod, tag):
        o = f' offset:{imm}' if imm else ''
        return I(f'buffer_load_dwordx4 {v(vreg)}, {s(srd, 4)}, {soff} offen{o}{mod} lds', tag=tag, cost=self.c.dma_cost)

    def tr_code(self, dyn=False):
        k = self.ntr
        self.ntr += 1
        ra, rb = self.trreg
        e = ['s_waitcnt lgkmcnt(0)', f's_memrealtime {s(sTM, 2)}', f's_memtime {s(sTM + 2, 2)}', 's_waitcnt lgkmcnt(0)']
        if dyn:
            e += [f's_mov_b32 m0, {s(sTR)}', 's_nop 3', f'v_writelane_b32 {v(ra)}, {s(sTM)}, m0',
                  f'v_writelane_b32 {v(rb)}, {s(sTM + 2)}, m0', f's_add_u32 {s(sTR)}, {s(sTR)}, 1']
        else:
            e += [f'v_writelane_b32 {v(ra)}, {s(sTM)}, {k}', f'v_writelane_b32 {v(rb)}, {s(sTM + 2)}, {k}', f's_mov_b32 {s(sTR)}, {k + 1}']
        return e

    def tr(self, dyn=False, name=''):
        if not self.c.trace:
            return
        self.trnames.append(name)
        sv = [set(x) for x in self.lg]
        self.emit(self.tr_code(dyn))
        self.lg = sv

    def tr_filler(self, fl, g, name=''):
        if self.c.trace:
            self.trnames.append(name)
            fl.append(Filler(self.tr_code(), rel=g, dl=g, stream='tr', cost=0))

    def kv_groups(self, sb, base, tag, win=None):
        m0 = lambda n: f's_add_u32 m0, {s(sb)}, {base + 1088 * n - 1024 * (n & 3)}'
        groups = [[m0(0)]]
        for n in range(8):
            g = [f's_waitcnt vmcnt({win if (n & 1) or self.c.win2 is None else self.c.win2})'] if win is not None else []
            g.append(self.dma(vKV, SRD_KV, s(sOFF if n < 4 else sOFF2), 1024 * (n & 3), self.c.kv_nt, tag))
            if n < 7:
                g.append(m0(n + 1))
            groups.append(g)
        groups.append([f's_add_u32 {s(sOFF)}, {s(sOFF)}, 8192', f's_and_b32 {s(sOFF)}, {s(sOFF)}, 0x3ffff',
                       f's_add_u32 {s(sOFF2)}, {s(sOFF)}, 4096'])
        return groups

    def kv_tile(self, slot, tag):
        return self.kv_groups(sRING, slot * TS, tag)

    def kv_stage(self):
        groups = []
        for tl in range(2):
            for n in range(8):
                g = []
                so = sOFF if n < 4 else sOFF2
                if tl == 3 and n == 0:
                    g += [f's_lshl_b32 {s(SRD_KV + 2)}, {s(sKL)}, 18']
                o = f' offset:{1024 * (n & 3)}' if n & 3 else ''
                g.append(I(f'buffer_load_dwordx4 {a(32 * tl + 4 * n, 4)}, {v(vKV)}, {s(SRD_KV, 4)}, {s(so)} offen{o}{self.c.kv_nt}',
                           tag=('T', tl, n), cost=self.c.dma_cost))
                if n == 7:
                    if tl == 3:
                        g += [f's_mov_b32 {s(SRD_KV + 2)}, 262144', f's_lshl_b32 {s(sT3)}, {s(sKL)}, 13', f's_add_u32 {s(sOFF)}, {s(sOFF)}, {s(sT3)}']
                    else:
                        g += [f's_add_u32 {s(sOFF)}, {s(sOFF)}, 8192']
                    g += [f's_and_b32 {s(sOFF)}, {s(sOFF)}, 0x3ffff', f's_add_u32 {s(sOFF2)}, {s(sOFF)}, 4096']
                if self.c.no_stage:
                    g = [x for x in g if not isinstance(x, I)] or ['s_nop 0']
                groups.append(g)
        return groups

    def kv_put(self, tl, n):
        return [self.wvm(('T', tl, n)), I(f'ds_write_b128 {v(vKW)}, {a(32 * tl + 4 * n, 4)} offset:{tl * TS + 1088 * n}', cost=12)]

    def flag_clear(self):
        L = v(vLANE)
        t0, t1 = v(vH), v(vH + 1)
        return [f'v_lshlrev_b32 {t0}, 7, {L}', f'v_mov_b32 {t1}, {OOB}', f's_cmp_eq_u32 {s(sW)}, 0', f's_cselect_b32 {s(sT3)}, 32, 0',
                f'v_cmp_gt_u32 vcc, {s(sT3)}, {L}', f's_lshl_b32 {s(sT3)}, {s(sJ)}, 12',
                's_nop 0', f'v_cndmask_b32 {t0}, {t1}, {t0}, vcc', f'v_mov_b32 {t1}, 0',
                I(f'buffer_store_dword {t1}, {t0}, {s(SRD_FL, 4)}, {s(sT3)} offen{self.c.fl_mod}', tag='CLR')]

    def clear_done(self):
        L = v(vLANE)
        t0, t1 = v(vDB), v(vDB + 1)
        return [f'v_mov_b32 {t1}, {OOB}', f's_cmp_eq_u32 {s(sW)}, 0', f's_cselect_b32 {s(sT3)}, 1, 0', f'v_cmp_gt_u32 vcc, {s(sT3)}, {L}',
                f's_lshl_b32 {s(sT3)}, {s(sGRP)}, 3', f's_add_u32 {s(sT3)}, {s(sT3)}, {s(sJ)}',
                f'v_cndmask_b32 {t0}, {t1}, {L}, vcc', f'v_mov_b32 {t1}, 1',
                I(f'buffer_store_byte {t1}, {t0}, {s(SRD_DBG, 4)}, {s(sT3)} offen sc1', tag='SIG')]

    def setup(self):
        c = self.c
        e = ['s_cmp_ge_u32 s2, 256', 's_cbranch_scc1 L_end']
        if c.trace:
            e += [f's_memrealtime {s(98, 2)}', f's_memtime {s(100, 2)}']
        e += ['s_load_dwordx8 s[36:43], s[0:1], 0', 's_load_dwordx2 s[44:45], s[0:1], 32',
              's_load_dwordx8 s[48:55], s[0:1], 40', 's_load_dwordx2 s[56:57], s[0:1], 72',
              's_load_dwordx2 s[58:59], s[0:1], 96', 's_load_dwordx4 s[92:95], s[0:1], 80']
        e += ['v_lshrrev_b32 v1, 6, v0', f'v_and_b32 {v(vLANE)}, 63, v0', f'v_readfirstlane_b32 {s(sW)}, v1']
        e += ['s_lshr_b32 s7, s2, 3', f's_and_b32 {s(sB)}, s7, 15', f's_lshr_b32 {s(sJ)}, s7, 4', 's_and_b32 s6, s2, 3',
              's_lshl_b32 s6, s6, 1', f's_add_u32 {s(sJ)}, {s(sJ)}, s6', f's_bfe_u32 {s(sBLK)}, s2, 0x10002']
        e += [f's_and_b32 {s(sHH)}, {s(sW)}, 1', f's_lshr_b32 {s(sT0)}, {s(sW)}, 1']
        e += [f's_lshl_b32 {s(sT1)}, {s(sHH)}, 1', f's_add_u32 {s(sT1)}, {s(sT1)}, {s(sT0)}',
              f's_mul_i32 {s(sRING)}, {s(sT1)}, {RING}',
              f's_lshl_b32 {s(sWOL)}, {s(sW)}, 10', f's_add_u32 {s(sXL)}, {s(sWOL)}, {XB}']
        if c.rot:
            e += [f's_and_b32 {s(sOFF)}, s7, 31', f's_lshl_b32 {s(sOFF)}, {s(sOFF)}, 13']
        else:
            e += [f's_mov_b32 {s(sOFF)}, 0']
        e += [f's_add_u32 {s(sOFF2)}, {s(sOFF)}, 4096']
        L = v(vLANE)
        e += [f'v_lshrrev_b32 v1, 4, {L}',
              f'v_and_b32 v2, 15, {L}',
              f'v_lshrrev_b32 v5, 2, v2',
              f'v_and_b32 v6, 3, {L}',
              f'v_lshrrev_b32 v8, 3, {L}', f'v_and_b32 v9, 7, {L}',
              'v_lshrrev_b32 v10, 1, v8']
        e += ['v_xor_b32 v11, v9, v10', f's_lshl_b32 {s(sT1)}, {s(sHH)}, 2', f'v_xor_b32 v11, {s(sT1)}, v11', 'v_lshlrev_b32 v11, 4, v11',
              f's_lshl_b32 {s(sT1)}, {s(sW)}, 3', f'v_add_u32 v12, {s(sT1)}, v8', 'v_mul_u32_u24 v12, 1152, v12',
              f'v_add_u32 {v(vXV)}, v12, v11']
        e += ['v_and_b32 v11, 1, v10', 'v_lshlrev_b32 v11, 2, v11', 'v_xor_b32 v11, v9, v11', 'v_lshlrev_b32 v11, 4, v11',
              'v_lshl_add_u32 v11, v8, 13, v11',
              f's_lshl_b32 {s(sT1)}, {s(sJ)}, 2', f's_add_u32 {s(sT1)}, {s(sT1)}, {s(sW)}', f's_lshl_b32 {s(sT1)}, {s(sT1)}, 8',
              f'v_add_u32 {v(vWV)}, {s(sT1)}, v11']
        for n in range(1, 4):
            e += [f'v_add_u32 {v(vWV + n)}, {64512 * n}, {v(vWV)}']
        e += ['s_waitcnt lgkmcnt(0)']
        e += [f's_cmp_eq_u32 {s(sBLK)}, 0']
        for d in range(10):
            e += [f's_cselect_b32 s{36 + d}, s{36 + d}, s{48 + d}']
        e += [f's_mul_i32 {s(sT1)}, {s(sB)}, 110592', f's_add_u32 {s(SRD_X)}, s36, {s(sT1)}', f's_addc_u32 {s(SRD_X + 1)}, s37, 0',
              f's_mov_b32 {s(SRD_X + 2)}, 110592', f's_mov_b32 {s(SRD_X + 3)}, 0x20000']
        e += [f's_mov_b32 {s(SRD_WQ)}, s42', f's_mov_b32 {s(SRD_WQ + 1)}, s43', f's_mov_b32 {s(SRD_WQ + 2)}, 4718592',
              f's_mov_b32 {s(SRD_WQ + 3)}, 0x20000']
        if c.krot:
            e += [f's_sub_u32 {s(sT1)}, {s(sB)}, 9', f's_cmp_lt_u32 {s(sB)}, 9', f's_cselect_b32 {s(sT1)}, {s(sB)}, {s(sT1)}',
                  f's_lshl_b32 {s(sXK)}, {s(sT1)}, 7', f's_lshl_b32 {s(sWK)}, {s(sT1)}, 19']
        else:
            e += [f's_mov_b32 {s(sXK)}, 0', f's_mov_b32 {s(sWK)}, 0']
        self.emit(e, 'setup')
        e = self.late_setup = []
        e += [f's_cmp_eq_u32 {s(sHH)}, 0', 's_cselect_b32 s38, s38, s40', 's_cselect_b32 s39, s39, s41',
              f's_lshl_b32 {s(sT1)}, {s(sB)}, 4', f's_lshl_b32 {s(sT2)}, {s(sJ)}, 1', f's_add_u32 {s(sT1)}, {s(sT1)}, {s(sT2)}',
              f's_add_u32 {s(sT1)}, {s(sT1)}, {s(sT0)}',
              f's_lshl_b32 {s(sT1)}, {s(sT1)}, 18' if not c.fake_kv else f's_lshl_b32 {s(sT1)}, {s(sT0)}, 18',
              f's_add_u32 {s(SRD_KV)}, s38, {s(sT1)}', f's_addc_u32 {s(SRD_KV + 1)}, s39, 0',
              f's_mov_b32 {s(SRD_KV + 2)}, 262144', f's_mov_b32 {s(SRD_KV + 3)}, 0x20000']
        e += ['v_and_b32 v11, 1, v1', 'v_lshlrev_b32 v11, 1, v11', 'v_lshrrev_b32 v12, 1, v1', 'v_lshl_or_b32 v11, v12, 3, v11',
              f's_cmp_eq_u32 {s(sHH)}, 0', 's_cselect_b64 vcc, -1, 0', 's_nop 1', 'v_cndmask_b32 v11, v11, v1, vcc',
              'v_xor_b32 v11, v2, v11', 'v_lshlrev_b32 v11, 4, v11', f'v_lshl_add_u32 {v(vKV)}, v1, 8, v11']
        e += [f's_mul_i32 {s(sT1)}, {s(sJ)}, 589824', f's_add_u32 {s(SRD_WO)}, s44, {s(sT1)}', f's_addc_u32 {s(SRD_WO + 1)}, s45, 0',
              f's_mov_b32 {s(SRD_WO + 2)}, 589824', f's_mov_b32 {s(SRD_WO + 3)}, 0x20000']
        e += [f's_lshl_b32 {s(sGRP)}, {s(sBLK)}, 4', f's_add_u32 {s(sGRP)}, {s(sGRP)}, {s(sB)}', f's_lshl_b32 {s(sT1)}, {s(sGRP)}, 15',
              f's_add_u32 {s(sT1)}, {s(sT1)}, {FL_OFF}', f's_add_u32 {s(SRD_FL)}, s58, {s(sT1)}', f's_addc_u32 {s(SRD_FL + 1)}, s59, 0',
              f's_mov_b32 {s(SRD_FL + 2)}, 32768', f's_mov_b32 {s(SRD_FL + 3)}, 0x20000',
              f's_mov_b32 {s(SRD_DBG)}, s94', f's_mov_b32 {s(SRD_DBG + 1)}, s95', f's_mov_b32 {s(SRD_DBG + 2)}, 256', f's_mov_b32 {s(SRD_DBG + 3)}, 0x20000',
              f's_mov_b32 {s(SRD_OUT)}, s92', f's_mov_b32 {s(SRD_OUT + 1)}, s93', f's_mov_b32 {s(SRD_OUT + 2)}, 3538944', f's_mov_b32 {s(SRD_OUT + 3)}, 0x20000',
              f's_lshl_b32 {s(sPSB)}, {s(sJ)}, 2', f's_add_u32 {s(sPSB)}, {s(sPSB)}, {s(sW)}',
              f's_xor_b32 {s(sKL)}, {s(sHH)}, 1', f'v_lshlrev_b32 {v(vKW)}, 4, {L}', f'v_add_u32 {v(vKW)}, {s(sRING)}, {v(vKW)}']
        e += [f's_mul_i32 {s(sT1)}, {s(sGRP)}, {GRP}',
              f's_add_u32 {s(SRD_WS)}, s58, {s(sT1)}', f's_addc_u32 {s(SRD_WS + 1)}, s59, 0',
              f's_mov_b32 {s(SRD_WS + 2)}, {GRP}', f's_mov_b32 {s(SRD_WS + 3)}, 0x20000']
        cs = f2u(math.log2(math.e) / math.sqrt(128.0))
        e += [f's_mov_b32 {s(sC)}, {cs:#x}', f's_mov_b32 {s(sC + 1)}, {cs:#x}', f's_mov_b32 {s(sTHR)}, {f2u(c.thr):#x}',
              f's_mov_b32 {s(sLTHR)}, {f2u(c.lthr if not c.force_fb else 1.0):#x}', f's_mov_b32 {s(sSAFE)}, 0',
              f's_mov_b32 {s(sOFF0)}, {s(sOFF)}']
        e += ['v_lshlrev_b32 v11, 10, v1', 'v_lshl_add_u32 v11, v5, 7, v11', 'v_lshl_add_u32 v11, v6, 4, v11',
              f'v_add_u32 v11, {s(sRING)}, v11', 'v_lshrrev_b32 v12, 1, v5', f'v_lshl_add_u32 {v(vWA)}, v12, 6, v11',
              'v_xor_b32 v12, 1, v12', f'v_lshl_add_u32 {v(vWA + 1)}, v12, 6, v11']
        e += ['v_lshrrev_b32 v11, 3, v2', 'v_and_b32 v12, 7, v2', 'v_lshlrev_b32 v13, 10, v11', 'v_lshl_add_u32 v13, v12, 7, v13',
              f'v_add_u32 v13, {XB}, v13', 'v_lshrrev_b32 v12, 1, v12', 'v_lshlrev_b32 v11, 2, v11', 'v_xor_b32 v12, v12, v11',
              'v_xor_b32 v12, v12, v1', f'v_lshl_add_u32 {v(vXA)}, v12, 4, v13', 'v_xor_b32 v12, 4, v12',
              f'v_lshl_add_u32 {v(vXA + 1)}, v12, 4, v13']
        e += [f's_mul_i32 {s(sT1)}, {s(sT0)}, {RING}', 'v_mul_u32_u24 v11, 1088, v5', 'v_lshl_add_u32 v11, v6, 8, v11',
              'v_xor_b32 v12, v1, v6', 'v_lshl_add_u32 v11, v12, 4, v11', f'v_add_u32 {v(vKA)}, {s(sT1)}, v11']
        e += [f's_add_u32 {s(sT1)}, {s(sT1)}, {2 * RING}',
              'v_mul_u32_u24 v11, 1088, v1', 'v_lshl_add_u32 v11, v5, 8, v11', 'v_lshl_add_u32 v11, v6, 3, v11',
              f'v_add_u32 v11, {s(sT1)}, v11',
              'v_and_b32 v12, 1, v5', 'v_lshrrev_b32 v13, 1, v5', 'v_lshl_or_b32 v12, v13, 2, v12']
        for k, d in enumerate((0, 1, 4, 5)):
            e += [f'v_xor_b32 v13, {d}, v12', f'v_lshl_add_u32 {v(vVA + k)}, v13, 5, v11']
        for k in range(4):
            e += [f's_sub_u32 {s(sT1)}, {k}, {s(sHH)}', f's_and_b32 {s(sT1)}, {s(sT1)}, 3', f's_mul_i32 {s(sT1)}, {s(sT1)}, {TS}',
                  f's_add_u32 {s(sTB + k)}, {s(sRING)}, {s(sT1)}']
        for k in range(4):
            e += [f's_add_u32 {s(sT1)}, {s(sB)}, {k}' if c.krot else f's_mov_b32 {s(sT1)}, {k}', f's_and_b32 {s(sT1)}, {s(sT1)}, 3',
                  f's_mul_i32 {s(sH + k)}, {s(sT1)}, 147456']

    def wq_unit(self, u):
        hf = u & 1
        pre = [f's_add_u32 m0, {s(sRING)}, {4096 * ((u + 4) & 7)}', f's_add_u32 {s(sSO)}, {s(sWK)}, {128 * hf}']
        g = [pre + [self.dma(vWV, SRD_WQ, s(sSO), 0, self.c.w_nt, ('U', u))]]
        for n in range(1, 4):
            g.append([self.dma(vWV + n, SRD_WQ, s(sSO), 1024 * n, self.c.w_nt, ('U', u))])
        if hf and not self.c.fake_w:
            g.append([f's_add_u32 {s(sWK)}, {s(sWK)}, 262144', f's_cmp_eq_u32 {s(sWK)}, 4718592', f's_cselect_b32 {s(sWK)}, 0, {s(sWK)}'])
        return g

    def x_chunk(self, kc):
        g = []
        for m in range(3):
            g.append([f's_add_u32 m0, {s(sXL)}, {12288 * (kc & 1) + 4096 * m}', f's_add_u32 {s(sSO)}, {s(sXK)}, {36864 * m}',
                      self.dma(vXV, SRD_X, s(sSO), 0, self.c.x_nt, ('X', kc))])
        if not self.c.fake_w:
          g.append([f's_add_u32 {s(sXK)}, {s(sXK)}, 128', f's_cmp_eq_u32 {s(sXK)}, 1152', f's_cselect_b32 {s(sXK)}, 0, {s(sXK)}'])
        return g

    def a_reads(self, u, k):
        r = QA + 4 * k
        return [f'ds_read_b64_tr_b16 {v(r + 2 * e_, 2)}, {v(vWA + (k >> 1))} offset:{4096 * ((u + 4) & 7) + 512 * e_ + 8 * (k & 1)}' for e_ in range(2)]

    def b_read(self, st, t):
        kc = st >> 1
        return f'ds_read_b128 {a(QB + 24 * (st & 1) + 4 * t, 4)}, {v(vXA + (st & 1))} offset:{12288 * (kc & 1) + 2048 * t}'

    def qproj(self):
        c = self.c
        e = flat(self.x_chunk(0)) + flat(self.wq_unit(0)) + flat(self.wq_unit(1)) + flat(self.x_chunk(1))
        for u in range(2, 4):
            e += flat(self.wq_unit(u))
        e += self.late_setup
        for u in range(4, c.init_u):
            e += flat(self.wq_unit(u))
        if c.trace:
            e += [f'v_writelane_b32 {v(vTRa)}, s98, 0', f'v_writelane_b32 {v(vTRb)}, s100, 0']
            self.ntr = 1
            self.trnames.append('start')
        e += [self.wvm([('X', 0), ('U', 0)]), 's_barrier']
        for t in range(6):
            e.append(self.b_read(0, t))
        for k in range(3):
            e += self.a_reads(0, k)
        self.emit(e, 'qpre')
        self.tr(name='first')
        mf, fl, dm = [], [], []
        NU = 36
        kvg = self.kv_stage()
        for q in range(max(c.init_u, 4), NU):
            x = max(24 * (q - 8) + 18, 12 * (q - c.init_u) + 1)
            for k, g in enumerate(self.wq_unit(q)):
                f = Filler(g, rel=x + 2 * k, dl=x + 3 + 2 * k, pos=x + 0.5)
                dm.append(f)
        dm.append(Filler(self.flag_clear(), rel=24 * 2 + 6, dl=24 * 2 + 17))
        for u in range(NU):
            st, hf = u >> 1, u & 1
            g0 = 24 * u
            for k in range(4):
                ct = 4 * hf + k
                for t in range(6):
                    acc = v((ct * 6 + t) * 4, 4)
                    mf.append(I(f'{MF} {acc}, {v(QA + 4 * k, 4)}, {a(QB + 24 * (st & 1) + 4 * t, 4)}, {acc if st else 0}'))
            fl.append(Filler(self.a_reads(u, 3), rel=g0, dl=g0 + 4, stream='a', pos=g0 + 17.5))
            if u + 1 < NU:
                fl.append(Filler(self.wvm(('U', u + 1)), rel=g0 + 5, dl=g0 + 8, stream='a'))
                for k in range(3):
                    fl.append(Filler(self.a_reads(u + 1, k), rel=g0 + 6 * k + 6, dl=g0 + 6 * k + 10, stream='a', pos=g0 + 24 + 6 * k - 0.5))
            if hf == 0 and st + 1 < 18:
                if st & 1:
                    kc = st >> 1
                    fl.append(Filler([self.wvm(('X', kc + 1)), 's_barrier'], rel=g0 + 6, dl=g0 + 8, stream='b'))
                    if kc + 2 <= 8:
                        for k, g in enumerate(self.x_chunk(kc + 2)):
                            dm.append(Filler(g, rel=g0 + 9 + 3 * k, dl=g0 + 17, pos=g0 + 9.5))
                for t in range(6):
                    fl.append(Filler(self.b_read(st + 1, t), rel=g0 + 9 + 5 * t, dl=g0 + 30 + t, stream='b', pos=g0 + 47.5))
            if u % 4 == 3 and u < 35:
                self.tr_filler(fl, g0 + 23, 'q')
            if c.warm_wo and u in c.warm_at:
                dm.append(Filler(self.warm_wo(c.warm_at.index(u)), rel=g0 + 8, dl=g0 + 17))
        for i, g in enumerate(kvg):
            x = int(24 * c.kv_from + 4 + c.kv_sp * i + (c.kv_gap * (i // 8)))
            fl.append(Filler(g, rel=x, dl=x + 1, stream='kv'))
        dm.sort(key=lambda f: f.pos)
        for f in dm:
            f.stream = 'dma'
        fl += dm
        puts = [(tl, n) for tl in range(2) for n in range(8)]
        for k in range(c.put_q):
            tl, n = puts.pop(0)
            sl = (tl * TS + 1088 * n + 1023) // 4096
            x = min(max(24 * (28 + min(sl, 7)) + 18, 24 * NU - 4 * (c.put_q - k)), 24 * NU - 1)
            fl.append(Filler(self.kv_put(tl, n), rel=x, dl=x + 2, stream='put'))
        seq = interleave(mf, fl, 8, c.verbose, 'qproj', rate=c.q_rate, cap=24)
        self.emit(seq, 'qproj')
        self.tr(name='q')
        e = []
        for t in (4, 5, 0, 1, 2, 3):
            for ct in range(8):
                b = (ct * 6 + t) * 4
                e += [f'v_pk_mul_f32 {v(b, 2)}, {v(b, 2)}, {s(sC, 2)}', f'v_pk_mul_f32 {v(b + 2, 2)}, {v(b + 2, 2)}, {s(sC, 2)}']
            for ct in range(8):
                b = (ct * 6 + t) * 4
                ks, uu = ct >> 1, ct & 1
                for h2 in range(2):
                    d = Q45 + 16 * (t - 4) + 4 * ks + 2 * uu + h2 if t >= 4 else b + h2
                    e.append(f'v_cvt_pk_bf16_f32 {v(d)}, {v(b + 2 * h2)}, {v(b + 2 * h2 + 1)}')
            if t < 4:
                for ct in range(8):
                    b = (ct * 6 + t) * 4
                    ks, uu = ct >> 1, ct & 1
                    for h2 in range(2):
                        e.append(f'v_accvgpr_write_b32 {a(192 + 16 * t + 4 * ks + 2 * uu + h2)}, {v(b + h2)}')
        nput = 16 - c.put_q
        for k in range(nput):
            tl, n = puts.pop(0)
            x = (k + 1) * (len(e) // (nput + 1))
            e[x:x] = self.kv_put(tl, n)
        self.puts = puts
        gs = self.kv_tile(2, None) + [[f's_lshl_b32 {s(SRD_KV + 2)}, {s(sKL)}, 18']] + self.kv_tile(3, None)[:-1]
        gs += [[f's_mov_b32 {s(SRD_KV + 2)}, 262144', f's_lshl_b32 {s(sT3)}, {s(sKL)}, 13', f's_add_u32 {s(sOFF)}, {s(sOFF)}, {s(sT3)}',
                f's_and_b32 {s(sOFF)}, {s(sOFF)}, 0x3ffff', f's_add_u32 {s(sOFF2)}, {s(sOFF)}, 4096']]
        step = len(e) // (len(gs) + 1)
        for k in range(len(gs) - 1, -1, -1):
            e[k * step:k * step] = gs[k]
        e += ['s_waitcnt lgkmcnt(0)', 's_barrier']
        self.emit(e, 'qconv')
        self.tr(name='conv')

    def kv_reload(self):
        e = flat(self.kv_tile(0, None)) + flat(self.kv_tile(1, None)) + flat(self.kv_tile(2, None))
        e += [f's_cmp_lg_u32 {s(sHH)}, 0', 's_cbranch_scc1 L_skip_t3'] + flat(self.kv_tile(3, None)) + ['L_skip_t3:', 's_waitcnt vmcnt(0)', 's_barrier']
        self.emit(e)

    def frag_reads(self, phi, kslot, vslot):
        r = FR + 4 * (phi & 3)
        if phi < 8:
            c_, ks = phi >> 2, phi & 3
            return [f'ds_read_b128 {v(r, 4)}, {v(vKA)} offset:{kslot * TS + 4352 * c_ + 64 * ks}']
        dt = phi - 8
        reg = vVA + (dt & 1) + 2 * (dt >> 2)
        return [f'ds_read_b64_tr_b16 {v(r + 2 * e_, 2)}, {v(reg)} offset:{vslot * TS + 4352 * e_ + 64 * ((dt >> 1) & 1)}' for e_ in range(2)]

    def qk_mfmas(self, buf, czero=False):
        mf = []
        for c_ in range(2):
            for ks in range(4):
                for t in range(6):
                    d = v(Sr(buf, c_, t), 4)
                    cc = d if ks else ('0' if czero else v(NM + 4 * t, 4))
                    mf.append(I(f'{MF} {d}, {v(FR + 4 * ks, 4)}, {Qfrag(t, ks)}, {cc}'))
        return mf

    def pv_mfmas(self, czero=False):
        mf, first = [], []
        for dt in range(8):
            first.append(len(mf))
            for t in range(6):
                o = a(Oacc(dt, t), 4)
                mf.append(I(f'{MF} {o}, {v(FR + 4 * (dt & 3), 4)}, {v(P_ + 4 * t, 4)}, {0 if czero else o}'))
            if dt < 6:
                l = v(L_ + 4 * dt, 4)
                mf.append(I(f'{MF} {l}, {v(ONES, 4)}, {v(P_ + 4 * dt, 4)}, {0 if czero else l}'))
        return mf, first

    def exp_order(self):
        return [(c_, t, i) for c_ in range(2) for t in range(6) for i in range(4)]

    def xlane_max(self, m, m2):
        return [f'v_mov_b32 {m2}, {m}', f'v_permlane32_swap_b32 {m}, {m2}', f'v_max_f32 {m}, {m}, {m2}',
                f'v_mov_b32 {m2}, {m}', f'v_permlane16_swap_b32 {m}, {m2}', f'v_max_f32 {m}, {m}, {m2}']

    def attn_pre(self, safe, lab):
        c = self.c
        self.emit(self.frag_reads(0, 0, 0) + self.frag_reads(1, 0, 0))
        fl = []
        for phi in range(2, 8):
            fl.append(Filler(self.frag_reads(phi, 0, 0), rel=max(6 * phi - 18, -1), dl=6 * phi - 10, stream='fr', pos=6 * phi - 0.5))
        for phi in range(2):
            fl.append(Filler(self.frag_reads(phi, 1, 0), rel=6 * (phi + 8) - 14, dl=6 * (phi + 8) - 10, stream='fr', pos=60))
        for i in range(4):
            fl.append(Filler(f'v_mov_b32 {v(ONES + i)}, 0x3f803f80', rel=0, dl=40, stream='i'))
        for k, (tl, n) in enumerate(self.puts):
            fl.append(Filler(self.kv_put(tl, n), rel=3 * k, dl=3 * k + 1, stream='put'))
        self.puts = []
        self.emit(interleave(self.qk_mfmas(0, True), fl, 8, c.verbose, 'qk0', rate=8.0), 'qk0')
        e = []
        for t0 in (0, 3):
            ms = [(v(vMX + 2 * k), v(vMX + 2 * k + 1)) for k in range(3)]
            rows = []
            for k in range(3):
                t = t0 + k
                m, m2 = ms[k]
                r = [Sr(0, 0, t) + i for i in range(4)] + [Sr(0, 1, t) + i for i in range(4)]
                row = [f'v_max3_f32 {m}, {v(r[0])}, {v(r[1])}, {v(r[2])}', f'v_max3_f32 {m}, {m}, {v(r[3])}, {v(r[4])}',
                       f'v_max3_f32 {m}, {m}, {v(r[5])}, {v(r[6])}', f'v_max_f32 {m}, {m}, {v(r[7])}'] + self.xlane_max(m, m2)
                row += [f'v_sub_f32 {v(NM + 4 * t + i)}, 0, {m}' for i in range(4)]
                row += [f'v_sub_f32 {v(x)}, {v(x)}, {m}' for x in r]
                rows.append(row)
            for z in zip(*rows):
                e += list(z)
        if not safe:
            for (c_, t, i) in self.exp_order()[:c.npart1]:
                x = v(Sr(0, c_, t) + i)
                e.append(f'v_exp_f32 {x}, {x}')
        e += ['s_waitcnt lgkmcnt(0)', 's_barrier']
        self.emit(e, 'max0')
        self.vm = []

    def cvt_fillers(self, cur, base, todo, rel0):
        fl = []
        todo = list(todo)
        for t in range(6):
            for c_ in range(2):
                for h2 in range(2):
                    b = Sr(cur, c_, t) + 2 * h2
                    for i in (2 * h2, 2 * h2 + 1):
                        if (c_, t, i) in todo:
                            fl.append(Filler(f'v_exp_f32 {v(Sr(cur, c_, t) + i)}, {v(Sr(cur, c_, t) + i)}', rel=rel0, dl=base + t - 4, stream='e', pos=-3))
                    fl.append(Filler(f'v_cvt_pk_bf16_f32 {v(P_ + 4 * t + 2 * c_ + h2)}, {v(b)}, {v(b + 1)}', rel=rel0, dl=base + t - 3,
                                     stream='c', pos=-2.5))
        return fl

    def attn_iter(self, j, safe, dma='kv', xwait='s_waitcnt vmcnt(8)', nextk=True, site=None, extra=()):
        c = self.c
        cur, new = j & 1, (j + 1) & 1
        pv, first = self.pv_mfmas(j == 0)
        mf = self.qk_mfmas(new) + pv
        n = len(mf)
        need = [6 * phi for phi in range(8)] + [48 + x for x in first] + [n, n + 6]
        fl = []
        for phi in range(2, 18):
            if phi >= 16:
                if not nextk: continue
                r = self.frag_reads(phi - 16, (j + 2) & 3, 0)
            else:
                r = self.frag_reads(phi, (j + 1) & 3, j & 3)
            fl.append(Filler(r, rel=max(need[phi] - 15, 0), dl=need[phi] - 10, stream='fr', pos=need[phi] - 0.5))
        order = self.exp_order()
        if safe:
            fl += self.cvt_fillers(cur, 48, order, 0)
            regs = [S_[new] + i for i in range(48)]
            m = v(vMX)
            fl.append(Filler(f'v_max3_f32 {m}, {v(regs[0])}, {v(regs[1])}, {v(regs[2])}', rel=52, dl=n - 4, stream='m', pos=200))
            for k in range(3, 48, 2):
                r2 = regs[min(k + 1, 47)]
                fl.append(Filler(f'v_max3_f32 {m}, {m}, {v(regs[k])}, {v(r2)}', rel=52, dl=n - 4, stream='m', pos=200))
            fl.append(Filler(f'v_cmp_lt_f32 vcc, {s(sTHR)}, {m}', rel=52, dl=n - 3, stream='m', pos=200))
        else:
            fl += self.cvt_fillers(cur, 48, order[c.npart1:], 0)
            for (c_, t, i) in order[:c.npart1]:
                x = v(Sr(new, c_, t) + i)
                fl.append(Filler(f'v_exp_f32 {x}, {x}', rel=(46 if c_ == 0 else 52), dl=n - 1, stream='e2', pos=200))
        if dma == 'kv':
            gs = self.kv_groups(sTB + (j & 3), 0, None, c.win)
            if j == 4:
                gs[0] = [f's_cmp_eq_u32 {s(sLOOP)}, {s(sKL)}', f's_cselect_b32 {s(SRD_KV + 2)}, 0, {s(SRD_KV + 2)}'] + gs[0]
            for k, g in enumerate(gs):
                fl.append(Filler(g, rel=max(11 * k - 9, 0), dl=min(11 * k - 3, 90) if k else 1, stream='dma'))
        fl += list(extra)
        xg = need[15]
        fl.append(Filler([xwait, 's_barrier'] if isinstance(xwait, str) else xwait + ['s_barrier'], rel=xg, dl=xg, stream='x'))
        seq = interleave(mf, fl, 8, c.verbose, f'iter{j}', rate=(c.a_rate if not safe else 10.0), cap=20)
        if safe:
            seq.append(I(f's_cbranch_vccnz L_rare_{site}'))
            seq.append(I(f'L_back_{site}:'))
            self.sites.append((site, new))
        return seq

    def warm_wo(self, part):
        L = v(vLANE)
        per = 72 // len(self.c.warm_at)
        assert per <= 64
        t0, t1 = v(vH + 4), v(vH + 5)
        e = []
        if part == 0:
            e += [f'v_lshlrev_b32 {t0}, 7, {L}', f'v_mov_b32 {t1}, {OOB}', f'v_cmp_gt_u32 vcc, {per}, {L}', 's_nop 1', f'v_cndmask_b32 {t0}, {t1}, {t0}, vcc']
        e += [f's_lshl_b32 {s(sT1)}, {s(sB)}, 2', f's_add_u32 {s(sT1)}, {s(sT1)}, {s(sW)}', f's_mul_i32 {s(sT1)}, {s(sT1)}, 9216',
              f's_add_u32 {s(sT1)}, {s(sT1)}, {128 * per * part}',
              I(f'buffer_load_dword v241, {t0}, {s(SRD_WO, 4)}, {s(sT1)} offen{self.c.warm_nt}', tag='W', cost=self.c.dma_cost)]
        return e

    def attention(self, safe):
        c = self.c
        lab = 's' if safe else 'f'
        self.emit([f's_mov_b32 {s(sLOOP)}, 7'])
        self.attn_pre(safe, lab)
        self.tr(name='pre')
        self.emit(self.attn_iter(0, safe, site='0', extra=[Filler(['s_waitcnt vmcnt(8)', 's_barrier'], rel=84, dl=84, stream='fr0')]), 'iter0')
        self.tr(name='it')
        entry = [set(x) for x in self.lg]
        self.raw(['.p2align 3', f'L_loop{lab}:'])
        start = len(self.out)
        for j in range(1, 5):
            self.emit(self.attn_iter(j, safe, site=f'{j}'), f'iter{j}')
            self.tr(dyn=True, name='it')
        assert [set(x) for x in self.lg] == entry, (self.lg, entry)
        self.emit([f's_sub_u32 {s(sLOOP)}, {s(sLOOP)}, 1', f's_cmp_lg_u32 {s(sLOOP)}, 0', f's_cbranch_scc1 L_loop{lab}'])
        rep = []
        pad_hazards(self.out[start:start + 40], history=self.out[-40:], report=rep)
        assert not rep, rep
        self.vm = []
        if c.trace:
            self.ntr += 24
            self.trnames += ['it'] * 24
        ex = [Filler(self.clear_done(), rel=2, dl=6)]
        self.emit(self.attn_iter(29, safe, dma=None, xwait='s_waitcnt vmcnt(9)', site='29', extra=ex), 'iter29')
        self.tr(name='it')
        self.emit(self.attn_iter(30, safe, dma=None, xwait='s_waitcnt vmcnt(0)', nextk=False, site='30'), 'iter30')
        self.tr(name='it')
        self.vm = []
        self.attn_last(safe)

    def oproj_setup(self):
        L = v(vLANE)
        t0, t1, t2 = v(vT), v(vT + 1), v(vT + 2)
        e = [f'v_lshrrev_b32 {t0}, 3, {L}', f'v_and_b32 {t1}, 7, {L}', f'v_and_b32 {t2}, 6, {t0}', f'v_xor_b32 {t1}, {t1}, {t2}',
             f's_lshl_b32 {s(sT1)}, {s(sW)}, 3', f'v_add_u32 {t0}, {s(sT1)}, {t0}', f'v_mul_u32_u24 {t0}, 1152, {t0}',
             f'v_lshl_add_u32 {v(vOV)}, {t1}, 4, {t0}']
        e += [f'v_bfe_u32 {t0}, {L}, 2, 3', f'v_lshrrev_b32 {t1}, 1, {t0}', f'v_xor_b32 {t1}, {s(sW)}, {t1}', f'v_lshlrev_b32 {t1}, 5, {t1}',
              f'v_lshl_add_u32 {t0}, {t0}, 7, {t1}', f'v_and_b32 {t1}, 3, {L}', f'v_lshl_add_u32 {t0}, {t1}, 3, {t0}',
              f'v_lshrrev_b32 {t1}, 5, {L}', f'v_lshl_add_u32 {v(vOA)}, {t1}, 10, {t0}', f'v_add_u32 {v(vOA2)}, 65536, {v(vOA)}', f'v_add_u32 {v(vOA3)}, 131072, {v(vOA)}']
        e += [f'v_lshlrev_b32 {v(vPS)}, 4, {L}']
        for k in range(4):
            e += [f's_mul_hi_u32 {s(sT1)}, {s(sH + k)}, {(2 ** 32 + 5) // 6}', f's_add_u32 {s(sT1)}, {s(sT1)}, {OB}',
                  f'v_add_u32 {v(vBA + k)}, {s(sT1)}, {v(vPS)}']
        e += [f's_mul_i32 {s(sT1)}, {s(sW)}, 24576', f's_add_u32 {s(sT1)}, {s(sT1)}, {OB}', f'v_add_u32 {v(vOW)}, {s(sT1)}, {v(vPS)}']
        return e

    def late_consts(self):
        L = v(vLANE)
        t0, t1 = v(OPK), v(OPK + 1)
        g = [[f'v_mov_b32 {t0}, {OOB}', f'v_cmp_eq_u32 vcc, 0, {L}', 's_nop 1', f'v_cndmask_b32 {v(vL0)}, {t0}, {L}, vcc'],
             [f'v_and_b32 {t0}, 15, {L}', f'v_mul_u32_u24 {t0}, 2304, {t0}'], [f'v_lshrrev_b32 {t1}, 4, {L}', f'v_lshl_add_u32 {v(vOO)}, {t1}, 3, {t0}'],
             [f'v_bfe_u32 {t0}, {L}, 2, 2', f'v_cmp_eq_u32 vcc, {t0}, {t1}', f'v_and_b32 {t0}, 1, {L}', f'v_lshlrev_b32 {t0}, 4, {t0}',
              f'v_lshlrev_b32_e64 {t0}, {t0}, 1', f'v_mul_u32_u24 {t0}, 0x3f80, {t0}', f'v_cndmask_b32 {t0}, 0, {t0}, vcc'],
             [f'v_and_b32 {t1}, 2, {L}', f'v_cmp_eq_u32 vcc, 0, {t1}', f'v_mov_b32 {v(SEL)}, 0', f'v_mov_b32 {v(SEL + 1)}, 0',
              f'v_cndmask_b32 {v(SEL + 2)}, 0, {t0}, vcc', f'v_sub_u32 {v(SEL + 3)}, {t0}, {v(SEL + 2)}'],
             [f'v_mov_b32 {v(SEL + 4)}, 0', f'v_mov_b32 {v(SEL + 5)}, 0'],
             [f's_mul_i32 {s(sOO)}, {s(sB)}, {96 * 2304}', f's_mul_i32 {s(sT3)}, {s(sBLK)}, 1152', f's_add_u32 {s(sOO)}, {s(sOO)}, {s(sT3)}',
              f's_lshl_b32 {s(sT3)}, {s(sW)}, 5', f's_add_u32 {s(sOO)}, {s(sOO)}, {s(sT3)}']]
        return g

    def check(self, reg, want, reload, name, allanes=False, two=False):
        k = len(self.spins)
        if two:
            test = [f'v_and_b32 {v(reg)}, {v(reg)}, {v(reg + 1)}', 's_nop 0', f'v_readfirstlane_b32 {s(sT3)}, {v(reg)}', 's_nop 1', f's_cmp_eq_u32 {s(sT3)}, {want}']
        elif allanes:
            test = [f'v_cmp_eq_u32 vcc, 0, {v(reg)}', 's_nop 1', 's_cmp_eq_u64 vcc, 0']
        else:
            test = [f'v_readfirstlane_b32 {s(sT3)}, {v(reg)}', 's_nop 1', f's_cmp_lg_u32 {s(sT3)}, 0']
        self.spins.append((k, reload, test))
        return test + [f's_cbranch_scc0 L_spin{k}', f'L_spun{k}:']

    def spin_blocks(self):
        for k, reload, test in self.spins:
            self.raw([f'L_spin{k}:', f's_mov_b32 {s(sSPIN)}, {self.c.spin_max}', f'L_spinl{k}:', 's_sleep 1', reload, 's_waitcnt vmcnt(0)'] + test +
                     [f's_cbranch_scc1 L_spun{k}', f's_sub_u32 {s(sSPIN)}, {s(sSPIN)}, 1', f's_cmp_lg_u32 {s(sSPIN)}, 0', f's_cbranch_scc1 L_spinl{k}',
                      f's_branch L_spun{k}'])

    def plan_wo(self):
        self.slot_of = {0: 0, 1: 1, 2: 2}
        self.issue_at = {}
        free = [3]
        nxt = 3
        for sg in range(1, 36):
            if sg >= 2:
                free.append(self.slot_of[sg - 2])
            if sg == 5:
                free += list(range(4, self.c.oring))
            todo = []
            while nxt < 36 and free and len(todo) < 2:
                self.slot_of[nxt] = free.pop(0)
                todo.append(nxt); nxt += 1
            assert nxt >= min(sg + 2, 36)
            self.issue_at[sg] = todo

    def wo_slot(self, n):
        return 16384 * self.slot_of[n >> 2] + 4096 * (n & 3)

    def wo_unit(self, n):
        p, kk = n >> 4, n & 15
        g = [f's_add_u32 m0, {s(sWOL)}, {self.wo_slot(n)}']
        if kk == 0:
            if p == 0:
                g += [f's_mov_b32 {s(sCG)}, 1024']
            else:
                g += [f's_add_u32 {s(sCG)}, {s(sJ)}, {p}', f's_and_b32 {s(sCG)}, {s(sCG)}, 7', f's_lshl_b32 {s(sCG)}, {s(sCG)}, 7']
        if kk & 3 == 0:
            g += [f's_add_u32 {s(sSO)}, {s(sH + (kk >> 2))}, {s(sCG)}']
        else:
            g += [f's_add_u32 {s(sSO)}, {s(sSO)}, 36864']
        g.append(self.dma(vOV, SRD_WO, s(sSO), 0, self.c.wo_nt, ('O', n)))
        return g

    def attn_last(self, safe):
        c = self.c
        cur = 1
        e = self.frag_reads(8, 0, 3) + self.frag_reads(9, 0, 3) + self.oproj_setup()
        self.emit(e, 'last0')
        pv, first = self.pv_mfmas()
        fl = []
        for phi in range(10, 16):
            nd = first[phi - 8]
            fl.append(Filler(self.frag_reads(phi, 0, 3), rel=max(nd - 18, -1), dl=nd - 10, stream='fr', pos=nd - 0.5))
        order = self.exp_order()
        fl += self.cvt_fillers(cur, 0, order if safe else order[c.npart1:], -1)
        for n in range(12):
            fl.append(Filler(self.wo_unit(n), rel=3 * n, dl=3 * n + 8, stream='dma'))
        fl.append(Filler('s_barrier', rel=first[7], dl=first[7], stream='x'))
        for t in range(6):
            fl.append(Filler(f'v_rcp_f32 {v(vR + 2 * t)}, {v(L_ + 4 * t)}', rel=first[min(t + 2, 7)] + 3, dl=60, stream='r', pos=100))
        self.emit(interleave(pv, fl, 8, c.verbose, 'last', rate=9.0), 'last')

    def onorm(self):
        c = self.c
        e = []
        k = 0
        for u in range(4):
            for t in range(6):
                tb = 8 * (k % 6); k += 1
                for i in range(4):
                    e.append(f'v_accvgpr_read_b32 {v(tb + i)}, {a(Oacc(2 * u, t) + i)}')
                for i in range(4):
                    e.append(f'v_accvgpr_read_b32 {v(tb + 4 + i)}, {a(Oacc(2 * u + 1, t) + i)}')
                for i in range(0, 8, 2):
                    e.append(f'v_pk_mul_f32 {v(tb + i, 2)}, {v(tb + i, 2)}, {v(vR + 2 * t, 2)} op_sel_hi:[1,0]')
                for i in range(4):
                    e.append(f'v_cvt_pk_bf16_f32 {v(tb + i)}, {v(tb + 2 * i)}, {v(tb + 2 * i + 1)}')
                e.append(f'ds_write_b128 {v(vOW)}, {v(tb, 4)} offset:{1024 * (6 * u + t)}')
        return e

    def oproj(self):
        c = self.c
        NS = 144

        def aread(n):
            r = OA_ + 4 * (n & 3)
            ad = self.wo_slot(n)
            return [f'ds_read_b64_tr_b16 {v(r + 2 * e_, 2)}, {v((vOA, vOA2, vOA3)[ad >> 16])} offset:{(ad & 65535) + 2048 * e_}' for e_ in range(2)]

        def bread(kk, t):
            phi = 6 * kk + t
            return f'ds_read_b128 {Bfrag(phi)}, {v(vBA + (kk >> 2))} offset:{1024 * (phi % 24)}'

        def prod(p, sd):
            return [f's_sub_u32 {s(sd)}, {s(sJ)}, {p}', f's_and_b32 {s(sd)}, {s(sd)}, 7', f's_lshl_b32 {s(sd)}, {s(sd)}, 2',
                    f's_add_u32 {s(sd)}, {s(sd)}, {s(sW)}']

        def fload(p):
            return f'buffer_load_dword {v(vF)}, {v(SEL)}, {s(SRD_FL, 4)}, {s(sFA)} offen offset:{128 * p}{c.fl_mod}'

        def poll(p):
            return prod(p, sFA) + [f's_lshl_b32 {s(sFA)}, {s(sFA)}, 10', I(fload(p), tag=('F', p), cost=c.dma_cost)]

        def dloads(p, dst):
            g = [prod(p, sDA) + [f's_mul_i32 {s(sDA)}, {s(sDA)}, 3072', f's_mul_i32 {s(sT3)}, {s(sJ)}, 98304', f's_add_u32 {s(sDA)}, {s(sDA)}, {s(sT3)}']]
            for z in range(3):
                o = f' offset:{1024 * z}' if z else ''
                g.append([I(f'buffer_load_dwordx4 {dst(z)}, {v(vPS)}, {s(SRD_WS, 4)}, {s(sDA)} offen{o}{c.d_mod}', tag=('D', p), cost=c.dma_cost)])
            return g

        def adds(src, first=False):
            r = []
            for z in range(3):
                for h in range(2):
                    acc = v(RR + 8 * z + 4 * h, 4)
                    r.append(I(f'{MF} {acc}, {v(SEL + 2 - 2 * h, 4)}, {src(z)}, {0 if first else acc}'))
            return r

        def signal(p):
            return [self.wvm(('P', p)), f's_lshl_b32 {s(sT3)}, {s(sPSB)}, 10',
                    I(f'buffer_store_dword {v(vOA2)}, {v(vL0)}, {s(SRD_FL, 4)}, {s(sT3)} offen offset:{128 * p}{c.fl_mod}', tag=('S', p), cost=c.dma_cost)]

        ldb = lambda z: v(LDB + 4 * z, 4)
        e = [bread(0, t) for t in range(6)] + aread(0) + aread(1) + [bread(1, t) for t in range(4)]
        self.emit(e, 'opre')
        mf, fl = [], []
        G = []
        for n in range(NS):
            p, kk = n >> 4, n & 15
            if kk == 2 and 5 <= p <= 8:
                mf += adds(ldb, p == 5)
            G.append(len(mf))
            for t in range(6):
                acc = v((RR if p == 8 else OACC[p & 1]) + 4 * t, 4)
                mf.append(I(f'{MF} {acc}, {v(OA_ + 4 * (n & 3), 4)}, {Bfrag(6 * kk + t)}, {acc if kk or p == 8 else 0}'))
        G.append(len(mf))
        at = lambda p, x: min(G[16 * p + x // 6] + x % 6, len(mf) - 1) if 16 * p + x // 6 < NS else len(mf) - 1
        for t in range(4, 6):
            fl.append(Filler(bread(1, t), rel=0, dl=1, stream='b', pos=5.5))
        for k, g in enumerate(self.late_consts()):
            fl.append(Filler(g, rel=6 + 7 * k, dl=8 + 7 * k, stream='k'))
        for n in range(NS):
            p, kk = n >> 4, n & 15
            g0 = G[n]
            m = n + 2
            if m < NS:
                if m % 4 == 0:
                    sg = m // 4
                    fl.append(Filler([self.wvm(('O', m + 3)), 's_barrier'], rel=g0 - 1, dl=g0, stream='a'))
                    units = [4 * q + k for q in self.issue_at[sg] for k in range(4)]
                    for k, uu in enumerate(units):
                        sp = 20 // max(len(units), 1)
                        fl.append(Filler(self.wo_unit(uu), rel=g0 + 2 + sp * k, dl=g0 + 4 + sp * k, stream='dma'))
                fl.append(Filler(aread(m), rel=g0, dl=g0 + 2, stream='a', pos=G[m] - 0.5))
                if m < 16:
                    for t in range(6):
                        fl.append(Filler(bread(m, t), rel=g0 + t, dl=g0 + 5 + t, stream='b', pos=G[m] - 0.5))
            if kk == 15:
                self.tr_filler(fl, g0 + 5, 'o')
            if kk == 15 and p < 8:
                if p == 0:
                    pre = [f's_mul_i32 {s(sT2)}, {s(sPSB)}, 3072', f's_add_u32 {s(sPS)}, {s(sT2)}, {8 * 98304}']
                else:
                    pre = [f's_add_u32 {s(sPS)}, {s(sJ)}, {p}', f's_and_b32 {s(sPS)}, {s(sPS)}, 7', f's_mul_i32 {s(sPS)}, {s(sPS)}, 98304',
                           f's_add_u32 {s(sPS)}, {s(sPS)}, {s(sT2)}']
                fl.append(Filler(pre, rel=g0, dl=g0 + 20, stream='st', pos=g0 + 5.5))
                for z in range(3):
                    for i in range(4):
                        b = OACC[p & 1] + 8 * z + 2 * i
                        fl.append(Filler(f'v_cvt_pk_bf16_f32 {v(OPK + 4 * z + i)}, {v(b)}, {v(b + 1)}', rel=g0 + 10 + 2 * z, dl=g0 + 30,
                                         stream='st', pos=g0 + 5.5))
                    o = f' offset:{1024 * z}' if z else ''
                    fl.append(Filler(I(f'buffer_store_dwordx4 {v(OPK + 4 * z, 4)}, {v(vPS)}, {s(SRD_WS, 4)}, {s(sPS)} offen{o}{c.st_mod}',
                                       tag=('P', p), cost=c.dma_cost), rel=g0 + 10 + 2 * z, dl=g0 + 30, stream='st', pos=g0 + 5.5))
                sgm = c.sig[0] if p <= 4 else (c.sig[1] if p <= 6 else c.sig[2])
                x = at(p + 1, sgm)
                fl.append(Filler(signal(p), rel=x, dl=x + 2, stream='red'))
        red = []
        dbgl = f'buffer_load_dwordx2 {v(LDB, 2)}, {v(SEL)}, {s(SRD_DBG, 4)}, {s(sDA)} offen sc1'
        x = at(c.dbg_at[0], c.dbg_at[1])
        red.append(Filler([f's_lshl_b32 {s(sDA)}, {s(sGRP)}, 3', I(dbgl, tag='DBG', cost=c.dma_cost)], rel=x, dl=x + 2))
        x = at(c.dbg_at[2], c.dbg_at[3])
        red.append(Filler([self.wvm('DBG')] + self.check(LDB, 0x01010101, dbgl, 'dbg', two=True), rel=x, dl=x + 2))
        for p in range(1, 6):
            x = at(p + c.poll_at[0] - 1, c.poll_at[1])
            red.append(Filler(poll(p), rel=x, dl=x + 2))
            x = at(p + 3, 20)
            red.append(Filler([self.wvm(('F', p))] + self.check(vF, 1, fload(p), f'f{p}'), rel=x, dl=x + 2))
            for k, g in enumerate(dloads(p, ldb)):
                red.append(Filler(g, rel=x + 1 + 2 * k, dl=x + 4 + 2 * k, pos=x + 1.5 + 2 * k))
            if p < 5:
                x = G[16 * (p + 4) + 2] - 7
                red.append(Filler(self.wvm(('D', p)), rel=x, dl=x))
        shl = f'buffer_load_dword {v(OPK + 1)}, {v(OPK)}, {s(SRD_FL, 4)}, {s(sFA)} offen{c.fl_mod}'
        x = at(8, 44)
        L = v(vLANE)
        red.append(Filler([f'v_lshrrev_b32 {v(OPK)}, 4, {v(vPS)}', f'v_and_b32 {v(OPK)}, 7, {v(OPK)}', f'v_lshlrev_b32 {v(OPK)}, 12, {v(OPK)}',
                           f's_lshl_b32 {s(sFA)}, {s(sW)}, 10', I(shl, tag='F0', cost=c.dma_cost)], rel=x, dl=x + 2, pos=len(mf) + 1))
        if c.red_off:
            red = []
            self.spins = []
            fl = [f for f in fl if f.stream != 'red']
        if c.st_off:
            fl = [f for f in fl if not (f.stream == 'st' and f.ins[0].kind == 'vst')]
        for f in fl:
            if f.stream == 'red':
                red.append(f)
        fl = [f for f in fl if f.stream != 'red']
        red.sort(key=lambda f: f.rel)
        for f in red:
            f.stream = 'red'
        fl += red
        for f in fl:
            f.rel = min(f.rel, len(mf) - 1)
        self.emit(interleave(mf, fl, 8, c.verbose, 'oproj', rate=c.o_rate, cap=24), 'oproj')
        if c.red_off:
            return
        e = [self.wvm('F0')] + self.check(OPK + 1, 1, shl, 'f0', allanes=True)
        e += poll(6)
        e += [f's_lshl_b32 {s(sDA)}, {s(sJ)}, 10', f's_mul_i32 {s(sT3)}, {s(sW)}, 3072', f's_add_u32 {s(sDA)}, {s(sDA)}, {s(sT3)}',
              f's_add_u32 {s(sDA)}, {s(sDA)}, {8 * 98304}', f's_cmp_lt_u32 {s(sJ)}, 3', f's_cselect_b32 {s(sDA)}, {s(sDA)}, {GRP}']
        for i in range(8):
            e.append(I(f'buffer_load_dwordx4 {a(4 * i, 4)}, {v(vPS)}, {s(SRD_WS, 4)}, {s(sDA)} offen{c.d_mod}', tag=('H', i)))
            if i < 7:
                e.append(f's_add_u32 {s(sDA)}, {s(sDA)}, 12288')
        e += [self.wvm(('D', 5))] + adds(ldb)
        e += [self.wvm(('F', 6))] + self.check(vF, 1, fload(6), 'f6')
        e += flat(dloads(6, lambda z: a(32 + 4 * z, 4)))
        e += poll(7)
        for i in range(8):
            e.append(self.wvm(('H', i)))
            for h in range(2):
                acc = v(4 * h, 4)
                e.append(f'{MF} {acc}, {v(SEL + 2 - 2 * h, 4)}, {a(4 * i, 4)}, {acc if i else 0}')
        e += [self.wvm(('F', 7))] + self.check(vF, 1, fload(7), 'f7')
        e += flat(dloads(7, lambda z: a(44 + 4 * z, 4)))
        e += [f's_mul_i32 {s(sPS)}, {s(sJ)}, {32 * 2304}', f's_add_u32 {s(sPS)}, {s(sPS)}, {s(sOO)}', f's_add_u32 {s(sPS)}, {s(sPS)}, 1024',
              f's_add_u32 {s(sT3)}, {s(sPS)}, {16 * 2304}']
        e += [f'v_cvt_pk_bf16_f32 {v(8 + i)}, {v(2 * i)}, {v(2 * i + 1)}' for i in range(4)]
        e += [f's_cmp_lt_u32 {s(sJ)}, 3', 's_cbranch_scc0 L_nosh']
        self.emit(e, 'otail')
        self.raw([f'buffer_store_dwordx2 {v(8, 2)}, {v(vOO)}, {s(SRD_OUT, 4)}, {s(sPS)} offen{c.out_mod}',
                  f'buffer_store_dwordx2 {v(10, 2)}, {v(vOO)}, {s(SRD_OUT, 4)}, {s(sT3)} offen{c.out_mod}', 'L_nosh:'])
        e = []
        e += [self.wvm(('D', 6))] + adds(lambda z: a(32 + 4 * z, 4))
        e += [f's_lshl_b32 {s(sPS)}, {s(sJ)}, 7', f's_add_u32 {s(sPS)}, {s(sPS)}, {s(sOO)}']
        e += [self.wvm(('D', 7))] + adds(lambda z: a(44 + 4 * z, 4))
        for t in range(6):
            e += [f'v_cvt_pk_bf16_f32 {v(12 + 2 * t + i)}, {v(RR + 4 * t + 2 * i)}, {v(RR + 4 * t + 2 * i + 1)}' for i in range(2)]
            e.append(I(f'buffer_store_dwordx2 {v(12 + 2 * t, 2)}, {v(vOO)}, {s(SRD_OUT, 4)}, {s(sPS)} offen{c.out_mod}', tag='Z'))
            if t < 5:
                e.append(f's_add_u32 {s(sPS)}, {s(sPS)}, {16 * 2304}')
        self.emit(e, 'otail')

    def rare_paths(self):
        for site, new in self.sites:
            self.raw([f'L_rare_{site}:', f's_call_b64 {s(sRET, 2)}, L_rescale_{new}', f's_branch L_back_{site}'])
        if not self.sites:
            return
        for new in range(2):
            e = []
            self.raw([f'L_rescale_{new}:', 's_nop 15'])
            m, m2, f = v(vT), v(vT + 1), v(vT + 2)
            for t in range(6):
                r = [Sr(new, 0, t) + i for i in range(4)] + [Sr(new, 1, t) + i for i in range(4)]
                e += [f'v_max3_f32 {m}, {v(r[0])}, {v(r[1])}, {v(r[2])}', f'v_max3_f32 {m}, {m}, {v(r[3])}, {v(r[4])}',
                      f'v_max3_f32 {m}, {m}, {v(r[5])}, {v(r[6])}', f'v_max3_f32 {m}, {m}, {v(r[7])}, 0'] + self.xlane_max(m, m2)
                e += [f'v_exp_f32 {f}, -{m}']
                e += [f'v_sub_f32 {v(NM + 4 * t + i)}, {v(NM + 4 * t + i)}, {m}' for i in range(4)]
                e += [f'v_sub_f32 {v(x)}, {v(x)}, {m}' for x in r]
                e += [f'v_mul_f32 {v(L_ + 4 * t + i)}, {v(L_ + 4 * t + i)}, {f}' for i in range(4)]
                for dt in range(8):
                    for i in range(0, 4, 2):
                        o = Oacc(dt, t) + i
                        e += [f'v_accvgpr_read_b32 {v(vMX)}, {a(o)}', f'v_accvgpr_read_b32 {v(vMX + 1)}, {a(o + 1)}',
                              f'v_mul_f32 {v(vMX)}, {v(vMX)}, {f}', f'v_mul_f32 {v(vMX + 1)}, {v(vMX + 1)}, {f}',
                              f'v_accvgpr_write_b32 {a(o)}, {v(vMX)}', f'v_accvgpr_write_b32 {a(o + 1)}, {v(vMX + 1)}']
            e += ['s_nop 1', f's_setpc_b64 {s(sRET, 2)}']
            self.out += pad_hazards([mk(x) for x in e])

    def finish(self):
        self.raw(['L_end:', 's_endpgm'])

    def trace_move(self):
        if self.c.trace:
            self.tr(name='norm')
            self.emit([f'v_mov_b32 v126, {v(vTRa)}', f'v_mov_b32 v127, {v(vTRb)}'])
            self.trreg = (126, 127)

    def trace_out(self):
        if not self.c.trace:
            return
        self.tr(name='tail')
        self.emit(['s_waitcnt vmcnt(0)'])
        self.tr(name='drain')
        e = [f's_add_u32 s12, s58, {STAMP_OFF + 0x80000}', 's_addc_u32 s13, s59, 0', 's_mov_b32 s14, 0x80000', 's_mov_b32 s15, 0x20000',
             f's_lshl_b32 {s(sT1)}, s2, 2', f's_add_u32 {s(sT1)}, {s(sT1)}, {s(sW)}', f's_lshl_b32 {s(sT1)}, {s(sT1)}, 9',
             f'v_lshrrev_b32 v40, 1, {v(vPS)}', I(f'buffer_store_dwordx2 v[126:127], v40, s[12:15], {s(sT1)} offen', tag='TR')]
        self.emit(e)

    def kernel1(self):
        c = self.c
        self.setup()
        self.qproj()
        self.attention(c.mode == 'safe')
        self.tr(name='last')
        vm_join = list(self.vm)
        self.raw(['L_norm:'])
        e = []
        if c.mode == 'fast':
            m = v(vT)
            e += [f'v_max3_f32 {m}, {v(L_)}, {v(L_ + 4)}, {v(L_ + 8)}', f'v_max3_f32 {m}, {m}, {v(L_ + 12)}, {v(L_ + 16)}',
                  f'v_max_f32 {m}, {m}, {v(L_ + 20)}', f'v_cmp_nge_f32 vcc, {s(sLTHR)}, {m}',
                  's_nop 1', 's_cmp_lg_u64 vcc, 0', f's_cselect_b32 {s(sT1)}, 1, 0', f's_andn2_b32 {s(sT1)}, {s(sT1)}, {s(sSAFE)}',
                  f'v_mov_b32 {v(vT + 1)}, {s(sT1)}', f's_lshl_b32 {s(sT1)}, {s(sW)}, 2', f's_add_u32 {s(sT1)}, {s(sT1)}, {49152}',
                  f'v_mov_b32 {v(vT + 2)}, {s(sT1)}', f'ds_write_b32 {v(vT + 2)}, {v(vT + 1)}']
        e += self.onorm()
        e += [self.wvm(('O', 3)), 's_waitcnt lgkmcnt(0)', 's_barrier']
        if c.mode == 'fast':
            e += [f'v_mov_b32 {v(vT + 2)}, 49152', f'ds_read_b128 {v(4, 4)}, {v(vT + 2)}', 'v_or3_b32 v4, v4, v5, v6', 'v_or_b32 v4, v4, v7',
                  f'v_readfirstlane_b32 {s(sT1)}, v4', f's_cmp_lg_u32 {s(sT1)}, 0', 's_cbranch_scc1 L_fallback']
        self.emit(e, 'onorm')
        self.trace_move()
        self.oproj()
        self.trace_out()
        self.finish()
        if c.mode == 'fast':
            self.raw(['L_fallback:'])
            self.lg = []; self.vm = []
            tr = c.trace
            c.trace = False
            e = ['s_waitcnt vmcnt(0) lgkmcnt(0)', 's_barrier', f's_mov_b32 {s(sSAFE)}, 1', f's_mov_b32 {s(sOFF)}, {s(sOFF0)}',
                 f's_add_u32 {s(sOFF2)}, {s(sOFF)}, 4096', f's_mov_b32 {s(SRD_KV + 2)}, 262144']
            self.emit(e)
            self.kv_reload()
            self.attention(True)
            assert self.vm == vm_join, (self.vm, vm_join)
            self.emit(['s_waitcnt lgkmcnt(0)', 's_nop 15', 's_branch L_norm'])
            c.trace = tr
        self.rare_paths()
        self.spin_blocks()
        return self.out


def descriptor(name, vg, acc, sg=102):
    d = ['.section .rodata,"a"', '.p2align 6', f'.amdhsa_kernel {name}']
    for k, x in dict(next_free_vgpr=vg, next_free_sgpr=sg, accum_offset=acc, group_segment_fixed_size=0, kernarg_size=104,
                     user_sgpr_count=2, user_sgpr_kernarg_segment_ptr=1, system_sgpr_workgroup_id_x=1).items():
        d.append(f'  .amdhsa_{k} {x}')
    d.append('.end_amdhsa_kernel')
    return d


def build(cfg, path):
    g = Gen(cfg)
    k1 = g.kernel1()
    L = ['; @launch grid=(256,1,1) block=(256,1,1) lds=163840',
         '; Fused GQA block x2: Q projection + flash attention + O projection with an in-kernel reduce-scatter.',
         '.amdgcn_target "amdgcn-amd-amdhsa--gfx950"', '.text']
    L += [f'.globl {K1}', '.p2align 8', f'.type {K1},@function', f'{K1}:']
    L += [('' if x.kind in ('label', 'dir') else '    ') + x.text for x in k1]
    if cfg.trace:
        assert g.ntr == len(g.trnames) <= 64, (g.ntr, len(g.trnames))
        L += ['; trnames ' + ' '.join(g.trnames)]
    L += descriptor(K1, 512, 256)
    open(path, 'w').write('\n'.join(L) + '\n')
    return g

if __name__ == '__main__':
    kw = {}
    path = sys.argv[1]
    for x in sys.argv[2:]:
        k, val = x.split('=', 1)
        try:
            val = eval(val)
        except Exception:
            pass
        kw[k] = val
    build(Cfg(**kw), path)
```

```python
import sys, math, struct
from asmlib import *

NAME = 'concat_heads__gqa_block_cached__gqa_block_cached__near_ridge'
K1 = NAME + '_kernel'
K2 = 'reduce_partials_kernel'


def f2u(x):
    return struct.unpack('<I', struct.pack('<f', x))[0]


class Cfg:
    trace = False
    dma_cost = 20
    rot = True
    krot = True
    warm_wo = True
    warm_stride = 128
    kv_nt = ' nt'
    w_nt = ' nt'
    x_nt = ' nt'
    wo_nt = ''
    st_mod = ' sc1'
    fl_mod = ' sc1'
    d_mod = ' sc1'
    out_mod = ''
    thr = 8.0
    lthr = 2.0 ** 40
    verbose = False
    kv_from = 28
    kv_sp = 5
    kv_gap = 0
    put_q = 6
    win = (3, 4)
    fake_kv = False
    mode = 'fast'
    force_fb = False
    q_rate = 8.0
    a_rate = 8.3
    o_rate = 8.0
    npart1 = 30
    oring = 5
    sig = (54, 54, 42)
    pa = (30, 70, 30, 70)
    pb = (20, 60, 84)
    add_at = (101, 111, 122, 135)
    sh_at = 2
    prepoll = False
    spin_max = 20000
    no_stage = False
    q32 = False
    wq_sp = 6
    q32_budget = 24
    xtouch = 2
    warm_it = 31
    vsum = False
    nosum = False
    noexp = False
    krot_m = 9
    red2 = True
    warm_code = True
    trace_o = False
    red_off = False
    st_off = False
    warm_nt = ''
    warm_at = (0, 1)
    init_u = 4
    fake_w = False

    def __init__(self, **kw):
        for k, x in kw.items():
            assert hasattr(self, k), k
            setattr(self, k, x)


TS = 8704
RING = 4 * TS
XB = 4 * RING
OB = 65536
GRP = 9 * 8 * 12288
FL_OFF = 32 * GRP
STAMP_OFF = 256 * 122880
assert FL_OFF + 32 * 32768 <= STAMP_OFF
OOB = 0x7ffffff0

sW = 3
sB, sJ, sBLK = 4, 5, 6
SRD_KV, SRD_WQ, SRD_X, SRD_WO, SRD_WS = 8, 12, 16, 20, 24
SRD_FL, SRD_DBG, SRD_OUT = 60, 64, 68
sRING = 28
sOFF, sOFF2 = 29, 30
sHH = 31
sLOOP = 32
sT0, sT1, sT2 = 33, 34, 35
sTB = 40
sH = 44
sWK, sXK = 48, 49
sOFF0 = 50
sSAFE = 51
sTR = 52
sSPIN = 53
sTM = 54
sXL, sSO = 72, 73
sC = 74
sTHR, sLTHR = 76, 77
sRET = 78
sFS = 90
sC1152 = 91
sWOL, sCG, sPS, sPSB, sKL, sFA, sDA, sT3, sGRP, sOO = 80, 81, 82, 83, 84, 85, 86, 87, 88, 89

S_ = [0, 48]
NM = 96
L_ = 120
P_ = 144
FR = 168
ONES = 184
vT = 188
vKA = 192
vVA = 193
vKV = 197
vLANE = 198
vKW = 199
Q45 = 200
vMX = 232
vDB = 242
vTRa, vTRb = 254, 255
QA = 200
vWA = 216
vXA = 244
vWV = 220
vXV = 224
vH = 226
QB = 192
OACC = [0, 24]
OA_ = 48
OPK = 64
RR = 76
vR = 80
LDB = 100
vBA = 100
vOW = 104
vPA = 119
vOV, vOA, vOA2, vPS, vF, vOO, vL0 = 112, 113, 114, 115, 116, 117, 118
SEL = 120
OBV = 128

MF = 'v_mfma_f32_16x16x32_bf16'
MF32 = 'v_mfma_f32_32x32x16_bf16'


def Sr(buf, c, t):
    return S_[buf] + (c * 6 + t) * 4


def Qfrag(t, ks):
    return a(192 + 16 * t + 4 * ks, 4) if t < 4 else v(Q45 + 16 * (t - 4) + 4 * ks, 4)


def Oacc(dt, t):
    return (dt * 6 + t) * 4


def Bfrag(phi):
    return a(4 * phi, 4) if phi < 64 else v(OBV + 4 * (phi - 64), 4)


flat = lambda gs: [x for g in gs for x in g]


class Gen:
    def __init__(self, cfg):
        self.c = cfg
        self.out = []
        self.lg = []
        self.vm = []
        self.spins = []
        self.sites = []
        self.ntr = 0
        self.trreg = (vTRa, vTRb)
        self.trnames = []
        self.plan_wo()

    def emit(self, seq, name=''):
        seq = [mk(x) for x in seq]
        seq, self.lg = auto_lgkm(seq, self.lg)
        seq = self.resolve_vm(seq)
        rep = []
        seq = pad_hazards(seq, history=self.out[-40:], report=rep)
        if rep and self.c.verbose:
            for r in rep:
                if 'm0' not in r[1]:
                    print(f'  nop[{name}]', r)
        self.out.extend(seq)

    def raw(self, seq):
        self.out.extend(mk(x) for x in seq)

    def resolve_vm(self, seq):
        out = []
        for ins in seq:
            if ins.kind == 'wait' and 'vmcnt(?)' in ins.text:
                tags = ins.tag if isinstance(ins.tag, list) else [ins.tag]
                idx = -1
                for k, t in enumerate(self.vm):
                    if t in tags:
                        idx = k
                if idx < 0:
                    continue
                n = min(len(self.vm) - 1 - idx, 63)
                self.vm = self.vm[len(self.vm) - n:] if n else []
                out.append(I(f's_waitcnt vmcnt({n})'))
                continue
            if ins.kind == 'wait':
                m = re.search(r'vmcnt\((\d+)\)', ins.text)
                if m:
                    n = int(m.group(1))
                    if n < len(self.vm):
                        self.vm = self.vm[len(self.vm) - n:] if n else []
            if ins.kind in ('dma', 'vld', 'vst'):
                self.vm.append(ins.tag)
            out.append(ins)
        return out

    def wvm(self, tags):
        return I('s_waitcnt vmcnt(?)', tag=tags)

    def dma(self, vreg, srd, soff, imm, mod, tag):
        o = f' offset:{imm}' if imm else ''
        return I(f'buffer_load_dwordx4 {v(vreg)}, {s(srd, 4)}, {soff} offen{o}{mod} lds', tag=tag, cost=self.c.dma_cost)

    def tr_code(self, dyn=False):
        k = self.ntr
        self.ntr += 1
        ra, rb = self.trreg
        e = ['s_waitcnt lgkmcnt(0)', f's_memrealtime {s(sTM, 2)}', f's_memtime {s(sTM + 2, 2)}', 's_waitcnt lgkmcnt(0)']
        if dyn:
            e += [f's_mov_b32 m0, {s(sTR)}', 's_nop 3', f'v_writelane_b32 {v(ra)}, {s(sTM)}, m0',
                  f'v_writelane_b32 {v(rb)}, {s(sTM + 2)}, m0', f's_add_u32 {s(sTR)}, {s(sTR)}, 1']
        else:
            e += [f'v_writelane_b32 {v(ra)}, {s(sTM)}, {k}', f'v_writelane_b32 {v(rb)}, {s(sTM + 2)}, {k}', f's_mov_b32 {s(sTR)}, {k + 1}']
        return e

    def tr(self, dyn=False, name=''):
        if not self.c.trace or (self.c.trace_o and name == 'it'):
            return
        self.trnames.append(name)
        sv = [set(x) for x in self.lg]
        self.emit(self.tr_code(dyn))
        self.lg = sv

    def tr_filler(self, fl, g, name=''):
        if self.c.trace:
            self.trnames.append(name)
            fl.append(Filler(self.tr_code(), rel=g, dl=g, stream='tr', cost=0))

    def kv_groups(self, sb, base, tag, win=None):
        m0 = lambda n: f's_add_u32 m0, {s(sb)}, {base + 1088 * n - 1024 * (n & 3)}'
        groups = [[m0(0)]]
        for n in range(8):
            g = [f's_waitcnt vmcnt({win[n % len(win)] if isinstance(win, tuple) else win})'] if win is not None else []
            g.append(self.dma(vKV, SRD_KV, s(sOFF if n < 4 else sOFF2), 1024 * (n & 3), self.c.kv_nt, tag))
            if n < 7:
                g.append(m0(n + 1))
            groups.append(g)
        groups.append([f's_add_u32 {s(sOFF)}, {s(sOFF)}, 8192', f's_and_b32 {s(sOFF)}, {s(sOFF)}, 0x3ffff',
                       f's_add_u32 {s(sOFF2)}, {s(sOFF)}, 4096'])
        return groups

    def kv_tile(self, slot, tag):
        return self.kv_groups(sRING, slot * TS, tag)

    def kv_stage(self):
        groups = []
        for tl in range(2):
            for n in range(8):
                g = []
                so = sOFF if n < 4 else sOFF2
                if tl == 3 and n == 0:
                    g += [f's_lshl_b32 {s(SRD_KV + 2)}, {s(sKL)}, 18']
                o = f' offset:{1024 * (n & 3)}' if n & 3 else ''
                g.append(I(f'buffer_load_dwordx4 {a(32 * tl + 4 * n, 4)}, {v(vKV)}, {s(SRD_KV, 4)}, {s(so)} offen{o}{self.c.kv_nt}',
                           tag=('T', tl, n), cost=self.c.dma_cost))
                if n == 7:
                    if tl == 3:
                        g += [f's_mov_b32 {s(SRD_KV + 2)}, 262144', f's_lshl_b32 {s(sT3)}, {s(sKL)}, 13', f's_add_u32 {s(sOFF)}, {s(sOFF)}, {s(sT3)}']
                    else:
                        g += [f's_add_u32 {s(sOFF)}, {s(sOFF)}, 8192']
                    g += [f's_and_b32 {s(sOFF)}, {s(sOFF)}, 0x3ffff', f's_add_u32 {s(sOFF2)}, {s(sOFF)}, 4096']
                if self.c.no_stage:
                    g = [x for x in g if not isinstance(x, I)] or ['s_nop 0']
                groups.append(g)
        return groups

    def kv_put(self, tl, n):
        return [self.wvm(('T', tl, n)), I(f'ds_write_b128 {v(vKW)}, {a(32 * tl + 4 * n, 4)} offset:{tl * TS + 1088 * n}', cost=12)]

    def code_warm(self):
        L = v(vLANE)
        return ['s_getpc_b64 s[96:97]', f's_lshl_b32 {s(sT1)}, s7, 2', f's_add_u32 {s(sT1)}, {s(sT1)}, {s(sW)}',
                f's_and_b32 {s(sT1)}, {s(sT1)}, 7', f's_min_u32 {s(sT1)}, {s(sT1)}, 6', f's_lshl_b32 {s(sT1)}, {s(sT1)}, 13', f'v_lshlrev_b32 {v(vH + 2)}, 7, {L}',
                f'v_add_u32 {v(vH + 2)}, {s(sT1)}, {v(vH + 2)}', I(f'global_load_dword v240, {v(vH + 2)}, s[96:97]', tag='CW')]

    def x_touch(self, kc_now):
        L = v(vLANE)
        t0, t1 = v(vH + 2), v(vH + 3)
        d = 128 * (7 - kc_now)
        return [f'v_and_b32 {t0}, 1, {L}', f'v_lshlrev_b32 {t0}, 7, {t0}', f's_add_u32 {s(sT1)}, {s(sXK)}, {d}', f'v_add_u32 {t0}, {s(sT1)}, {t0}',
                f'v_subrev_u32 {t1}, 1152, {t0}', f'v_min_u32 {t0}, {t0}, {t1}',
                f'v_lshrrev_b32 {t1}, 1, {L}', f'v_min_u32 {t1}, 23, {t1}', f's_mul_i32 {s(sT1)}, {s(sW)}, {24 * 1152}',
                f'v_mad_u32_u24 {t0}, {t1}, {s(sC1152)}, {t0}',
                I(f'buffer_load_dword v239, {t0}, {s(SRD_X, 4)}, {s(sT1)} offen{self.c.x_nt}', tag='W', cost=self.c.dma_cost)]

    def flag_clear(self):
        L = v(vLANE)
        t0, t1 = v(vH), v(vH + 1)
        return [f'v_lshlrev_b32 {t0}, 7, {L}', f'v_mov_b32 {t1}, {OOB}', f's_cmp_eq_u32 {s(sW)}, 0', f's_cselect_b32 {s(sT3)}, 32, 0',
                f'v_cmp_gt_u32 vcc, {s(sT3)}, {L}', f's_lshl_b32 {s(sT3)}, {s(sJ)}, 12',
                's_nop 0', f'v_cndmask_b32 {t0}, {t1}, {t0}, vcc', f'v_mov_b32 {t1}, 0',
                I(f'buffer_store_dword {t1}, {t0}, {s(SRD_FL, 4)}, {s(sT3)} offen{self.c.fl_mod}', tag='CLR')]

    def clear_done(self):
        L = v(vLANE)
        t0, t1 = v(vDB), v(vDB + 1)
        return [f'v_mov_b32 {t1}, {OOB}', f's_cmp_eq_u32 {s(sW)}, 0', f's_cselect_b32 {s(sT3)}, 1, 0', f'v_cmp_gt_u32 vcc, {s(sT3)}, {L}',
                f's_lshl_b32 {s(sT3)}, {s(sGRP)}, 3', f's_add_u32 {s(sT3)}, {s(sT3)}, {s(sJ)}',
                f'v_cndmask_b32 {t0}, {t1}, {L}, vcc', f'v_mov_b32 {t1}, 1',
                I(f'buffer_store_byte {t1}, {t0}, {s(SRD_DBG, 4)}, {s(sT3)} offen sc1', tag='SIG')]

    def setup(self):
        c = self.c
        e = ['s_cmp_ge_u32 s2, 256', 's_cbranch_scc1 L_end']
        if c.trace:
            e += [f's_memrealtime {s(98, 2)}', f's_memtime {s(100, 2)}']
        e += ['s_load_dwordx8 s[36:43], s[0:1], 0', 's_load_dwordx2 s[44:45], s[0:1], 32',
              's_load_dwordx8 s[48:55], s[0:1], 40', 's_load_dwordx2 s[56:57], s[0:1], 72',
              's_load_dwordx2 s[58:59], s[0:1], 96', 's_load_dwordx4 s[92:95], s[0:1], 80']
        e += ['v_lshrrev_b32 v1, 6, v0', f'v_and_b32 {v(vLANE)}, 63, v0', f'v_readfirstlane_b32 {s(sW)}, v1']
        e += ['s_lshr_b32 s7, s2, 3', f's_and_b32 {s(sB)}, s7, 15', f's_lshr_b32 {s(sJ)}, s7, 4', 's_and_b32 s6, s2, 3',
              's_lshl_b32 s6, s6, 1', f's_add_u32 {s(sJ)}, {s(sJ)}, s6', f's_bfe_u32 {s(sBLK)}, s2, 0x10002']
        e += [f's_and_b32 {s(sHH)}, {s(sW)}, 1', f's_lshr_b32 {s(sT0)}, {s(sW)}, 1']
        e += [f's_lshl_b32 {s(sT1)}, {s(sHH)}, 1', f's_add_u32 {s(sT1)}, {s(sT1)}, {s(sT0)}',
              f's_mul_i32 {s(sRING)}, {s(sT1)}, {RING}',
              f's_lshl_b32 {s(sWOL)}, {s(sW)}, 10', f's_add_u32 {s(sXL)}, {s(sWOL)}, {XB}']
        if c.rot:
            e += [f's_and_b32 {s(sOFF)}, s7, 31', f's_lshl_b32 {s(sOFF)}, {s(sOFF)}, 13']
        else:
            e += [f's_mov_b32 {s(sOFF)}, 0']
        e += [f's_add_u32 {s(sOFF2)}, {s(sOFF)}, 4096']
        L = v(vLANE)
        e += [f'v_lshrrev_b32 v1, 4, {L}',
              f'v_and_b32 v2, 15, {L}',
              f'v_lshrrev_b32 v5, 2, v2',
              f'v_and_b32 v6, 3, {L}',
              f'v_lshrrev_b32 v8, 3, {L}', f'v_and_b32 v9, 7, {L}',
              'v_lshrrev_b32 v10, 1, v8']
        e += ['v_xor_b32 v11, v9, v10', f's_lshl_b32 {s(sT1)}, {s(sHH)}, 2', f'v_xor_b32 v11, {s(sT1)}, v11', 'v_lshlrev_b32 v11, 4, v11',
              f's_lshl_b32 {s(sT1)}, {s(sW)}, 3', f'v_add_u32 v12, {s(sT1)}, v8', 'v_mul_u32_u24 v12, 1152, v12',
              f'v_add_u32 {v(vXV)}, v12, v11']
        if c.q32:
            e += ['v_lshlrev_b32 v11, 2, v1', 'v_xor_b32 v11, v2, v11', 'v_lshlrev_b32 v11, 4, v11', 'v_lshl_add_u32 v11, v1, 13, v11']
        else:
            e += ['v_and_b32 v11, 1, v10', 'v_lshlrev_b32 v11, 2, v11', 'v_xor_b32 v11, v9, v11', 'v_lshlrev_b32 v11, 4, v11',
                  'v_lshl_add_u32 v11, v8, 13, v11']
        e += [f's_lshl_b32 {s(sT1)}, {s(sJ)}, 2', f's_add_u32 {s(sT1)}, {s(sT1)}, {s(sW)}', f's_lshl_b32 {s(sT1)}, {s(sT1)}, 8',
              f'v_add_u32 {v(vWV)}, {s(sT1)}, v11']
        for n in range(1, 4):
            e += [f'v_add_u32 {v(vWV + n)}, {(31744 if c.q32 else 64512) * n}, {v(vWV)}']
        e += ['s_waitcnt lgkmcnt(0)']
        e += [f's_cmp_eq_u32 {s(sBLK)}, 0']
        for d in range(10):
            e += [f's_cselect_b32 s{36 + d}, s{36 + d}, s{48 + d}']
        e += [f's_mul_i32 {s(sT1)}, {s(sB)}, 110592', f's_add_u32 {s(SRD_X)}, s36, {s(sT1)}', f's_addc_u32 {s(SRD_X + 1)}, s37, 0',
              f's_mov_b32 {s(SRD_X + 2)}, 110592', f's_mov_b32 {s(SRD_X + 3)}, 0x20000']
        e += [f's_mov_b32 {s(SRD_WQ)}, s42', f's_mov_b32 {s(SRD_WQ + 1)}, s43', f's_mov_b32 {s(SRD_WQ + 2)}, 4718592',
              f's_mov_b32 {s(SRD_WQ + 3)}, 0x20000']
        if c.krot and c.krot_m > 1:
            m = c.krot_m
            e += [f's_mul_hi_u32 {s(sT1)}, {s(sB)}, {(2 ** 32 + m - 1) // m}', f's_mul_i32 {s(sT1)}, {s(sT1)}, {m}', f's_sub_u32 {s(sT1)}, {s(sB)}, {s(sT1)}',
                  f's_mul_i32 {s(sT1)}, {s(sT1)}, {9 // m}', f's_lshl_b32 {s(sXK)}, {s(sT1)}, 7', f's_lshl_b32 {s(sWK)}, {s(sT1)}, 19']
        else:
            e += [f's_mov_b32 {s(sXK)}, 0', f's_mov_b32 {s(sWK)}, 0']
        self.emit(e, 'setup')
        e = self.late_setup = []
        e += [f's_cmp_eq_u32 {s(sHH)}, 0', 's_cselect_b32 s38, s38, s40', 's_cselect_b32 s39, s39, s41',
              f's_lshl_b32 {s(sT1)}, {s(sB)}, 4', f's_lshl_b32 {s(sT2)}, {s(sJ)}, 1', f's_add_u32 {s(sT1)}, {s(sT1)}, {s(sT2)}',
              f's_add_u32 {s(sT1)}, {s(sT1)}, {s(sT0)}',
              f's_lshl_b32 {s(sT1)}, {s(sT1)}, 18' if not c.fake_kv else f's_lshl_b32 {s(sT1)}, {s(sT0)}, 18',
              f's_add_u32 {s(SRD_KV)}, s38, {s(sT1)}', f's_addc_u32 {s(SRD_KV + 1)}, s39, 0',
              f's_mov_b32 {s(SRD_KV + 2)}, 262144', f's_mov_b32 {s(SRD_KV + 3)}, 0x20000']
        e += ['v_and_b32 v11, 1, v1', 'v_lshlrev_b32 v11, 1, v11', 'v_lshrrev_b32 v12, 1, v1', 'v_lshl_or_b32 v11, v12, 3, v11',
              f's_cmp_eq_u32 {s(sHH)}, 0', 's_cselect_b64 vcc, -1, 0', 's_nop 1', 'v_cndmask_b32 v11, v11, v1, vcc',
              'v_xor_b32 v11, v2, v11', 'v_lshlrev_b32 v11, 4, v11', f'v_lshl_add_u32 {v(vKV)}, v1, 8, v11']
        e += [f's_mul_i32 {s(sT1)}, {s(sJ)}, 589824', f's_add_u32 {s(SRD_WO)}, s44, {s(sT1)}', f's_addc_u32 {s(SRD_WO + 1)}, s45, 0',
              f's_mov_b32 {s(SRD_WO + 2)}, 589824', f's_mov_b32 {s(SRD_WO + 3)}, 0x20000']
        e += [f's_lshl_b32 {s(sGRP)}, {s(sBLK)}, 4', f's_add_u32 {s(sGRP)}, {s(sGRP)}, {s(sB)}', f's_lshl_b32 {s(sT1)}, {s(sGRP)}, 15',
              f's_add_u32 {s(sT1)}, {s(sT1)}, {FL_OFF}', f's_add_u32 {s(SRD_FL)}, s58, {s(sT1)}', f's_addc_u32 {s(SRD_FL + 1)}, s59, 0',
              f's_mov_b32 {s(SRD_FL + 2)}, 32768', f's_mov_b32 {s(SRD_FL + 3)}, 0x20000',
              f's_mov_b32 {s(SRD_DBG)}, s94', f's_mov_b32 {s(SRD_DBG + 1)}, s95', f's_mov_b32 {s(SRD_DBG + 2)}, 256', f's_mov_b32 {s(SRD_DBG + 3)}, 0x20000',
              f's_mov_b32 {s(SRD_OUT)}, s92', f's_mov_b32 {s(SRD_OUT + 1)}, s93', f's_mov_b32 {s(SRD_OUT + 2)}, 3538944', f's_mov_b32 {s(SRD_OUT + 3)}, 0x20000',
              f's_lshl_b32 {s(sPSB)}, {s(sJ)}, 2', f's_add_u32 {s(sPSB)}, {s(sPSB)}, {s(sW)}',
              f's_xor_b32 {s(sKL)}, {s(sHH)}, 1', f'v_lshlrev_b32 {v(vKW)}, 4, {L}', f'v_add_u32 {v(vKW)}, {s(sRING)}, {v(vKW)}']
        e += [f's_mul_i32 {s(sT1)}, {s(sGRP)}, {GRP}',
              f's_add_u32 {s(SRD_WS)}, s58, {s(sT1)}', f's_addc_u32 {s(SRD_WS + 1)}, s59, 0',
              f's_mov_b32 {s(SRD_WS + 2)}, {GRP}', f's_mov_b32 {s(SRD_WS + 3)}, 0x20000']
        cs = f2u(math.log2(math.e) / math.sqrt(128.0))
        e += [f's_mov_b32 {s(sC)}, {cs:#x}', f's_mov_b32 {s(sC + 1)}, {cs:#x}', f's_mov_b32 {s(sTHR)}, {f2u(c.thr):#x}',
              f's_mov_b32 {s(sLTHR)}, {f2u(c.lthr if not c.force_fb else 1.0):#x}', f's_mov_b32 {s(sSAFE)}, 0', f's_mov_b32 {s(sC1152)}, 1152',
              f's_mov_b32 {s(sOFF0)}, {s(sOFF)}']
        if c.q32:
            e += [f'v_lshrrev_b32 v3, 5, {L}', 'v_and_b32 v4, 1, v1', 'v_lshlrev_b32 v11, 11, v3', 'v_lshl_add_u32 v11, v5, 8, v11',
                  'v_lshl_add_u32 v11, v4, 4, v11', 'v_and_b32 v12, 1, v6', 'v_lshl_add_u32 v11, v12, 5, v11', 'v_lshrrev_b32 v12, 1, v6',
                  'v_lshl_add_u32 v11, v12, 3, v11', f'v_add_u32 v11, {s(sRING)}, v11']
            for ct in range(4):
                e += [f'v_xor_b32 v12, {ct}, v5', f'v_lshl_add_u32 {v(vWA + ct)}, v12, 6, v11']
            e += [f'v_and_b32 v14, 31, {L}', 'v_lshrrev_b32 v11, 3, v14', 'v_and_b32 v12, 7, v14',
                  'v_lshlrev_b32 v13, 10, v11', 'v_lshl_add_u32 v13, v12, 7, v13', f'v_add_u32 v13, {XB}, v13',
                  'v_lshrrev_b32 v12, 1, v12', 'v_and_b32 v11, 1, v11', 'v_lshlrev_b32 v11, 2, v11', 'v_xor_b32 v12, v12, v11', 'v_xor_b32 v12, v12, v3']
            for k in range(4):
                e += [f'v_xor_b32 v11, {2 * k}, v12', f'v_lshl_add_u32 {v(vXA + k)}, v11, 4, v13']
        else:
            e += ['v_lshlrev_b32 v11, 10, v1', 'v_lshl_add_u32 v11, v5, 7, v11', 'v_lshl_add_u32 v11, v6, 4, v11',
                  f'v_add_u32 v11, {s(sRING)}, v11', 'v_lshrrev_b32 v12, 1, v5', f'v_lshl_add_u32 {v(vWA)}, v12, 6, v11',
                  'v_xor_b32 v12, 1, v12', f'v_lshl_add_u32 {v(vWA + 1)}, v12, 6, v11']
            e += ['v_lshrrev_b32 v11, 3, v2', 'v_and_b32 v12, 7, v2', 'v_lshlrev_b32 v13, 10, v11', 'v_lshl_add_u32 v13, v12, 7, v13',
                  f'v_add_u32 v13, {XB}, v13', 'v_lshrrev_b32 v12, 1, v12', 'v_lshlrev_b32 v11, 2, v11', 'v_xor_b32 v12, v12, v11',
                  'v_xor_b32 v12, v12, v1', f'v_lshl_add_u32 {v(vXA)}, v12, 4, v13', 'v_xor_b32 v12, 4, v12',
                  f'v_lshl_add_u32 {v(vXA + 1)}, v12, 4, v13']
        e += [f's_mul_i32 {s(sT1)}, {s(sT0)}, {RING}', 'v_mul_u32_u24 v11, 1088, v5', 'v_lshl_add_u32 v11, v6, 8, v11',
              'v_xor_b32 v12, v1, v6', 'v_lshl_add_u32 v11, v12, 4, v11', f'v_add_u32 {v(vKA)}, {s(sT1)}, v11']
        e += [f's_add_u32 {s(sT1)}, {s(sT1)}, {2 * RING}',
              'v_mul_u32_u24 v11, 1088, v1', 'v_lshl_add_u32 v11, v5, 8, v11', 'v_lshl_add_u32 v11, v6, 3, v11',
              f'v_add_u32 v11, {s(sT1)}, v11',
              'v_and_b32 v12, 1, v5', 'v_lshrrev_b32 v13, 1, v5', 'v_lshl_or_b32 v12, v13, 2, v12']
        for k, d in enumerate((0, 1, 4, 5)):
            e += [f'v_xor_b32 v13, {d}, v12', f'v_lshl_add_u32 {v(vVA + k)}, v13, 5, v11']
        for k in range(4):
            e += [f's_sub_u32 {s(sT1)}, {k}, {s(sHH)}', f's_and_b32 {s(sT1)}, {s(sT1)}, 3', f's_mul_i32 {s(sT1)}, {s(sT1)}, {TS}',
                  f's_add_u32 {s(sTB + k)}, {s(sRING)}, {s(sT1)}']
        for k in range(4):
            e += [f's_add_u32 {s(sT1)}, {s(sB)}, {k}' if c.krot else f's_mov_b32 {s(sT1)}, {k}', f's_and_b32 {s(sT1)}, {s(sT1)}, 3',
                  f's_mul_i32 {s(sH + k)}, {s(sT1)}, 147456']

    def wq_unit(self, u):
        hf = u & 1
        pre = [f's_add_u32 m0, {s(sRING)}, {4096 * ((u + 4) & 7)}', f's_add_u32 {s(sSO)}, {s(sWK)}, {(131072 if self.c.q32 else 128) * hf}']
        g = [pre + [self.dma(vWV, SRD_WQ, s(sSO), 0, self.c.w_nt, ('U', u))]]
        for n in range(1, 4):
            g.append([self.dma(vWV + n, SRD_WQ, s(sSO), 1024 * n, self.c.w_nt, ('U', u))])
        if hf and not self.c.fake_w:
            g.append([f's_add_u32 {s(sWK)}, {s(sWK)}, 262144', f's_cmp_eq_u32 {s(sWK)}, 4718592', f's_cselect_b32 {s(sWK)}, 0, {s(sWK)}'])
        return g

    def x_chunk(self, kc):
        g = []
        for m in range(3):
            g.append([f's_add_u32 m0, {s(sXL)}, {12288 * (kc & 1) + 4096 * m}', f's_add_u32 {s(sSO)}, {s(sXK)}, {36864 * m}',
                      self.dma(vXV, SRD_X, s(sSO), 0, self.c.x_nt, ('X', kc))])
        if not self.c.fake_w:
          g.append([f's_add_u32 {s(sXK)}, {s(sXK)}, 128', f's_cmp_eq_u32 {s(sXK)}, 1152', f's_cselect_b32 {s(sXK)}, 0, {s(sXK)}'])
        return g

    def a_reads(self, u, k):
        r = QA + 4 * k
        if self.c.q32:
            return [f'ds_read_b64_tr_b16 {v(r + 2 * e_, 2)}, {v(vWA + k)} offset:{4096 * ((u + 4) & 7) + 1024 * e_}' for e_ in range(2)]
        return [f'ds_read_b64_tr_b16 {v(r + 2 * e_, 2)}, {v(vWA + (k >> 1))} offset:{4096 * ((u + 4) & 7) + 512 * e_ + 8 * (k & 1)}' for e_ in range(2)]

    def b_read(self, st, t):
        if self.c.q32:
            return f'ds_read_b128 {a(QB + 12 * (st & 1) + 4 * t, 4)}, {v(vXA + (st & 3))} offset:{12288 * ((st >> 2) & 1) + 4096 * t}'
        kc = st >> 1
        return f'ds_read_b128 {a(QB + 24 * (st & 1) + 4 * t, 4)}, {v(vXA + (st & 1))} offset:{12288 * (kc & 1) + 2048 * t}'

    def qproj(self):
        c = self.c
        e = flat(self.x_chunk(0)) + flat(self.wq_unit(0)) + flat(self.wq_unit(1)) + flat(self.x_chunk(1))
        for u in range(2, 4):
            e += flat(self.wq_unit(u))
        if c.warm_code:
            e += self.code_warm()
        e += self.late_setup
        for u in range(4, c.init_u):
            e += flat(self.wq_unit(u))
        if c.trace:
            e += [f'v_writelane_b32 {v(vTRa)}, s98, 0', f'v_writelane_b32 {v(vTRb)}, s100, 0']
            self.ntr = 1
            self.trnames.append('start')
        e += [self.wvm([('X', 0), ('U', 0)]), 's_barrier']
        for t in range(3 if c.q32 else 6):
            e.append(self.b_read(0, t))
        for k in range(3):
            e += self.a_reads(0, k)
        self.emit(e, 'qpre')
        self.tr(name='first')
        mf, fl, dm = [], [], []
        NU = 36
        kvg = self.kv_stage()
        D = 12 if c.q32 else 24
        sc = lambda x: x * D // 24
        for q in range(max(c.init_u, 4), NU):
            x = max(D * (q - 8) + sc(18), (D // 2) * (q - c.init_u) + 1)
            steady = x == D * (q - 8) + sc(18)
            nxt_x = ((q - 7) & 3) == (3 if c.q32 else 2)
            sp = sc(c.wq_sp) if steady and not nxt_x else sc(2)
            if steady and nxt_x and c.q32:
                sp = 1.5
            for k, g in enumerate(self.wq_unit(q)):
                dm.append(Filler(g, rel=x + int(sp * k), dl=x + 1 + int(sp * k), pos=x + 0.5))
        dm.append(Filler(self.flag_clear(), rel=D * 2 + sc(6), dl=D * 2 + sc(16)))
        for u in range(NU):
            st, hf = u >> 1, u & 1
            g0 = D * u
            if c.q32:
                for ct in range(4):
                    for t in range(3):
                        acc = v((ct * 3 + t) * 16, 16)
                        mf.append(I(f'{MF32} {acc}, {v(QA + 4 * ct, 4)}, {a(QB + 12 * (u & 1) + 4 * t, 4)}, {acc if u else 0}'))
            else:
                for k in range(4):
                    ct = 4 * hf + k
                    for t in range(6):
                        acc = v((ct * 6 + t) * 4, 4)
                        mf.append(I(f'{MF} {acc}, {v(QA + 4 * k, 4)}, {a(QB + 24 * (st & 1) + 4 * t, 4)}, {acc if st else 0}'))
            fl.append(Filler(self.a_reads(u, 3), rel=g0, dl=g0 + sc(4), stream='a', pos=g0 + sc(18) - 0.5))
            if u + 1 < NU:
                fl.append(Filler(self.wvm(('U', u + 1)), rel=g0 + sc(5), dl=g0 + sc(8), stream='a'))
                for k in range(3):
                    fl.append(Filler(self.a_reads(u + 1, k), rel=g0 + sc(6 * k + 6), dl=g0 + sc(6 * k + 10), stream='a', pos=g0 + D + sc(6 * k) - 0.5))
            xu = (u & 3 == 3) if c.q32 else (u & 3 == 2)
            if xu and u + 1 < NU:
                kc = u >> 2
                if kc < 8:
                    fl.append(Filler([self.wvm(('X', kc + 1)), 's_barrier'], rel=g0 + sc(6) - (1 if c.q32 else 0), dl=g0 + sc(8) - (1 if c.q32 else 0), stream='b'))
                if kc + 2 <= 8:
                    for k, g in enumerate(self.x_chunk(kc + 2)):
                        dm.append(Filler(g, rel=g0 + sc(9 + 3 * k), dl=g0 + sc(10 + 3 * k), pos=g0 + sc(9) + 0.5))
                if kc == c.xtouch:
                    dm.append(Filler(self.x_touch(kc + 3), rel=g0 + sc(17), dl=g0 + sc(18), pos=g0 + sc(17) + 0.2))
            if c.q32 and u + 1 < NU:
                for t in range(3):
                    fl.append(Filler(self.b_read(u + 1, t), rel=g0 + 4 + t, dl=g0 + 7 + t, stream='b', pos=g0 + 11.5))
            if not c.q32 and hf == 0 and st + 1 < 18:
                for t in range(6):
                    fl.append(Filler(self.b_read(st + 1, t), rel=g0 + 9 + 5 * t, dl=g0 + 30 + t, stream='b', pos=g0 + 47.5))
            if u % 4 == 3 and u < 35:
                self.tr_filler(fl, g0 + D - 1, 'q')
        for i, g in enumerate(kvg):
            x = int(D * c.kv_from + sc(4) + c.kv_sp * i * D / 24)
            fl.append(Filler(g, rel=x, dl=x + 1, stream='kv'))
        dm.sort(key=lambda f: f.pos)
        for f in dm:
            f.stream = 'dma'
        fl += dm
        puts = [(tl, n) for tl in range(2) for n in range(8)]
        for k in range(c.put_q):
            tl, n = puts.pop(0)
            sl = (tl * TS + 1088 * n + 1023) // 4096
            x = min(max(D * (28 + min(sl, 7)) + sc(18), D * NU - sc(4) * (c.put_q - k)), D * NU - 1)
            fl.append(Filler(self.kv_put(tl, n), rel=x, dl=x + sc(2), stream='put'))
        if c.q32:
            seq = interleave(mf, fl, 24, c.verbose, 'qproj', rate=float(c.q32_budget), cap=40)
        else:
            seq = interleave(mf, fl, 8, c.verbose, 'qproj', rate=c.q_rate, cap=24)
        self.emit(seq, 'qproj')
        self.tr(name='q')
        e = []
        for t3 in ((2, 0, 1) if c.q32 else ()):
            for ct in range(4):
                b = (ct * 3 + t3) * 16
                e += [f'v_pk_mul_f32 {v(b + i, 2)}, {v(b + i, 2)}, {s(sC, 2)}' for i in range(0, 16, 2)]
                dst = [Q45 + 16 * (i >> 2) + 4 * ct + (i & 3) if t3 == 2 else b + i for i in range(8)]
                e += [f'v_cvt_pk_bf16_f32 {v(dst[i])}, {v(b + 2 * i)}, {v(b + 2 * i + 1)}' for i in range(8)]
                e += [f'v_permlane16_swap_b32 {v(dst[j])}, {v(dst[4 + j])}' for j in range(4)]
                if t3 < 2:
                    e += [f'v_accvgpr_write_b32 {a(192 + 16 * (2 * t3 + (i >> 2)) + 4 * ct + (i & 3))}, {v(dst[i])}' for i in range(8)]
        for t in (() if c.q32 else (4, 5, 0, 1, 2, 3)):
            for ct in range(8):
                b = (ct * 6 + t) * 4
                e += [f'v_pk_mul_f32 {v(b, 2)}, {v(b, 2)}, {s(sC, 2)}', f'v_pk_mul_f32 {v(b + 2, 2)}, {v(b + 2, 2)}, {s(sC, 2)}']
            for ct in range(8):
                b = (ct * 6 + t) * 4
                ks, uu = ct >> 1, ct & 1
                for h2 in range(2):
                    d = Q45 + 16 * (t - 4) + 4 * ks + 2 * uu + h2 if t >= 4 else b + h2
                    e.append(f'v_cvt_pk_bf16_f32 {v(d)}, {v(b + 2 * h2)}, {v(b + 2 * h2 + 1)}')
            if t < 4:
                for ct in range(8):
                    b = (ct * 6 + t) * 4
                    ks, uu = ct >> 1, ct & 1
                    for h2 in range(2):
                        e.append(f'v_accvgpr_write_b32 {a(192 + 16 * t + 4 * ks + 2 * uu + h2)}, {v(b + h2)}')
        nput = 16 - c.put_q
        for k in range(nput):
            tl, n = puts.pop(0)
            x = (k + 1) * (len(e) // (nput + 1))
            e[x:x] = self.kv_put(tl, n)
        self.puts = puts
        gs = self.kv_tile(2, None) + [[f's_lshl_b32 {s(SRD_KV + 2)}, {s(sKL)}, 18']] + self.kv_tile(3, None)[:-1]
        gs += [[f's_mov_b32 {s(SRD_KV + 2)}, 262144', f's_lshl_b32 {s(sT3)}, {s(sKL)}, 13', f's_add_u32 {s(sOFF)}, {s(sOFF)}, {s(sT3)}',
                f's_and_b32 {s(sOFF)}, {s(sOFF)}, 0x3ffff', f's_add_u32 {s(sOFF2)}, {s(sOFF)}, 4096']]
        step = len(e) // (len(gs) + 1)
        for k in range(len(gs) - 1, -1, -1):
            e[k * step:k * step] = gs[k]
        e += ['s_waitcnt lgkmcnt(0)', 's_barrier']
        self.emit(e, 'qconv')
        self.tr(name='conv')

    def kv_reload(self):
        e = flat(self.kv_tile(0, None)) + flat(self.kv_tile(1, None)) + flat(self.kv_tile(2, None))
        e += [f's_cmp_lg_u32 {s(sHH)}, 0', 's_cbranch_scc1 L_skip_t3'] + flat(self.kv_tile(3, None)) + ['L_skip_t3:', 's_waitcnt vmcnt(0)', 's_barrier']
        self.emit(e)

    def frag_reads(self, phi, kslot, vslot):
        r = FR + 4 * (phi & 3)
        if phi < 8:
            c_, ks = phi >> 2, phi & 3
            return [f'ds_read_b128 {v(r, 4)}, {v(vKA)} offset:{kslot * TS + 4352 * c_ + 64 * ks}']
        dt = phi - 8
        reg = vVA + (dt & 1) + 2 * (dt >> 2)
        return [f'ds_read_b64_tr_b16 {v(r + 2 * e_, 2)}, {v(reg)} offset:{vslot * TS + 4352 * e_ + 64 * ((dt >> 1) & 1)}' for e_ in range(2)]

    def qk_mfmas(self, buf, czero=False):
        mf = []
        for c_ in range(2):
            for ks in range(4):
                for t in range(6):
                    d = v(Sr(buf, c_, t), 4)
                    cc = d if ks else ('0' if czero else v(NM + 4 * t, 4))
                    mf.append(I(f'{MF} {d}, {v(FR + 4 * ks, 4)}, {Qfrag(t, ks)}, {cc}'))
        return mf

    def pv_mfmas(self, czero=False):
        mf, first = [], []
        for dt in range(8):
            first.append(len(mf))
            for t in range(6):
                o = a(Oacc(dt, t), 4)
                mf.append(I(f'{MF} {o}, {v(FR + 4 * (dt & 3), 4)}, {v(P_ + 4 * t, 4)}, {0 if czero else o}'))
            if dt < 6 and not self.c.vsum and not self.c.nosum:
                l = v(L_ + 4 * dt, 4)
                mf.append(I(f'{MF} {l}, {v(ONES, 4)}, {v(P_ + 4 * dt, 4)}, {0 if czero else l}'))
        return mf, first

    def exp_order(self):
        return [(c_, t, i) for c_ in range(2) for t in range(6) for i in range(4)]

    def xlane_max(self, m, m2):
        return [f'v_mov_b32 {m2}, {m}', f'v_permlane32_swap_b32 {m}, {m2}', f'v_max_f32 {m}, {m}, {m2}',
                f'v_mov_b32 {m2}, {m}', f'v_permlane16_swap_b32 {m}, {m2}', f'v_max_f32 {m}, {m}, {m2}']

    def attn_pre(self, safe, lab):
        c = self.c
        self.emit(self.frag_reads(0, 0, 0) + self.frag_reads(1, 0, 0))
        fl = []
        for phi in range(2, 8):
            fl.append(Filler(self.frag_reads(phi, 0, 0), rel=max(6 * phi - 18, -1), dl=6 * phi - 10, stream='fr', pos=6 * phi - 0.5))
        for phi in range(2):
            fl.append(Filler(self.frag_reads(phi, 1, 0), rel=6 * (phi + 8) - 14, dl=6 * (phi + 8) - 10, stream='fr', pos=60))
        for i in range(4):
            fl.append(Filler(f'v_mov_b32 {v(ONES + i)}, 0x3f803f80', rel=0, dl=40, stream='i'))
        for k, (tl, n) in enumerate(self.puts):
            fl.append(Filler(self.kv_put(tl, n), rel=3 * k, dl=3 * k + 1, stream='put'))
        self.puts = []
        self.emit(interleave(self.qk_mfmas(0, True), fl, 8, c.verbose, 'qk0', rate=8.0), 'qk0')
        e = []
        for t0 in (0, 3):
            ms = [(v(vMX + 2 * k), v(vMX + 2 * k + 1)) for k in range(3)]
            rows = []
            for k in range(3):
                t = t0 + k
                m, m2 = ms[k]
                r = [Sr(0, 0, t) + i for i in range(4)] + [Sr(0, 1, t) + i for i in range(4)]
                row = [f'v_max3_f32 {m}, {v(r[0])}, {v(r[1])}, {v(r[2])}', f'v_max3_f32 {m}, {m}, {v(r[3])}, {v(r[4])}',
                       f'v_max3_f32 {m}, {m}, {v(r[5])}, {v(r[6])}', f'v_max_f32 {m}, {m}, {v(r[7])}'] + self.xlane_max(m, m2)
                row += [f'v_sub_f32 {v(NM + 4 * t + i)}, 0, {m}' for i in range(4)]
                row += [f'v_sub_f32 {v(x)}, {v(x)}, {m}' for x in r]
                rows.append(row)
            for z in zip(*rows):
                e += list(z)
        if not safe:
            for (c_, t, i) in self.exp_order()[:c.npart1]:
                x = v(Sr(0, c_, t) + i)
                e.append(f'v_exp_f32 {x}, {x}')
        e += ['s_waitcnt lgkmcnt(0)', 's_barrier']
        self.emit(e, 'max0')
        self.vm = []

    def cvt_fillers(self, cur, base, todo, rel0):
        fl = []
        todo = list(todo)
        for t in range(6):
            for c_ in range(2):
                for h2 in range(2):
                    b = Sr(cur, c_, t) + 2 * h2
                    for i in (2 * h2, 2 * h2 + 1):
                        if (c_, t, i) in todo:
                            fl.append(Filler(f'v_exp_f32 {v(Sr(cur, c_, t) + i)}, {v(Sr(cur, c_, t) + i)}', rel=rel0, dl=base + t - 4, stream='e', pos=-3))
                    fl.append(Filler(f'v_cvt_pk_bf16_f32 {v(P_ + 4 * t + 2 * c_ + h2)}, {v(b)}, {v(b + 1)}', rel=rel0, dl=base + t - 3,
                                     stream='c', pos=-2.5))
                    if self.c.vsum:
                        for i in range(2):
                            fl.append(Filler(f'v_add_f32 {v(L_ + 4 * t)}, {v(L_ + 4 * t)}, {v(b + i)}', rel=rel0, dl=base + 40, stream='s', pos=-2.4))
        return fl

    def attn_iter(self, j, safe, dma='kv', xwait='s_waitcnt vmcnt(8)', nextk=True, site=None, extra=()):
        c = self.c
        cur, new = j & 1, (j + 1) & 1
        pv, first = self.pv_mfmas(j == 0)
        mf = self.qk_mfmas(new) + pv
        n = len(mf)
        need = [6 * phi for phi in range(8)] + [48 + x for x in first] + [n, n + 6]
        fl = []
        for phi in range(2, 18):
            if phi >= 16:
                if not nextk: continue
                r = self.frag_reads(phi - 16, (j + 2) & 3, 0)
            else:
                r = self.frag_reads(phi, (j + 1) & 3, j & 3)
            fl.append(Filler(r, rel=max(need[phi] - 15, 0), dl=need[phi] - 10, stream='fr', pos=need[phi] - 0.5))
        order = self.exp_order()
        if safe:
            fl += self.cvt_fillers(cur, 48, order, 0)
            regs = [S_[new] + i for i in range(48)]
            m = v(vMX)
            fl.append(Filler(f'v_max3_f32 {m}, {v(regs[0])}, {v(regs[1])}, {v(regs[2])}', rel=52, dl=n - 4, stream='m', pos=200))
            for k in range(3, 48, 2):
                r2 = regs[min(k + 1, 47)]
                fl.append(Filler(f'v_max3_f32 {m}, {m}, {v(regs[k])}, {v(r2)}', rel=52, dl=n - 4, stream='m', pos=200))
            fl.append(Filler(f'v_cmp_lt_f32 vcc, {s(sTHR)}, {m}', rel=52, dl=n - 3, stream='m', pos=200))
        else:
            fl += self.cvt_fillers(cur, 48, order[c.npart1:], 0)
            for (c_, t, i) in order[:c.npart1]:
                x = v(Sr(new, c_, t) + i)
                fl.append(Filler(f'v_exp_f32 {x}, {x}', rel=(46 if c_ == 0 else 52), dl=n - 1, stream='e2', pos=200))
        if dma == 'kv':
            gs = self.kv_groups(sTB + (j & 3), 0, None, c.win)
            if j == 4:
                gs[0] = [f's_cmp_eq_u32 {s(sLOOP)}, {s(sKL)}', f's_cselect_b32 {s(SRD_KV + 2)}, 0, {s(SRD_KV + 2)}'] + gs[0]
            for k, g in enumerate(gs):
                fl.append(Filler(g, rel=max(11 * k - 9, 0), dl=min(11 * k - 3, 90) if k else 1, stream='dma'))
        fl += list(extra)
        if c.noexp:
            fl = [f for f in fl if not f.ins[0].op.startswith('v_exp')]
        xg = need[15]
        fl.append(Filler([xwait, 's_barrier'] if isinstance(xwait, str) else xwait + ['s_barrier'], rel=xg, dl=xg, stream='x'))
        seq = interleave(mf, fl, 8, c.verbose, f'iter{j}', rate=(c.a_rate if not safe else 10.0), cap=20)
        if safe:
            seq.append(I(f's_cbranch_vccnz L_rare_{site}'))
            seq.append(I(f'L_back_{site}:'))
            self.sites.append((site, new))
        return seq

    def warm_wo(self, part, tmp=vH + 4):
        L = v(vLANE)
        per = -(-72 // len(self.c.warm_at))
        assert per <= 64
        t0, t1 = v(tmp), v(tmp + 1)
        e = []
        if part == 0:
            e += [f'v_lshlrev_b32 {t0}, 7, {L}', f'v_mov_b32 {t1}, {OOB}', f'v_cmp_gt_u32 vcc, {per}, {L}', 's_nop 1', f'v_cndmask_b32 {t0}, {t1}, {t0}, vcc']
        e += [f's_lshl_b32 {s(sT1)}, {s(sB)}, 2', f's_add_u32 {s(sT1)}, {s(sT1)}, {s(sW)}', f's_mul_i32 {s(sT1)}, {s(sT1)}, 9216',
              f's_add_u32 {s(sT1)}, {s(sT1)}, {128 * per * part}',
              I(f'buffer_load_dword v241, {t0}, {s(SRD_WO, 4)}, {s(sT1)} offen{self.c.warm_nt}', tag='W', cost=self.c.dma_cost)]
        return e

    def attention(self, safe):
        c = self.c
        lab = 's' if safe else 'f'
        self.emit([f's_mov_b32 {s(sLOOP)}, 7'])
        self.attn_pre(safe, lab)
        self.tr(name='pre')
        self.emit(self.attn_iter(0, safe, site='0', extra=[Filler(['s_waitcnt vmcnt(8)', 's_barrier'], rel=84, dl=84, stream='fr0')]), 'iter0')
        self.tr(name='it')
        entry = [set(x) for x in self.lg]
        self.raw(['.p2align 3', f'L_loop{lab}:'])
        start = len(self.out)
        for j in range(1, 5):
            self.emit(self.attn_iter(j, safe, site=f'{j}'), f'iter{j}')
            self.tr(dyn=True, name='it')
        assert [set(x) for x in self.lg] == entry, (self.lg, entry)
        self.emit([f's_sub_u32 {s(sLOOP)}, {s(sLOOP)}, 1', f's_cmp_lg_u32 {s(sLOOP)}, 0', f's_cbranch_scc1 L_loop{lab}'])
        rep = []
        pad_hazards(self.out[start:start + 40], history=self.out[-40:], report=rep)
        assert not rep, rep
        self.vm = []
        if c.trace and not c.trace_o:
            self.ntr += 24
            self.trnames += ['it'] * 24
        ex = [Filler(self.clear_done(), rel=2, dl=6)] + [Filler(g, rel=8 + 6 * k, dl=12 + 6 * k, stream='ft') for k, g in enumerate(self.flag_touch())]
        wm = [Filler(self.warm_wo(k, vMX + 6), rel=8 + 4 * k, dl=12 + 4 * k, stream='wm') for k in range(len(c.warm_at))] if c.warm_wo else []
        n29 = len(wm) if c.warm_it == 29 else 0
        n30 = len(wm) if c.warm_it in (29, 30) else 0
        self.emit(self.attn_iter(29, safe, dma=None, xwait=f's_waitcnt vmcnt({10 + n29})', site='29', extra=ex + (wm if n29 else [])), 'iter29')
        self.tr(name='it')
        self.emit(self.attn_iter(30, safe, dma=None, xwait=f's_waitcnt vmcnt({2 + n30})', nextk=False, site='30',
                                 extra=(wm if c.warm_it == 30 else [])), 'iter30')
        self.last_extra = wm if c.warm_it == 31 else []
        self.tr(name='it')
        self.vm = []
        self.attn_last(safe)

    def oproj_setup(self):
        L = v(vLANE)
        t0, t1, t2 = v(vT), v(vT + 1), v(vT + 2)
        e = [f'v_lshrrev_b32 {t0}, 3, {L}', f'v_and_b32 {t1}, 7, {L}', f'v_and_b32 {t2}, 6, {t0}', f'v_xor_b32 {t1}, {t1}, {t2}',
             f's_lshl_b32 {s(sT1)}, {s(sW)}, 3', f'v_add_u32 {t0}, {s(sT1)}, {t0}', f'v_mul_u32_u24 {t0}, 1152, {t0}',
             f'v_lshl_add_u32 {v(vOV)}, {t1}, 4, {t0}']
        e += [f'v_bfe_u32 {t0}, {L}, 2, 3', f'v_lshrrev_b32 {t1}, 1, {t0}', f'v_xor_b32 {t1}, {s(sW)}, {t1}', f'v_lshlrev_b32 {t1}, 5, {t1}',
              f'v_lshl_add_u32 {t0}, {t0}, 7, {t1}', f'v_and_b32 {t1}, 3, {L}', f'v_lshl_add_u32 {t0}, {t1}, 3, {t0}',
              f'v_lshrrev_b32 {t1}, 5, {L}', f'v_lshl_add_u32 {v(vOA)}, {t1}, 10, {t0}', f'v_add_u32 {v(vOA2)}, 65536, {v(vOA)}']
        e += [f'v_lshlrev_b32 {v(vPS)}, 4, {L}', f'v_mov_b32 {v(vPA)}, v246']
        for k in range(4):
            e += [f's_mul_hi_u32 {s(sT1)}, {s(sH + k)}, {(2 ** 32 + 5) // 6}', f's_add_u32 {s(sT1)}, {s(sT1)}, {OB}',
                  f'v_add_u32 {v(vBA + k)}, {s(sT1)}, {v(vPS)}']
        e += [f's_mul_i32 {s(sT1)}, {s(sW)}, 24576', f's_add_u32 {s(sT1)}, {s(sT1)}, {OB}', f'v_add_u32 {v(vOW)}, {s(sT1)}, {v(vPS)}']
        return e

    def flag_touch(self):
        L = v(vLANE)
        t0, t1 = v(244), v(245)
        return [[f'v_subrev_u32 {t0}, 7, {L}', f'v_sub_u32 {t1}, {s(sJ)}, {t0}', f'v_and_b32 {t1}, 7, {t1}', f'v_lshlrev_b32 {t1}, 12, {t1}',
                 f'v_lshl_add_u32 {t1}, {t0}, 7, {t1}'],
                [f'v_cmp_gt_u32 vcc, 15, {L}', f'v_lshlrev_b32 {t0}, 12, {L}', 's_nop 0', f'v_cndmask_b32 {t1}, 0, {t1}, vcc', f'v_cmp_gt_u32 vcc, 8, {L}', 's_nop 1',
                 f'v_cndmask_b32 v246, {t1}, {t0}, vcc'],
                [f's_lshl_b32 {s(sFA)}, {s(sW)}, 10', I(f'buffer_load_dword v247, v246, {s(SRD_FL, 4)}, {s(sFA)} offen{self.c.fl_mod}', cost=self.c.dma_cost)]]

    def late_consts(self):
        L = v(vLANE)
        t0, t1 = v(OPK), v(OPK + 1)
        g = [[f'v_mov_b32 {t0}, {OOB}', f'v_cmp_eq_u32 vcc, 0, {L}', 's_nop 1', f'v_cndmask_b32 {v(vL0)}, {t0}, {L}, vcc'],
             [f'v_and_b32 {t0}, 15, {L}', f'v_mul_u32_u24 {t0}, 2304, {t0}'], [f'v_lshrrev_b32 {t1}, 4, {L}', f'v_lshl_add_u32 {v(vOO)}, {t1}, 3, {t0}'],
             [f'v_bfe_u32 {t0}, {L}, 2, 2', f'v_cmp_eq_u32 vcc, {t0}, {t1}', f'v_and_b32 {t0}, 1, {L}', f'v_lshlrev_b32 {t0}, 4, {t0}',
              f'v_lshlrev_b32_e64 {t0}, {t0}, 1', f'v_mul_u32_u24 {t0}, 0x3f80, {t0}', f'v_cndmask_b32 {t0}, 0, {t0}, vcc'],
             [f'v_and_b32 {t1}, 2, {L}', f'v_cmp_eq_u32 vcc, 0, {t1}', f'v_mov_b32 {v(SEL)}, 0', f'v_mov_b32 {v(SEL + 1)}, 0',
              f'v_cndmask_b32 {v(SEL + 2)}, 0, {t0}, vcc', f'v_sub_u32 {v(SEL + 3)}, {t0}, {v(SEL + 2)}'],
             [f'v_mov_b32 {v(SEL + 4)}, 0', f'v_mov_b32 {v(SEL + 5)}, 0'],
             [f's_lshl_b32 {s(sFS)}, {s(sPSB)}, 10', f's_mul_i32 {s(sOO)}, {s(sB)}, {96 * 2304}', f's_mul_i32 {s(sT3)}, {s(sBLK)}, 1152', f's_add_u32 {s(sOO)}, {s(sOO)}, {s(sT3)}',
              f's_lshl_b32 {s(sT3)}, {s(sW)}, 5', f's_add_u32 {s(sOO)}, {s(sOO)}, {s(sT3)}']]
        return g

    def check(self, reg, want, reload, name, allanes=False, two=False):
        k = len(self.spins)
        if two:
            test = [f'v_and_b32 {v(reg)}, {v(reg)}, {v(reg + 1)}', 's_nop 0', f'v_readfirstlane_b32 {s(sT3)}, {v(reg)}', 's_nop 1', f's_cmp_eq_u32 {s(sT3)}, {want}']
        elif allanes:
            test = [f'v_cmp_eq_u32 vcc, 0, {v(reg)}', 's_nop 1', f's_and_b32 {s(sT3)}, vcc_lo, {want:#x}', f's_cmp_eq_u32 {s(sT3)}, 0']
        else:
            test = [f'v_readfirstlane_b32 {s(sT3)}, {v(reg)}', 's_nop 1', f's_cmp_lg_u32 {s(sT3)}, 0']
        self.spins.append((k, reload, test))
        return test + [f's_cbranch_scc0 L_spin{k}', f'L_spun{k}:']

    def spin_blocks(self):
        for k, reload, test in self.spins:
            self.raw([f'L_spin{k}:', f's_mov_b32 {s(sSPIN)}, {self.c.spin_max}', f'L_spinl{k}:', 's_sleep 1', reload, 's_waitcnt vmcnt(0)'] + test +
                     ([f's_cbranch_scc0 L_spinc{k}', f's_sub_u32 {s(sSPIN)}, {self.c.spin_max + 1}, {s(sSPIN)}', f'v_writelane_b32 v126, {s(sSPIN)}, {58 + k}',
                       f's_branch L_spun{k}', f'L_spinc{k}:'] if self.c.trace else []) +
                     [f's_cbranch_scc1 L_spun{k}', f's_sub_u32 {s(sSPIN)}, {s(sSPIN)}, 1', f's_cmp_lg_u32 {s(sSPIN)}, 0', f's_cbranch_scc1 L_spinl{k}',
                      f's_branch L_spun{k}'])

    def plan_wo(self):
        self.slot_of = {0: 0, 1: 1, 2: 2}
        self.issue_at = {}
        free = [3]
        nxt = 3
        for sg in range(1, 36):
            if sg >= 2:
                free.append(self.slot_of[sg - 2])
            if sg == 5:
                free += list(range(4, self.c.oring))
            todo = []
            while nxt < 36 and free and len(todo) < 2:
                self.slot_of[nxt] = free.pop(0)
                todo.append(nxt); nxt += 1
            assert nxt >= min(sg + 2, 36)
            self.issue_at[sg] = todo

    def wo_slot(self, n):
        return 16384 * self.slot_of[n >> 2] + 4096 * (n & 3)

    def wo_unit(self, n):
        p, kk = n >> 4, n & 15
        g = [f's_add_u32 m0, {s(sWOL)}, {self.wo_slot(n)}']
        if kk == 0:
            if p == 0:
                g += [f's_mov_b32 {s(sCG)}, 1024']
            else:
                g += [f's_add_u32 {s(sCG)}, {s(sJ)}, {p}', f's_and_b32 {s(sCG)}, {s(sCG)}, 7', f's_lshl_b32 {s(sCG)}, {s(sCG)}, 7']
        if kk & 3 == 0:
            g += [f's_add_u32 {s(sSO)}, {s(sH + (kk >> 2))}, {s(sCG)}']
        else:
            g += [f's_add_u32 {s(sSO)}, {s(sSO)}, 36864']
        g.append(self.dma(vOV, SRD_WO, s(sSO), 0, self.c.wo_nt, ('O', n)))
        return g

    def attn_last(self, safe):
        c = self.c
        cur = 1
        e = self.frag_reads(8, 0, 3) + self.frag_reads(9, 0, 3) + self.oproj_setup()
        self.emit(e, 'last0')
        pv, first = self.pv_mfmas()
        fl = []
        for phi in range(10, 16):
            nd = first[phi - 8]
            fl.append(Filler(self.frag_reads(phi, 0, 3), rel=max(nd - 18, -1), dl=nd - 10, stream='fr', pos=nd - 0.5))
        order = self.exp_order()
        fl += self.cvt_fillers(cur, 0, order if safe else order[c.npart1:], -1)
        for n in range(12):
            fl.append(Filler(self.wo_unit(n), rel=3 * n, dl=3 * n + 8, stream='dma'))
        for k, f in enumerate(self.last_extra):
            f.rel = f.dl = 38 + 3 * k
            f.pos = f.rel + 0.5
            fl.append(f)
        fl.append(Filler('s_barrier', rel=first[7], dl=first[7], stream='x'))
        for t in range(6):
            fl.append(Filler(f'v_rcp_f32 {v(vR + 2 * t)}, {v(L_ + 4 * t)}', rel=first[min(t + 2, 7)] + 3, dl=60, stream='r', pos=100))
        self.emit(interleave(pv, fl, 8, c.verbose, 'last', rate=9.0), 'last')

    def onorm(self):
        c = self.c
        e = []
        k = 0
        for u in range(4):
            for t in range(6):
                tb = 8 * (k % 6); k += 1
                for i in range(4):
                    e.append(f'v_accvgpr_read_b32 {v(tb + i)}, {a(Oacc(2 * u, t) + i)}')
                for i in range(4):
                    e.append(f'v_accvgpr_read_b32 {v(tb + 4 + i)}, {a(Oacc(2 * u + 1, t) + i)}')
                for i in range(0, 8, 2):
                    e.append(f'v_pk_mul_f32 {v(tb + i, 2)}, {v(tb + i, 2)}, {v(vR + 2 * t, 2)} op_sel_hi:[1,0]')
                for i in range(4):
                    e.append(f'v_cvt_pk_bf16_f32 {v(tb + i)}, {v(tb + 2 * i)}, {v(tb + 2 * i + 1)}')
                e.append(f'ds_write_b128 {v(vOW)}, {v(tb, 4)} offset:{1024 * (6 * u + t)}')
        return e

    def oproj(self):
        c = self.c
        NS = 144

        def aread(n):
            r = OA_ + 4 * (n & 3)
            ad = self.wo_slot(n)
            return [f'ds_read_b64_tr_b16 {v(r + 2 * e_, 2)}, {v((vOA, vOA2)[ad >> 16])} offset:{(ad & 65535) + 2048 * e_}' for e_ in range(2)]

        def bread(kk, t):
            phi = 6 * kk + t
            return f'ds_read_b128 {Bfrag(phi)}, {v(vBA + (kk >> 2))} offset:{1024 * (phi % 24)}'

        def prod(p, sd):
            return [f's_sub_u32 {s(sd)}, {s(sJ)}, {p}', f's_and_b32 {s(sd)}, {s(sd)}, 7', f's_lshl_b32 {s(sd)}, {s(sd)}, 2',
                    f's_add_u32 {s(sd)}, {s(sd)}, {s(sW)}']

        def fload(p):
            return f'buffer_load_dword {v(vF)}, {v(SEL)}, {s(SRD_FL, 4)}, {s(sFA)} offen offset:{128 * p}{c.fl_mod}'

        def poll(p):
            return prod(p, sFA) + [f's_lshl_b32 {s(sFA)}, {s(sFA)}, 10', I(fload(p), tag=('F', p), cost=c.dma_cost)]

        def dloads(p, dst):
            g = [prod(p, sDA) + [f's_mul_i32 {s(sDA)}, {s(sDA)}, 3072', f's_mul_i32 {s(sT3)}, {s(sJ)}, 98304', f's_add_u32 {s(sDA)}, {s(sDA)}, {s(sT3)}']]
            for z in range(3):
                o = f' offset:{1024 * z}' if z else ''
                g.append([I(f'buffer_load_dwordx4 {dst(z)}, {v(vPS)}, {s(SRD_WS, 4)}, {s(sDA)} offen{o}{c.d_mod}', tag=('D', p), cost=c.dma_cost)])
            return g

        def adds(src, first=False):
            r = []
            for z in range(3):
                for h in range(2):
                    acc = v(RR + 8 * z + 4 * h, 4)
                    r.append(I(f'{MF} {acc}, {v(SEL + 2 - 2 * h, 4)}, {src(z)}, {0 if first else acc}'))
            return r

        def signal(p):
            return [self.wvm(('P', p)),
                    I(f'buffer_store_dword {v(vOA2)}, {v(vL0)}, {s(SRD_FL, 4)}, {s(sFS)} offen offset:{128 * p}{c.fl_mod}', tag=('S', p), cost=c.dma_cost)]

        ldb = lambda z: v(LDB + 4 * z, 4)
        bufs = [ldb, lambda z: v(4 * z, 4), lambda z: v(12 + 4 * z, 4)] + [(lambda k: (lambda z: a(32 + 12 * k + 4 * z, 4)))(k) for k in range(4)]
        e = [bread(0, t) for t in range(6)] + aread(0) + aread(1) + [bread(1, t) for t in range(4)]
        self.emit(e, 'opre')
        mf, fl = [], []
        G = []
        A = {}
        for n in range(NS):
            p, kk = n >> 4, n & 15
            for k, nn in enumerate(c.add_at):
                if n == nn:
                    A[k] = len(mf)
                    for q in ((0,), (0,), (0,), (1, 2))[k]:
                        mf += adds(bufs[q], k == 0)
            G.append(len(mf))
            for t in range(6):
                acc = v((RR if p == 8 else OACC[p & 1]) + 4 * t, 4)
                mf.append(I(f'{MF} {acc}, {v(OA_ + 4 * (n & 3), 4)}, {Bfrag(6 * kk + t)}, {acc if kk or p == 8 else 0}'))
        G.append(len(mf))
        at = lambda p, x: min(G[16 * p + x // 6] + x % 6, len(mf) - 1) if 16 * p + x // 6 < NS else len(mf) - 1
        for t in range(4, 6):
            fl.append(Filler(bread(1, t), rel=0, dl=1, stream='b', pos=5.5))
        for k, g in enumerate(self.late_consts()):
            fl.append(Filler(g, rel=4 + 6 * k, dl=6 + 6 * k, stream='k'))
        for n in range(NS):
            p, kk = n >> 4, n & 15
            g0 = G[n]
            m = n + 2
            if m < NS:
                if m % 4 == 0:
                    sg = m // 4
                    fl.append(Filler([self.wvm(('O', m + 3)), 's_barrier'], rel=g0 - 1, dl=g0, stream='a'))
                    units = [4 * q + k for q in self.issue_at[sg] for k in range(4)]
                    for k, uu in enumerate(units):
                        sp = 20 // max(len(units), 1)
                        fl.append(Filler(self.wo_unit(uu), rel=g0 + 2 + sp * k, dl=g0 + 4 + sp * k, stream='dma'))
                fl.append(Filler(aread(m), rel=g0, dl=g0 + 2, stream='a', pos=G[m] - 0.5))
                if m < 16:
                    for t in range(6):
                        fl.append(Filler(bread(m, t), rel=g0 + t, dl=g0 + 5 + t, stream='b', pos=G[m] - 0.5))
            if kk == 15 or (c.trace_o and kk & 3 == 3):
                self.tr_filler(fl, g0 + 5, 'o')
            if kk == 15 and p < 8:
                if p == 0:
                    pre = [f's_mul_i32 {s(sT2)}, {s(sPSB)}, 3072', f's_add_u32 {s(sPS)}, {s(sT2)}, {8 * 98304}']
                else:
                    pre = [f's_add_u32 {s(sPS)}, {s(sJ)}, {p}', f's_and_b32 {s(sPS)}, {s(sPS)}, 7', f's_mul_i32 {s(sPS)}, {s(sPS)}, 98304',
                           f's_add_u32 {s(sPS)}, {s(sPS)}, {s(sT2)}']
                fl.append(Filler(pre, rel=g0, dl=g0 + 8, stream='st', pos=g0 + 5.5))
                for z in range(3):
                    for i in range(4):
                        b = OACC[p & 1] + 8 * z + 2 * i
                        fl.append(Filler(f'v_cvt_pk_bf16_f32 {v(OPK + 4 * z + i)}, {v(b)}, {v(b + 1)}', rel=g0 + 10 + 3 * z, dl=g0 + 11 + 3 * z + (i >> 1),
                                         stream='st', pos=g0 + 5.5))
                    o = f' offset:{1024 * z}' if z else ''
                    fl.append(Filler(I(f'buffer_store_dwordx4 {v(OPK + 4 * z, 4)}, {v(vPS)}, {s(SRD_WS, 4)}, {s(sPS)} offen{o}{c.st_mod}',
                                       tag=('P', p), cost=c.dma_cost), rel=g0 + 10 + 3 * z, dl=g0 + 13 + 3 * z, stream='st', pos=g0 + 5.5))
                sgm = c.sig[0] if p <= 4 else (c.sig[1] if p <= 6 else c.sig[2])
                x = min(g0 + 6 + sgm, len(mf) - 1)
                fl.append(Filler(signal(p), rel=x, dl=x, stream='sig'))
        red = []
        dbgl = f'buffer_load_dwordx2 {v(LDB, 2)}, {v(SEL)}, {s(SRD_DBG, 4)}, {s(sDA)} offen sc1'
        x = at(3, 62)
        red.append(Filler([f's_lshl_b32 {s(sDA)}, {s(sGRP)}, 3', I(dbgl, tag='DBG', cost=c.dma_cost)], rel=x, dl=x + 2))
        x = at(4, 56)
        red.append(Filler([self.wvm('DBG')] + self.check(LDB, 0x01010101, dbgl, 'dbg', two=True), rel=x, dl=x + 2))
        pal = f'buffer_load_dword {v(vF)}, {v(vPA)}, {s(SRD_FL, 4)}, {s(sFA)} offen{c.fl_mod}'

        def place(gs, x, sp=2):
            for k, g in enumerate(gs):
                red.append(Filler(g, rel=x + sp * k, dl=x + 2 + sp * k, pos=x + 0.5 + sp * k))
            return x + sp * len(gs)
        if c.prepoll:
            x = at(3, 64)
            red.append(Filler([f's_lshl_b32 {s(sFA)}, {s(sW)}, 10', I(pal, tag='F_', cost=c.dma_cost)], rel=x, dl=x + 2))
        x = at(5, c.pa[0])
        red.append(Filler([f's_lshl_b32 {s(sFA)}, {s(sW)}, 10', I(pal, tag='FA', cost=c.dma_cost)], rel=x, dl=x + 2))
        x = at(5, c.pa[1])
        red.append(Filler([self.wvm('FA')] + self.check(vF, 0x700, pal, 'fa', allanes=True), rel=x, dl=x + 2))
        place(dloads(1, ldb), x + 1)
        for k in range(3):
            red.append(Filler(self.wvm(('D', k + 1)), rel=A[k] - 1, dl=A[k] - 1))
            if k < 2:
                place(dloads(k + 2, ldb), A[k] + 6)
        x = at(7, c.pa[2])
        red.append(Filler([I(pal, tag='FB', cost=c.dma_cost)], rel=x, dl=x + 2))
        x = at(7, c.pa[3])
        red.append(Filler([self.wvm('FB')] + self.check(vF, 0x18ff, pal, 'fb', allanes=True), rel=x, dl=x + 2))
        place(dloads(4, bufs[1]) + dloads(5, bufs[2]), x + 1)
        x = at(8, c.pb[0])
        red.append(Filler(poll(6), rel=x, dl=x + 2))
        red.append(Filler(self.wvm(('D', 5)), rel=A[3] - 1, dl=A[3] - 1))
        x = G[128 + c.sh_at]
        k = 0
        g = [f's_lshl_b32 {s(sDA)}, {s(sJ)}, 10', f's_mul_i32 {s(sT3)}, {s(sW)}, 3072', f's_add_u32 {s(sDA)}, {s(sDA)}, {s(sT3)}',
             f's_add_u32 {s(sDA)}, {s(sDA)}, {8 * 98304}', f's_cmp_lt_u32 {s(sJ)}, 3', f's_cselect_b32 {s(sDA)}, {s(sDA)}, {GRP}']
        for i in range(8):
            g.append(I(f'buffer_load_dwordx4 {a(4 * i, 4)}, {v(vPS)}, {s(SRD_WS, 4)}, {s(sDA)} offen{c.d_mod}', tag=('H', i), cost=c.dma_cost))
            if i < 7:
                g.append(f's_add_u32 {s(sDA)}, {s(sDA)}, 12288')
            red.append(Filler(g, rel=x + 2 * k, dl=x + 3 + 2 * k, pos=x + 0.5 + 2 * k)); k += 1
            g = []
        x = max(at(8, c.pb[1]), x + 2 * k)
        red.append(Filler([self.wvm(('F', 6))] + self.check(vF, 1, fload(6), 'f6'), rel=x, dl=x + 2))
        x = place(dloads(6, bufs[5]), x + 1)
        x = max(at(8, c.pb[2]), x)
        red.append(Filler(poll(7), rel=x, dl=x + 2))
        if c.red_off:
            red = []
            self.spins = []
            fl = [f for f in fl if f.stream != 'sig']
        if c.st_off:
            fl = [f for f in fl if not (f.stream == 'st' and f.ins[0].kind == 'vst')]
        for f in fl:
            if f.stream == 'red':
                red.append(f)
        fl = [f for f in fl if f.stream != 'red']
        red.sort(key=lambda f: f.rel)
        for f in red:
            f.stream = 'red'
        fl += red
        for f in fl:
            f.rel = min(f.rel, len(mf) - 1)
        self.emit(interleave(mf, fl, 8, c.verbose, 'oproj', rate=c.o_rate, cap=24), 'oproj')
        if c.red_off:
            return
        e = [self.wvm(('F', 7))] + self.check(vF, 1, fload(7), 'f7')
        e += flat(dloads(7, bufs[6]))
        for i in range(8):
            e.append(self.wvm(('H', i)))
            for h in range(2):
                acc = v(4 * h, 4)
                e.append(f'{MF} {acc}, {v(SEL + 2 - 2 * h, 4)}, {a(4 * i, 4)}, {acc if i else 0}')
        e += [self.wvm(('D', 6))] + adds(bufs[5])
        e += [f's_mul_i32 {s(sPS)}, {s(sJ)}, {32 * 2304}', f's_add_u32 {s(sPS)}, {s(sPS)}, {s(sOO)}', f's_add_u32 {s(sPS)}, {s(sPS)}, 1024',
              f's_add_u32 {s(sT3)}, {s(sPS)}, {16 * 2304}']
        e += [f'v_cvt_pk_bf16_f32 {v(8 + i)}, {v(2 * i)}, {v(2 * i + 1)}' for i in range(4)]
        e += [f's_cmp_lt_u32 {s(sJ)}, 3', 's_cbranch_scc0 L_nosh']
        self.emit(e, 'otail')
        self.raw([f'buffer_store_dwordx2 {v(8, 2)}, {v(vOO)}, {s(SRD_OUT, 4)}, {s(sPS)} offen{c.out_mod}',
                  f'buffer_store_dwordx2 {v(10, 2)}, {v(vOO)}, {s(SRD_OUT, 4)}, {s(sT3)} offen{c.out_mod}', 'L_nosh:'])
        e = []
        e += [f's_lshl_b32 {s(sPS)}, {s(sJ)}, 7', f's_add_u32 {s(sPS)}, {s(sPS)}, {s(sOO)}']
        e += [self.wvm(('D', 7))] + adds(bufs[6])
        for t in range(6):
            e += [f'v_cvt_pk_bf16_f32 {v(12 + 2 * t + i)}, {v(RR + 4 * t + 2 * i)}, {v(RR + 4 * t + 2 * i + 1)}' for i in range(2)]
            e.append(I(f'buffer_store_dwordx2 {v(12 + 2 * t, 2)}, {v(vOO)}, {s(SRD_OUT, 4)}, {s(sPS)} offen{c.out_mod}', tag='Z'))
            if t < 5:
                e.append(f's_add_u32 {s(sPS)}, {s(sPS)}, {16 * 2304}')
        self.emit(e, 'otail')

    def rare_paths(self):
        for site, new in self.sites:
            self.raw([f'L_rare_{site}:', f's_call_b64 {s(sRET, 2)}, L_rescale_{new}', f's_branch L_back_{site}'])
        if not self.sites:
            return
        for new in range(2):
            e = []
            self.raw([f'L_rescale_{new}:', 's_nop 15'])
            m, m2, f = v(vT), v(vT + 1), v(vT + 2)
            for t in range(6):
                r = [Sr(new, 0, t) + i for i in range(4)] + [Sr(new, 1, t) + i for i in range(4)]
                e += [f'v_max3_f32 {m}, {v(r[0])}, {v(r[1])}, {v(r[2])}', f'v_max3_f32 {m}, {m}, {v(r[3])}, {v(r[4])}',
                      f'v_max3_f32 {m}, {m}, {v(r[5])}, {v(r[6])}', f'v_max3_f32 {m}, {m}, {v(r[7])}, 0'] + self.xlane_max(m, m2)
                e += [f'v_exp_f32 {f}, -{m}']
                e += [f'v_sub_f32 {v(NM + 4 * t + i)}, {v(NM + 4 * t + i)}, {m}' for i in range(4)]
                e += [f'v_sub_f32 {v(x)}, {v(x)}, {m}' for x in r]
                e += [f'v_mul_f32 {v(L_ + 4 * t + i)}, {v(L_ + 4 * t + i)}, {f}' for i in range(4)]
                for dt in range(8):
                    for i in range(0, 4, 2):
                        o = Oacc(dt, t) + i
                        e += [f'v_accvgpr_read_b32 {v(vMX)}, {a(o)}', f'v_accvgpr_read_b32 {v(vMX + 1)}, {a(o + 1)}',
                              f'v_mul_f32 {v(vMX)}, {v(vMX)}, {f}', f'v_mul_f32 {v(vMX + 1)}, {v(vMX + 1)}, {f}',
                              f'v_accvgpr_write_b32 {a(o)}, {v(vMX)}', f'v_accvgpr_write_b32 {a(o + 1)}, {v(vMX + 1)}']
            e += ['s_nop 1', f's_setpc_b64 {s(sRET, 2)}']
            self.out += pad_hazards([mk(x) for x in e])

    def finish(self):
        self.raw(['L_end:', 's_endpgm'])

    def trace_move(self):
        if self.c.trace:
            self.tr(name='norm')
            self.emit([f'v_mov_b32 v126, {v(vTRa)}', f'v_mov_b32 v127, {v(vTRb)}'] + [f'v_writelane_b32 v126, 0, {58 + k}' for k in range(6)])
            self.trreg = (126, 127)

    def trace_out(self):
        if not self.c.trace:
            return
        self.tr(name='tail')
        self.emit(['s_waitcnt vmcnt(0)'])
        self.tr(name='drain')
        e = [f's_add_u32 s12, s58, {STAMP_OFF + 0x80000}', 's_addc_u32 s13, s59, 0', 's_mov_b32 s14, 0x80000', 's_mov_b32 s15, 0x20000',
             f's_lshl_b32 {s(sT1)}, s2, 2', f's_add_u32 {s(sT1)}, {s(sT1)}, {s(sW)}', f's_lshl_b32 {s(sT1)}, {s(sT1)}, 9',
             f'v_lshrrev_b32 v40, 1, {v(vPS)}', I(f'buffer_store_dwordx2 v[126:127], v40, s[12:15], {s(sT1)} offen', tag='TR')]
        self.emit(e)

    def kernel1(self):
        c = self.c
        self.setup()
        self.qproj()
        self.attention(c.mode == 'safe')
        self.tr(name='last')
        vm_join = list(self.vm)
        self.raw(['L_norm:'])
        e = []
        if c.mode == 'fast':
            m = v(vT)
            e += [f'v_max3_f32 {m}, {v(L_)}, {v(L_ + 4)}, {v(L_ + 8)}', f'v_max3_f32 {m}, {m}, {v(L_ + 12)}, {v(L_ + 16)}',
                  f'v_max_f32 {m}, {m}, {v(L_ + 20)}', f'v_cmp_nge_f32 vcc, {s(sLTHR)}, {m}',
                  's_nop 1', 's_cmp_lg_u64 vcc, 0', f's_cselect_b32 {s(sT1)}, 1, 0', f's_andn2_b32 {s(sT1)}, {s(sT1)}, {s(sSAFE)}',
                  f'v_mov_b32 {v(vT + 1)}, {s(sT1)}', f's_lshl_b32 {s(sT1)}, {s(sW)}, 2', f's_add_u32 {s(sT1)}, {s(sT1)}, {49152}',
                  f'v_mov_b32 {v(vT + 2)}, {s(sT1)}', f'ds_write_b32 {v(vT + 2)}, {v(vT + 1)}']
        e += self.onorm()
        e += [self.wvm(('O', 3)), 's_waitcnt lgkmcnt(0)', 's_barrier']
        if c.mode == 'fast':
            e += [f'v_mov_b32 {v(vT + 2)}, 49152', f'ds_read_b128 {v(4, 4)}, {v(vT + 2)}', 'v_or3_b32 v4, v4, v5, v6', 'v_or_b32 v4, v4, v7',
                  f'v_readfirstlane_b32 {s(sT1)}, v4', f's_cmp_lg_u32 {s(sT1)}, 0', 's_cbranch_scc1 L_fallback']
        self.emit(e, 'onorm')
        self.trace_move()
        self.oproj()
        self.trace_out()
        self.finish()
        if c.mode == 'fast':
            self.raw(['L_fallback:'])
            self.lg = []; self.vm = []
            tr = c.trace
            c.trace = False
            e = ['s_waitcnt vmcnt(0) lgkmcnt(0)', 's_barrier', f's_mov_b32 {s(sSAFE)}, 1', f's_mov_b32 {s(sOFF)}, {s(sOFF0)}',
                 f's_add_u32 {s(sOFF2)}, {s(sOFF)}, 4096', f's_mov_b32 {s(SRD_KV + 2)}, 262144']
            self.emit(e)
            self.kv_reload()
            self.attention(True)
            assert self.vm == vm_join, (self.vm, vm_join)
            self.emit(['s_waitcnt lgkmcnt(0)', 's_nop 15', 's_branch L_norm'])
            c.trace = tr
        self.rare_paths()
        self.spin_blocks()
        return self.out


def descriptor(name, vg, acc, sg=102):
    d = ['.section .rodata,"a"', '.p2align 6', f'.amdhsa_kernel {name}']
    for k, x in dict(next_free_vgpr=vg, next_free_sgpr=sg, accum_offset=acc, group_segment_fixed_size=0, kernarg_size=104,
                     user_sgpr_count=2, user_sgpr_kernarg_segment_ptr=1, system_sgpr_workgroup_id_x=1).items():
        d.append(f'  .amdhsa_{k} {x}')
    d.append('.end_amdhsa_kernel')
    return d


def build(cfg, path):
    g = Gen(cfg)
    k1 = g.kernel1()
    L = ['; @launch grid=(256,1,1) block=(256,1,1) lds=163840',
         '; Fused GQA block x2: Q projection + flash attention + O projection with an in-kernel reduce-scatter.',
         '.amdgcn_target "amdgcn-amd-amdhsa--gfx950"', '.text']
    L += [f'.globl {K1}', '.p2align 8', f'.type {K1},@function', f'{K1}:']
    L += [('' if x.kind in ('label', 'dir') else '    ') + x.text for x in k1]
    if cfg.trace:
        assert g.ntr == len(g.trnames) <= 58, (g.ntr, len(g.trnames))
        L += ['; trnames ' + ' '.join(g.trnames)]
    L += descriptor(K1, 512, 256)
    open(path, 'w').write('\n'.join(L) + '\n')
    return g

if __name__ == '__main__':
    kw = {}
    path = sys.argv[1]
    for x in sys.argv[2:]:
        k, val = x.split('=', 1)
        try:
            val = eval(val)
        except Exception:
            pass
        kw[k] = val
    build(Cfg(**kw), path)
```

```python
import sys, math, struct
from asmlib import *

NAME = 'concat_heads__gqa_block_cached__gqa_block_cached__near_ridge'
K1 = NAME + '_kernel'
K2 = 'reduce_partials_kernel'


def f2u(x):
    return struct.unpack('<I', struct.pack('<f', x))[0]


class Cfg:
    trace = False
    dma_cost = 20
    rot = True
    krot = True
    warm_wo = True
    warm_stride = 128
    kv_nt = ' nt'
    w_nt = ' nt'
    x_nt = ' nt'
    wo_nt = ''
    st_mod = ' sc1'
    fl_mod = ' sc1'
    d_mod = ' sc1'
    out_mod = ''
    thr = 8.0
    lthr = 2.0 ** 40
    verbose = False
    kv_from = 28
    kv_sp = 5
    kv_gap = 0
    put_q = 6
    win = (3, 4)
    fake_kv = False
    mode = 'fast'
    force_fb = False
    q_rate = 8.0
    a_rate = 8.3
    o_rate = 8.0
    npart1 = 30
    oring = 5
    sig = (54, 54, 42)
    pa = (30, 70, 30, 70)
    pb = (20, 60, 84)
    add_at = (101, 111, 122, 135)
    sh_at = 2
    prepoll = False
    spin_max = 20000
    no_stage = False
    dbgout = False
    q32 = False
    wq_sp = 6
    q32_budget = 24
    xtouch = 2
    warm_it = 31
    vsum = False
    nosum = False
    noexp = False
    krot_m = 9
    red2 = True
    warm_code = True
    trace_o = False
    red_off = False
    st_off = False
    warm_nt = ''
    warm_at = (0, 1)
    init_u = 4
    fake_w = False

    def __init__(self, **kw):
        for k, x in kw.items():
            assert hasattr(self, k), k
            setattr(self, k, x)


TS = 8704
RING = 4 * TS
XB = 4 * RING
OB = 65536
GRP = 9 * 8 * 12288
FL_OFF = 32 * GRP
STAMP_OFF = 256 * 122880
assert FL_OFF + 32 * 32768 <= STAMP_OFF
OOB = 0x7ffffff0

sW = 3
sB, sJ, sBLK = 4, 5, 6
SRD_KV, SRD_WQ, SRD_X, SRD_WO, SRD_WS = 8, 12, 16, 20, 24
SRD_FL, SRD_DBG, SRD_OUT = 60, 64, 68
sRING = 28
sOFF, sOFF2 = 29, 30
sHH = 31
sLOOP = 32
sT0, sT1, sT2 = 33, 34, 35
sTB = 40
sH = 44
sWK, sXK = 48, 49
sOFF0 = 50
sSAFE = 51
sTR = 52
sSPIN = 53
sTM = 54
sXL, sSO = 72, 73
sC = 74
sTHR, sLTHR = 76, 77
sRET = 78
sFS = 90
sC1152 = 91
sWOL, sCG, sPS, sPSB, sKL, sFA, sDA, sT3, sGRP, sOO = 80, 81, 82, 83, 84, 85, 86, 87, 88, 89

S_ = [0, 48]
NM = 96
L_ = 120
P_ = 144
FR = 168
ONES = 184
vT = 188
vKA = 192
vVA = 193
vKV = 197
vLANE = 198
vKW = 199
Q45 = 200
vMX = 232
vDB = 242
vTRa, vTRb = 254, 255
QA = 200
vWA = 216
vXA = 244
vWV = 220
vXV = 224
vH = 226
QB = 192
OACC = [0, 24]
OA_ = 48
OPK = 64
RR = 76
vR = 80
LDB = 100
vBA = 100
vOW = 104
vPA = 119
vOV, vOA, vOA2, vPS, vF, vOO, vL0 = 112, 113, 114, 115, 116, 117, 118
SEL = 120
OBV = 128

MF = 'v_mfma_f32_16x16x32_bf16'
MF32 = 'v_mfma_f32_32x32x16_bf16'


def Sr(buf, c, t):
    return S_[buf] + (c * 6 + t) * 4


def Qfrag(t, ks):
    return a(192 + 16 * t + 4 * ks, 4) if t < 4 else v(Q45 + 16 * (t - 4) + 4 * ks, 4)


def Oacc(dt, t):
    return (dt * 6 + t) * 4


def Bfrag(phi):
    return a(4 * phi, 4) if phi < 64 else v(OBV + 4 * (phi - 64), 4)


flat = lambda gs: [x for g in gs for x in g]


class Gen:
    def __init__(self, cfg):
        self.c = cfg
        self.out = []
        self.lg = []
        self.vm = []
        self.spins = []
        self.sites = []
        self.ntr = 0
        self.trreg = (vTRa, vTRb)
        self.trnames = []
        self.plan_wo()

    def emit(self, seq, name=''):
        seq = [mk(x) for x in seq]
        seq, self.lg = auto_lgkm(seq, self.lg)
        seq = self.resolve_vm(seq)
        rep = []
        seq = pad_hazards(seq, history=self.out[-40:], report=rep)
        if rep and self.c.verbose:
            for r in rep:
                if 'm0' not in r[1]:
                    print(f'  nop[{name}]', r)
        self.out.extend(seq)

    def raw(self, seq):
        self.out.extend(mk(x) for x in seq)

    def resolve_vm(self, seq):
        out = []
        for ins in seq:
            if ins.kind == 'wait' and 'vmcnt(?)' in ins.text:
                tags = ins.tag if isinstance(ins.tag, list) else [ins.tag]
                idx = -1
                for k, t in enumerate(self.vm):
                    if t in tags:
                        idx = k
                if idx < 0:
                    continue
                n = min(len(self.vm) - 1 - idx, 63)
                self.vm = self.vm[len(self.vm) - n:] if n else []
                out.append(I(f's_waitcnt vmcnt({n})'))
                continue
            if ins.kind == 'wait':
                m = re.search(r'vmcnt\((\d+)\)', ins.text)
                if m:
                    n = int(m.group(1))
                    if n < len(self.vm):
                        self.vm = self.vm[len(self.vm) - n:] if n else []
            if ins.kind in ('dma', 'vld', 'vst'):
                self.vm.append(ins.tag)
            out.append(ins)
        return out

    def wvm(self, tags):
        return I('s_waitcnt vmcnt(?)', tag=tags)

    def dma(self, vreg, srd, soff, imm, mod, tag):
        o = f' offset:{imm}' if imm else ''
        return I(f'buffer_load_dwordx4 {v(vreg)}, {s(srd, 4)}, {soff} offen{o}{mod} lds', tag=tag, cost=self.c.dma_cost)

    def tr_code(self, dyn=False):
        k = self.ntr
        self.ntr += 1
        ra, rb = self.trreg
        e = ['s_waitcnt lgkmcnt(0)', f's_memrealtime {s(sTM, 2)}', f's_memtime {s(sTM + 2, 2)}', 's_waitcnt lgkmcnt(0)']
        if dyn:
            e += [f's_mov_b32 m0, {s(sTR)}', 's_nop 3', f'v_writelane_b32 {v(ra)}, {s(sTM)}, m0',
                  f'v_writelane_b32 {v(rb)}, {s(sTM + 2)}, m0', f's_add_u32 {s(sTR)}, {s(sTR)}, 1']
        else:
            e += [f'v_writelane_b32 {v(ra)}, {s(sTM)}, {k}', f'v_writelane_b32 {v(rb)}, {s(sTM + 2)}, {k}', f's_mov_b32 {s(sTR)}, {k + 1}']
        return e

    def tr(self, dyn=False, name=''):
        if not self.c.trace or (self.c.trace_o and name == 'it'):
            return
        self.trnames.append(name)
        sv = [set(x) for x in self.lg]
        self.emit(self.tr_code(dyn))
        self.lg = sv

    def tr_filler(self, fl, g, name=''):
        if self.c.trace:
            self.trnames.append(name)
            fl.append(Filler(self.tr_code(), rel=g, dl=g, stream='tr', cost=0))

    def kv_groups(self, sb, base, tag, win=None):
        m0 = lambda n: f's_add_u32 m0, {s(sb)}, {base + 1088 * n - 1024 * (n & 3)}'
        groups = [[m0(0)]]
        for n in range(8):
            g = [f's_waitcnt vmcnt({win[n % len(win)] if isinstance(win, tuple) else win})'] if win is not None else []
            g.append(self.dma(vKV, SRD_KV, s(sOFF if n < 4 else sOFF2), 1024 * (n & 3), self.c.kv_nt, tag))
            if n < 7:
                g.append(m0(n + 1))
            groups.append(g)
        groups.append([f's_add_u32 {s(sOFF)}, {s(sOFF)}, 8192', f's_and_b32 {s(sOFF)}, {s(sOFF)}, 0x3ffff',
                       f's_add_u32 {s(sOFF2)}, {s(sOFF)}, 4096'])
        return groups

    def kv_tile(self, slot, tag):
        return self.kv_groups(sRING, slot * TS, tag)

    def kv_stage(self):
        groups = []
        for tl in range(2):
            for n in range(8):
                g = []
                so = sOFF if n < 4 else sOFF2
                if tl == 3 and n == 0:
                    g += [f's_lshl_b32 {s(SRD_KV + 2)}, {s(sKL)}, 18']
                o = f' offset:{1024 * (n & 3)}' if n & 3 else ''
                g.append(I(f'buffer_load_dwordx4 {a(32 * tl + 4 * n, 4)}, {v(vKV)}, {s(SRD_KV, 4)}, {s(so)} offen{o}{self.c.kv_nt}',
                           tag=('T', tl, n), cost=self.c.dma_cost))
                if n == 7:
                    if tl == 3:
                        g += [f's_mov_b32 {s(SRD_KV + 2)}, 262144', f's_lshl_b32 {s(sT3)}, {s(sKL)}, 13', f's_add_u32 {s(sOFF)}, {s(sOFF)}, {s(sT3)}']
                    else:
                        g += [f's_add_u32 {s(sOFF)}, {s(sOFF)}, 8192']
                    g += [f's_and_b32 {s(sOFF)}, {s(sOFF)}, 0x3ffff', f's_add_u32 {s(sOFF2)}, {s(sOFF)}, 4096']
                if self.c.no_stage:
                    g = [x for x in g if not isinstance(x, I)] or ['s_nop 0']
                groups.append(g)
        return groups

    def kv_put(self, tl, n):
        return [self.wvm(('T', tl, n)), I(f'ds_write_b128 {v(vKW)}, {a(32 * tl + 4 * n, 4)} offset:{tl * TS + 1088 * n}', cost=12)]

    def code_warm(self):
        L = v(vLANE)
        return ['s_getpc_b64 s[96:97]', f's_lshl_b32 {s(sT1)}, s7, 2', f's_add_u32 {s(sT1)}, {s(sT1)}, {s(sW)}',
                f's_and_b32 {s(sT1)}, {s(sT1)}, 7', f's_min_u32 {s(sT1)}, {s(sT1)}, 6', f's_lshl_b32 {s(sT1)}, {s(sT1)}, 13', f'v_lshlrev_b32 {v(vH + 2)}, 7, {L}',
                f'v_add_u32 {v(vH + 2)}, {s(sT1)}, {v(vH + 2)}', I(f'global_load_dword v240, {v(vH + 2)}, s[96:97]', tag='CW')]

    def x_touch(self, kc_now):
        L = v(vLANE)
        t0, t1 = v(vH + 2), v(vH + 3)
        d = 128 * (7 - kc_now)
        return [f'v_and_b32 {t0}, 1, {L}', f'v_lshlrev_b32 {t0}, 7, {t0}', f's_add_u32 {s(sT1)}, {s(sXK)}, {d}', f'v_add_u32 {t0}, {s(sT1)}, {t0}',
                f'v_subrev_u32 {t1}, 1152, {t0}', f'v_min_u32 {t0}, {t0}, {t1}',
                f'v_lshrrev_b32 {t1}, 1, {L}', f'v_min_u32 {t1}, 23, {t1}', f's_mul_i32 {s(sT1)}, {s(sW)}, {24 * 1152}',
                f'v_mad_u32_u24 {t0}, {t1}, {s(sC1152)}, {t0}',
                I(f'buffer_load_dword v239, {t0}, {s(SRD_X, 4)}, {s(sT1)} offen{self.c.x_nt}', tag='W', cost=self.c.dma_cost)]

    def flag_clear(self):
        L = v(vLANE)
        t0, t1 = v(vH), v(vH + 1)
        return [f'v_lshlrev_b32 {t0}, 7, {L}', f'v_mov_b32 {t1}, {OOB}', f's_cmp_eq_u32 {s(sW)}, 0', f's_cselect_b32 {s(sT3)}, 32, 0',
                f'v_cmp_gt_u32 vcc, {s(sT3)}, {L}', f's_lshl_b32 {s(sT3)}, {s(sJ)}, 12',
                's_nop 0', f'v_cndmask_b32 {t0}, {t1}, {t0}, vcc', f'v_mov_b32 {t1}, 0',
                I(f'buffer_store_dword {t1}, {t0}, {s(SRD_FL, 4)}, {s(sT3)} offen{self.c.fl_mod}', tag='CLR')]

    def clear_done(self):
        L = v(vLANE)
        t0, t1 = v(vDB), v(vDB + 1)
        return [f'v_mov_b32 {t1}, {OOB}', f's_cmp_eq_u32 {s(sW)}, 0', f's_cselect_b32 {s(sT3)}, 1, 0', f'v_cmp_gt_u32 vcc, {s(sT3)}, {L}',
                f's_lshl_b32 {s(sT3)}, {s(sGRP)}, 3', f's_add_u32 {s(sT3)}, {s(sT3)}, {s(sJ)}',
                f'v_cndmask_b32 {t0}, {t1}, {L}, vcc', f'v_mov_b32 {t1}, 1',
                I(f'buffer_store_byte {t1}, {t0}, {s(SRD_DBG, 4)}, {s(sT3)} offen sc1', tag='SIG')]

    def setup(self):
        c = self.c
        e = ['s_cmp_ge_u32 s2, 256', 's_cbranch_scc1 L_end']
        if c.trace:
            e += [f's_memrealtime {s(98, 2)}', f's_memtime {s(100, 2)}']
        e += ['s_load_dwordx8 s[36:43], s[0:1], 0', 's_load_dwordx2 s[44:45], s[0:1], 32',
              's_load_dwordx8 s[48:55], s[0:1], 40', 's_load_dwordx2 s[56:57], s[0:1], 72',
              's_load_dwordx2 s[58:59], s[0:1], 96', 's_load_dwordx4 s[92:95], s[0:1], 80']
        e += ['v_lshrrev_b32 v1, 6, v0', f'v_and_b32 {v(vLANE)}, 63, v0', f'v_readfirstlane_b32 {s(sW)}, v1']
        e += ['s_lshr_b32 s7, s2, 3', f's_and_b32 {s(sB)}, s7, 15', f's_lshr_b32 {s(sJ)}, s7, 4', 's_and_b32 s6, s2, 3',
              's_lshl_b32 s6, s6, 1', f's_add_u32 {s(sJ)}, {s(sJ)}, s6', f's_bfe_u32 {s(sBLK)}, s2, 0x10002']
        e += [f's_and_b32 {s(sHH)}, {s(sW)}, 1', f's_lshr_b32 {s(sT0)}, {s(sW)}, 1']
        e += [f's_lshl_b32 {s(sT1)}, {s(sHH)}, 1', f's_add_u32 {s(sT1)}, {s(sT1)}, {s(sT0)}',
              f's_mul_i32 {s(sRING)}, {s(sT1)}, {RING}',
              f's_lshl_b32 {s(sWOL)}, {s(sW)}, 10', f's_add_u32 {s(sXL)}, {s(sWOL)}, {XB}']
        if c.rot:
            e += [f's_and_b32 {s(sOFF)}, s7, 31', f's_lshl_b32 {s(sOFF)}, {s(sOFF)}, 13']
        else:
            e += [f's_mov_b32 {s(sOFF)}, 0']
        e += [f's_add_u32 {s(sOFF2)}, {s(sOFF)}, 4096']
        L = v(vLANE)
        e += [f'v_lshrrev_b32 v1, 4, {L}',
              f'v_and_b32 v2, 15, {L}',
              f'v_lshrrev_b32 v5, 2, v2',
              f'v_and_b32 v6, 3, {L}',
              f'v_lshrrev_b32 v8, 3, {L}', f'v_and_b32 v9, 7, {L}',
              'v_lshrrev_b32 v10, 1, v8']
        e += ['v_xor_b32 v11, v9, v10', f's_lshl_b32 {s(sT1)}, {s(sHH)}, 2', f'v_xor_b32 v11, {s(sT1)}, v11', 'v_lshlrev_b32 v11, 4, v11',
              f's_lshl_b32 {s(sT1)}, {s(sW)}, 3', f'v_add_u32 v12, {s(sT1)}, v8', 'v_mul_u32_u24 v12, 1152, v12',
              f'v_add_u32 {v(vXV)}, v12, v11']
        if c.q32:
            e += ['v_lshlrev_b32 v11, 2, v1', 'v_xor_b32 v11, v2, v11', 'v_lshlrev_b32 v11, 4, v11', 'v_lshl_add_u32 v11, v1, 13, v11']
        else:
            e += ['v_and_b32 v11, 1, v10', 'v_lshlrev_b32 v11, 2, v11', 'v_xor_b32 v11, v9, v11', 'v_lshlrev_b32 v11, 4, v11',
                  'v_lshl_add_u32 v11, v8, 13, v11']
        e += [f's_lshl_b32 {s(sT1)}, {s(sJ)}, 2', f's_add_u32 {s(sT1)}, {s(sT1)}, {s(sW)}', f's_lshl_b32 {s(sT1)}, {s(sT1)}, 8',
              f'v_add_u32 {v(vWV)}, {s(sT1)}, v11']
        for n in range(1, 4):
            e += [f'v_add_u32 {v(vWV + n)}, {(31744 if c.q32 else 64512) * n}, {v(vWV)}']
        e += ['s_waitcnt lgkmcnt(0)']
        e += [f's_cmp_eq_u32 {s(sBLK)}, 0']
        for d in range(10):
            e += [f's_cselect_b32 s{36 + d}, s{36 + d}, s{48 + d}']
        e += [f's_mul_i32 {s(sT1)}, {s(sB)}, 110592', f's_add_u32 {s(SRD_X)}, s36, {s(sT1)}', f's_addc_u32 {s(SRD_X + 1)}, s37, 0',
              f's_mov_b32 {s(SRD_X + 2)}, 110592', f's_mov_b32 {s(SRD_X + 3)}, 0x20000']
        e += [f's_mov_b32 {s(SRD_WQ)}, s42', f's_mov_b32 {s(SRD_WQ + 1)}, s43', f's_mov_b32 {s(SRD_WQ + 2)}, 4718592',
              f's_mov_b32 {s(SRD_WQ + 3)}, 0x20000']
        if c.krot and c.krot_m > 1:
            m = c.krot_m
            e += [f's_mul_hi_u32 {s(sT1)}, {s(sB)}, {(2 ** 32 + m - 1) // m}', f's_mul_i32 {s(sT1)}, {s(sT1)}, {m}', f's_sub_u32 {s(sT1)}, {s(sB)}, {s(sT1)}',
                  f's_mul_i32 {s(sT1)}, {s(sT1)}, {9 // m}', f's_lshl_b32 {s(sXK)}, {s(sT1)}, 7', f's_lshl_b32 {s(sWK)}, {s(sT1)}, 19']
        else:
            e += [f's_mov_b32 {s(sXK)}, 0', f's_mov_b32 {s(sWK)}, 0']
        self.emit(e, 'setup')
        e = self.late_setup = []
        e += [f's_cmp_eq_u32 {s(sHH)}, 0', 's_cselect_b32 s38, s38, s40', 's_cselect_b32 s39, s39, s41',
              f's_lshl_b32 {s(sT1)}, {s(sB)}, 4', f's_lshl_b32 {s(sT2)}, {s(sJ)}, 1', f's_add_u32 {s(sT1)}, {s(sT1)}, {s(sT2)}',
              f's_add_u32 {s(sT1)}, {s(sT1)}, {s(sT0)}',
              f's_lshl_b32 {s(sT1)}, {s(sT1)}, 18' if not c.fake_kv else f's_lshl_b32 {s(sT1)}, {s(sT0)}, 18',
              f's_add_u32 {s(SRD_KV)}, s38, {s(sT1)}', f's_addc_u32 {s(SRD_KV + 1)}, s39, 0',
              f's_mov_b32 {s(SRD_KV + 2)}, 262144', f's_mov_b32 {s(SRD_KV + 3)}, 0x20000']
        e += ['v_and_b32 v11, 1, v1', 'v_lshlrev_b32 v11, 1, v11', 'v_lshrrev_b32 v12, 1, v1', 'v_lshl_or_b32 v11, v12, 3, v11',
              f's_cmp_eq_u32 {s(sHH)}, 0', 's_cselect_b64 vcc, -1, 0', 's_nop 1', 'v_cndmask_b32 v11, v11, v1, vcc',
              'v_xor_b32 v11, v2, v11', 'v_lshlrev_b32 v11, 4, v11', f'v_lshl_add_u32 {v(vKV)}, v1, 8, v11']
        e += [f's_mul_i32 {s(sT1)}, {s(sJ)}, 589824', f's_add_u32 {s(SRD_WO)}, s44, {s(sT1)}', f's_addc_u32 {s(SRD_WO + 1)}, s45, 0',
              f's_mov_b32 {s(SRD_WO + 2)}, 589824', f's_mov_b32 {s(SRD_WO + 3)}, 0x20000']
        e += [f's_lshl_b32 {s(sGRP)}, {s(sBLK)}, 4', f's_add_u32 {s(sGRP)}, {s(sGRP)}, {s(sB)}', f's_lshl_b32 {s(sT1)}, {s(sGRP)}, 15',
              f's_add_u32 {s(sT1)}, {s(sT1)}, {FL_OFF}', f's_add_u32 {s(SRD_FL)}, s58, {s(sT1)}', f's_addc_u32 {s(SRD_FL + 1)}, s59, 0',
              f's_mov_b32 {s(SRD_FL + 2)}, 32768', f's_mov_b32 {s(SRD_FL + 3)}, 0x20000',
              f's_mov_b32 {s(SRD_DBG)}, s94', f's_mov_b32 {s(SRD_DBG + 1)}, s95', f's_mov_b32 {s(SRD_DBG + 2)}, 256', f's_mov_b32 {s(SRD_DBG + 3)}, 0x20000',
              f's_mov_b32 {s(SRD_OUT)}, s92', f's_mov_b32 {s(SRD_OUT + 1)}, s93', f's_mov_b32 {s(SRD_OUT + 2)}, 3538944', f's_mov_b32 {s(SRD_OUT + 3)}, 0x20000',
              f's_lshl_b32 {s(sPSB)}, {s(sJ)}, 2', f's_add_u32 {s(sPSB)}, {s(sPSB)}, {s(sW)}',
              f's_xor_b32 {s(sKL)}, {s(sHH)}, 1', f'v_lshlrev_b32 {v(vKW)}, 4, {L}', f'v_add_u32 {v(vKW)}, {s(sRING)}, {v(vKW)}']
        e += [f's_mul_i32 {s(sT1)}, {s(sGRP)}, {GRP}',
              f's_add_u32 {s(SRD_WS)}, s58, {s(sT1)}', f's_addc_u32 {s(SRD_WS + 1)}, s59, 0',
              f's_mov_b32 {s(SRD_WS + 2)}, {GRP}', f's_mov_b32 {s(SRD_WS + 3)}, 0x20000']
        cs = f2u(math.log2(math.e) / math.sqrt(128.0))
        e += [f's_mov_b32 {s(sC)}, {cs:#x}', f's_mov_b32 {s(sC + 1)}, {cs:#x}', f's_mov_b32 {s(sTHR)}, {f2u(c.thr):#x}',
              f's_mov_b32 {s(sLTHR)}, {f2u(c.lthr if not c.force_fb else 1.0):#x}', f's_mov_b32 {s(sSAFE)}, 0', f's_mov_b32 {s(sC1152)}, 1152',
              f's_mov_b32 {s(sOFF0)}, {s(sOFF)}']
        if c.q32:
            e += [f'v_lshrrev_b32 v3, 5, {L}', 'v_and_b32 v4, 1, v1', 'v_lshlrev_b32 v11, 11, v3', 'v_lshl_add_u32 v11, v5, 8, v11',
                  'v_lshl_add_u32 v11, v4, 4, v11', 'v_and_b32 v12, 1, v6', 'v_lshl_add_u32 v11, v12, 5, v11', 'v_lshrrev_b32 v12, 1, v6',
                  'v_lshl_add_u32 v11, v12, 3, v11', f'v_add_u32 v11, {s(sRING)}, v11']
            for ct in range(4):
                e += [f'v_xor_b32 v12, {ct}, v5', f'v_lshl_add_u32 {v(vWA + ct)}, v12, 6, v11']
            e += [f'v_and_b32 v14, 31, {L}', 'v_lshrrev_b32 v11, 3, v14', 'v_and_b32 v12, 7, v14',
                  'v_lshlrev_b32 v13, 10, v11', 'v_lshl_add_u32 v13, v12, 7, v13', f'v_add_u32 v13, {XB}, v13',
                  'v_lshrrev_b32 v12, 1, v12', 'v_and_b32 v11, 1, v11', 'v_lshlrev_b32 v11, 2, v11', 'v_xor_b32 v12, v12, v11', 'v_xor_b32 v12, v12, v3']
            for k in range(4):
                e += [f'v_xor_b32 v11, {2 * k}, v12', f'v_lshl_add_u32 {v(vXA + k)}, v11, 4, v13']
        else:
            e += ['v_lshlrev_b32 v11, 10, v1', 'v_lshl_add_u32 v11, v5, 7, v11', 'v_lshl_add_u32 v11, v6, 4, v11',
                  f'v_add_u32 v11, {s(sRING)}, v11', 'v_lshrrev_b32 v12, 1, v5', f'v_lshl_add_u32 {v(vWA)}, v12, 6, v11',
                  'v_xor_b32 v12, 1, v12', f'v_lshl_add_u32 {v(vWA + 1)}, v12, 6, v11']
            e += ['v_lshrrev_b32 v11, 3, v2', 'v_and_b32 v12, 7, v2', 'v_lshlrev_b32 v13, 10, v11', 'v_lshl_add_u32 v13, v12, 7, v13',
                  f'v_add_u32 v13, {XB}, v13', 'v_lshrrev_b32 v12, 1, v12', 'v_lshlrev_b32 v11, 2, v11', 'v_xor_b32 v12, v12, v11',
                  'v_xor_b32 v12, v12, v1', f'v_lshl_add_u32 {v(vXA)}, v12, 4, v13', 'v_xor_b32 v12, 4, v12',
                  f'v_lshl_add_u32 {v(vXA + 1)}, v12, 4, v13']
        e += [f's_mul_i32 {s(sT1)}, {s(sT0)}, {RING}', 'v_mul_u32_u24 v11, 1088, v5', 'v_lshl_add_u32 v11, v6, 8, v11',
              'v_xor_b32 v12, v1, v6', 'v_lshl_add_u32 v11, v12, 4, v11', f'v_add_u32 {v(vKA)}, {s(sT1)}, v11']
        e += [f's_add_u32 {s(sT1)}, {s(sT1)}, {2 * RING}',
              'v_mul_u32_u24 v11, 1088, v1', 'v_lshl_add_u32 v11, v5, 8, v11', 'v_lshl_add_u32 v11, v6, 3, v11',
              f'v_add_u32 v11, {s(sT1)}, v11',
              'v_and_b32 v12, 1, v5', 'v_lshrrev_b32 v13, 1, v5', 'v_lshl_or_b32 v12, v13, 2, v12']
        for k, d in enumerate((0, 1, 4, 5)):
            e += [f'v_xor_b32 v13, {d}, v12', f'v_lshl_add_u32 {v(vVA + k)}, v13, 5, v11']
        for k in range(4):
            e += [f's_sub_u32 {s(sT1)}, {k}, {s(sHH)}', f's_and_b32 {s(sT1)}, {s(sT1)}, 3', f's_mul_i32 {s(sT1)}, {s(sT1)}, {TS}',
                  f's_add_u32 {s(sTB + k)}, {s(sRING)}, {s(sT1)}']
        for k in range(4):
            e += [f's_add_u32 {s(sT1)}, {s(sB)}, {k}' if c.krot else f's_mov_b32 {s(sT1)}, {k}', f's_and_b32 {s(sT1)}, {s(sT1)}, 3',
                  f's_mul_i32 {s(sH + k)}, {s(sT1)}, 147456']

    def wq_unit(self, u):
        hf = u & 1
        pre = [f's_add_u32 m0, {s(sRING)}, {4096 * ((u + 4) & 7)}', f's_add_u32 {s(sSO)}, {s(sWK)}, {(131072 if self.c.q32 else 128) * hf}']
        g = [pre + [self.dma(vWV, SRD_WQ, s(sSO), 0, self.c.w_nt, ('U', u))]]
        for n in range(1, 4):
            g.append([self.dma(vWV + n, SRD_WQ, s(sSO), 1024 * n, self.c.w_nt, ('U', u))])
        if hf and not self.c.fake_w:
            g.append([f's_add_u32 {s(sWK)}, {s(sWK)}, 262144', f's_cmp_eq_u32 {s(sWK)}, 4718592', f's_cselect_b32 {s(sWK)}, 0, {s(sWK)}'])
        return g

    def x_chunk(self, kc):
        g = []
        for m in range(3):
            g.append([f's_add_u32 m0, {s(sXL)}, {12288 * (kc & 1) + 4096 * m}', f's_add_u32 {s(sSO)}, {s(sXK)}, {36864 * m}',
                      self.dma(vXV, SRD_X, s(sSO), 0, self.c.x_nt, ('X', kc))])
        if not self.c.fake_w:
          g.append([f's_add_u32 {s(sXK)}, {s(sXK)}, 128', f's_cmp_eq_u32 {s(sXK)}, 1152', f's_cselect_b32 {s(sXK)}, 0, {s(sXK)}'])
        return g

    def a_reads(self, u, k):
        r = QA + 4 * k
        if self.c.q32:
            return [f'ds_read_b64_tr_b16 {v(r + 2 * e_, 2)}, {v(vWA + k)} offset:{4096 * ((u + 4) & 7) + 1024 * e_}' for e_ in range(2)]
        return [f'ds_read_b64_tr_b16 {v(r + 2 * e_, 2)}, {v(vWA + (k >> 1))} offset:{4096 * ((u + 4) & 7) + 512 * e_ + 8 * (k & 1)}' for e_ in range(2)]

    def b_read(self, st, t):
        if self.c.q32:
            return f'ds_read_b128 {a(QB + 12 * (st & 1) + 4 * t, 4)}, {v(vXA + (st & 3))} offset:{12288 * ((st >> 2) & 1) + 4096 * t}'
        kc = st >> 1
        return f'ds_read_b128 {a(QB + 24 * (st & 1) + 4 * t, 4)}, {v(vXA + (st & 1))} offset:{12288 * (kc & 1) + 2048 * t}'

    def qproj(self):
        c = self.c
        e = flat(self.x_chunk(0)) + flat(self.wq_unit(0)) + flat(self.wq_unit(1)) + flat(self.x_chunk(1))
        for u in range(2, 4):
            e += flat(self.wq_unit(u))
        if c.warm_code:
            e += self.code_warm()
        e += self.late_setup
        for u in range(4, c.init_u):
            e += flat(self.wq_unit(u))
        if c.trace:
            e += [f'v_writelane_b32 {v(vTRa)}, s98, 0', f'v_writelane_b32 {v(vTRb)}, s100, 0']
            self.ntr = 1
            self.trnames.append('start')
        e += [self.wvm([('X', 0), ('U', 0)]), 's_barrier']
        for t in range(3 if c.q32 else 6):
            e.append(self.b_read(0, t))
        for k in range(3):
            e += self.a_reads(0, k)
        self.emit(e, 'qpre')
        self.tr(name='first')
        mf, fl, dm = [], [], []
        NU = 36
        kvg = self.kv_stage()
        D = 12 if c.q32 else 24
        sc = lambda x: x * D // 24
        for q in range(max(c.init_u, 4), NU):
            x = max(D * (q - 8) + sc(18), (D // 2) * (q - c.init_u) + 1)
            steady = x == D * (q - 8) + sc(18)
            nxt_x = ((q - 7) & 3) == (3 if c.q32 else 2)
            sp = sc(c.wq_sp) if steady and not nxt_x else sc(2)
            if steady and nxt_x and c.q32:
                sp = 1.5
            for k, g in enumerate(self.wq_unit(q)):
                dm.append(Filler(g, rel=x + int(sp * k), dl=x + 1 + int(sp * k), pos=x + 0.5))
        dm.append(Filler(self.flag_clear(), rel=D * 2 + sc(6), dl=D * 2 + sc(16)))
        for u in range(NU):
            st, hf = u >> 1, u & 1
            g0 = D * u
            if c.q32:
                for ct in range(4):
                    for t in range(3):
                        acc = v((ct * 3 + t) * 16, 16)
                        mf.append(I(f'{MF32} {acc}, {v(QA + 4 * ct, 4)}, {a(QB + 12 * (u & 1) + 4 * t, 4)}, {acc if u else 0}'))
            else:
                for k in range(4):
                    ct = 4 * hf + k
                    for t in range(6):
                        acc = v((ct * 6 + t) * 4, 4)
                        mf.append(I(f'{MF} {acc}, {v(QA + 4 * k, 4)}, {a(QB + 24 * (st & 1) + 4 * t, 4)}, {acc if st else 0}'))
            fl.append(Filler(self.a_reads(u, 3), rel=g0, dl=g0 + sc(4), stream='a', pos=g0 + sc(18) - 0.5))
            if u + 1 < NU:
                fl.append(Filler(self.wvm(('U', u + 1)), rel=g0 + sc(5), dl=g0 + sc(8), stream='a'))
                for k in range(3):
                    fl.append(Filler(self.a_reads(u + 1, k), rel=g0 + sc(6 * k + 6), dl=g0 + sc(6 * k + 10), stream='a', pos=g0 + D + sc(6 * k) - 0.5))
            xu = (u & 3 == 3) if c.q32 else (u & 3 == 2)
            if xu and u + 1 < NU:
                kc = u >> 2
                if kc < 8:
                    fl.append(Filler([self.wvm(('X', kc + 1)), 's_barrier'], rel=g0 + sc(6) - (1 if c.q32 else 0), dl=g0 + sc(8) - (1 if c.q32 else 0), stream='b'))
                if kc + 2 <= 8:
                    for k, g in enumerate(self.x_chunk(kc + 2)):
                        dm.append(Filler(g, rel=g0 + sc(9 + 3 * k), dl=g0 + sc(10 + 3 * k), pos=g0 + sc(9) + 0.5))
                if kc == c.xtouch:
                    dm.append(Filler(self.x_touch(kc + 3), rel=g0 + sc(17), dl=g0 + sc(18), pos=g0 + sc(17) + 0.2))
            if c.q32 and u + 1 < NU:
                for t in range(3):
                    fl.append(Filler(self.b_read(u + 1, t), rel=g0 + 4 + t, dl=g0 + 7 + t, stream='b', pos=g0 + 11.5))
            if not c.q32 and hf == 0 and st + 1 < 18:
                for t in range(6):
                    fl.append(Filler(self.b_read(st + 1, t), rel=g0 + 9 + 5 * t, dl=g0 + 30 + t, stream='b', pos=g0 + 47.5))
            if u % 4 == 3 and u < 35:
                self.tr_filler(fl, g0 + D - 1, 'q')
        for i, g in enumerate(kvg):
            x = int(D * c.kv_from + sc(4) + c.kv_sp * i * D / 24)
            fl.append(Filler(g, rel=x, dl=x + 1, stream='kv'))
        dm.sort(key=lambda f: f.pos)
        for f in dm:
            f.stream = 'dma'
        fl += dm
        puts = [(tl, n) for tl in range(2) for n in range(8)]
        for k in range(c.put_q):
            tl, n = puts.pop(0)
            sl = (tl * TS + 1088 * n + 1023) // 4096
            x = min(max(D * (28 + min(sl, 7)) + sc(18), D * NU - sc(4) * (c.put_q - k)), D * NU - 1)
            fl.append(Filler(self.kv_put(tl, n), rel=x, dl=x + sc(2), stream='put'))
        if c.q32:
            seq = interleave(mf, fl, 24, c.verbose, 'qproj', rate=float(c.q32_budget), cap=40)
        else:
            seq = interleave(mf, fl, 8, c.verbose, 'qproj', rate=c.q_rate, cap=24)
        self.emit(seq, 'qproj')
        self.tr(name='q')
        e = []
        for t3 in ((2, 0, 1) if c.q32 else ()):
            for ct in range(4):
                b = (ct * 3 + t3) * 16
                e += [f'v_pk_mul_f32 {v(b + i, 2)}, {v(b + i, 2)}, {s(sC, 2)}' for i in range(0, 16, 2)]
                dst = [Q45 + 16 * (i >> 2) + 4 * ct + (i & 3) if t3 == 2 else b + i for i in range(8)]
                e += [f'v_cvt_pk_bf16_f32 {v(dst[i])}, {v(b + 2 * i)}, {v(b + 2 * i + 1)}' for i in range(8)]
                e += [f'v_permlane16_swap_b32 {v(dst[j])}, {v(dst[4 + j])}' for j in range(4)]
                if t3 < 2:
                    e += [f'v_accvgpr_write_b32 {a(192 + 16 * (2 * t3 + (i >> 2)) + 4 * ct + (i & 3))}, {v(dst[i])}' for i in range(8)]
        for t in (() if c.q32 else (4, 5, 0, 1, 2, 3)):
            for ct in range(8):
                b = (ct * 6 + t) * 4
                e += [f'v_pk_mul_f32 {v(b, 2)}, {v(b, 2)}, {s(sC, 2)}', f'v_pk_mul_f32 {v(b + 2, 2)}, {v(b + 2, 2)}, {s(sC, 2)}']
            for ct in range(8):
                b = (ct * 6 + t) * 4
                ks, uu = ct >> 1, ct & 1
                for h2 in range(2):
                    d = Q45 + 16 * (t - 4) + 4 * ks + 2 * uu + h2 if t >= 4 else b + h2
                    e.append(f'v_cvt_pk_bf16_f32 {v(d)}, {v(b + 2 * h2)}, {v(b + 2 * h2 + 1)}')
            if t < 4:
                for ct in range(8):
                    b = (ct * 6 + t) * 4
                    ks, uu = ct >> 1, ct & 1
                    for h2 in range(2):
                        e.append(f'v_accvgpr_write_b32 {a(192 + 16 * t + 4 * ks + 2 * uu + h2)}, {v(b + h2)}')
        nput = 16 - c.put_q
        for k in range(nput):
            tl, n = puts.pop(0)
            x = (k + 1) * (len(e) // (nput + 1))
            e[x:x] = self.kv_put(tl, n)
        self.puts = puts
        gs = self.kv_tile(2, None) + [[f's_lshl_b32 {s(SRD_KV + 2)}, {s(sKL)}, 18']] + self.kv_tile(3, None)[:-1]
        gs += [[f's_mov_b32 {s(SRD_KV + 2)}, 262144', f's_lshl_b32 {s(sT3)}, {s(sKL)}, 13', f's_add_u32 {s(sOFF)}, {s(sOFF)}, {s(sT3)}',
                f's_and_b32 {s(sOFF)}, {s(sOFF)}, 0x3ffff', f's_add_u32 {s(sOFF2)}, {s(sOFF)}, 4096']]
        step = len(e) // (len(gs) + 1)
        for k in range(len(gs) - 1, -1, -1):
            e[k * step:k * step] = gs[k]
        e += ['s_waitcnt lgkmcnt(0)', 's_barrier']
        self.emit(e, 'qconv')
        self.tr(name='conv')

    def kv_reload(self):
        e = flat(self.kv_tile(0, None)) + flat(self.kv_tile(1, None)) + flat(self.kv_tile(2, None))
        e += [f's_cmp_lg_u32 {s(sHH)}, 0', 's_cbranch_scc1 L_skip_t3'] + flat(self.kv_tile(3, None)) + ['L_skip_t3:', 's_waitcnt vmcnt(0)', 's_barrier']
        self.emit(e)

    def frag_reads(self, phi, kslot, vslot):
        r = FR + 4 * (phi & 3)
        if phi < 8:
            c_, ks = phi >> 2, phi & 3
            return [f'ds_read_b128 {v(r, 4)}, {v(vKA)} offset:{kslot * TS + 4352 * c_ + 64 * ks}']
        dt = phi - 8
        reg = vVA + (dt & 1) + 2 * (dt >> 2)
        return [f'ds_read_b64_tr_b16 {v(r + 2 * e_, 2)}, {v(reg)} offset:{vslot * TS + 4352 * e_ + 64 * ((dt >> 1) & 1)}' for e_ in range(2)]

    def qk_mfmas(self, buf, czero=False):
        mf = []
        for c_ in range(2):
            for ks in range(4):
                for t in range(6):
                    d = v(Sr(buf, c_, t), 4)
                    cc = d if ks else ('0' if czero else v(NM + 4 * t, 4))
                    mf.append(I(f'{MF} {d}, {v(FR + 4 * ks, 4)}, {Qfrag(t, ks)}, {cc}'))
        return mf

    def pv_mfmas(self, czero=False):
        mf, first = [], []
        for dt in range(8):
            first.append(len(mf))
            for t in range(6):
                o = a(Oacc(dt, t), 4)
                mf.append(I(f'{MF} {o}, {v(FR + 4 * (dt & 3), 4)}, {v(P_ + 4 * t, 4)}, {0 if czero else o}'))
            if dt < 6 and not self.c.vsum and not self.c.nosum:
                l = v(L_ + 4 * dt, 4)
                mf.append(I(f'{MF} {l}, {v(ONES, 4)}, {v(P_ + 4 * dt, 4)}, {0 if czero else l}'))
        return mf, first

    def exp_order(self):
        return [(c_, t, i) for c_ in range(2) for t in range(6) for i in range(4)]

    def xlane_max(self, m, m2):
        return [f'v_mov_b32 {m2}, {m}', f'v_permlane32_swap_b32 {m}, {m2}', f'v_max_f32 {m}, {m}, {m2}',
                f'v_mov_b32 {m2}, {m}', f'v_permlane16_swap_b32 {m}, {m2}', f'v_max_f32 {m}, {m}, {m2}']

    def attn_pre(self, safe, lab):
        c = self.c
        self.emit(self.frag_reads(0, 0, 0) + self.frag_reads(1, 0, 0))
        fl = []
        for phi in range(2, 8):
            fl.append(Filler(self.frag_reads(phi, 0, 0), rel=max(6 * phi - 18, -1), dl=6 * phi - 10, stream='fr', pos=6 * phi - 0.5))
        for phi in range(2):
            fl.append(Filler(self.frag_reads(phi, 1, 0), rel=6 * (phi + 8) - 14, dl=6 * (phi + 8) - 10, stream='fr', pos=60))
        for i in range(4):
            fl.append(Filler(f'v_mov_b32 {v(ONES + i)}, 0x3f803f80', rel=0, dl=40, stream='i'))
        for k, (tl, n) in enumerate(self.puts):
            fl.append(Filler(self.kv_put(tl, n), rel=3 * k, dl=3 * k + 1, stream='put'))
        self.puts = []
        self.emit(interleave(self.qk_mfmas(0, True), fl, 8, c.verbose, 'qk0', rate=8.0), 'qk0')
        e = []
        for t0 in (0, 3):
            ms = [(v(vMX + 2 * k), v(vMX + 2 * k + 1)) for k in range(3)]
            rows = []
            for k in range(3):
                t = t0 + k
                m, m2 = ms[k]
                r = [Sr(0, 0, t) + i for i in range(4)] + [Sr(0, 1, t) + i for i in range(4)]
                row = [f'v_max3_f32 {m}, {v(r[0])}, {v(r[1])}, {v(r[2])}', f'v_max3_f32 {m}, {m}, {v(r[3])}, {v(r[4])}',
                       f'v_max3_f32 {m}, {m}, {v(r[5])}, {v(r[6])}', f'v_max_f32 {m}, {m}, {v(r[7])}'] + self.xlane_max(m, m2)
                row += [f'v_sub_f32 {v(NM + 4 * t + i)}, 0, {m}' for i in range(4)]
                row += [f'v_sub_f32 {v(x)}, {v(x)}, {m}' for x in r]
                rows.append(row)
            for z in zip(*rows):
                e += list(z)
        if not safe:
            for (c_, t, i) in self.exp_order()[:c.npart1]:
                x = v(Sr(0, c_, t) + i)
                e.append(f'v_exp_f32 {x}, {x}')
        e += ['s_waitcnt lgkmcnt(0)', 's_barrier']
        self.emit(e, 'max0')
        self.vm = []

    def cvt_fillers(self, cur, base, todo, rel0):
        fl = []
        todo = list(todo)
        for t in range(6):
            for c_ in range(2):
                for h2 in range(2):
                    b = Sr(cur, c_, t) + 2 * h2
                    for i in (2 * h2, 2 * h2 + 1):
                        if (c_, t, i) in todo:
                            fl.append(Filler(f'v_exp_f32 {v(Sr(cur, c_, t) + i)}, {v(Sr(cur, c_, t) + i)}', rel=rel0, dl=base + t - 4, stream='e', pos=-3))
                    fl.append(Filler(f'v_cvt_pk_bf16_f32 {v(P_ + 4 * t + 2 * c_ + h2)}, {v(b)}, {v(b + 1)}', rel=rel0, dl=base + t - 3,
                                     stream='c', pos=-2.5))
                    if self.c.vsum:
                        for i in range(2):
                            fl.append(Filler(f'v_add_f32 {v(L_ + 4 * t)}, {v(L_ + 4 * t)}, {v(b + i)}', rel=rel0, dl=base + 40, stream='s', pos=-2.4))
        return fl

    def attn_iter(self, j, safe, dma='kv', xwait='s_waitcnt vmcnt(8)', nextk=True, site=None, extra=()):
        c = self.c
        cur, new = j & 1, (j + 1) & 1
        pv, first = self.pv_mfmas(j == 0)
        mf = self.qk_mfmas(new) + pv
        n = len(mf)
        need = [6 * phi for phi in range(8)] + [48 + x for x in first] + [n, n + 6]
        fl = []
        for phi in range(2, 18):
            if phi >= 16:
                if not nextk: continue
                r = self.frag_reads(phi - 16, (j + 2) & 3, 0)
            else:
                r = self.frag_reads(phi, (j + 1) & 3, j & 3)
            fl.append(Filler(r, rel=max(need[phi] - 15, 0), dl=need[phi] - 10, stream='fr', pos=need[phi] - 0.5))
        order = self.exp_order()
        if safe:
            fl += self.cvt_fillers(cur, 48, order, 0)
            regs = [S_[new] + i for i in range(48)]
            m = v(vMX)
            fl.append(Filler(f'v_max3_f32 {m}, {v(regs[0])}, {v(regs[1])}, {v(regs[2])}', rel=52, dl=n - 4, stream='m', pos=200))
            for k in range(3, 48, 2):
                r2 = regs[min(k + 1, 47)]
                fl.append(Filler(f'v_max3_f32 {m}, {m}, {v(regs[k])}, {v(r2)}', rel=52, dl=n - 4, stream='m', pos=200))
            fl.append(Filler(f'v_cmp_lt_f32 vcc, {s(sTHR)}, {m}', rel=52, dl=n - 3, stream='m', pos=200))
        else:
            fl += self.cvt_fillers(cur, 48, order[c.npart1:], 0)
            for (c_, t, i) in order[:c.npart1]:
                x = v(Sr(new, c_, t) + i)
                fl.append(Filler(f'v_exp_f32 {x}, {x}', rel=(46 if c_ == 0 else 52), dl=n - 1, stream='e2', pos=200))
        if dma == 'kv':
            gs = self.kv_groups(sTB + (j & 3), 0, None, c.win)
            if j == 4:
                gs[0] = [f's_cmp_eq_u32 {s(sLOOP)}, {s(sKL)}', f's_cselect_b32 {s(SRD_KV + 2)}, 0, {s(SRD_KV + 2)}'] + gs[0]
            for k, g in enumerate(gs):
                fl.append(Filler(g, rel=max(11 * k - 9, 0), dl=min(11 * k - 3, 90) if k else 1, stream='dma'))
        fl += list(extra)
        if c.noexp:
            fl = [f for f in fl if not f.ins[0].op.startswith('v_exp')]
        xg = need[15]
        fl.append(Filler([xwait, 's_barrier'] if isinstance(xwait, str) else xwait + ['s_barrier'], rel=xg, dl=xg, stream='x'))
        seq = interleave(mf, fl, 8, c.verbose, f'iter{j}', rate=(c.a_rate if not safe else 10.0), cap=20)
        if safe:
            seq.append(I(f's_cbranch_vccnz L_rare_{site}'))
            seq.append(I(f'L_back_{site}:'))
            self.sites.append((site, new))
        return seq

    def warm_wo(self, part, tmp=vH + 4):
        L = v(vLANE)
        per = -(-72 // len(self.c.warm_at))
        assert per <= 64
        t0, t1 = v(tmp), v(tmp + 1)
        e = []
        if part == 0:
            e += [f'v_lshlrev_b32 {t0}, 7, {L}', f'v_mov_b32 {t1}, {OOB}', f'v_cmp_gt_u32 vcc, {per}, {L}', 's_nop 1', f'v_cndmask_b32 {t0}, {t1}, {t0}, vcc']
        e += [f's_lshl_b32 {s(sT1)}, {s(sB)}, 2', f's_add_u32 {s(sT1)}, {s(sT1)}, {s(sW)}', f's_mul_i32 {s(sT1)}, {s(sT1)}, 9216',
              f's_add_u32 {s(sT1)}, {s(sT1)}, {128 * per * part}',
              I(f'buffer_load_dword v241, {t0}, {s(SRD_WO, 4)}, {s(sT1)} offen{self.c.warm_nt}', tag='W', cost=self.c.dma_cost)]
        return e

    def attention(self, safe):
        c = self.c
        lab = 's' if safe else 'f'
        self.emit([f's_mov_b32 {s(sLOOP)}, 7'])
        self.attn_pre(safe, lab)
        self.tr(name='pre')
        self.emit(self.attn_iter(0, safe, site='0', extra=[Filler(['s_waitcnt vmcnt(8)', 's_barrier'], rel=84, dl=84, stream='fr0')]), 'iter0')
        self.tr(name='it')
        entry = [set(x) for x in self.lg]
        self.raw(['.p2align 3', f'L_loop{lab}:'])
        start = len(self.out)
        for j in range(1, 5):
            self.emit(self.attn_iter(j, safe, site=f'{j}'), f'iter{j}')
            self.tr(dyn=True, name='it')
        assert [set(x) for x in self.lg] == entry, (self.lg, entry)
        self.emit([f's_sub_u32 {s(sLOOP)}, {s(sLOOP)}, 1', f's_cmp_lg_u32 {s(sLOOP)}, 0', f's_cbranch_scc1 L_loop{lab}'])
        rep = []
        pad_hazards(self.out[start:start + 40], history=self.out[-40:], report=rep)
        assert not rep, rep
        self.vm = []
        if c.trace and not c.trace_o:
            self.ntr += 24
            self.trnames += ['it'] * 24
        ex = [Filler(self.clear_done(), rel=2, dl=6)] + [Filler(g, rel=8 + 6 * k, dl=12 + 6 * k, stream='ft') for k, g in enumerate(self.flag_touch())]
        wm = [Filler(self.warm_wo(k, vMX + 6), rel=8 + 4 * k, dl=12 + 4 * k, stream='wm') for k in range(len(c.warm_at))] if c.warm_wo else []
        n29 = len(wm) if c.warm_it == 29 else 0
        n30 = len(wm) if c.warm_it in (29, 30) else 0
        self.emit(self.attn_iter(29, safe, dma=None, xwait=f's_waitcnt vmcnt({10 + n29})', site='29', extra=ex + (wm if n29 else [])), 'iter29')
        self.tr(name='it')
        self.emit(self.attn_iter(30, safe, dma=None, xwait=f's_waitcnt vmcnt({2 + n30})', nextk=False, site='30',
                                 extra=(wm if c.warm_it == 30 else [])), 'iter30')
        self.last_extra = wm if c.warm_it == 31 else []
        self.tr(name='it')
        self.vm = []
        self.attn_last(safe)

    def oproj_setup(self):
        L = v(vLANE)
        t0, t1, t2 = v(vT), v(vT + 1), v(vT + 2)
        e = [f'v_lshrrev_b32 {t0}, 3, {L}', f'v_and_b32 {t1}, 7, {L}', f'v_and_b32 {t2}, 6, {t0}', f'v_xor_b32 {t1}, {t1}, {t2}',
             f's_lshl_b32 {s(sT1)}, {s(sW)}, 3', f'v_add_u32 {t0}, {s(sT1)}, {t0}', f'v_mul_u32_u24 {t0}, 1152, {t0}',
             f'v_lshl_add_u32 {v(vOV)}, {t1}, 4, {t0}']
        e += [f'v_bfe_u32 {t0}, {L}, 2, 3', f'v_lshrrev_b32 {t1}, 1, {t0}', f'v_xor_b32 {t1}, {s(sW)}, {t1}', f'v_lshlrev_b32 {t1}, 5, {t1}',
              f'v_lshl_add_u32 {t0}, {t0}, 7, {t1}', f'v_and_b32 {t1}, 3, {L}', f'v_lshl_add_u32 {t0}, {t1}, 3, {t0}',
              f'v_lshrrev_b32 {t1}, 5, {L}', f'v_lshl_add_u32 {v(vOA)}, {t1}, 10, {t0}', f'v_add_u32 {v(vOA2)}, 65536, {v(vOA)}']
        e += [f'v_lshlrev_b32 {v(vPS)}, 4, {L}', f'v_mov_b32 {v(vPA)}, v246']
        for k in range(4):
            e += [f's_mul_hi_u32 {s(sT1)}, {s(sH + k)}, {(2 ** 32 + 5) // 6}', f's_add_u32 {s(sT1)}, {s(sT1)}, {OB}',
                  f'v_add_u32 {v(vBA + k)}, {s(sT1)}, {v(vPS)}']
        e += [f's_mul_i32 {s(sT1)}, {s(sW)}, 24576', f's_add_u32 {s(sT1)}, {s(sT1)}, {OB}', f'v_add_u32 {v(vOW)}, {s(sT1)}, {v(vPS)}']
        return e

    def flag_touch(self):
        L = v(vLANE)
        t0, t1 = v(244), v(245)
        return [[f'v_subrev_u32 {t0}, 7, {L}', f'v_sub_u32 {t1}, {s(sJ)}, {t0}', f'v_and_b32 {t1}, 7, {t1}', f'v_lshlrev_b32 {t1}, 12, {t1}',
                 f'v_lshl_add_u32 {t1}, {t0}, 7, {t1}'],
                [f'v_cmp_gt_u32 vcc, 15, {L}', f'v_lshlrev_b32 {t0}, 12, {L}', 's_nop 0', f'v_cndmask_b32 {t1}, 0, {t1}, vcc', f'v_cmp_gt_u32 vcc, 8, {L}', 's_nop 1',
                 f'v_cndmask_b32 v246, {t1}, {t0}, vcc'],
                [f's_lshl_b32 {s(sFA)}, {s(sW)}, 10', I(f'buffer_load_dword v247, v246, {s(SRD_FL, 4)}, {s(sFA)} offen{self.c.fl_mod}', cost=self.c.dma_cost)]]

    def late_consts(self):
        L = v(vLANE)
        t0, t1 = v(OPK), v(OPK + 1)
        g = [[f'v_mov_b32 {t0}, {OOB}', f'v_cmp_eq_u32 vcc, 0, {L}', 's_nop 1', f'v_cndmask_b32 {v(vL0)}, {t0}, {L}, vcc'],
             [f'v_and_b32 {t0}, 15, {L}', f'v_mul_u32_u24 {t0}, 2304, {t0}'], [f'v_lshrrev_b32 {t1}, 4, {L}', f'v_lshl_add_u32 {v(vOO)}, {t1}, 3, {t0}'],
             [f'v_bfe_u32 {t0}, {L}, 2, 2', f'v_cmp_eq_u32 vcc, {t0}, {t1}', f'v_and_b32 {t0}, 1, {L}', f'v_lshlrev_b32 {t0}, 4, {t0}',
              f'v_lshlrev_b32_e64 {t0}, {t0}, 1', f'v_mul_u32_u24 {t0}, 0x3f80, {t0}', f'v_cndmask_b32 {t0}, 0, {t0}, vcc'],
             [f'v_and_b32 {t1}, 2, {L}', f'v_cmp_eq_u32 vcc, 0, {t1}', f'v_mov_b32 {v(SEL)}, 0', f'v_mov_b32 {v(SEL + 1)}, 0',
              f'v_cndmask_b32 {v(SEL + 2)}, 0, {t0}, vcc', f'v_sub_u32 {v(SEL + 3)}, {t0}, {v(SEL + 2)}'],
             [f'v_mov_b32 {v(SEL + 4)}, 0', f'v_mov_b32 {v(SEL + 5)}, 0'],
             [f's_lshl_b32 {s(sFS)}, {s(sPSB)}, 10', f's_mul_i32 {s(sOO)}, {s(sB)}, {96 * 2304}', f's_mul_i32 {s(sT3)}, {s(sBLK)}, 1152', f's_add_u32 {s(sOO)}, {s(sOO)}, {s(sT3)}',
              f's_lshl_b32 {s(sT3)}, {s(sW)}, 5', f's_add_u32 {s(sOO)}, {s(sOO)}, {s(sT3)}']]
        return g

    def check(self, reg, want, reload, name, allanes=False, two=False):
        k = len(self.spins)
        if two:
            test = [f'v_and_b32 {v(reg)}, {v(reg)}, {v(reg + 1)}', 's_nop 0', f'v_readfirstlane_b32 {s(sT3)}, {v(reg)}', 's_nop 1', f's_cmp_eq_u32 {s(sT3)}, {want}']
        elif allanes:
            test = [f'v_cmp_eq_u32 vcc, 0, {v(reg)}', 's_nop 1', f's_and_b32 {s(sT3)}, vcc_lo, {want:#x}', f's_cmp_eq_u32 {s(sT3)}, 0']
        else:
            test = [f'v_readfirstlane_b32 {s(sT3)}, {v(reg)}', 's_nop 1', f's_cmp_lg_u32 {s(sT3)}, 0']
        self.spins.append((k, reload, test))
        return test + [f's_cbranch_scc0 L_spin{k}', f'L_spun{k}:']

    def spin_blocks(self):
        for k, reload, test in self.spins:
            self.raw([f'L_spin{k}:', f's_mov_b32 {s(sSPIN)}, {self.c.spin_max}', f'L_spinl{k}:', 's_sleep 1', reload, 's_waitcnt vmcnt(0)'] + test +
                     ([f's_cbranch_scc0 L_spinc{k}', f's_sub_u32 {s(sSPIN)}, {self.c.spin_max + 1}, {s(sSPIN)}', f'v_writelane_b32 v126, {s(sSPIN)}, {58 + k}',
                       f's_branch L_spun{k}', f'L_spinc{k}:'] if self.c.trace else []) +
                     [f's_cbranch_scc1 L_spun{k}', f's_sub_u32 {s(sSPIN)}, {s(sSPIN)}, 1', f's_cmp_lg_u32 {s(sSPIN)}, 0', f's_cbranch_scc1 L_spinl{k}',
                      f's_branch L_spun{k}'])

    def plan_wo(self):
        self.slot_of = {0: 0, 1: 1, 2: 2}
        self.issue_at = {}
        free = [3]
        nxt = 3
        for sg in range(1, 36):
            if sg >= 2:
                free.append(self.slot_of[sg - 2])
            if sg == 5:
                free += list(range(4, self.c.oring))
            todo = []
            while nxt < 36 and free and len(todo) < 2:
                self.slot_of[nxt] = free.pop(0)
                todo.append(nxt); nxt += 1
            assert nxt >= min(sg + 2, 36)
            self.issue_at[sg] = todo

    def wo_slot(self, n):
        return 16384 * self.slot_of[n >> 2] + 4096 * (n & 3)

    def wo_unit(self, n):
        p, kk = n >> 4, n & 15
        g = [f's_add_u32 m0, {s(sWOL)}, {self.wo_slot(n)}']
        if kk == 0:
            if p == 0:
                g += [f's_mov_b32 {s(sCG)}, 1024']
            else:
                g += [f's_add_u32 {s(sCG)}, {s(sJ)}, {p}', f's_and_b32 {s(sCG)}, {s(sCG)}, 7', f's_lshl_b32 {s(sCG)}, {s(sCG)}, 7']
        if kk & 3 == 0:
            g += [f's_add_u32 {s(sSO)}, {s(sH + (kk >> 2))}, {s(sCG)}']
        else:
            g += [f's_add_u32 {s(sSO)}, {s(sSO)}, 36864']
        g.append(self.dma(vOV, SRD_WO, s(sSO), 0, self.c.wo_nt, ('O', n)))
        return g

    def attn_last(self, safe):
        c = self.c
        cur = 1
        e = self.frag_reads(8, 0, 3) + self.frag_reads(9, 0, 3) + self.oproj_setup()
        self.emit(e, 'last0')
        pv, first = self.pv_mfmas()
        fl = []
        for phi in range(10, 16):
            nd = first[phi - 8]
            fl.append(Filler(self.frag_reads(phi, 0, 3), rel=max(nd - 18, -1), dl=nd - 10, stream='fr', pos=nd - 0.5))
        order = self.exp_order()
        fl += self.cvt_fillers(cur, 0, order if safe else order[c.npart1:], -1)
        for n in range(12):
            fl.append(Filler(self.wo_unit(n), rel=3 * n, dl=3 * n + 8, stream='dma'))
        for k, f in enumerate(self.last_extra):
            f.rel = f.dl = 38 + 3 * k
            f.pos = f.rel + 0.5
            fl.append(f)
        fl.append(Filler('s_barrier', rel=first[7], dl=first[7], stream='x'))
        for t in range(6):
            fl.append(Filler(f'v_rcp_f32 {v(vR + 2 * t)}, {v(L_ + 4 * t)}', rel=first[min(t + 2, 7)] + 3, dl=60, stream='r', pos=100))
        self.emit(interleave(pv, fl, 8, c.verbose, 'last', rate=9.0), 'last')

    def onorm(self):
        c = self.c
        e = []
        k = 0
        for u in range(4):
            for t in range(6):
                tb = 8 * (k % 6); k += 1
                for i in range(4):
                    e.append(f'v_accvgpr_read_b32 {v(tb + i)}, {a(Oacc(2 * u, t) + i)}')
                for i in range(4):
                    e.append(f'v_accvgpr_read_b32 {v(tb + 4 + i)}, {a(Oacc(2 * u + 1, t) + i)}')
                for i in range(0, 8, 2):
                    e.append(f'v_pk_mul_f32 {v(tb + i, 2)}, {v(tb + i, 2)}, {v(vR + 2 * t, 2)} op_sel_hi:[1,0]')
                for i in range(4):
                    e.append(f'v_cvt_pk_bf16_f32 {v(tb + i)}, {v(tb + 2 * i)}, {v(tb + 2 * i + 1)}')
                e.append(f'ds_write_b128 {v(vOW)}, {v(tb, 4)} offset:{1024 * (6 * u + t)}')
        return e

    def oproj(self):
        c = self.c
        NS = 144

        def aread(n):
            r = OA_ + 4 * (n & 3)
            ad = self.wo_slot(n)
            return [f'ds_read_b64_tr_b16 {v(r + 2 * e_, 2)}, {v((vOA, vOA2)[ad >> 16])} offset:{(ad & 65535) + 2048 * e_}' for e_ in range(2)]

        def bread(kk, t):
            phi = 6 * kk + t
            return f'ds_read_b128 {Bfrag(phi)}, {v(vBA + (kk >> 2))} offset:{1024 * (phi % 24)}'

        def prod(p, sd):
            return [f's_sub_u32 {s(sd)}, {s(sJ)}, {p}', f's_and_b32 {s(sd)}, {s(sd)}, 7', f's_lshl_b32 {s(sd)}, {s(sd)}, 2',
                    f's_add_u32 {s(sd)}, {s(sd)}, {s(sW)}']

        def fload(p):
            return f'buffer_load_dword {v(vF)}, {v(SEL)}, {s(SRD_FL, 4)}, {s(sFA)} offen offset:{128 * p}{c.fl_mod}'

        def poll(p):
            return prod(p, sFA) + [f's_lshl_b32 {s(sFA)}, {s(sFA)}, 10', I(fload(p), tag=('F', p), cost=c.dma_cost)]

        def dloads(p, dst):
            g = [prod(p, sDA) + [f's_mul_i32 {s(sDA)}, {s(sDA)}, 3072', f's_mul_i32 {s(sT3)}, {s(sJ)}, 98304', f's_add_u32 {s(sDA)}, {s(sDA)}, {s(sT3)}']]
            for z in range(3):
                o = f' offset:{1024 * z}' if z else ''
                g.append([I(f'buffer_load_dwordx4 {dst(z)}, {v(vPS)}, {s(SRD_WS, 4)}, {s(sDA)} offen{o}{c.d_mod}', tag=('D', p), cost=c.dma_cost)])
            return g

        def adds(src, first=False):
            r = []
            for z in range(3):
                for h in range(2):
                    acc = v(RR + 8 * z + 4 * h, 4)
                    r.append(I(f'{MF} {acc}, {v(SEL + 2 - 2 * h, 4)}, {src(z)}, {0 if first else acc}'))
            return r

        def signal(p):
            return [self.wvm(('P', p)),
                    I(f'buffer_store_dword {v(vOA2)}, {v(vL0)}, {s(SRD_FL, 4)}, {s(sFS)} offen offset:{128 * p}{c.fl_mod}', tag=('S', p), cost=c.dma_cost)]

        ldb = lambda z: v(LDB + 4 * z, 4)
        bufs = [ldb, lambda z: v(4 * z, 4), lambda z: v(12 + 4 * z, 4)] + [(lambda k: (lambda z: a(32 + 12 * k + 4 * z, 4)))(k) for k in range(4)]
        e = [bread(0, t) for t in range(6)] + aread(0) + aread(1) + [bread(1, t) for t in range(4)]
        self.emit(e, 'opre')
        mf, fl = [], []
        G = []
        A = {}
        for n in range(NS):
            p, kk = n >> 4, n & 15
            for k, nn in enumerate(c.add_at):
                if n == nn:
                    A[k] = len(mf)
                    for q in ((0,), (0,), (0,), (1, 2))[k]:
                        mf += adds(bufs[q], k == 0)
            G.append(len(mf))
            for t in range(6):
                acc = v((RR if p == 8 else OACC[p & 1]) + 4 * t, 4)
                mf.append(I(f'{MF} {acc}, {v(OA_ + 4 * (n & 3), 4)}, {Bfrag(6 * kk + t)}, {acc if kk or p == 8 else 0}'))
        G.append(len(mf))
        at = lambda p, x: min(G[16 * p + x // 6] + x % 6, len(mf) - 1) if 16 * p + x // 6 < NS else len(mf) - 1
        for t in range(4, 6):
            fl.append(Filler(bread(1, t), rel=0, dl=1, stream='b', pos=5.5))
        for k, g in enumerate(self.late_consts()):
            fl.append(Filler(g, rel=4 + 6 * k, dl=6 + 6 * k, stream='k'))
        for n in range(NS):
            p, kk = n >> 4, n & 15
            g0 = G[n]
            m = n + 2
            if m < NS:
                if m % 4 == 0:
                    sg = m // 4
                    fl.append(Filler([self.wvm(('O', m + 3)), 's_barrier'], rel=g0 - 1, dl=g0, stream='a'))
                    units = [4 * q + k for q in self.issue_at[sg] for k in range(4)]
                    for k, uu in enumerate(units):
                        sp = 20 // max(len(units), 1)
                        fl.append(Filler(self.wo_unit(uu), rel=g0 + 2 + sp * k, dl=g0 + 4 + sp * k, stream='dma'))
                fl.append(Filler(aread(m), rel=g0, dl=g0 + 2, stream='a', pos=G[m] - 0.5))
                if m < 16:
                    for t in range(6):
                        fl.append(Filler(bread(m, t), rel=g0 + t, dl=g0 + 5 + t, stream='b', pos=G[m] - 0.5))
            if kk == 15 or (c.trace_o and kk & 3 == 3):
                self.tr_filler(fl, g0 + 5, 'o')
            if kk == 15 and p < 8:
                if p == 0:
                    pre = [f's_mul_i32 {s(sT2)}, {s(sPSB)}, 3072', f's_add_u32 {s(sPS)}, {s(sT2)}, {8 * 98304}']
                else:
                    pre = [f's_add_u32 {s(sPS)}, {s(sJ)}, {p}', f's_and_b32 {s(sPS)}, {s(sPS)}, 7', f's_mul_i32 {s(sPS)}, {s(sPS)}, 98304',
                           f's_add_u32 {s(sPS)}, {s(sPS)}, {s(sT2)}']
                fl.append(Filler(pre, rel=g0, dl=g0 + 8, stream='st', pos=g0 + 5.5))
                for z in range(3):
                    for i in range(4):
                        b = OACC[p & 1] + 8 * z + 2 * i
                        fl.append(Filler(f'v_cvt_pk_bf16_f32 {v(OPK + 4 * z + i)}, {v(b)}, {v(b + 1)}', rel=g0 + 10 + 3 * z, dl=g0 + 11 + 3 * z + (i >> 1),
                                         stream='st', pos=g0 + 5.5))
                    o = f' offset:{1024 * z}' if z else ''
                    fl.append(Filler(I(f'buffer_store_dwordx4 {v(OPK + 4 * z, 4)}, {v(vPS)}, {s(SRD_WS, 4)}, {s(sPS)} offen{o}{c.st_mod}',
                                       tag=('P', p), cost=c.dma_cost), rel=g0 + 10 + 3 * z, dl=g0 + 13 + 3 * z, stream='st', pos=g0 + 5.5))
                sgm = c.sig[0] if p <= 4 else (c.sig[1] if p <= 6 else c.sig[2])
                x = min(g0 + 6 + sgm, len(mf) - 1)
                fl.append(Filler(signal(p), rel=x, dl=x, stream='sig'))
        red = []
        dbgl = f'buffer_load_dwordx2 {v(LDB, 2)}, {v(SEL)}, {s(SRD_DBG, 4)}, {s(sDA)} offen sc1'
        x = at(3, 62)
        red.append(Filler([f's_lshl_b32 {s(sDA)}, {s(sGRP)}, 3', I(dbgl, tag='DBG', cost=c.dma_cost)], rel=x, dl=x + 2))
        x = at(4, 56)
        red.append(Filler([self.wvm('DBG')] + self.check(LDB, 0x01010101, dbgl, 'dbg', two=True), rel=x, dl=x + 2))
        pal = f'buffer_load_dword {v(vF)}, {v(vPA)}, {s(SRD_FL, 4)}, {s(sFA)} offen{c.fl_mod}'

        def place(gs, x, sp=2):
            for k, g in enumerate(gs):
                red.append(Filler(g, rel=x + sp * k, dl=x + 2 + sp * k, pos=x + 0.5 + sp * k))
            return x + sp * len(gs)
        if c.prepoll:
            x = at(3, 64)
            red.append(Filler([f's_lshl_b32 {s(sFA)}, {s(sW)}, 10', I(pal, tag='F_', cost=c.dma_cost)], rel=x, dl=x + 2))
        x = at(5, c.pa[0])
        red.append(Filler([f's_lshl_b32 {s(sFA)}, {s(sW)}, 10', I(pal, tag='FA', cost=c.dma_cost)], rel=x, dl=x + 2))
        x = at(5, c.pa[1])
        red.append(Filler([self.wvm('FA')] + self.check(vF, 0x700, pal, 'fa', allanes=True), rel=x, dl=x + 2))
        place(dloads(1, ldb), x + 1)
        for k in range(3):
            red.append(Filler(self.wvm(('D', k + 1)), rel=A[k] - 1, dl=A[k] - 1))
            if k < 2:
                place(dloads(k + 2, ldb), A[k] + 6)
        x = at(7, c.pa[2])
        red.append(Filler([I(pal, tag='FB', cost=c.dma_cost)], rel=x, dl=x + 2))
        x = at(7, c.pa[3])
        red.append(Filler([self.wvm('FB')] + self.check(vF, 0x18ff, pal, 'fb', allanes=True), rel=x, dl=x + 2))
        place(dloads(4, bufs[1]) + dloads(5, bufs[2]), x + 1)
        x = at(8, c.pb[0])
        red.append(Filler(poll(6), rel=x, dl=x + 2))
        red.append(Filler(self.wvm(('D', 5)), rel=A[3] - 1, dl=A[3] - 1))
        x = G[128 + c.sh_at]
        k = 0
        g = [f's_lshl_b32 {s(sDA)}, {s(sJ)}, 10', f's_mul_i32 {s(sT3)}, {s(sW)}, 3072', f's_add_u32 {s(sDA)}, {s(sDA)}, {s(sT3)}',
             f's_add_u32 {s(sDA)}, {s(sDA)}, {8 * 98304}', f's_cmp_lt_u32 {s(sJ)}, 3', f's_cselect_b32 {s(sDA)}, {s(sDA)}, {GRP}']
        for i in range(8):
            g.append(I(f'buffer_load_dwordx4 {a(4 * i, 4)}, {v(vPS)}, {s(SRD_WS, 4)}, {s(sDA)} offen{c.d_mod}', tag=('H', i), cost=c.dma_cost))
            if i < 7:
                g.append(f's_add_u32 {s(sDA)}, {s(sDA)}, 12288')
            red.append(Filler(g, rel=x + 2 * k, dl=x + 3 + 2 * k, pos=x + 0.5 + 2 * k)); k += 1
            g = []
        x = max(at(8, c.pb[1]), x + 2 * k)
        red.append(Filler([self.wvm(('F', 6))] + self.check(vF, 1, fload(6), 'f6'), rel=x, dl=x + 2))
        x = place(dloads(6, bufs[5]), x + 1)
        x = max(at(8, c.pb[2]), x)
        red.append(Filler(poll(7), rel=x, dl=x + 2))
        if c.red_off:
            red = []
            self.spins = []
            fl = [f for f in fl if f.stream != 'sig']
        if c.st_off:
            fl = [f for f in fl if not (f.stream == 'st' and f.ins[0].kind == 'vst')]
        for f in fl:
            if f.stream == 'red':
                red.append(f)
        fl = [f for f in fl if f.stream != 'red']
        red.sort(key=lambda f: f.rel)
        for f in red:
            f.stream = 'red'
        fl += red
        for f in fl:
            f.rel = min(f.rel, len(mf) - 1)
        self.emit(interleave(mf, fl, 8, c.verbose, 'oproj', rate=c.o_rate, cap=24), 'oproj')
        if c.red_off:
            return
        e = [self.wvm(('F', 7))] + self.check(vF, 1, fload(7), 'f7')
        e += flat(dloads(7, bufs[6]))
        for i in range(8):
            e.append(self.wvm(('H', i)))
            for h in range(2):
                acc = v(4 * h, 4)
                e.append(f'{MF} {acc}, {v(SEL + 2 - 2 * h, 4)}, {a(4 * i, 4)}, {acc if i else 0}')
        e += [self.wvm(('D', 6))] + adds(bufs[5])
        e += [f's_mul_i32 {s(sPS)}, {s(sJ)}, {32 * 2304}', f's_add_u32 {s(sPS)}, {s(sPS)}, {s(sOO)}', f's_add_u32 {s(sPS)}, {s(sPS)}, 1024',
              f's_add_u32 {s(sT3)}, {s(sPS)}, {16 * 2304}']
        e += [f'v_cvt_pk_bf16_f32 {v(8 + i)}, {v(2 * i)}, {v(2 * i + 1)}' for i in range(4)]
        e += [f's_cmp_lt_u32 {s(sJ)}, 3', 's_cbranch_scc0 L_nosh']
        self.emit(e, 'otail')
        self.raw([f'buffer_store_dwordx2 {v(8, 2)}, {v(vOO)}, {s(SRD_OUT, 4)}, {s(sPS)} offen{c.out_mod}',
                  f'buffer_store_dwordx2 {v(10, 2)}, {v(vOO)}, {s(SRD_OUT, 4)}, {s(sT3)} offen{c.out_mod}', 'L_nosh:'])
        e = []
        e += [f's_lshl_b32 {s(sPS)}, {s(sJ)}, 7', f's_add_u32 {s(sPS)}, {s(sPS)}, {s(sOO)}']
        e += [self.wvm(('D', 7))] + adds(bufs[6])
        for t in range(6):
            e += [f'v_cvt_pk_bf16_f32 {v(12 + 2 * t + i)}, {v(RR + 4 * t + 2 * i)}, {v(RR + 4 * t + 2 * i + 1)}' for i in range(2)]
            e.append(I(f'buffer_store_dwordx2 {v(12 + 2 * t, 2)}, {v(vOO)}, {s(SRD_OUT, 4)}, {s(sPS)} offen{c.out_mod}', tag='Z'))
            if t < 5:
                e.append(f's_add_u32 {s(sPS)}, {s(sPS)}, {16 * 2304}')
        self.emit(e, 'otail')

    def rare_paths(self):
        for site, new in self.sites:
            self.raw([f'L_rare_{site}:', f's_call_b64 {s(sRET, 2)}, L_rescale_{new}', f's_branch L_back_{site}'])
        if not self.sites:
            return
        for new in range(2):
            e = []
            self.raw([f'L_rescale_{new}:', 's_nop 15'])
            m, m2, f = v(vT), v(vT + 1), v(vT + 2)
            for t in range(6):
                r = [Sr(new, 0, t) + i for i in range(4)] + [Sr(new, 1, t) + i for i in range(4)]
                e += [f'v_max3_f32 {m}, {v(r[0])}, {v(r[1])}, {v(r[2])}', f'v_max3_f32 {m}, {m}, {v(r[3])}, {v(r[4])}',
                      f'v_max3_f32 {m}, {m}, {v(r[5])}, {v(r[6])}', f'v_max3_f32 {m}, {m}, {v(r[7])}, 0'] + self.xlane_max(m, m2)
                e += [f'v_exp_f32 {f}, -{m}']
                e += [f'v_sub_f32 {v(NM + 4 * t + i)}, {v(NM + 4 * t + i)}, {m}' for i in range(4)]
                e += [f'v_sub_f32 {v(x)}, {v(x)}, {m}' for x in r]
                e += [f'v_mul_f32 {v(L_ + 4 * t + i)}, {v(L_ + 4 * t + i)}, {f}' for i in range(4)]
                for dt in range(8):
                    for i in range(0, 4, 2):
                        o = Oacc(dt, t) + i
                        e += [f'v_accvgpr_read_b32 {v(vMX)}, {a(o)}', f'v_accvgpr_read_b32 {v(vMX + 1)}, {a(o + 1)}',
                              f'v_mul_f32 {v(vMX)}, {v(vMX)}, {f}', f'v_mul_f32 {v(vMX + 1)}, {v(vMX + 1)}, {f}',
                              f'v_accvgpr_write_b32 {a(o)}, {v(vMX)}', f'v_accvgpr_write_b32 {a(o + 1)}, {v(vMX + 1)}']
            e += ['s_nop 1', f's_setpc_b64 {s(sRET, 2)}']
            self.out += pad_hazards([mk(x) for x in e])

    def finish(self):
        self.raw(['L_end:', 's_endpgm'])

    def trace_move(self):
        if self.c.trace:
            self.tr(name='norm')
            self.emit([f'v_mov_b32 v126, {v(vTRa)}', f'v_mov_b32 v127, {v(vTRb)}'] + [f'v_writelane_b32 v126, 0, {58 + k}' for k in range(6)])
            self.trreg = (126, 127)

    def trace_out(self):
        if not self.c.trace:
            return
        self.tr(name='tail')
        self.emit(['s_waitcnt vmcnt(0)'])
        self.tr(name='drain')
        e = [f's_add_u32 s12, s58, {STAMP_OFF + 0x80000}', 's_addc_u32 s13, s59, 0', 's_mov_b32 s14, 0x80000', 's_mov_b32 s15, 0x20000',
             f's_lshl_b32 {s(sT1)}, s2, 2', f's_add_u32 {s(sT1)}, {s(sT1)}, {s(sW)}', f's_lshl_b32 {s(sT1)}, {s(sT1)}, 9',
             f'v_lshrrev_b32 v40, 1, {v(vPS)}', I(f'buffer_store_dwordx2 v[126:127], v40, s[12:15], {s(sT1)} offen', tag='TR')]
        if self.c.dbgout:
            names = self.trnames
            last = lambda n: len(names) - 1 - names[::-1].index(n)
            its = [i for i, n in enumerate(names) if n == 'it']
            sel = [last('first'), names.index('q'), last('q'), last('conv'), last('pre'), its[4], its[12], its[20], its[27], its[-1], last('last'), last('norm'),
                   last('o') - 4, last('o'), last('tail'), last('drain')]
            e += ['s_waitcnt vmcnt(0)', 's_or_b32 s4, s2, s3', 's_cmp_lg_u32 s4, 0', 's_cbranch_scc1 L_end', 'v_readlane_b32 s5, v126, 0', 'v_mov_b32 v41, 0']
            for k, i in enumerate(sel):
                e += [f'v_readlane_b32 s4, v126, {i}', 's_nop 1', 's_sub_u32 s4, s4, s5', f'v_writelane_b32 v41, s4, {k}']
            e += ['v_lshrrev_b32 v40, 2, v115', 's_mov_b64 exec, 0xffff', f'buffer_store_dword v41, v40, {s(SRD_DBG, 4)}, 0 offen']
        self.emit(e)

    def kernel1(self):
        c = self.c
        self.setup()
        self.qproj()
        self.attention(c.mode == 'safe')
        self.tr(name='last')
        vm_join = list(self.vm)
        self.raw(['L_norm:'])
        e = []
        if c.mode == 'fast':
            m = v(vT)
            e += [f'v_max3_f32 {m}, {v(L_)}, {v(L_ + 4)}, {v(L_ + 8)}', f'v_max3_f32 {m}, {m}, {v(L_ + 12)}, {v(L_ + 16)}',
                  f'v_max_f32 {m}, {m}, {v(L_ + 20)}', f'v_cmp_nge_f32 vcc, {s(sLTHR)}, {m}',
                  's_nop 1', 's_cmp_lg_u64 vcc, 0', f's_cselect_b32 {s(sT1)}, 1, 0', f's_andn2_b32 {s(sT1)}, {s(sT1)}, {s(sSAFE)}',
                  f'v_mov_b32 {v(vT + 1)}, {s(sT1)}', f's_lshl_b32 {s(sT1)}, {s(sW)}, 2', f's_add_u32 {s(sT1)}, {s(sT1)}, {49152}',
                  f'v_mov_b32 {v(vT + 2)}, {s(sT1)}', f'ds_write_b32 {v(vT + 2)}, {v(vT + 1)}']
        e += self.onorm()
        e += [self.wvm(('O', 3)), 's_waitcnt lgkmcnt(0)', 's_barrier']
        if c.mode == 'fast':
            e += [f'v_mov_b32 {v(vT + 2)}, 49152', f'ds_read_b128 {v(4, 4)}, {v(vT + 2)}', 'v_or3_b32 v4, v4, v5, v6', 'v_or_b32 v4, v4, v7',
                  f'v_readfirstlane_b32 {s(sT1)}, v4', f's_cmp_lg_u32 {s(sT1)}, 0', 's_cbranch_scc1 L_fallback']
        self.emit(e, 'onorm')
        self.trace_move()
        self.oproj()
        self.trace_out()
        self.finish()
        if c.mode == 'fast':
            self.raw(['L_fallback:'])
            self.lg = []; self.vm = []
            tr = c.trace
            c.trace = False
            e = ['s_waitcnt vmcnt(0) lgkmcnt(0)', 's_barrier', f's_mov_b32 {s(sSAFE)}, 1', f's_mov_b32 {s(sOFF)}, {s(sOFF0)}',
                 f's_add_u32 {s(sOFF2)}, {s(sOFF)}, 4096', f's_mov_b32 {s(SRD_KV + 2)}, 262144']
            self.emit(e)
            self.kv_reload()
            self.attention(True)
            assert self.vm == vm_join, (self.vm, vm_join)
            self.emit(['s_waitcnt lgkmcnt(0)', 's_nop 15', 's_branch L_norm'])
            c.trace = tr
        self.rare_paths()
        self.spin_blocks()
        return self.out


def descriptor(name, vg, acc, sg=102):
    d = ['.section .rodata,"a"', '.p2align 6', f'.amdhsa_kernel {name}']
    for k, x in dict(next_free_vgpr=vg, next_free_sgpr=sg, accum_offset=acc, group_segment_fixed_size=0, kernarg_size=104,
                     user_sgpr_count=2, user_sgpr_kernarg_segment_ptr=1, system_sgpr_workgroup_id_x=1).items():
        d.append(f'  .amdhsa_{k} {x}')
    d.append('.end_amdhsa_kernel')
    return d


def build(cfg, path):
    g = Gen(cfg)
    k1 = g.kernel1()
    L = ['; @launch grid=(256,1,1) block=(256,1,1) lds=163840',
         '; Fused GQA block x2: Q projection + flash attention + O projection with an in-kernel reduce-scatter.',
         '.amdgcn_target "amdgcn-amd-amdhsa--gfx950"', '.text']
    L += [f'.globl {K1}', '.p2align 8', f'.type {K1},@function', f'{K1}:']
    L += [('' if x.kind in ('label', 'dir') else '    ') + x.text for x in k1]
    if cfg.trace:
        assert g.ntr == len(g.trnames) <= 58, (g.ntr, len(g.trnames))
        L += ['; trnames ' + ' '.join(g.trnames)]
    L += descriptor(K1, 512, 256)
    open(path, 'w').write('\n'.join(L) + '\n')
    return g

if __name__ == '__main__':
    kw = {}
    path = sys.argv[1]
    for x in sys.argv[2:]:
        k, val = x.split('=', 1)
        try:
            val = eval(val)
        except Exception:
            pass
        kw[k] = val
    build(Cfg(**kw), path)
```

```python
import sys, math, struct
from asmlib import *

NAME = 'concat_heads__gqa_block_cached__gqa_block_cached__near_ridge'
K1 = NAME + '_kernel'
K2 = 'reduce_partials_kernel'


def f2u(x):
    return struct.unpack('<I', struct.pack('<f', x))[0]


class Cfg:
    trace = False
    dma_cost = 20
    rot = True
    krot = True
    warm_wo = True
    warm_stride = 128
    kv_nt = ' nt'
    w_nt = ' nt'
    x_nt = ' nt'
    wo_nt = ''
    st_mod = ' sc1'
    fl_mod = ' sc1'
    d_mod = ' sc1'
    out_mod = ''
    thr = 8.0
    lthr = 2.0 ** 40
    verbose = False
    kv_from = 28
    kv_sp = 8
    t3_late = True
    win_c = 5
    n2 = 2
    npre = 24
    kv_nc = 9
    put_sp = 4
    put_m = 8
    kv_gap = 0
    put_q = 6
    win = (3, 4)
    fake_kv = False
    mode = 'fast'
    force_fb = False
    q_rate = 8.0
    a_rate = 8.3
    o_rate = 8.0
    npart1 = 30
    oring = 5
    sig = (50, 50, 40)
    pa = (30, 70, 30, 70)
    pb = (18, 58, 80)
    add_at = (101, 111, 122, 135)
    sh_at = 4
    prepoll = False
    spin_max = 20000
    n_stage = 2
    trace_h = False
    win_b = 4
    n1 = 3
    dbgout = False
    q32 = False
    wq_sp = 6
    q32_budget = 24
    xtouch = -1
    warm_it = 31
    vsum = False
    nosum = False
    noexp = False
    krot_m = 9
    red2 = True
    warm_code = True
    trace_o = False
    red_off = False
    st_off = False
    warm_nt = ''
    warm_at = (0, 1)
    init_u = 4
    ramp = 14
    cw_late = False
    cw_piece = 8192
    cw_n = 9
    fake_w = False

    def __init__(self, **kw):
        for k, x in kw.items():
            assert hasattr(self, k), k
            setattr(self, k, x)


TS = 8704
RING = 4 * TS
XB = 4 * RING
OB = 65536
GRP = 9 * 8 * 12288
FL_OFF = 32 * GRP
STAMP_OFF = 256 * 122880
assert FL_OFF + 32 * 32768 <= STAMP_OFF
OOB = 0x7ffffff0

sW = 3
sB, sJ, sBLK = 4, 5, 6
SRD_KV, SRD_WQ, SRD_X, SRD_WO, SRD_WS = 8, 12, 16, 20, 24
SRD_FL, SRD_DBG, SRD_OUT = 60, 64, 68
sRING = 28
sOFF, sOFF2 = 29, 30
sHH = 31
sLOOP = 32
sT0, sT1, sT2 = 33, 34, 35
sTB = 40
sH = 44
sWK, sXK = 48, 49
sOFF0 = 50
sSAFE = 51
sTR = 52
sSPIN = 53
sTM = 54
sXL, sSO = 72, 73
sC = 74
sTHR, sLTHR = 76, 77
sRET = 78
sFS = 90
sC1152 = 91
sWOL, sCG, sPS, sPSB, sKL, sFA, sDA, sT3, sGRP, sOO = 80, 81, 82, 83, 84, 85, 86, 87, 88, 89

S_ = [0, 48]
NM = 96
L_ = 120
P_ = 144
FR = 168
ONES = 184
vT = 188
vKA = 192
vVA = 193
vKV = 197
vLANE = 198
vKW = 199
Q45 = 200
vMX = 232
vDB = 242
vKW4 = 248
vTRa, vTRb = 254, 255
QA = 200
vWA = 216
vXA = 244
vWV = 220
vXV = 224
vH = 226
QB = 192
OACC = [0, 24]
OA_ = 48
OPK = 64
RR = 76
vR = 80
LDB = 100
vBA = 100
vOW = 104
vPA = 119
vOV, vOA, vOA2, vPS, vF, vOO, vL0 = 112, 113, 114, 115, 116, 117, 118
SEL = 120
OBV = 128
HB = 128

MF = 'v_mfma_f32_16x16x32_bf16'
MF32 = 'v_mfma_f32_32x32x16_bf16'


def Sr(buf, c, t):
    return S_[buf] + (c * 6 + t) * 4


def Qfrag(t, ks):
    return a(192 + 16 * t + 4 * ks, 4) if t < 4 else v(Q45 + 16 * (t - 4) + 4 * ks, 4)


def Oacc(dt, t):
    return (dt * 6 + t) * 4


def Bfrag(phi):
    if phi < 32:
        return v(OBV + 4 * phi, 4)
    if phi < 48:
        return a(192 + 4 * (phi - 32), 4)
    return a(4 * (phi - 48), 4)


sPSt = [0, 1, 36, 37, 38, 39, 92, 93]
sDAt = [94, 95, 96, 97, 98, 99, 100, 101]

flat = lambda gs: [x for g in gs for x in g]


class Gen:
    def __init__(self, cfg):
        self.c = cfg
        self.out = []
        self.lg = []
        self.vm = []
        self.spins = []
        self.sites = []
        self.ntr = 0
        self.trreg = (vTRa, vTRb)
        self.trnames = []
        self.plan_wo()

    def emit(self, seq, name=''):
        seq = [mk(x) for x in seq]
        seq, self.lg = auto_lgkm(seq, self.lg)
        seq = self.resolve_vm(seq)
        rep = []
        seq = pad_hazards(seq, history=self.out[-40:], report=rep)
        if rep and self.c.verbose:
            for r in rep:
                if 'm0' not in r[1]:
                    print(f'  nop[{name}]', r)
        self.out.extend(seq)

    def raw(self, seq):
        self.out.extend(mk(x) for x in seq)

    def vm_reset(self):
        self.vm = [x for x in self.vm if x[1]]

    def resolve_vm(self, seq):
        out = []
        for ins in seq:
            if ins.kind == 'wait' and 'vmcnt(?)' in ins.text:
                tags = ins.tag if isinstance(ins.tag, list) else [ins.tag]
                idx = -1
                for k, t in enumerate(self.vm):
                    if t[0] in tags:
                        idx = k
                if idx < 0:
                    continue
                n = min(len(self.vm) - 1 - idx, 63)
                self.vm = self.vm[len(self.vm) - n:] if n else []
                out.append(I(f's_waitcnt vmcnt({n})'))
                continue
            if ins.kind == 'wait':
                m = re.search(r'vmcnt\((\d+)\)', ins.text)
                if m:
                    n = int(m.group(1))
                    if n < len(self.vm):
                        self.vm = self.vm[len(self.vm) - n:] if n else []
            touched = set(ins.rd) | (set(ins.wr) if ins.kind != 'vld' else set())
            for t in self.vm:
                assert not (t[1] & touched), f'register of an outstanding load touched: {ins.text} / {t}'
            if ins.kind in ('dma', 'vld', 'vst'):
                self.vm.append((ins.tag, set(ins.wr) if ins.kind == 'vld' else set()))
            out.append(ins)
        return out

    def wvm(self, tags):
        return I('s_waitcnt vmcnt(?)', tag=tags)

    def dma(self, vreg, srd, soff, imm, mod, tag):
        o = f' offset:{imm}' if imm else ''
        return I(f'buffer_load_dwordx4 {v(vreg)}, {s(srd, 4)}, {soff} offen{o}{mod} lds', tag=tag, cost=self.c.dma_cost)

    def tr_code(self, dyn=False):
        k = self.ntr
        self.ntr += 1
        ra, rb = self.trreg
        e = ['s_waitcnt lgkmcnt(0)', f's_memrealtime {s(sTM, 2)}', f's_memtime {s(sTM + 2, 2)}', 's_waitcnt lgkmcnt(0)']
        if dyn:
            e += [f's_mov_b32 m0, {s(sTR)}', 's_nop 3', f'v_writelane_b32 {v(ra)}, {s(sTM)}, m0',
                  f'v_writelane_b32 {v(rb)}, {s(sTM + 2)}, m0', f's_add_u32 {s(sTR)}, {s(sTR)}, 1']
        else:
            e += [f'v_writelane_b32 {v(ra)}, {s(sTM)}, {k}', f'v_writelane_b32 {v(rb)}, {s(sTM + 2)}, {k}', f's_mov_b32 {s(sTR)}, {k + 1}']
        return e

    def tr(self, dyn=False, name=''):
        if not self.c.trace or ((self.c.trace_o or self.c.trace_h) and name == 'it'):
            return
        self.trnames.append(name)
        sv = [set(x) for x in self.lg]
        self.emit(self.tr_code(dyn))
        self.lg = sv

    def tr_filler(self, fl, g, name=''):
        if self.c.trace:
            self.trnames.append(name)
            fl.append(Filler(self.tr_code(), rel=g, dl=g, stream='tr', cost=0))

    def kv_groups(self, sb, base, tag, win=None):
        m0 = lambda n: f's_add_u32 m0, {s(sb)}, {base + 1088 * n - 1024 * (n & 3)}'
        groups = [[m0(0)]]
        for n in range(8):
            g = [f's_waitcnt vmcnt({win[n % len(win)] if isinstance(win, tuple) else win})'] if win is not None else []
            g.append(self.dma(vKV, SRD_KV, s(sOFF if n < 4 else sOFF2), 1024 * (n & 3), self.c.kv_nt, tag))
            if n < 7:
                g.append(m0(n + 1))
            groups.append(g)
        groups.append([f's_add_u32 {s(sOFF)}, {s(sOFF)}, 8192', f's_and_b32 {s(sOFF)}, {s(sOFF)}, 0x3ffff',
                       f's_add_u32 {s(sOFF2)}, {s(sOFF)}, 4096'])
        return groups

    def kv_tile(self, slot, tag):
        return self.kv_groups(sRING, slot * TS, tag)

    def kv_stage(self):
        groups = []
        for tl in range(self.c.n_stage):
            for n in range(8):
                g = []
                so = sOFF if n < 4 else sOFF2
                if tl == 4 and n == 0:
                    g += [f's_lshl_b32 {s(SRD_KV + 2)}, {s(sKL)}, 18']
                o = f' offset:{1024 * (n & 3)}' if n & 3 else ''
                g.append(I(f'buffer_load_dwordx4 {a(32 * tl + 4 * n, 4)}, {v(vKV)}, {s(SRD_KV, 4)}, {s(so)} offen{o}{self.c.kv_nt}',
                           tag=('T', tl, n), cost=self.c.dma_cost))
                if n == 7:
                    if tl == 4:
                        g += [f's_mov_b32 {s(SRD_KV + 2)}, 262144', f's_lshl_b32 {s(sT3)}, {s(sKL)}, 13', f's_add_u32 {s(sOFF)}, {s(sOFF)}, {s(sT3)}']
                    else:
                        g += [f's_add_u32 {s(sOFF)}, {s(sOFF)}, 8192']
                    g += [f's_and_b32 {s(sOFF)}, {s(sOFF)}, 0x3ffff', f's_add_u32 {s(sOFF2)}, {s(sOFF)}, 4096']
                groups.append(g)
        return groups

    def kv_put(self, tl, n):
        ad = (vKW, tl * TS) if tl < 4 else (vKW4, 0)
        return [self.wvm(('T', tl, n)), I(f'ds_write_b128 {v(ad[0])}, {a(32 * tl + 4 * n, 4)} offset:{ad[1] + 1088 * n}', cost=12)]

    def code_warm(self):
        L = v(vLANE)
        return ['s_getpc_b64 s[96:97]', f's_lshl_b32 {s(sT1)}, s7, 2', f's_add_u32 {s(sT1)}, {s(sT1)}, {s(sW)}',
                f's_and_b32 {s(sT1)}, {s(sT1)}, 15', f's_min_u32 {s(sT1)}, {s(sT1)}, {self.c.cw_n - 1 if self.c.mode == "fast" else 5}', f's_mul_i32 {s(sT1)}, {s(sT1)}, {self.c.cw_piece}',
                f'v_mul_u32_u24 {v(vH + 2)}, {self.c.cw_piece // 64}, {L}',
                f'v_add_u32 {v(vH + 2)}, {s(sT1)}, {v(vH + 2)}', I(f'global_load_dword v240, {v(vH + 2)}, s[96:97]', tag='CW')]

    def x_touch(self, kc_now):
        L = v(vLANE)
        t0, t1 = v(vH + 2), v(vH + 3)
        d = 128 * (7 - kc_now)
        return [f'v_and_b32 {t0}, 1, {L}', f'v_lshlrev_b32 {t0}, 7, {t0}', f's_add_u32 {s(sT1)}, {s(sXK)}, {d}', f'v_add_u32 {t0}, {s(sT1)}, {t0}',
                f'v_subrev_u32 {t1}, 1152, {t0}', f'v_min_u32 {t0}, {t0}, {t1}',
                f'v_lshrrev_b32 {t1}, 1, {L}', f'v_min_u32 {t1}, 23, {t1}', f's_mul_i32 {s(sT1)}, {s(sW)}, {24 * 1152}',
                f'v_mad_u32_u24 {t0}, {t1}, {s(sC1152)}, {t0}',
                I(f'buffer_load_dword v239, {t0}, {s(SRD_X, 4)}, {s(sT1)} offen{self.c.x_nt}', tag='W', cost=self.c.dma_cost)]

    def flag_clear(self):
        L = v(vLANE)
        t0, t1 = v(vH), v(vH + 1)
        return [f'v_lshlrev_b32 {t0}, 7, {L}', f'v_mov_b32 {t1}, {OOB}', f's_cmp_eq_u32 {s(sW)}, 0', f's_cselect_b32 {s(sT3)}, 32, 0',
                f'v_cmp_gt_u32 vcc, {s(sT3)}, {L}', f's_lshl_b32 {s(sT3)}, {s(sJ)}, 12',
                's_nop 0', f'v_cndmask_b32 {t0}, {t1}, {t0}, vcc', f'v_mov_b32 {t1}, 0',
                I(f'buffer_store_dword {t1}, {t0}, {s(SRD_FL, 4)}, {s(sT3)} offen{self.c.fl_mod}', tag='CLR')]

    def clear_done(self):
        L = v(vLANE)
        t0, t1 = v(vDB), v(vDB + 1)
        return [f'v_mov_b32 {t1}, {OOB}', f's_cmp_eq_u32 {s(sW)}, 0', f's_cselect_b32 {s(sT3)}, 1, 0', f'v_cmp_gt_u32 vcc, {s(sT3)}, {L}',
                f's_lshl_b32 {s(sT3)}, {s(sGRP)}, 3', f's_add_u32 {s(sT3)}, {s(sT3)}, {s(sJ)}',
                f'v_cndmask_b32 {t0}, {t1}, {L}, vcc', f'v_mov_b32 {t1}, 1',
                I(f'buffer_store_byte {t1}, {t0}, {s(SRD_DBG, 4)}, {s(sT3)} offen sc1', tag='SIG')]

    def setup(self):
        c = self.c
        e = ['s_cmp_ge_u32 s2, 256', 's_cbranch_scc1 L_end']
        if c.trace:
            e += [f's_memrealtime {s(98, 2)}', f's_memtime {s(100, 2)}']
        e += ['s_load_dwordx8 s[36:43], s[0:1], 0', 's_load_dwordx2 s[44:45], s[0:1], 32',
              's_load_dwordx8 s[48:55], s[0:1], 40', 's_load_dwordx2 s[56:57], s[0:1], 72',
              's_load_dwordx2 s[58:59], s[0:1], 96', 's_load_dwordx4 s[92:95], s[0:1], 80']
        e += ['v_lshrrev_b32 v1, 6, v0', f'v_and_b32 {v(vLANE)}, 63, v0', f'v_readfirstlane_b32 {s(sW)}, v1']
        e += ['s_lshr_b32 s7, s2, 3', f's_and_b32 {s(sB)}, s7, 15', f's_lshr_b32 {s(sJ)}, s7, 4', 's_and_b32 s6, s2, 3',
              's_lshl_b32 s6, s6, 1', f's_add_u32 {s(sJ)}, {s(sJ)}, s6', f's_bfe_u32 {s(sBLK)}, s2, 0x10002']
        e += [f's_and_b32 {s(sHH)}, {s(sW)}, 1', f's_lshr_b32 {s(sT0)}, {s(sW)}, 1']
        e += [f's_lshl_b32 {s(sT1)}, {s(sHH)}, 1', f's_add_u32 {s(sT1)}, {s(sT1)}, {s(sT0)}',
              f's_mul_i32 {s(sRING)}, {s(sT1)}, {RING}',
              f's_lshl_b32 {s(sWOL)}, {s(sW)}, 10', f's_add_u32 {s(sXL)}, {s(sWOL)}, {XB}']
        if c.rot:
            e += [f's_and_b32 {s(sOFF)}, s7, 31', f's_lshl_b32 {s(sOFF)}, {s(sOFF)}, 13']
        else:
            e += [f's_mov_b32 {s(sOFF)}, 0']
        e += [f's_add_u32 {s(sOFF2)}, {s(sOFF)}, 4096']
        L = v(vLANE)
        e += [f'v_lshrrev_b32 v1, 4, {L}',
              f'v_and_b32 v2, 15, {L}',
              f'v_lshrrev_b32 v5, 2, v2',
              f'v_and_b32 v6, 3, {L}',
              f'v_lshrrev_b32 v8, 3, {L}', f'v_and_b32 v9, 7, {L}',
              'v_lshrrev_b32 v10, 1, v8']
        e += ['v_xor_b32 v11, v9, v10', f's_lshl_b32 {s(sT1)}, {s(sHH)}, 2', f'v_xor_b32 v11, {s(sT1)}, v11', 'v_lshlrev_b32 v11, 4, v11',
              f's_lshl_b32 {s(sT1)}, {s(sW)}, 3', f'v_add_u32 v12, {s(sT1)}, v8', 'v_mul_u32_u24 v12, 1152, v12',
              f'v_add_u32 {v(vXV)}, v12, v11']
        if c.q32:
            e += ['v_lshlrev_b32 v11, 2, v1', 'v_xor_b32 v11, v2, v11', 'v_lshlrev_b32 v11, 4, v11', 'v_lshl_add_u32 v11, v1, 13, v11']
        else:
            e += ['v_and_b32 v11, 1, v10', 'v_lshlrev_b32 v11, 2, v11', 'v_xor_b32 v11, v9, v11', 'v_lshlrev_b32 v11, 4, v11',
                  'v_lshl_add_u32 v11, v8, 13, v11']
        e += [f's_lshl_b32 {s(sT1)}, {s(sJ)}, 2', f's_add_u32 {s(sT1)}, {s(sT1)}, {s(sW)}', f's_lshl_b32 {s(sT1)}, {s(sT1)}, 8',
              f'v_add_u32 {v(vWV)}, {s(sT1)}, v11']
        for n in range(1, 4):
            e += [f'v_add_u32 {v(vWV + n)}, {(31744 if c.q32 else 64512) * n}, {v(vWV)}']
        e += ['s_waitcnt lgkmcnt(0)']
        e += [f's_cmp_eq_u32 {s(sBLK)}, 0']
        for d in range(10):
            e += [f's_cselect_b32 s{36 + d}, s{36 + d}, s{48 + d}']
        e += [f's_mul_i32 {s(sT1)}, {s(sB)}, 110592', f's_add_u32 {s(SRD_X)}, s36, {s(sT1)}', f's_addc_u32 {s(SRD_X + 1)}, s37, 0',
              f's_mov_b32 {s(SRD_X + 2)}, 110592', f's_mov_b32 {s(SRD_X + 3)}, 0x20000']
        e += [f's_mov_b32 {s(SRD_WQ)}, s42', f's_mov_b32 {s(SRD_WQ + 1)}, s43', f's_mov_b32 {s(SRD_WQ + 2)}, 4718592',
              f's_mov_b32 {s(SRD_WQ + 3)}, 0x20000']
        if c.krot and c.krot_m > 1:
            m = c.krot_m
            e += [f's_mul_hi_u32 {s(sT1)}, {s(sB)}, {(2 ** 32 + m - 1) // m}', f's_mul_i32 {s(sT1)}, {s(sT1)}, {m}', f's_sub_u32 {s(sT1)}, {s(sB)}, {s(sT1)}',
                  f's_mul_i32 {s(sT1)}, {s(sT1)}, {9 // m}', f's_lshl_b32 {s(sXK)}, {s(sT1)}, 7', f's_lshl_b32 {s(sWK)}, {s(sT1)}, 19']
        else:
            e += [f's_mov_b32 {s(sXK)}, 0', f's_mov_b32 {s(sWK)}, 0']
        self.emit(e, 'setup')
        e = self.late_setup = []
        e += [f's_cmp_eq_u32 {s(sHH)}, 0', 's_cselect_b32 s38, s38, s40', 's_cselect_b32 s39, s39, s41',
              f's_lshl_b32 {s(sT1)}, {s(sB)}, 4', f's_lshl_b32 {s(sT2)}, {s(sJ)}, 1', f's_add_u32 {s(sT1)}, {s(sT1)}, {s(sT2)}',
              f's_add_u32 {s(sT1)}, {s(sT1)}, {s(sT0)}',
              f's_lshl_b32 {s(sT1)}, {s(sT1)}, 18' if not c.fake_kv else f's_lshl_b32 {s(sT1)}, {s(sT0)}, 18',
              f's_add_u32 {s(SRD_KV)}, s38, {s(sT1)}', f's_addc_u32 {s(SRD_KV + 1)}, s39, 0',
              f's_mov_b32 {s(SRD_KV + 2)}, 262144', f's_mov_b32 {s(SRD_KV + 3)}, 0x20000']
        e += ['v_and_b32 v11, 1, v1', 'v_lshlrev_b32 v11, 1, v11', 'v_lshrrev_b32 v12, 1, v1', 'v_lshl_or_b32 v11, v12, 3, v11',
              f's_cmp_eq_u32 {s(sHH)}, 0', 's_cselect_b64 vcc, -1, 0', 's_nop 1', 'v_cndmask_b32 v11, v11, v1, vcc',
              'v_xor_b32 v11, v2, v11', 'v_lshlrev_b32 v11, 4, v11', f'v_lshl_add_u32 {v(vKV)}, v1, 8, v11']
        e += [f's_mul_i32 {s(sT1)}, {s(sJ)}, 589824', f's_add_u32 {s(SRD_WO)}, s44, {s(sT1)}', f's_addc_u32 {s(SRD_WO + 1)}, s45, 0',
              f's_mov_b32 {s(SRD_WO + 2)}, 589824', f's_mov_b32 {s(SRD_WO + 3)}, 0x20000']
        e += [f's_lshl_b32 {s(sGRP)}, {s(sBLK)}, 4', f's_add_u32 {s(sGRP)}, {s(sGRP)}, {s(sB)}', f's_lshl_b32 {s(sT1)}, {s(sGRP)}, 15',
              f's_add_u32 {s(sT1)}, {s(sT1)}, {FL_OFF}', f's_add_u32 {s(SRD_FL)}, s58, {s(sT1)}', f's_addc_u32 {s(SRD_FL + 1)}, s59, 0',
              f's_mov_b32 {s(SRD_FL + 2)}, 32768', f's_mov_b32 {s(SRD_FL + 3)}, 0x20000',
              f's_mov_b32 {s(SRD_DBG)}, s94', f's_mov_b32 {s(SRD_DBG + 1)}, s95', f's_mov_b32 {s(SRD_DBG + 2)}, 256', f's_mov_b32 {s(SRD_DBG + 3)}, 0x20000',
              f's_mov_b32 {s(SRD_OUT)}, s92', f's_mov_b32 {s(SRD_OUT + 1)}, s93', f's_mov_b32 {s(SRD_OUT + 2)}, 3538944', f's_mov_b32 {s(SRD_OUT + 3)}, 0x20000',
              f's_lshl_b32 {s(sPSB)}, {s(sJ)}, 2', f's_add_u32 {s(sPSB)}, {s(sPSB)}, {s(sW)}',
              f's_xor_b32 {s(sKL)}, {s(sHH)}, 1', f'v_lshlrev_b32 {v(vKW)}, 4, {L}', f's_cmp_eq_u32 {s(sHH)}, 0', f's_cselect_b32 {s(sT1)}, {s(sRING)}, {XB}', f'v_add_u32 {v(vKW4)}, {s(sT1)}, {v(vKW)}',
              f'v_add_u32 {v(vKW)}, {s(sRING)}, {v(vKW)}']
        e += [f's_mul_i32 {s(sT1)}, {s(sGRP)}, {GRP}',
              f's_add_u32 {s(SRD_WS)}, s58, {s(sT1)}', f's_addc_u32 {s(SRD_WS + 1)}, s59, 0',
              f's_mov_b32 {s(SRD_WS + 2)}, {GRP}', f's_mov_b32 {s(SRD_WS + 3)}, 0x20000']
        cs = f2u(math.log2(math.e) / math.sqrt(128.0))
        e += [f's_mov_b32 {s(sC)}, {cs:#x}', f's_mov_b32 {s(sC + 1)}, {cs:#x}', f's_mov_b32 {s(sTHR)}, {f2u(c.thr):#x}',
              f's_mov_b32 {s(sLTHR)}, {f2u(c.lthr if not c.force_fb else 1.0):#x}', f's_mov_b32 {s(sSAFE)}, 0', f's_mov_b32 {s(sC1152)}, 1152',
              f's_mov_b32 {s(sOFF0)}, {s(sOFF)}']
        if c.q32:
            e += [f'v_lshrrev_b32 v3, 5, {L}', 'v_and_b32 v4, 1, v1', 'v_lshlrev_b32 v11, 11, v3', 'v_lshl_add_u32 v11, v5, 8, v11',
                  'v_lshl_add_u32 v11, v4, 4, v11', 'v_and_b32 v12, 1, v6', 'v_lshl_add_u32 v11, v12, 5, v11', 'v_lshrrev_b32 v12, 1, v6',
                  'v_lshl_add_u32 v11, v12, 3, v11', f'v_add_u32 v11, {s(sRING)}, v11']
            for ct in range(4):
                e += [f'v_xor_b32 v12, {ct}, v5', f'v_lshl_add_u32 {v(vWA + ct)}, v12, 6, v11']
            e += [f'v_and_b32 v14, 31, {L}', 'v_lshrrev_b32 v11, 3, v14', 'v_and_b32 v12, 7, v14',
                  'v_lshlrev_b32 v13, 10, v11', 'v_lshl_add_u32 v13, v12, 7, v13', f'v_add_u32 v13, {XB}, v13',
                  'v_lshrrev_b32 v12, 1, v12', 'v_and_b32 v11, 1, v11', 'v_lshlrev_b32 v11, 2, v11', 'v_xor_b32 v12, v12, v11', 'v_xor_b32 v12, v12, v3']
            for k in range(4):
                e += [f'v_xor_b32 v11, {2 * k}, v12', f'v_lshl_add_u32 {v(vXA + k)}, v11, 4, v13']
        else:
            e += ['v_lshlrev_b32 v11, 10, v1', 'v_lshl_add_u32 v11, v5, 7, v11', 'v_lshl_add_u32 v11, v6, 4, v11',
                  f'v_add_u32 v11, {s(sRING)}, v11', 'v_lshrrev_b32 v12, 1, v5', f'v_lshl_add_u32 {v(vWA)}, v12, 6, v11',
                  'v_xor_b32 v12, 1, v12', f'v_lshl_add_u32 {v(vWA + 1)}, v12, 6, v11']
            e += ['v_lshrrev_b32 v11, 3, v2', 'v_and_b32 v12, 7, v2', 'v_lshlrev_b32 v13, 10, v11', 'v_lshl_add_u32 v13, v12, 7, v13',
                  f'v_add_u32 v13, {XB}, v13', 'v_lshrrev_b32 v12, 1, v12', 'v_lshlrev_b32 v11, 2, v11', 'v_xor_b32 v12, v12, v11',
                  'v_xor_b32 v12, v12, v1', f'v_lshl_add_u32 {v(vXA)}, v12, 4, v13', 'v_xor_b32 v12, 4, v12',
                  f'v_lshl_add_u32 {v(vXA + 1)}, v12, 4, v13']
        e += [f's_mul_i32 {s(sT1)}, {s(sT0)}, {RING}', 'v_mul_u32_u24 v11, 1088, v5', 'v_lshl_add_u32 v11, v6, 8, v11',
              'v_xor_b32 v12, v1, v6', 'v_lshl_add_u32 v11, v12, 4, v11', f'v_add_u32 {v(vKA)}, {s(sT1)}, v11']
        e += [f's_add_u32 {s(sT1)}, {s(sT1)}, {2 * RING}',
              'v_mul_u32_u24 v11, 1088, v1', 'v_lshl_add_u32 v11, v5, 8, v11', 'v_lshl_add_u32 v11, v6, 3, v11',
              f'v_add_u32 v11, {s(sT1)}, v11',
              'v_and_b32 v12, 1, v5', 'v_lshrrev_b32 v13, 1, v5', 'v_lshl_or_b32 v12, v13, 2, v12']
        for k, d in enumerate((0, 1, 4, 5)):
            e += [f'v_xor_b32 v13, {d}, v12', f'v_lshl_add_u32 {v(vVA + k)}, v13, 5, v11']
        for k in range(4):
            e += [f's_sub_u32 {s(sT1)}, {k}, {s(sHH)}', f's_and_b32 {s(sT1)}, {s(sT1)}, 3', f's_mul_i32 {s(sT1)}, {s(sT1)}, {TS}',
                  f's_add_u32 {s(sTB + k)}, {s(sRING)}, {s(sT1)}']
        e += [f's_mul_i32 {s(sT2)}, {s(sPSB)}, 3072', f's_add_u32 {s(sPSt[0])}, {s(sT2)}, {8 * 98304}', f's_mul_i32 {s(sT3)}, {s(sJ)}, 98304',
              f's_mul_i32 {s(sSO)}, {s(sW)}, 3072', f's_add_u32 {s(sT3)}, {s(sT3)}, {s(sSO)}']
        for p in range(1, 8):
            e += [f's_add_u32 {s(sT1)}, {s(sJ)}, {p}', f's_and_b32 {s(sT1)}, {s(sT1)}, 7', f's_mul_i32 {s(sT1)}, {s(sT1)}, 98304',
                  f's_add_u32 {s(sPSt[p])}, {s(sT1)}, {s(sT2)}',
                  f's_sub_u32 {s(sT1)}, {s(sJ)}, {p}', f's_and_b32 {s(sT1)}, {s(sT1)}, 7', f's_mul_i32 {s(sT1)}, {s(sT1)}, 12288',
                  f's_add_u32 {s(sDAt[p])}, {s(sT1)}, {s(sT3)}']
        e += [f's_lshl_b32 {s(sT1)}, {s(sJ)}, 10', f's_add_u32 {s(sT1)}, {s(sT1)}, {s(sSO)}', f's_add_u32 {s(sT1)}, {s(sT1)}, {8 * 98304}',
              f's_cmp_lt_u32 {s(sJ)}, 3', f's_cselect_b32 {s(sDAt[0])}, {s(sT1)}, {GRP}',
              f's_lshl_b32 {s(sFS)}, {s(sPSB)}, 10', f's_mul_i32 {s(sOO)}, {s(sB)}, {96 * 2304}', f's_mul_i32 {s(sT3)}, {s(sBLK)}, 1152',
              f's_add_u32 {s(sOO)}, {s(sOO)}, {s(sT3)}', f's_lshl_b32 {s(sT3)}, {s(sW)}, 5', f's_add_u32 {s(sOO)}, {s(sOO)}, {s(sT3)}']
        for k in range(4):
            e += [f's_add_u32 {s(sT1)}, {s(sB)}, {k}' if c.krot else f's_mov_b32 {s(sT1)}, {k}', f's_and_b32 {s(sT1)}, {s(sT1)}, 3',
                  f's_mul_i32 {s(sH + k)}, {s(sT1)}, 147456']

    def wq_unit(self, u):
        hf = u & 1
        pre = [f's_add_u32 m0, {s(sRING)}, {4096 * ((u + 4) & 7)}', f's_add_u32 {s(sSO)}, {s(sWK)}, {(131072 if self.c.q32 else 128) * hf}']
        g = [pre + [self.dma(vWV, SRD_WQ, s(sSO), 0, self.c.w_nt, ('U', u))]]
        for n in range(1, 4):
            g.append([self.dma(vWV + n, SRD_WQ, s(sSO), 1024 * n, self.c.w_nt, ('U', u))])
        if hf and not self.c.fake_w:
            g.append([f's_add_u32 {s(sWK)}, {s(sWK)}, 262144', f's_cmp_eq_u32 {s(sWK)}, 4718592', f's_cselect_b32 {s(sWK)}, 0, {s(sWK)}'])
        return g

    def x_chunk(self, kc):
        g = []
        for m in range(3):
            g.append([f's_add_u32 m0, {s(sXL)}, {12288 * (kc & 1) + 4096 * m}', f's_add_u32 {s(sSO)}, {s(sXK)}, {36864 * m}',
                      self.dma(vXV, SRD_X, s(sSO), 0, self.c.x_nt, ('X', kc))])
        if not self.c.fake_w:
          g.append([f's_add_u32 {s(sXK)}, {s(sXK)}, 128', f's_cmp_eq_u32 {s(sXK)}, 1152', f's_cselect_b32 {s(sXK)}, 0, {s(sXK)}'])
        return g

    def a_reads(self, u, k):
        r = QA + 4 * k
        if self.c.q32:
            return [f'ds_read_b64_tr_b16 {v(r + 2 * e_, 2)}, {v(vWA + k)} offset:{4096 * ((u + 4) & 7) + 1024 * e_}' for e_ in range(2)]
        return [f'ds_read_b64_tr_b16 {v(r + 2 * e_, 2)}, {v(vWA + (k >> 1))} offset:{4096 * ((u + 4) & 7) + 512 * e_ + 8 * (k & 1)}' for e_ in range(2)]

    def b_read(self, st, t):
        if self.c.q32:
            return f'ds_read_b128 {a(QB + 12 * (st & 1) + 4 * t, 4)}, {v(vXA + (st & 3))} offset:{12288 * ((st >> 2) & 1) + 4096 * t}'
        kc = st >> 1
        return f'ds_read_b128 {a(QB + 24 * (st & 1) + 4 * t, 4)}, {v(vXA + (st & 1))} offset:{12288 * (kc & 1) + 2048 * t}'

    def qproj(self):
        c = self.c
        if c.trace:
            self.emit([f'v_writelane_b32 {v(vTRa)}, s98, 0', f'v_writelane_b32 {v(vTRb)}, s100, 0'])
            self.ntr = 1
            self.trnames.append('start')
        if c.trace_h:
            self.tr(name='sld')
        e = flat(self.x_chunk(0)) + flat(self.wq_unit(0)) + flat(self.wq_unit(1))
        if c.init_u >= 3:
            e += flat(self.x_chunk(1))
        for u in range(2, min(c.init_u, 4)):
            e += flat(self.wq_unit(u))
        if c.warm_code and not c.cw_late:
            e += self.code_warm()
        e += self.late_setup
        for u in range(4, c.init_u):
            e += flat(self.wq_unit(u))
        if c.trace_h:
            self.emit(e); e = []
            self.tr(name='iss')
            self.emit([self.wvm([('X', 0), ('U', 0)])])
            self.tr(name='land')
        e += [self.wvm([('X', 0), ('U', 0)]), 's_barrier']
        for t in range(3 if c.q32 else 6):
            e.append(self.b_read(0, t))
        for k in range(3):
            e += self.a_reads(0, k)
        self.emit(e, 'qpre')
        self.tr(name='first')
        mf, fl, dm = [], [], []
        NU = 36
        kvg = self.kv_stage()
        D = 12 if c.q32 else 24
        sc = lambda x: x * D // 24
        if c.init_u < 3:
            for k, g in enumerate(self.x_chunk(1)):
                dm.append(Filler(g, rel=sc(c.ramp) + 1, dl=sc(c.ramp) + 2 + k, pos=sc(c.ramp) + 0.7))
        for q in range(c.init_u, NU):
            x = max(D * (q - 8) + sc(18), sc(c.ramp) * (q - c.init_u) + (sc(6) if c.init_u < 3 and q > c.init_u + 1 else 0))
            steady = x == D * (q - 8) + sc(18)
            nxt_x = ((q - 7) & 3) == (3 if c.q32 else 2)
            sp = sc(c.wq_sp) if steady and not nxt_x else sc(2)
            if steady and nxt_x and c.q32:
                sp = 1.5
            for k, g in enumerate(self.wq_unit(q)):
                dm.append(Filler(g, rel=x + int(sp * k), dl=x + 1 + int(sp * k), pos=x + 0.5))
        if c.warm_code and c.cw_late:
            dm.append(Filler(self.code_warm(), rel=D + sc(8), dl=D + sc(10)))
        dm.append(Filler(self.flag_clear(), rel=D * 2 + sc(6), dl=D * 2 + sc(16)))
        for u in range(NU):
            st, hf = u >> 1, u & 1
            g0 = D * u
            if c.q32:
                for ct in range(4):
                    for t in range(3):
                        acc = v((ct * 3 + t) * 16, 16)
                        mf.append(I(f'{MF32} {acc}, {v(QA + 4 * ct, 4)}, {a(QB + 12 * (u & 1) + 4 * t, 4)}, {acc if u else 0}'))
            else:
                for k in range(4):
                    ct = 4 * hf + k
                    for t in range(6):
                        acc = v((ct * 6 + t) * 4, 4)
                        mf.append(I(f'{MF} {acc}, {v(QA + 4 * k, 4)}, {a(QB + 24 * (st & 1) + 4 * t, 4)}, {acc if st else 0}'))
            fl.append(Filler(self.a_reads(u, 3), rel=g0, dl=g0 + sc(4), stream='a', pos=g0 + sc(18) - 0.5))
            if u + 1 < NU:
                fl.append(Filler(self.wvm(('U', u + 1)), rel=g0 + sc(5), dl=g0 + sc(8), stream='a'))
                for k in range(3):
                    fl.append(Filler(self.a_reads(u + 1, k), rel=g0 + sc(6 * k + 6), dl=g0 + sc(6 * k + 10), stream='a', pos=g0 + D + sc(6 * k) - 0.5))
            xu = (u & 3 == 3) if c.q32 else (u & 3 == 2)
            if xu and u + 1 < NU:
                kc = u >> 2
                if kc < 8:
                    fl.append(Filler([self.wvm(('X', kc + 1)), 's_barrier'], rel=g0 + sc(6) - (1 if c.q32 else 0), dl=g0 + sc(8) - (1 if c.q32 else 0), stream='b'))
                if kc + 2 <= 8:
                    for k, g in enumerate(self.x_chunk(kc + 2)):
                        dm.append(Filler(g, rel=g0 + sc(9 + 3 * k), dl=g0 + sc(10 + 3 * k), pos=g0 + sc(9) + 0.5))
                if kc == c.xtouch:
                    dm.append(Filler(self.x_touch(kc + 3), rel=g0 + sc(17), dl=g0 + sc(18), pos=g0 + sc(17) + 0.2))
            if c.q32 and u + 1 < NU:
                for t in range(3):
                    fl.append(Filler(self.b_read(u + 1, t), rel=g0 + 4 + t, dl=g0 + 7 + t, stream='b', pos=g0 + 11.5))
            if not c.q32 and hf == 0 and st + 1 < 18:
                for t in range(6):
                    fl.append(Filler(self.b_read(st + 1, t), rel=g0 + 9 + 5 * t, dl=g0 + 30 + t, stream='b', pos=g0 + 47.5))
            if u % 4 == 3 and u < 35:
                self.tr_filler(fl, g0 + D - 1, 'q')
        i = 0
        while kvg:
            x = int(D * c.kv_from + sc(4) + c.kv_sp * i * D / 24)
            if x > D * NU - 2:
                break
            fl.append(Filler(kvg.pop(0), rel=x, dl=x + 1, stream='kv')); i += 1
        assert i >= 16
        dm.sort(key=lambda f: f.pos)
        for f in dm:
            f.stream = 'dma'
        fl += dm
        puts = [(tl, n) for tl in range(c.n_stage) for n in range(8)]
        for k in range(c.put_q):
            tl, n = puts.pop(0)
            sl = (tl * TS + 1088 * n + 1023) // 4096
            x = min(max(D * (28 + min(sl, 7)) + sc(18), D * NU - sc(4) * (c.put_q - k)), D * NU - 1)
            fl.append(Filler(self.kv_put(tl, n), rel=x, dl=x + sc(2), stream='put'))
        if c.q32:
            seq = interleave(mf, fl, 24, c.verbose, 'qproj', rate=float(c.q32_budget), cap=40)
        else:
            seq = interleave(mf, fl, 8, c.verbose, 'qproj', rate=c.q_rate, cap=24)
        self.emit(seq, 'qproj')
        self.tr(name='q')
        e = []
        for t3 in ((2, 0, 1) if c.q32 else ()):
            for ct in range(4):
                b = (ct * 3 + t3) * 16
                e += [f'v_pk_mul_f32 {v(b + i, 2)}, {v(b + i, 2)}, {s(sC, 2)}' for i in range(0, 16, 2)]
                dst = [Q45 + 16 * (i >> 2) + 4 * ct + (i & 3) if t3 == 2 else b + i for i in range(8)]
                e += [f'v_cvt_pk_bf16_f32 {v(dst[i])}, {v(b + 2 * i)}, {v(b + 2 * i + 1)}' for i in range(8)]
                e += [f'v_permlane16_swap_b32 {v(dst[j])}, {v(dst[4 + j])}' for j in range(4)]
                if t3 < 2:
                    e += [f'v_accvgpr_write_b32 {a(192 + 16 * (2 * t3 + (i >> 2)) + 4 * ct + (i & 3))}, {v(dst[i])}' for i in range(8)]
        for t in (() if c.q32 else (4, 5, 0, 1, 2, 3)):
            for ct in range(8):
                b = (ct * 6 + t) * 4
                e += [f'v_pk_mul_f32 {v(b, 2)}, {v(b, 2)}, {s(sC, 2)}', f'v_pk_mul_f32 {v(b + 2, 2)}, {v(b + 2, 2)}, {s(sC, 2)}']
            for ct in range(8):
                b = (ct * 6 + t) * 4
                ks, uu = ct >> 1, ct & 1
                for h2 in range(2):
                    d = Q45 + 16 * (t - 4) + 4 * ks + 2 * uu + h2 if t >= 4 else b + h2
                    e.append(f'v_cvt_pk_bf16_f32 {v(d)}, {v(b + 2 * h2)}, {v(b + 2 * h2 + 1)}')
            if t < 4:
                for ct in range(8):
                    b = (ct * 6 + t) * 4
                    ks, uu = ct >> 1, ct & 1
                    for h2 in range(2):
                        e.append(f'v_accvgpr_write_b32 {a(192 + 16 * t + 4 * ks + 2 * uu + h2)}, {v(b + h2)}')
        nput = 16 - c.put_q
        for k in range(nput):
            tl, n = puts.pop(0)
            x = (k + 1) * (len(e) // (nput + 1))
            e[x:x] = self.kv_put(tl, n)
        self.puts = puts
        gs = [kvg.pop(0) for _ in range(min(c.kv_nc, len(kvg)))]
        self.kvg = kvg
        if c.n_stage == 2:
            t3 = [[f's_lshl_b32 {s(SRD_KV + 2)}, {s(sKL)}, 18']] + self.kv_tile(3, None)[:-1]
            t3 += [[f's_mov_b32 {s(SRD_KV + 2)}, 262144', f's_lshl_b32 {s(sT3)}, {s(sKL)}, 13', f's_add_u32 {s(sOFF)}, {s(sOFF)}, {s(sT3)}',
                    f's_and_b32 {s(sOFF)}, {s(sOFF)}, 0x3ffff', f's_add_u32 {s(sOFF2)}, {s(sOFF)}, 4096']]
            gs = self.kv_tile(2, None)
            if c.t3_late:
                self.kvg = t3
            else:
                gs += t3
        step = len(e) // (len(gs) + 1)
        for k in range(len(gs) - 1, -1, -1):
            e[k * step + 4:k * step + 4] = gs[k]
        e += ['s_waitcnt lgkmcnt(0)', 's_barrier']
        self.emit(e, 'qconv')
        self.tr(name='conv')

    def kv_reload(self):
        e = flat(self.kv_tile(0, None)) + flat(self.kv_tile(1, None)) + flat(self.kv_tile(2, None))
        e += [f's_cmp_lg_u32 {s(sHH)}, 0', 's_cbranch_scc1 L_skip_t3'] + flat(self.kv_tile(3, None)) + ['L_skip_t3:', 's_waitcnt vmcnt(0)', 's_barrier']
        self.emit(e)

    def frag_reads(self, phi, kslot, vslot):
        r = FR + 4 * (phi & 3)
        if phi < 8:
            c_, ks = phi >> 2, phi & 3
            return [f'ds_read_b128 {v(r, 4)}, {v(vKA)} offset:{kslot * TS + 4352 * c_ + 64 * ks}']
        dt = phi - 8
        reg = vVA + (dt & 1) + 2 * (dt >> 2)
        return [f'ds_read_b64_tr_b16 {v(r + 2 * e_, 2)}, {v(reg)} offset:{vslot * TS + 4352 * e_ + 64 * ((dt >> 1) & 1)}' for e_ in range(2)]

    def qk_mfmas(self, buf, czero=False):
        mf = []
        for c_ in range(2):
            for ks in range(4):
                for t in range(6):
                    d = v(Sr(buf, c_, t), 4)
                    cc = d if ks else ('0' if czero else v(NM + 4 * t, 4))
                    mf.append(I(f'{MF} {d}, {v(FR + 4 * ks, 4)}, {Qfrag(t, ks)}, {cc}'))
        return mf

    def pv_mfmas(self, czero=False):
        mf, first = [], []
        for dt in range(8):
            first.append(len(mf))
            for t in range(6):
                o = a(Oacc(dt, t), 4)
                mf.append(I(f'{MF} {o}, {v(FR + 4 * (dt & 3), 4)}, {v(P_ + 4 * t, 4)}, {0 if czero else o}'))
            if dt < 6 and not self.c.vsum and not self.c.nosum:
                l = v(L_ + 4 * dt, 4)
                mf.append(I(f'{MF} {l}, {v(ONES, 4)}, {v(P_ + 4 * dt, 4)}, {0 if czero else l}'))
        return mf, first

    def exp_order(self):
        return [(c_, t, i) for c_ in range(2) for t in range(6) for i in range(4)]

    def xlane_max(self, m, m2):
        return [f'v_mov_b32 {m2}, {m}', f'v_permlane32_swap_b32 {m}, {m2}', f'v_max_f32 {m}, {m}, {m2}',
                f'v_mov_b32 {m2}, {m}', f'v_permlane16_swap_b32 {m}, {m2}', f'v_max_f32 {m}, {m}, {m2}']

    def attn_pre(self, safe, lab):
        c = self.c
        self.emit(self.frag_reads(0, 0, 0) + self.frag_reads(1, 0, 0))
        fl = []
        for phi in range(2, 8):
            fl.append(Filler(self.frag_reads(phi, 0, 0), rel=max(6 * phi - 18, -1), dl=6 * phi - 10, stream='fr', pos=6 * phi - 0.5))
        for phi in range(2):
            fl.append(Filler(self.frag_reads(phi, 1, 0), rel=6 * (phi + 8) - 14, dl=6 * (phi + 8) - 10, stream='fr', pos=60))
        for i in range(4):
            fl.append(Filler(f'v_mov_b32 {v(ONES + i)}, 0x3f803f80', rel=0, dl=40, stream='i'))
        for k, g in enumerate(self.kvg):
            x = 2 + k * 44 // max(len(self.kvg), 1)
            fl.append(Filler(g, rel=x, dl=x + 1, stream='kv'))
        self.kvg = []
        self.emit(interleave(self.qk_mfmas(0, True), fl, 8, c.verbose, 'qk0', rate=8.0), 'qk0')
        e = []
        for t0 in (0, 3):
            ms = [(v(vMX + 2 * k), v(vMX + 2 * k + 1)) for k in range(3)]
            rows = []
            for k in range(3):
                t = t0 + k
                m, m2 = ms[k]
                r = [Sr(0, 0, t) + i for i in range(4)] + [Sr(0, 1, t) + i for i in range(4)]
                row = [f'v_max3_f32 {m}, {v(r[0])}, {v(r[1])}, {v(r[2])}', f'v_max3_f32 {m}, {m}, {v(r[3])}, {v(r[4])}',
                       f'v_max3_f32 {m}, {m}, {v(r[5])}, {v(r[6])}', f'v_max_f32 {m}, {m}, {v(r[7])}'] + self.xlane_max(m, m2)
                row += [f'v_sub_f32 {v(NM + 4 * t + i)}, 0, {m}' for i in range(4)]
                row += [f'v_sub_f32 {v(x)}, {v(x)}, {m}' for x in r]
                rows.append(row)
            for z in zip(*rows):
                e += list(z)
        if not safe:
            for (c_, t, i) in self.exp_order()[:c.npart1]:
                x = v(Sr(0, c_, t) + i)
                e.append(f'v_exp_f32 {x}, {x}')
        nput = min(c.put_m, len(self.puts))
        for k in range(nput):
            x = (k + 1) * (len(e) // (nput + 1))
            e[x:x] = self.kv_put(*self.puts.pop(0))
        e += ['s_waitcnt lgkmcnt(0)', 's_barrier']
        self.emit(e, 'max0')

    def cvt_fillers(self, cur, base, todo, rel0):
        fl = []
        todo = list(todo)
        for t in range(6):
            for c_ in range(2):
                for h2 in range(2):
                    b = Sr(cur, c_, t) + 2 * h2
                    for i in (2 * h2, 2 * h2 + 1):
                        if (c_, t, i) in todo:
                            fl.append(Filler(f'v_exp_f32 {v(Sr(cur, c_, t) + i)}, {v(Sr(cur, c_, t) + i)}', rel=rel0, dl=base + t - 4, stream='e', pos=-3))
                    fl.append(Filler(f'v_cvt_pk_bf16_f32 {v(P_ + 4 * t + 2 * c_ + h2)}, {v(b)}, {v(b + 1)}', rel=rel0, dl=base + t - 3,
                                     stream='c', pos=-2.5))
                    if self.c.vsum:
                        for i in range(2):
                            fl.append(Filler(f'v_add_f32 {v(L_ + 4 * t)}, {v(L_ + 4 * t)}, {v(b + i)}', rel=rel0, dl=base + 40, stream='s', pos=-2.4))
        return fl

    def attn_iter(self, j, safe, dma='kv', xwait='s_waitcnt vmcnt(8)', nextk=True, site=None, extra=(), win=None):
        c = self.c
        cur, new = j & 1, (j + 1) & 1
        pv, first = self.pv_mfmas(j == 0)
        mf = self.qk_mfmas(new) + pv
        n = len(mf)
        need = [6 * phi for phi in range(8)] + [48 + x for x in first] + [n, n + 6]
        fl = []
        for phi in range(2, 18):
            if phi >= 16:
                if not nextk: continue
                r = self.frag_reads(phi - 16, (j + 2) & 3, 0)
            else:
                r = self.frag_reads(phi, (j + 1) & 3, j & 3)
            fl.append(Filler(r, rel=max(need[phi] - 15, 0), dl=need[phi] - 10, stream='fr', pos=need[phi] - 0.5))
        order = self.exp_order()
        if safe:
            fl += self.cvt_fillers(cur, 48, order, 0)
            regs = [S_[new] + i for i in range(48)]
            m = v(vMX)
            fl.append(Filler(f'v_max3_f32 {m}, {v(regs[0])}, {v(regs[1])}, {v(regs[2])}', rel=52, dl=n - 4, stream='m', pos=200))
            for k in range(3, 48, 2):
                r2 = regs[min(k + 1, 47)]
                fl.append(Filler(f'v_max3_f32 {m}, {m}, {v(regs[k])}, {v(r2)}', rel=52, dl=n - 4, stream='m', pos=200))
            fl.append(Filler(f'v_cmp_lt_f32 vcc, {s(sTHR)}, {m}', rel=52, dl=n - 3, stream='m', pos=200))
        else:
            fl += self.cvt_fillers(cur, 48, order[c.npart1:], 0)
            for (c_, t, i) in order[:c.npart1]:
                x = v(Sr(new, c_, t) + i)
                fl.append(Filler(f'v_exp_f32 {x}, {x}', rel=(46 if c_ == 0 else 52), dl=n - 1, stream='e2', pos=200))
        if dma == 'kv':
            gs = self.kv_groups(sTB + (j & 3), 0, None, c.win if win is None else win)
            if j == 4:
                gs[0] = [f's_cmp_eq_u32 {s(sLOOP)}, {s(sKL)}', f's_cselect_b32 {s(SRD_KV + 2)}, 0, {s(SRD_KV + 2)}'] + gs[0]
            for k, g in enumerate(gs):
                fl.append(Filler(g, rel=max(11 * k - 9, 0), dl=min(11 * k - 3, 90) if k else 1, stream='dma'))
        fl += list(extra)
        if c.noexp:
            fl = [f for f in fl if not f.ins[0].op.startswith('v_exp')]
        xg = need[15]
        fl.append(Filler([xwait, 's_barrier'] if isinstance(xwait, str) else xwait + ['s_barrier'], rel=xg, dl=xg, stream='x'))
        seq = interleave(mf, fl, 8, c.verbose, f'iter{j}', rate=((c.a_rate if j else 9.5) if not safe else 10.0), cap=20)
        if safe:
            seq.append(I(f's_cbranch_vccnz L_rare_{site}'))
            seq.append(I(f'L_back_{site}:'))
            self.sites.append((site, new))
        return seq

    def warm_wo(self, part, tmp=vH + 4):
        L = v(vLANE)
        per = -(-72 // len(self.c.warm_at))
        assert per <= 64
        t0, t1 = v(tmp), v(tmp + 1)
        e = []
        if part == 0:
            e += [f'v_lshlrev_b32 {t0}, 7, {L}', f'v_mov_b32 {t1}, {OOB}', f'v_cmp_gt_u32 vcc, {per}, {L}', 's_nop 1', f'v_cndmask_b32 {t0}, {t1}, {t0}, vcc']
        e += [f's_lshl_b32 {s(sT1)}, {s(sB)}, 2', f's_add_u32 {s(sT1)}, {s(sT1)}, {s(sW)}', f's_mul_i32 {s(sT1)}, {s(sT1)}, 9216',
              f's_add_u32 {s(sT1)}, {s(sT1)}, {128 * per * part}',
              I(f'buffer_load_dword {v(vF) if self.c.warm_it == 31 else v(241)}, {t0}, {s(SRD_WO, 4)}, {s(sT1)} offen{self.c.warm_nt}', tag='W', cost=self.c.dma_cost)]
        return e

    def attention(self, safe):
        c = self.c
        lab = 's' if safe else 'f'
        self.emit([f's_mov_b32 {s(sLOOP)}, 7'])
        self.attn_pre(safe, lab)
        self.tr(name='pre')
        if self.puts:
            ex = [Filler(self.kv_put(tl, n), rel=int(k * c.put_sp), dl=int(k * c.put_sp) + 1, stream='put', pos=-1) for k, (tl, n) in enumerate(self.puts)]
            ex.append(Filler(['s_waitcnt lgkmcnt(0)', 's_barrier'], rel=84, dl=84, stream='put'))
            self.puts = []
            self.emit(self.attn_iter(0, safe, dma=None, site='0', extra=ex), 'iter0')
        else:
            self.emit(self.attn_iter(0, safe, site='0', extra=[Filler(['s_waitcnt vmcnt(8)', 's_barrier'], rel=84, dl=84, stream='fr0')]), 'iter0')
        self.vm_reset()
        self.tr(name='it')
        entry = [set(x) for x in self.lg]
        phases = [(c.win, 0)] if (safe or c.win_b is None) else [(c.win, 7 - c.n1), (c.win_b, 0)]
        if len(phases) == 2 and c.win_c is not None:
            phases = [(c.win, 7 - c.n1), (c.win_b, 7 - c.n1 - c.n2), (c.win_c, 0)]
        for ph, (win, stop) in enumerate(phases):
            self.raw(['.p2align 3', f'L_loop{lab}{ph}:'])
            start = len(self.out)
            for j in range(1, 5):
                self.emit(self.attn_iter(j, safe, site=f'{j}', win=win), f'iter{j}')
                self.tr(dyn=True, name='it')
            assert [set(x) for x in self.lg] == entry, (self.lg, entry)
            self.emit([f's_sub_u32 {s(sLOOP)}, {s(sLOOP)}, 1', f's_cmp_lg_u32 {s(sLOOP)}, {stop}', f's_cbranch_scc1 L_loop{lab}{ph}'])
            rep = []
            pad_hazards(self.out[start:start + 40], history=self.out[-40:], report=rep)
            assert not rep, rep
            if ph and c.trace and not c.trace_o and not c.trace_h:
                self.ntr -= 4
                self.trnames = self.trnames[:-4]
        self.vm_reset()
        if c.trace and not c.trace_o and not c.trace_h:
            self.ntr += 24
            self.trnames += ['it'] * 24
        ex = [Filler(self.clear_done(), rel=2, dl=6)] + [Filler(g, rel=8 + 6 * k, dl=12 + 6 * k, stream='ft') for k, g in enumerate(self.flag_touch())]
        wm = [Filler(self.warm_wo(k, vMX + 6), rel=8 + 4 * k, dl=12 + 4 * k, stream='wm') for k in range(len(c.warm_at))] if c.warm_wo else []
        n29 = len(wm) if c.warm_it == 29 else 0
        n30 = len(wm) if c.warm_it in (29, 30) else 0
        self.emit(self.attn_iter(29, safe, dma=None, xwait=f's_waitcnt vmcnt({10 + n29})', site='29', extra=ex + (wm if n29 else [])), 'iter29')
        self.tr(name='it')
        self.emit(self.attn_iter(30, safe, dma=None, xwait=f's_waitcnt vmcnt({2 + n30})', nextk=False, site='30',
                                 extra=(wm if c.warm_it == 30 else [])), 'iter30')
        self.last_extra = wm if c.warm_it == 31 else []
        self.tr(name='it')
        self.vm_reset()
        self.attn_last(safe)

    def oproj_setup(self):
        L = v(vLANE)
        t0, t1, t2 = v(vT), v(vT + 1), v(vT + 2)
        e = [f'v_lshrrev_b32 {t0}, 3, {L}', f'v_and_b32 {t1}, 7, {L}', f'v_and_b32 {t2}, 6, {t0}', f'v_xor_b32 {t1}, {t1}, {t2}',
             f's_lshl_b32 {s(sT1)}, {s(sW)}, 3', f'v_add_u32 {t0}, {s(sT1)}, {t0}', f'v_mul_u32_u24 {t0}, 1152, {t0}',
             f'v_lshl_add_u32 {v(vOV)}, {t1}, 4, {t0}']
        e += [f'v_bfe_u32 {t0}, {L}, 2, 3', f'v_lshrrev_b32 {t1}, 1, {t0}', f'v_xor_b32 {t1}, {s(sW)}, {t1}', f'v_lshlrev_b32 {t1}, 5, {t1}',
              f'v_lshl_add_u32 {t0}, {t0}, 7, {t1}', f'v_and_b32 {t1}, 3, {L}', f'v_lshl_add_u32 {t0}, {t1}, 3, {t0}',
              f'v_lshrrev_b32 {t1}, 5, {L}', f'v_lshl_add_u32 {v(vOA)}, {t1}, 10, {t0}', f'v_add_u32 {v(vOA2)}, 65536, {v(vOA)}']
        e += [f'v_lshlrev_b32 {v(vPS)}, 4, {L}', f'v_mov_b32 {v(vPA)}, v246']
        for k in range(4):
            e += [f's_mul_hi_u32 {s(sT1)}, {s(sH + k)}, {(2 ** 32 + 5) // 6}', f's_add_u32 {s(sT1)}, {s(sT1)}, {OB}',
                  f'v_add_u32 {v(vBA + k)}, {s(sT1)}, {v(vPS)}']
        e += [f's_mul_i32 {s(sT1)}, {s(sW)}, 24576', f's_add_u32 {s(sT1)}, {s(sT1)}, {OB}', f'v_add_u32 {v(vOW)}, {s(sT1)}, {v(vPS)}']
        return e

    def flag_touch(self):
        L = v(vLANE)
        t0, t1 = v(244), v(245)
        return [[f'v_subrev_u32 {t0}, 7, {L}', f'v_sub_u32 {t1}, {s(sJ)}, {t0}', f'v_and_b32 {t1}, 7, {t1}', f'v_lshlrev_b32 {t1}, 12, {t1}',
                 f'v_lshl_add_u32 {t1}, {t0}, 7, {t1}'],
                [f'v_cmp_gt_u32 vcc, 15, {L}', f'v_lshlrev_b32 {t0}, 12, {L}', 's_nop 0', f'v_cndmask_b32 {t1}, 0, {t1}, vcc', f'v_cmp_gt_u32 vcc, 8, {L}', 's_nop 1',
                 f'v_cndmask_b32 v246, {t1}, {t0}, vcc'],
                [f's_lshl_b32 {s(sFA)}, {s(sW)}, 10', I(f'buffer_load_dword v247, v246, {s(SRD_FL, 4)}, {s(sFA)} offen{self.c.fl_mod}', cost=self.c.dma_cost)]]

    def late_consts(self):
        L = v(RR + 2)
        t0, t1 = v(RR), v(RR + 1)
        g = [[f'v_lshrrev_b32 {L}, 4, {v(vPS)}', f'v_mov_b32 {t0}, {OOB}', f'v_cmp_eq_u32 vcc, 0, {L}', 's_nop 1', f'v_cndmask_b32 {v(vL0)}, {t0}, {L}, vcc'],
             [f'v_and_b32 {t0}, 15, {L}', f'v_mul_u32_u24 {t0}, 2304, {t0}'], [f'v_lshrrev_b32 {t1}, 4, {L}', f'v_lshl_add_u32 {v(vOO)}, {t1}, 3, {t0}'],
             [f'v_bfe_u32 {t0}, {L}, 2, 2', f'v_cmp_eq_u32 vcc, {t0}, {t1}', f'v_and_b32 {t0}, 1, {L}', f'v_lshlrev_b32 {t0}, 4, {t0}',
              f'v_lshlrev_b32_e64 {t0}, {t0}, 1', f'v_mul_u32_u24 {t0}, 0x3f80, {t0}', f'v_cndmask_b32 {t0}, 0, {t0}, vcc'],
             [f'v_and_b32 {t1}, 2, {L}', f'v_cmp_eq_u32 vcc, 0, {t1}', f'v_mov_b32 {v(SEL)}, 0', f'v_mov_b32 {v(SEL + 1)}, 0',
              f'v_cndmask_b32 {v(SEL + 2)}, 0, {t0}, vcc', f'v_sub_u32 {v(SEL + 3)}, {t0}, {v(SEL + 2)}'],
             [f'v_mov_b32 {v(SEL + 4)}, 0', f'v_mov_b32 {v(SEL + 5)}, 0']]
        return g

    def check(self, reg, want, reload, name, allanes=False, two=False):
        k = len(self.spins)
        if two:
            test = [f'v_and_b32 {v(reg)}, {v(reg)}, {v(reg + 1)}', 's_nop 0', f'v_readfirstlane_b32 {s(sT3)}, {v(reg)}', 's_nop 1', f's_cmp_eq_u32 {s(sT3)}, {want}']
        elif allanes:
            test = [f'v_cmp_eq_u32 vcc, 0, {v(reg)}', 's_nop 1', f's_and_b32 {s(sT3)}, vcc_lo, {want:#x}', f's_cmp_eq_u32 {s(sT3)}, 0']
        else:
            test = [f'v_readfirstlane_b32 {s(sT3)}, {v(reg)}', 's_nop 1', f's_cmp_lg_u32 {s(sT3)}, 0']
        self.spins.append((k, reload, test))
        return test + [f's_cbranch_scc0 L_spin{k}', f'L_spun{k}:']

    def spin_blocks(self):
        for k, reload, test in self.spins:
            self.raw([f'L_spin{k}:', f's_mov_b32 {s(sSPIN)}, {self.c.spin_max}', f'L_spinl{k}:', 's_sleep 1', reload, 's_waitcnt vmcnt(0)'] + test +
                     ([f's_cbranch_scc0 L_spinc{k}', f's_sub_u32 {s(sSPIN)}, {self.c.spin_max + 1}, {s(sSPIN)}', f'v_writelane_b32 v126, {s(sSPIN)}, {58 + k}',
                       f's_branch L_spun{k}', f'L_spinc{k}:'] if self.c.trace else []) +
                     [f's_cbranch_scc1 L_spun{k}', f's_sub_u32 {s(sSPIN)}, {s(sSPIN)}, 1', f's_cmp_lg_u32 {s(sSPIN)}, 0', f's_cbranch_scc1 L_spinl{k}',
                      f's_branch L_spun{k}'])

    def plan_wo(self):
        self.slot_of = {0: 0, 1: 1, 2: 2}
        self.issue_at = {}
        free = [3]
        nxt = 3
        for sg in range(1, 36):
            if sg >= 2:
                free.append(self.slot_of[sg - 2])
            if sg == 5:
                free += list(range(4, self.c.oring))
            todo = []
            while nxt < 36 and free and len(todo) < 2:
                self.slot_of[nxt] = free.pop(0)
                todo.append(nxt); nxt += 1
            assert nxt >= min(sg + 2, 36)
            self.issue_at[sg] = todo

    def wo_slot(self, n):
        return 16384 * self.slot_of[n >> 2] + 4096 * (n & 3)

    def wo_unit(self, n):
        p, kk = n >> 4, n & 15
        g = [f's_add_u32 m0, {s(sWOL)}, {self.wo_slot(n)}']
        if kk == 0:
            if p == 0:
                g += [f's_mov_b32 {s(sCG)}, 1024']
            else:
                g += [f's_add_u32 {s(sCG)}, {s(sJ)}, {p}', f's_and_b32 {s(sCG)}, {s(sCG)}, 7', f's_lshl_b32 {s(sCG)}, {s(sCG)}, 7']
        elif kk & 3 == 0:
            g += [f's_add_u32 {s(sCG)}, {s(sCG)}, 36864']
        g += [f's_add_u32 {s(sSO)}, {s(sH + (kk & 3))}, {s(sCG)}']
        g.append(self.dma(vOV, SRD_WO, s(sSO), 0, self.c.wo_nt, ('O', n)))
        return g

    def attn_last(self, safe):
        c = self.c
        cur = 1
        e = self.frag_reads(8, 0, 3) + self.frag_reads(9, 0, 3) + self.oproj_setup()
        self.emit(e, 'last0')
        pv, first = self.pv_mfmas()
        fl = []
        for phi in range(10, 16):
            nd = first[phi - 8]
            fl.append(Filler(self.frag_reads(phi, 0, 3), rel=max(nd - 18, -1), dl=nd - 10, stream='fr', pos=nd - 0.5))
        order = self.exp_order()
        fl += self.cvt_fillers(cur, 0, order if safe else order[c.npart1:], -1)
        for n in range(12):
            fl.append(Filler(self.wo_unit(n), rel=3 * n, dl=3 * n + 8, stream='dma'))
        for k, f in enumerate(self.last_extra):
            f.rel = f.dl = 38 + 3 * k
            f.pos = f.rel + 0.5
            fl.append(f)
        fl.append(Filler('s_barrier', rel=first[7], dl=first[7], stream='x'))
        for t in range(6):
            fl.append(Filler(f'v_rcp_f32 {v(vR + 2 * t)}, {v(L_ + 4 * t)}', rel=first[min(t + 2, 7)] + 3, dl=60, stream='r', pos=100))
        self.emit(interleave(pv, fl, 8, c.verbose, 'last', rate=9.0), 'last')

    def ofrag(self, k, tb):
        u, t = divmod(k, 6)
        e = [[f'v_accvgpr_read_b32 {v(tb + i)}, {a(Oacc(2 * u + (i >> 2), t) + (i & 3))}'] for i in range(8)]
        e += [[f'v_pk_mul_f32 {v(tb + i, 2)}, {v(tb + i, 2)}, {v(vR + 2 * t, 2)} op_sel_hi:[1,0]'] for i in range(0, 8, 2)]
        e += [[f'v_cvt_pk_bf16_f32 {v(tb + i)}, {v(tb + 2 * i)}, {v(tb + 2 * i + 1)}'] for i in range(4)]
        e.append([I(f'ds_write_b128 {v(vOW)}, {v(tb, 4)} offset:{1024 * k}', cost=12)])
        return e

    def onorm(self):
        return flat(flat(self.ofrag(k, 8 * (k % 6)) for k in range(self.c.npre)))

    def oproj(self):
        c = self.c
        NS = 144

        def aread(n):
            r = OA_ + 4 * (n & 3)
            ad = self.wo_slot(n)
            return [f'ds_read_b64_tr_b16 {v(r + 2 * e_, 2)}, {v((vOA, vOA2)[ad >> 16])} offset:{(ad & 65535) + 2048 * e_}' for e_ in range(2)]

        def bread(kk, t):
            phi = 6 * kk + t
            return f'ds_read_b128 {Bfrag(phi)}, {v(vBA + (kk & 3))} offset:{1024 * (6 * (kk >> 2) + t)}'

        def prod(p, sd):
            return [f's_sub_u32 {s(sd)}, {s(sJ)}, {p}', f's_and_b32 {s(sd)}, {s(sd)}, 7', f's_lshl_b32 {s(sd)}, {s(sd)}, 2',
                    f's_add_u32 {s(sd)}, {s(sd)}, {s(sW)}']

        def fload(p):
            return f'buffer_load_dword {v(vF)}, {v(SEL)}, {s(SRD_FL, 4)}, {s(sFA)} offen offset:{128 * p}{c.fl_mod}'

        def poll(p):
            return prod(p, sFA) + [f's_lshl_b32 {s(sFA)}, {s(sFA)}, 10', I(fload(p), tag=('F', p), cost=c.dma_cost)]

        def dloads(p, dst):
            g = []
            for z in range(3):
                o = f' offset:{1024 * z}' if z else ''
                g.append([I(f'buffer_load_dwordx4 {dst(z)}, {v(vPS)}, {s(SRD_WS, 4)}, {s(sDAt[p])} offen{o}{c.d_mod}', tag=('D', p), cost=c.dma_cost)])
            return g

        def adds(src, first=False):
            r = []
            for z in range(3):
                for h in range(2):
                    acc = v(RR + 8 * z + 4 * h, 4)
                    r.append(I(f'{MF} {acc}, {v(SEL + 2 - 2 * h, 4)}, {src(z)}, {0 if first else acc}'))
            return r

        def signal(p):
            return [self.wvm(('P', p)),
                    I(f'buffer_store_dword {v(vOA2)}, {v(vL0)}, {s(SRD_FL, 4)}, {s(sFS)} offen offset:{128 * p}{c.fl_mod}', tag=('S', p), cost=c.dma_cost)]

        ldb = lambda z: v(LDB + 4 * z, 4)
        bufs = [ldb, lambda z: v(4 * z, 4), lambda z: v(12 + 4 * z, 4)] + [(lambda k: (lambda z: v(HB + 8 + 12 * k + 4 * z, 4)))(k) for k in range(4)]
        e = [bread(0, t) for t in range(6)] + aread(0) + aread(1) + [bread(1, t) for t in range(4)]
        self.emit(e, 'opre')
        mf, fl = [], []
        G = []
        A = {}
        for n in range(NS):
            p, kk = n >> 4, n & 15
            for k, nn in enumerate(c.add_at):
                if n == nn:
                    A[k] = len(mf)
                    for q in ((0,), (0,), (0,), (1, 2))[k]:
                        mf += adds(bufs[q], k == 0)
            G.append(len(mf))
            for t in range(6):
                acc = v((RR if p == 8 else OACC[p & 1]) + 4 * t, 4)
                mf.append(I(f'{MF} {acc}, {v(OA_ + 4 * (n & 3), 4)}, {Bfrag(6 * kk + t)}, {acc if kk or p == 8 else 0}'))
        G.append(len(mf))
        at = lambda p, x: min(G[16 * p + x // 6] + x % 6, len(mf) - 1) if 16 * p + x // 6 < NS else len(mf) - 1
        for t in range(4, 6):
            fl.append(Filler(bread(1, t), rel=0, dl=1, stream='b', pos=5.5))
        for k, g in enumerate(self.late_consts()):
            fl.append(Filler(g, rel=G[12] + 7 * k, dl=G[12] + 2 + 7 * k, stream='k'))
        for n in range(NS):
            p, kk = n >> 4, n & 15
            g0 = G[n]
            m = n + 2
            if m < NS:
                if m % 4 == 0:
                    sg = m // 4
                    pub = sg < 4 and 6 * (sg + 1) > c.npre
                    fl.append(Filler([self.wvm(('O', m + 3))] + (['s_waitcnt lgkmcnt(0)'] if pub else []) + ['s_barrier'], rel=g0 - 1, dl=g0,
                                     stream='a', pos=g0 - 0.4))
                    if sg < 4:
                        ks = [k for k in range(6 * sg, 6 * sg + 6) if k >= c.npre]
                        items = flat(self.ofrag(k, 24 + 8 * (k % 3)) for k in ks)
                        lo, hi = max(g0 - 24, 0), g0 - 2
                        for q, it in enumerate(items):
                            x = lo + q * (hi - lo) // len(items)
                            fl.append(Filler(it, rel=x, dl=x, stream='cv', pos=lo - 0.6 + 1e-4 * q))
                    units = [4 * q + k for q in self.issue_at[sg] for k in range(4)]
                    for k, uu in enumerate(units):
                        sp = 20 // max(len(units), 1)
                        fl.append(Filler(self.wo_unit(uu), rel=g0 + 2 + sp * k, dl=g0 + 4 + sp * k, stream='dma'))
                fl.append(Filler(aread(m), rel=g0, dl=g0 + 2, stream='a', pos=G[m] - 0.5))
                if m < 16:
                    for t in range(6):
                        fl.append(Filler(bread(m, t), rel=g0 + 1 + t, dl=g0 + 5 + t, stream='b', pos=G[m] - 0.5))
            if kk == 15 or (c.trace_o and kk & 3 == 3):
                self.tr_filler(fl, g0 + 5, 'o')
            if kk == 15 and p < 8:
                for z in range(3):
                    for i in range(4):
                        b = OACC[p & 1] + 8 * z + 2 * i
                        fl.append(Filler(f'v_cvt_pk_bf16_f32 {v(OPK + 4 * z + i)}, {v(b)}, {v(b + 1)}', rel=g0 + 10 + 3 * z, dl=g0 + 11 + 3 * z + (i >> 1),
                                         stream='st', pos=g0 + 5.5))
                    o = f' offset:{1024 * z}' if z else ''
                    fl.append(Filler(I(f'buffer_store_dwordx4 {v(OPK + 4 * z, 4)}, {v(vPS)}, {s(SRD_WS, 4)}, {s(sPSt[p])} offen{o}{c.st_mod}',
                                       tag=('P', p), cost=c.dma_cost), rel=g0 + 10 + 3 * z, dl=g0 + 13 + 3 * z, stream='st', pos=g0 + 5.5))
                sgm = c.sig[0] if p <= 4 else (c.sig[1] if p <= 6 else c.sig[2])
                x = min(g0 + 6 + sgm, len(mf) - 1)
                fl.append(Filler(signal(p), rel=x, dl=x, stream='sig'))
        red = []
        dbgl = f'buffer_load_dwordx2 {v(LDB, 2)}, {v(SEL)}, {s(SRD_DBG, 4)}, {s(sDA)} offen sc1'
        x = at(3, 62)
        red.append(Filler([f's_lshl_b32 {s(sDA)}, {s(sGRP)}, 3', I(dbgl, tag='DBG', cost=c.dma_cost)], rel=x, dl=x + 2))
        x = at(4, 56)
        red.append(Filler([self.wvm('DBG')] + self.check(LDB, 0x01010101, dbgl, 'dbg', two=True), rel=x, dl=x + 2))
        pal = f'buffer_load_dword {v(vF)}, {v(vPA)}, {s(SRD_FL, 4)}, {s(sFA)} offen{c.fl_mod}'

        def place(gs, x, sp=2):
            for k, g in enumerate(gs):
                red.append(Filler(g, rel=x + sp * k, dl=x + 2 + sp * k, pos=x + 0.5 + sp * k))
            return x + sp * len(gs)
        if c.prepoll:
            x = at(3, 64)
            red.append(Filler([f's_lshl_b32 {s(sFA)}, {s(sW)}, 10', I(pal, tag='F_', cost=c.dma_cost)], rel=x, dl=x + 2))
        x = at(5, c.pa[0])
        red.append(Filler([f's_lshl_b32 {s(sFA)}, {s(sW)}, 10', I(pal, tag='FA', cost=c.dma_cost)], rel=x, dl=x + 2))
        x = at(5, c.pa[1])
        red.append(Filler([self.wvm('FA')] + self.check(vF, 0x700, pal, 'fa', allanes=True), rel=x, dl=x + 2))
        place(dloads(1, ldb), x + 1)
        for k in range(3):
            red.append(Filler(self.wvm(('D', k + 1)), rel=A[k] - 1, dl=A[k] - 1))
            if k < 2:
                place(dloads(k + 2, ldb), A[k] + 6)
        x = at(7, c.pa[2])
        red.append(Filler([I(pal, tag='FB', cost=c.dma_cost)], rel=x, dl=x + 2))
        x = at(7, c.pa[3])
        red.append(Filler([self.wvm('FB')] + self.check(vF, 0x18ff, pal, 'fb', allanes=True), rel=x, dl=x + 2))
        place(dloads(4, bufs[1]) + dloads(5, bufs[2]), x + 1)
        x = at(8, c.pb[0])
        red.append(Filler(poll(6), rel=x, dl=x + 2))
        red.append(Filler(self.wvm(('D', 5)), rel=A[3] - 1, dl=A[3] - 1))
        x = G[128 + c.sh_at]
        k = 0
        g = []
        for i in range(8):
            g.append(I(f'buffer_load_dwordx4 {v(HB + 4 * i, 4)}, {v(vPS)}, {s(SRD_WS, 4)}, {s(sDAt[0])} offen{c.d_mod}', tag=('H', i), cost=c.dma_cost))
            if i < 7:
                g.append(f's_add_u32 {s(sDAt[0])}, {s(sDAt[0])}, 12288')
            red.append(Filler(g, rel=x + 2 * k, dl=x + 3 + 2 * k, pos=x + 0.5 + 2 * k)); k += 1
            g = []
        x = max(at(8, c.pb[1]), x + 2 * k)
        red.append(Filler([self.wvm(('F', 6))] + self.check(vF, 1, fload(6), 'f6'), rel=x, dl=x + 2))
        x = place(dloads(6, bufs[5]), x + 1)
        x = max(at(8, c.pb[2]), x)
        red.append(Filler(poll(7), rel=x, dl=x + 2))
        if c.red_off:
            red = []
            self.spins = []
            fl = [f for f in fl if f.stream != 'sig']
        if c.st_off:
            fl = [f for f in fl if not (f.stream == 'st' and f.ins[0].kind == 'vst')]
        for f in fl:
            if f.stream == 'red':
                red.append(f)
        fl = [f for f in fl if f.stream != 'red']
        red.sort(key=lambda f: f.rel)
        for f in red:
            f.stream = 'red'
        fl += red
        for f in fl:
            f.rel = min(f.rel, len(mf) - 1)
        self.emit(interleave(mf, fl, 8, c.verbose, 'oproj', rate=c.o_rate, cap=24), 'oproj')
        if c.red_off:
            return
        e = [self.wvm(('F', 7))] + self.check(vF, 1, fload(7), 'f7')
        e += flat(dloads(7, bufs[6]))
        for i in range(8):
            e.append(self.wvm(('H', i)))
            for h in range(2):
                acc = v(4 * h, 4)
                e.append(f'{MF} {acc}, {v(SEL + 2 - 2 * h, 4)}, {v(HB + 4 * i, 4)}, {acc if i else 0}')
        e += [self.wvm(('D', 6))] + adds(bufs[5])
        e += [f's_mul_i32 {s(sPS)}, {s(sJ)}, {32 * 2304}', f's_add_u32 {s(sPS)}, {s(sPS)}, {s(sOO)}', f's_add_u32 {s(sPS)}, {s(sPS)}, 1024',
              f's_add_u32 {s(sT3)}, {s(sPS)}, {16 * 2304}']
        e += [f'v_cvt_pk_bf16_f32 {v(8 + i)}, {v(2 * i)}, {v(2 * i + 1)}' for i in range(4)]
        e += [f's_cmp_lt_u32 {s(sJ)}, 3', 's_cbranch_scc0 L_nosh']
        self.emit(e, 'otail')
        self.raw([f'buffer_store_dwordx2 {v(8, 2)}, {v(vOO)}, {s(SRD_OUT, 4)}, {s(sPS)} offen{c.out_mod}',
                  f'buffer_store_dwordx2 {v(10, 2)}, {v(vOO)}, {s(SRD_OUT, 4)}, {s(sT3)} offen{c.out_mod}', 'L_nosh:'])
        e = []
        e += [f's_lshl_b32 {s(sPS)}, {s(sJ)}, 7', f's_add_u32 {s(sPS)}, {s(sPS)}, {s(sOO)}']
        e += [self.wvm(('D', 7))] + adds(bufs[6])
        for t in range(6):
            e += [f'v_cvt_pk_bf16_f32 {v(12 + 2 * t + i)}, {v(RR + 4 * t + 2 * i)}, {v(RR + 4 * t + 2 * i + 1)}' for i in range(2)]
            e.append(I(f'buffer_store_dwordx2 {v(12 + 2 * t, 2)}, {v(vOO)}, {s(SRD_OUT, 4)}, {s(sPS)} offen{c.out_mod}', tag='Z'))
            if t < 5:
                e.append(f's_add_u32 {s(sPS)}, {s(sPS)}, {16 * 2304}')
        self.emit(e, 'otail')

    def rare_paths(self):
        for site, new in self.sites:
            self.raw([f'L_rare_{site}:', f's_call_b64 {s(sRET, 2)}, L_rescale_{new}', f's_branch L_back_{site}'])
        if not self.sites:
            return
        for new in range(2):
            e = []
            self.raw([f'L_rescale_{new}:', 's_nop 15'])
            m, m2, f = v(vT), v(vT + 1), v(vT + 2)
            for t in range(6):
                r = [Sr(new, 0, t) + i for i in range(4)] + [Sr(new, 1, t) + i for i in range(4)]
                e += [f'v_max3_f32 {m}, {v(r[0])}, {v(r[1])}, {v(r[2])}', f'v_max3_f32 {m}, {m}, {v(r[3])}, {v(r[4])}',
                      f'v_max3_f32 {m}, {m}, {v(r[5])}, {v(r[6])}', f'v_max3_f32 {m}, {m}, {v(r[7])}, 0'] + self.xlane_max(m, m2)
                e += [f'v_exp_f32 {f}, -{m}']
                e += [f'v_sub_f32 {v(NM + 4 * t + i)}, {v(NM + 4 * t + i)}, {m}' for i in range(4)]
                e += [f'v_sub_f32 {v(x)}, {v(x)}, {m}' for x in r]
                e += [f'v_mul_f32 {v(L_ + 4 * t + i)}, {v(L_ + 4 * t + i)}, {f}' for i in range(4)]
                for dt in range(8):
                    for i in range(0, 4, 2):
                        o = Oacc(dt, t) + i
                        e += [f'v_accvgpr_read_b32 {v(vMX)}, {a(o)}', f'v_accvgpr_read_b32 {v(vMX + 1)}, {a(o + 1)}',
                              f'v_mul_f32 {v(vMX)}, {v(vMX)}, {f}', f'v_mul_f32 {v(vMX + 1)}, {v(vMX + 1)}, {f}',
                              f'v_accvgpr_write_b32 {a(o)}, {v(vMX)}', f'v_accvgpr_write_b32 {a(o + 1)}, {v(vMX + 1)}']
            e += ['s_nop 1', f's_setpc_b64 {s(sRET, 2)}']
            self.out += pad_hazards([mk(x) for x in e])

    def finish(self):
        self.raw(['L_end:', 's_endpgm'])

    def trace_move(self):
        if self.c.trace:
            self.tr(name='norm')
            self.emit([f'v_mov_b32 v126, {v(vTRa)}', f'v_mov_b32 v127, {v(vTRb)}'] + [f'v_writelane_b32 v126, 0, {58 + k}' for k in range(6)])
            self.trreg = (126, 127)

    def trace_out(self):
        if not self.c.trace:
            return
        self.tr(name='tail')
        self.emit(['s_waitcnt vmcnt(0)'])
        self.tr(name='drain')
        e = [f's_add_u32 s12, s58, {STAMP_OFF + 0x80000}', 's_addc_u32 s13, s59, 0', 's_mov_b32 s14, 0x80000', 's_mov_b32 s15, 0x20000',
             f's_lshl_b32 {s(sT1)}, s2, 2', f's_add_u32 {s(sT1)}, {s(sT1)}, {s(sW)}', f's_lshl_b32 {s(sT1)}, {s(sT1)}, 9',
             f'v_lshrrev_b32 v40, 1, {v(vPS)}', I(f'buffer_store_dwordx2 v[126:127], v40, s[12:15], {s(sT1)} offen', tag='TR')]
        if self.c.dbgout:
            names = self.trnames
            last = lambda n: len(names) - 1 - names[::-1].index(n)
            its = [i for i, n in enumerate(names) if n == 'it']
            sel = [last('first'), names.index('q'), last('q'), last('conv'), last('pre'), its[4], its[12], its[20], its[27], its[-1], last('last'), last('norm'),
                   last('o') - 4, last('o'), last('tail'), last('drain')]
            e += ['s_waitcnt vmcnt(0)', 's_or_b32 s4, s2, s3', 's_cmp_lg_u32 s4, 0', 's_cbranch_scc1 L_end', 'v_readlane_b32 s5, v126, 0', 'v_mov_b32 v41, 0']
            for k, i in enumerate(sel):
                e += [f'v_readlane_b32 s4, v126, {i}', 's_nop 1', 's_sub_u32 s4, s4, s5', f'v_writelane_b32 v41, s4, {k}']
            e += ['v_lshrrev_b32 v40, 2, v115', 's_mov_b64 exec, 0xffff', f'buffer_store_dword v41, v40, {s(SRD_DBG, 4)}, 0 offen']
        self.emit(e)

    def kernel1(self):
        c = self.c
        self.setup()
        self.qproj()
        self.attention(c.mode == 'safe')
        self.tr(name='last')
        vm_join = list(self.vm)
        self.raw(['L_norm:'])
        e = []
        if c.mode == 'fast':
            m = v(vT)
            e += [f'v_max3_f32 {m}, {v(L_)}, {v(L_ + 4)}, {v(L_ + 8)}', f'v_max3_f32 {m}, {m}, {v(L_ + 12)}, {v(L_ + 16)}',
                  f'v_max_f32 {m}, {m}, {v(L_ + 20)}', f'v_cmp_nge_f32 vcc, {s(sLTHR)}, {m}',
                  's_nop 1', 's_cmp_lg_u64 vcc, 0', f's_cselect_b32 {s(sT1)}, 1, 0', f's_andn2_b32 {s(sT1)}, {s(sT1)}, {s(sSAFE)}',
                  f'v_mov_b32 {v(vT + 1)}, {s(sT1)}', f's_lshl_b32 {s(sT1)}, {s(sW)}, 2', f's_add_u32 {s(sT1)}, {s(sT1)}, {49152}',
                  f'v_mov_b32 {v(vT + 2)}, {s(sT1)}', f'ds_write_b32 {v(vT + 2)}, {v(vT + 1)}']
        e += self.onorm()
        e += [self.wvm(('O', 3)), 's_waitcnt lgkmcnt(0)', 's_barrier']
        if c.mode == 'fast':
            e += [f'v_mov_b32 {v(vT + 2)}, 49152', f'ds_read_b128 {v(4, 4)}, {v(vT + 2)}', 'v_or3_b32 v4, v4, v5, v6', 'v_or_b32 v4, v4, v7',
                  f'v_readfirstlane_b32 {s(sT1)}, v4', f's_cmp_lg_u32 {s(sT1)}, 0', 's_cbranch_scc1 L_fallback']
        self.emit(e, 'onorm')
        self.trace_move()
        self.oproj()
        self.trace_out()
        self.finish()
        if c.mode == 'fast':
            self.raw(['L_fallback:'])
            self.lg = []; self.vm = []
            tr = c.trace
            c.trace = False
            e = ['s_waitcnt vmcnt(0) lgkmcnt(0)', 's_barrier', f's_mov_b32 {s(sSAFE)}, 1', f's_mov_b32 {s(sOFF)}, {s(sOFF0)}',
                 f's_add_u32 {s(sOFF2)}, {s(sOFF)}, 4096', f's_mov_b32 {s(SRD_KV + 2)}, 262144']
            self.emit(e)
            self.kv_reload()
            self.attention(True)
            assert [x[0] for x in self.vm] == [x[0] for x in vm_join], (self.vm, vm_join)
            self.emit(['s_waitcnt lgkmcnt(0)', 's_nop 15', 's_branch L_norm'])
            c.trace = tr
        self.rare_paths()
        self.spin_blocks()
        return self.out


def descriptor(name, vg, acc, sg=102):
    d = ['.section .rodata,"a"', '.p2align 6', f'.amdhsa_kernel {name}']
    for k, x in dict(next_free_vgpr=vg, next_free_sgpr=sg, accum_offset=acc, group_segment_fixed_size=0, kernarg_size=104,
                     user_sgpr_count=2, user_sgpr_kernarg_segment_ptr=1, system_sgpr_workgroup_id_x=1).items():
        d.append(f'  .amdhsa_{k} {x}')
    d.append('.end_amdhsa_kernel')
    return d


def build(cfg, path):
    g = Gen(cfg)
    k1 = g.kernel1()
    L = ['; @launch grid=(256,1,1) block=(256,1,1) lds=163840',
         '; Fused GQA block x2: Q projection + flash attention + O projection with an in-kernel reduce-scatter.',
         '.amdgcn_target "amdgcn-amd-amdhsa--gfx950"', '.text']
    L += [f'.globl {K1}', '.p2align 8', f'.type {K1},@function', f'{K1}:']
    L += [('' if x.kind in ('label', 'dir') else '    ') + x.text for x in k1]
    if cfg.trace:
        assert g.ntr == len(g.trnames) <= 58, (g.ntr, len(g.trnames))
        L += ['; trnames ' + ' '.join(g.trnames)]
    L += descriptor(K1, 512, 256)
    open(path, 'w').write('\n'.join(L) + '\n')
    return g

if __name__ == '__main__':
    kw = {}
    path = sys.argv[1]
    for x in sys.argv[2:]:
        k, val = x.split('=', 1)
        try:
            val = eval(val)
        except Exception:
            pass
        kw[k] = val
    build(Cfg(**kw), path)
```

```python
import sys, math, struct
from asmlib import *

NAME = 'concat_heads__gqa_block_cached__gqa_block_cached__near_ridge'
K1 = NAME + '_kernel'
K2 = 'reduce_partials_kernel'


def f2u(x):
    return struct.unpack('<I', struct.pack('<f', x))[0]


class Cfg:
    trace = False
    dma_cost = 20
    rot = True
    krot = True
    warm_wo = True
    warm_stride = 128
    kv_nt = ' nt'
    w_nt = ''
    x_nt = ''
    wo_nt = ''
    st_mod = ' sc1'
    fl_mod = ' sc1'
    d_mod = ' sc1'
    out_mod = ''
    thr = 8.0
    lthr = 2.0 ** 40
    verbose = False
    kv_from = 28
    kv_sp = 8
    t3_late = True
    win_c = 5
    n2 = 2
    npre = 24
    kv_nc = 9
    put_sp = 4
    put_m = 8
    kv_gap = 0
    put_q = 6
    win = (3, 4)
    fake_kv = False
    mode = 'fast'
    force_fb = False
    q_rate = 8.0
    a_rate = 8.3
    o_rate = 8.0
    npart1 = 30
    oring = 5
    sig = (50, 50, 40)
    pa = (30, 70, 30, 70)
    pb = (18, 58, 80)
    add_at = (101, 111, 122, 135)
    sh_at = 4
    prepoll = False
    spin_max = 20000
    n_stage = 2
    trace_h = False
    win_b = 4
    n1 = 3
    dbgout = False
    q32 = False
    wq_sp = 6
    q32_budget = 24
    xtouch = -1
    warm_it = 31
    vsum = False
    nosum = False
    noexp = False
    krot_m = 9
    red2 = True
    warm_code = True
    trace_o = False
    red_off = False
    st_off = False
    warm_nt = ''
    warm_at = (0, 1)
    init_u = 4
    ramp = 14
    cw_late = False
    cw_piece = 8192
    cw_n = 9
    fake_w = False

    def __init__(self, **kw):
        for k, x in kw.items():
            assert hasattr(self, k), k
            setattr(self, k, x)


TS = 8704
RING = 4 * TS
XB = 4 * RING
OB = 65536
GRP = 9 * 8 * 12288
FL_OFF = 32 * GRP
STAMP_OFF = 256 * 122880
assert FL_OFF + 32 * 32768 <= STAMP_OFF
OOB = 0x7ffffff0

sW = 3
sB, sJ, sBLK = 4, 5, 6
SRD_KV, SRD_WQ, SRD_X, SRD_WO, SRD_WS = 8, 12, 16, 20, 24
SRD_FL, SRD_DBG, SRD_OUT = 60, 64, 68
sRING = 28
sOFF, sOFF2 = 29, 30
sHH = 31
sLOOP = 32
sT0, sT1, sT2 = 33, 34, 35
sTB = 40
sH = 44
sWK, sXK = 48, 49
sOFF0 = 50
sSAFE = 51
sTR = 52
sSPIN = 53
sTM = 54
sXL, sSO = 72, 73
sC = 74
sTHR, sLTHR = 76, 77
sRET = 78
sFS = 90
sC1152 = 91
sWOL, sCG, sPS, sPSB, sKL, sFA, sDA, sT3, sGRP, sOO = 80, 81, 82, 83, 84, 85, 86, 87, 88, 89

S_ = [0, 48]
NM = 96
L_ = 120
P_ = 144
FR = 168
ONES = 184
vT = 188
vKA = 192
vVA = 193
vKV = 197
vLANE = 198
vKW = 199
Q45 = 200
vMX = 232
vDB = 242
vKW4 = 248
vTRa, vTRb = 254, 255
QA = 200
vWA = 216
vXA = 244
vWV = 220
vXV = 224
vH = 226
QB = 192
OACC = [0, 24]
OA_ = 48
OPK = 64
RR = 76
vR = 80
LDB = 100
vBA = 100
vOW = 104
vPA = 119
vOV, vOA, vOA2, vPS, vF, vOO, vL0 = 112, 113, 114, 115, 116, 117, 118
SEL = 120
OBV = 128
HB = 128

MF = 'v_mfma_f32_16x16x32_bf16'
MF32 = 'v_mfma_f32_32x32x16_bf16'


def Sr(buf, c, t):
    return S_[buf] + (c * 6 + t) * 4


def Qfrag(t, ks):
    return a(192 + 16 * t + 4 * ks, 4) if t < 4 else v(Q45 + 16 * (t - 4) + 4 * ks, 4)


def Oacc(dt, t):
    return (dt * 6 + t) * 4


def Bfrag(phi):
    if phi < 32:
        return v(OBV + 4 * phi, 4)
    if phi < 48:
        return a(192 + 4 * (phi - 32), 4)
    return a(4 * (phi - 48), 4)


sPSt = [0, 1, 36, 37, 38, 39, 92, 93]
sDAt = [94, 95, 96, 97, 98, 99, 100, 101]

flat = lambda gs: [x for g in gs for x in g]


class Gen:
    def __init__(self, cfg):
        self.c = cfg
        self.out = []
        self.lg = []
        self.vm = []
        self.spins = []
        self.sites = []
        self.ntr = 0
        self.trreg = (vTRa, vTRb)
        self.trnames = []
        self.plan_wo()

    def emit(self, seq, name=''):
        seq = [mk(x) for x in seq]
        seq, self.lg = auto_lgkm(seq, self.lg)
        seq = self.resolve_vm(seq)
        rep = []
        seq = pad_hazards(seq, history=self.out[-40:], report=rep)
        if rep and self.c.verbose:
            for r in rep:
                if 'm0' not in r[1]:
                    print(f'  nop[{name}]', r)
        self.out.extend(seq)

    def raw(self, seq):
        self.out.extend(mk(x) for x in seq)

    def vm_reset(self):
        self.vm = [x for x in self.vm if x[1]]

    def resolve_vm(self, seq):
        out = []
        for ins in seq:
            if ins.kind == 'wait' and 'vmcnt(?)' in ins.text:
                tags = ins.tag if isinstance(ins.tag, list) else [ins.tag]
                idx = -1
                for k, t in enumerate(self.vm):
                    if t[0] in tags:
                        idx = k
                if idx < 0:
                    continue
                n = min(len(self.vm) - 1 - idx, 63)
                self.vm = self.vm[len(self.vm) - n:] if n else []
                out.append(I(f's_waitcnt vmcnt({n})'))
                continue
            if ins.kind == 'wait':
                m = re.search(r'vmcnt\((\d+)\)', ins.text)
                if m:
                    n = int(m.group(1))
                    if n < len(self.vm):
                        self.vm = self.vm[len(self.vm) - n:] if n else []
            touched = set(ins.rd) | (set(ins.wr) if ins.kind != 'vld' else set())
            for t in self.vm:
                assert not (t[1] & touched), f'register of an outstanding load touched: {ins.text} / {t}'
            if ins.kind in ('dma', 'vld', 'vst'):
                self.vm.append((ins.tag, set(ins.wr) if ins.kind == 'vld' else set()))
            out.append(ins)
        return out

    def wvm(self, tags):
        return I('s_waitcnt vmcnt(?)', tag=tags)

    def dma(self, vreg, srd, soff, imm, mod, tag):
        o = f' offset:{imm}' if imm else ''
        return I(f'buffer_load_dwordx4 {v(vreg)}, {s(srd, 4)}, {soff} offen{o}{mod} lds', tag=tag, cost=self.c.dma_cost)

    def tr_code(self, dyn=False):
        k = self.ntr
        self.ntr += 1
        ra, rb = self.trreg
        e = ['s_waitcnt lgkmcnt(0)', f's_memrealtime {s(sTM, 2)}', f's_memtime {s(sTM + 2, 2)}', 's_waitcnt lgkmcnt(0)']
        if dyn:
            e += [f's_mov_b32 m0, {s(sTR)}', 's_nop 3', f'v_writelane_b32 {v(ra)}, {s(sTM)}, m0',
                  f'v_writelane_b32 {v(rb)}, {s(sTM + 2)}, m0', f's_add_u32 {s(sTR)}, {s(sTR)}, 1']
        else:
            e += [f'v_writelane_b32 {v(ra)}, {s(sTM)}, {k}', f'v_writelane_b32 {v(rb)}, {s(sTM + 2)}, {k}', f's_mov_b32 {s(sTR)}, {k + 1}']
        return e

    def tr(self, dyn=False, name=''):
        if not self.c.trace or ((self.c.trace_o or self.c.trace_h) and name == 'it'):
            return
        self.trnames.append(name)
        sv = [set(x) for x in self.lg]
        self.emit(self.tr_code(dyn))
        self.lg = sv

    def tr_filler(self, fl, g, name=''):
        if self.c.trace:
            self.trnames.append(name)
            fl.append(Filler(self.tr_code(), rel=g, dl=g, stream='tr', cost=0))

    def kv_groups(self, sb, base, tag, win=None):
        m0 = lambda n: f's_add_u32 m0, {s(sb)}, {base + 1088 * n - 1024 * (n & 3)}'
        groups = [[m0(0)]]
        for n in range(8):
            g = [f's_waitcnt vmcnt({win[n % len(win)] if isinstance(win, tuple) else win})'] if win is not None else []
            g.append(self.dma(vKV, SRD_KV, s(sOFF if n < 4 else sOFF2), 1024 * (n & 3), self.c.kv_nt, tag))
            if n < 7:
                g.append(m0(n + 1))
            groups.append(g)
        groups.append([f's_add_u32 {s(sOFF)}, {s(sOFF)}, 8192', f's_and_b32 {s(sOFF)}, {s(sOFF)}, 0x3ffff',
                       f's_add_u32 {s(sOFF2)}, {s(sOFF)}, 4096'])
        return groups

    def kv_tile(self, slot, tag):
        return self.kv_groups(sRING, slot * TS, tag)

    def kv_stage(self):
        groups = []
        for tl in range(self.c.n_stage):
            for n in range(8):
                g = []
                so = sOFF if n < 4 else sOFF2
                if tl == 4 and n == 0:
                    g += [f's_lshl_b32 {s(SRD_KV + 2)}, {s(sKL)}, 18']
                o = f' offset:{1024 * (n & 3)}' if n & 3 else ''
                g.append(I(f'buffer_load_dwordx4 {a(32 * tl + 4 * n, 4)}, {v(vKV)}, {s(SRD_KV, 4)}, {s(so)} offen{o}{self.c.kv_nt}',
                           tag=('T', tl, n), cost=self.c.dma_cost))
                if n == 7:
                    if tl == 4:
                        g += [f's_mov_b32 {s(SRD_KV + 2)}, 262144', f's_lshl_b32 {s(sT3)}, {s(sKL)}, 13', f's_add_u32 {s(sOFF)}, {s(sOFF)}, {s(sT3)}']
                    else:
                        g += [f's_add_u32 {s(sOFF)}, {s(sOFF)}, 8192']
                    g += [f's_and_b32 {s(sOFF)}, {s(sOFF)}, 0x3ffff', f's_add_u32 {s(sOFF2)}, {s(sOFF)}, 4096']
                groups.append(g)
        return groups

    def kv_put(self, tl, n):
        ad = (vKW, tl * TS) if tl < 4 else (vKW4, 0)
        return [self.wvm(('T', tl, n)), I(f'ds_write_b128 {v(ad[0])}, {a(32 * tl + 4 * n, 4)} offset:{ad[1] + 1088 * n}', cost=12)]

    def code_warm(self):
        L = v(vLANE)
        return ['s_getpc_b64 s[96:97]', f's_lshl_b32 {s(sT1)}, s7, 2', f's_add_u32 {s(sT1)}, {s(sT1)}, {s(sW)}',
                f's_and_b32 {s(sT1)}, {s(sT1)}, 15', f's_min_u32 {s(sT1)}, {s(sT1)}, {self.c.cw_n - 1 if self.c.mode == "fast" else 5}', f's_mul_i32 {s(sT1)}, {s(sT1)}, {self.c.cw_piece}',
                f'v_mul_u32_u24 {v(vH + 2)}, {self.c.cw_piece // 64}, {L}',
                f'v_add_u32 {v(vH + 2)}, {s(sT1)}, {v(vH + 2)}', I(f'global_load_dword v240, {v(vH + 2)}, s[96:97]', tag='CW')]

    def x_touch(self, kc_now):
        L = v(vLANE)
        t0, t1 = v(vH + 2), v(vH + 3)
        d = 128 * (7 - kc_now)
        return [f'v_and_b32 {t0}, 1, {L}', f'v_lshlrev_b32 {t0}, 7, {t0}', f's_add_u32 {s(sT1)}, {s(sXK)}, {d}', f'v_add_u32 {t0}, {s(sT1)}, {t0}',
                f'v_subrev_u32 {t1}, 1152, {t0}', f'v_min_u32 {t0}, {t0}, {t1}',
                f'v_lshrrev_b32 {t1}, 1, {L}', f'v_min_u32 {t1}, 23, {t1}', f's_mul_i32 {s(sT1)}, {s(sW)}, {24 * 1152}',
                f'v_mad_u32_u24 {t0}, {t1}, {s(sC1152)}, {t0}',
                I(f'buffer_load_dword v239, {t0}, {s(SRD_X, 4)}, {s(sT1)} offen{self.c.x_nt}', tag='W', cost=self.c.dma_cost)]

    def flag_clear(self):
        L = v(vLANE)
        t0, t1 = v(vH), v(vH + 1)
        return [f'v_lshlrev_b32 {t0}, 7, {L}', f'v_mov_b32 {t1}, {OOB}', f's_cmp_eq_u32 {s(sW)}, 0', f's_cselect_b32 {s(sT3)}, 32, 0',
                f'v_cmp_gt_u32 vcc, {s(sT3)}, {L}', f's_lshl_b32 {s(sT3)}, {s(sJ)}, 12',
                's_nop 0', f'v_cndmask_b32 {t0}, {t1}, {t0}, vcc', f'v_mov_b32 {t1}, 0',
                I(f'buffer_store_dword {t1}, {t0}, {s(SRD_FL, 4)}, {s(sT3)} offen{self.c.fl_mod}', tag='CLR')]

    def clear_done(self):
        L = v(vLANE)
        t0, t1 = v(vDB), v(vDB + 1)
        return [f'v_mov_b32 {t1}, {OOB}', f's_cmp_eq_u32 {s(sW)}, 0', f's_cselect_b32 {s(sT3)}, 1, 0', f'v_cmp_gt_u32 vcc, {s(sT3)}, {L}',
                f's_lshl_b32 {s(sT3)}, {s(sGRP)}, 3', f's_add_u32 {s(sT3)}, {s(sT3)}, {s(sJ)}',
                f'v_cndmask_b32 {t0}, {t1}, {L}, vcc', f'v_mov_b32 {t1}, 1',
                I(f'buffer_store_byte {t1}, {t0}, {s(SRD_DBG, 4)}, {s(sT3)} offen sc1', tag='SIG')]

    def setup(self):
        c = self.c
        e = ['s_cmp_ge_u32 s2, 256', 's_cbranch_scc1 L_end']
        if c.trace:
            e += [f's_memrealtime {s(98, 2)}', f's_memtime {s(100, 2)}']
        e += ['s_load_dwordx8 s[36:43], s[0:1], 0', 's_load_dwordx2 s[44:45], s[0:1], 32',
              's_load_dwordx8 s[48:55], s[0:1], 40', 's_load_dwordx2 s[56:57], s[0:1], 72',
              's_load_dwordx2 s[58:59], s[0:1], 96', 's_load_dwordx4 s[92:95], s[0:1], 80']
        e += ['v_lshrrev_b32 v1, 6, v0', f'v_and_b32 {v(vLANE)}, 63, v0', f'v_readfirstlane_b32 {s(sW)}, v1']
        e += ['s_lshr_b32 s7, s2, 3', f's_and_b32 {s(sB)}, s7, 15', f's_lshr_b32 {s(sJ)}, s7, 4', 's_and_b32 s6, s2, 3',
              's_lshl_b32 s6, s6, 1', f's_add_u32 {s(sJ)}, {s(sJ)}, s6', f's_bfe_u32 {s(sBLK)}, s2, 0x10002']
        e += [f's_and_b32 {s(sHH)}, {s(sW)}, 1', f's_lshr_b32 {s(sT0)}, {s(sW)}, 1']
        e += [f's_lshl_b32 {s(sT1)}, {s(sHH)}, 1', f's_add_u32 {s(sT1)}, {s(sT1)}, {s(sT0)}',
              f's_mul_i32 {s(sRING)}, {s(sT1)}, {RING}',
              f's_lshl_b32 {s(sWOL)}, {s(sW)}, 10', f's_add_u32 {s(sXL)}, {s(sWOL)}, {XB}']
        if c.rot:
            e += [f's_and_b32 {s(sOFF)}, s7, 31', f's_lshl_b32 {s(sOFF)}, {s(sOFF)}, 13']
        else:
            e += [f's_mov_b32 {s(sOFF)}, 0']
        e += [f's_add_u32 {s(sOFF2)}, {s(sOFF)}, 4096']
        L = v(vLANE)
        e += [f'v_lshrrev_b32 v1, 4, {L}',
              f'v_and_b32 v2, 15, {L}',
              f'v_lshrrev_b32 v5, 2, v2',
              f'v_and_b32 v6, 3, {L}',
              f'v_lshrrev_b32 v8, 3, {L}', f'v_and_b32 v9, 7, {L}',
              'v_lshrrev_b32 v10, 1, v8']
        e += ['v_xor_b32 v11, v9, v10', f's_lshl_b32 {s(sT1)}, {s(sHH)}, 2', f'v_xor_b32 v11, {s(sT1)}, v11', 'v_lshlrev_b32 v11, 4, v11',
              f's_lshl_b32 {s(sT1)}, {s(sW)}, 3', f'v_add_u32 v12, {s(sT1)}, v8', 'v_mul_u32_u24 v12, 1152, v12',
              f'v_add_u32 {v(vXV)}, v12, v11']
        if c.q32:
            e += ['v_lshlrev_b32 v11, 2, v1', 'v_xor_b32 v11, v2, v11', 'v_lshlrev_b32 v11, 4, v11', 'v_lshl_add_u32 v11, v1, 13, v11']
        else:
            e += ['v_and_b32 v11, 1, v10', 'v_lshlrev_b32 v11, 2, v11', 'v_xor_b32 v11, v9, v11', 'v_lshlrev_b32 v11, 4, v11',
                  'v_lshl_add_u32 v11, v8, 13, v11']
        e += [f's_lshl_b32 {s(sT1)}, {s(sJ)}, 2', f's_add_u32 {s(sT1)}, {s(sT1)}, {s(sW)}', f's_lshl_b32 {s(sT1)}, {s(sT1)}, 8',
              f'v_add_u32 {v(vWV)}, {s(sT1)}, v11']
        for n in range(1, 4):
            e += [f'v_add_u32 {v(vWV + n)}, {(31744 if c.q32 else 64512) * n}, {v(vWV)}']
        e += ['s_waitcnt lgkmcnt(0)']
        e += [f's_cmp_eq_u32 {s(sBLK)}, 0']
        for d in range(10):
            e += [f's_cselect_b32 s{36 + d}, s{36 + d}, s{48 + d}']
        e += [f's_mul_i32 {s(sT1)}, {s(sB)}, 110592', f's_add_u32 {s(SRD_X)}, s36, {s(sT1)}', f's_addc_u32 {s(SRD_X + 1)}, s37, 0',
              f's_mov_b32 {s(SRD_X + 2)}, 110592', f's_mov_b32 {s(SRD_X + 3)}, 0x20000']
        e += [f's_mov_b32 {s(SRD_WQ)}, s42', f's_mov_b32 {s(SRD_WQ + 1)}, s43', f's_mov_b32 {s(SRD_WQ + 2)}, 4718592',
              f's_mov_b32 {s(SRD_WQ + 3)}, 0x20000']
        if c.krot and c.krot_m > 1:
            m = c.krot_m
            e += [f's_mul_hi_u32 {s(sT1)}, {s(sB)}, {(2 ** 32 + m - 1) // m}', f's_mul_i32 {s(sT1)}, {s(sT1)}, {m}', f's_sub_u32 {s(sT1)}, {s(sB)}, {s(sT1)}',
                  f's_mul_i32 {s(sT1)}, {s(sT1)}, {9 // m}', f's_lshl_b32 {s(sXK)}, {s(sT1)}, 7', f's_lshl_b32 {s(sWK)}, {s(sT1)}, 19']
        else:
            e += [f's_mov_b32 {s(sXK)}, 0', f's_mov_b32 {s(sWK)}, 0']
        self.emit(e, 'setup')
        e = self.late_setup = []
        e += [f's_cmp_eq_u32 {s(sHH)}, 0', 's_cselect_b32 s38, s38, s40', 's_cselect_b32 s39, s39, s41',
              f's_lshl_b32 {s(sT1)}, {s(sB)}, 4', f's_lshl_b32 {s(sT2)}, {s(sJ)}, 1', f's_add_u32 {s(sT1)}, {s(sT1)}, {s(sT2)}',
              f's_add_u32 {s(sT1)}, {s(sT1)}, {s(sT0)}',
              f's_lshl_b32 {s(sT1)}, {s(sT1)}, 18' if not c.fake_kv else f's_lshl_b32 {s(sT1)}, {s(sT0)}, 18',
              f's_add_u32 {s(SRD_KV)}, s38, {s(sT1)}', f's_addc_u32 {s(SRD_KV + 1)}, s39, 0',
              f's_mov_b32 {s(SRD_KV + 2)}, 262144', f's_mov_b32 {s(SRD_KV + 3)}, 0x20000']
        e += ['v_and_b32 v11, 1, v1', 'v_lshlrev_b32 v11, 1, v11', 'v_lshrrev_b32 v12, 1, v1', 'v_lshl_or_b32 v11, v12, 3, v11',
              f's_cmp_eq_u32 {s(sHH)}, 0', 's_cselect_b64 vcc, -1, 0', 's_nop 1', 'v_cndmask_b32 v11, v11, v1, vcc',
              'v_xor_b32 v11, v2, v11', 'v_lshlrev_b32 v11, 4, v11', f'v_lshl_add_u32 {v(vKV)}, v1, 8, v11']
        e += [f's_mul_i32 {s(sT1)}, {s(sJ)}, 589824', f's_add_u32 {s(SRD_WO)}, s44, {s(sT1)}', f's_addc_u32 {s(SRD_WO + 1)}, s45, 0',
              f's_mov_b32 {s(SRD_WO + 2)}, 589824', f's_mov_b32 {s(SRD_WO + 3)}, 0x20000']
        e += [f's_lshl_b32 {s(sGRP)}, {s(sBLK)}, 4', f's_add_u32 {s(sGRP)}, {s(sGRP)}, {s(sB)}', f's_lshl_b32 {s(sT1)}, {s(sGRP)}, 15',
              f's_add_u32 {s(sT1)}, {s(sT1)}, {FL_OFF}', f's_add_u32 {s(SRD_FL)}, s58, {s(sT1)}', f's_addc_u32 {s(SRD_FL + 1)}, s59, 0',
              f's_mov_b32 {s(SRD_FL + 2)}, 32768', f's_mov_b32 {s(SRD_FL + 3)}, 0x20000',
              f's_mov_b32 {s(SRD_DBG)}, s94', f's_mov_b32 {s(SRD_DBG + 1)}, s95', f's_mov_b32 {s(SRD_DBG + 2)}, 256', f's_mov_b32 {s(SRD_DBG + 3)}, 0x20000',
              f's_mov_b32 {s(SRD_OUT)}, s92', f's_mov_b32 {s(SRD_OUT + 1)}, s93', f's_mov_b32 {s(SRD_OUT + 2)}, 3538944', f's_mov_b32 {s(SRD_OUT + 3)}, 0x20000',
              f's_lshl_b32 {s(sPSB)}, {s(sJ)}, 2', f's_add_u32 {s(sPSB)}, {s(sPSB)}, {s(sW)}',
              f's_xor_b32 {s(sKL)}, {s(sHH)}, 1', f'v_lshlrev_b32 {v(vKW)}, 4, {L}', f's_cmp_eq_u32 {s(sHH)}, 0', f's_cselect_b32 {s(sT1)}, {s(sRING)}, {XB}', f'v_add_u32 {v(vKW4)}, {s(sT1)}, {v(vKW)}',
              f'v_add_u32 {v(vKW)}, {s(sRING)}, {v(vKW)}']
        e += [f's_mul_i32 {s(sT1)}, {s(sGRP)}, {GRP}',
              f's_add_u32 {s(SRD_WS)}, s58, {s(sT1)}', f's_addc_u32 {s(SRD_WS + 1)}, s59, 0',
              f's_mov_b32 {s(SRD_WS + 2)}, {GRP}', f's_mov_b32 {s(SRD_WS + 3)}, 0x20000']
        cs = f2u(math.log2(math.e) / math.sqrt(128.0))
        e += [f's_mov_b32 {s(sC)}, {cs:#x}', f's_mov_b32 {s(sC + 1)}, {cs:#x}', f's_mov_b32 {s(sTHR)}, {f2u(c.thr):#x}',
              f's_mov_b32 {s(sLTHR)}, {f2u(c.lthr if not c.force_fb else 1.0):#x}', f's_mov_b32 {s(sSAFE)}, 0', f's_mov_b32 {s(sC1152)}, 1152',
              f's_mov_b32 {s(sOFF0)}, {s(sOFF)}']
        if c.q32:
            e += [f'v_lshrrev_b32 v3, 5, {L}', 'v_and_b32 v4, 1, v1', 'v_lshlrev_b32 v11, 11, v3', 'v_lshl_add_u32 v11, v5, 8, v11',
                  'v_lshl_add_u32 v11, v4, 4, v11', 'v_and_b32 v12, 1, v6', 'v_lshl_add_u32 v11, v12, 5, v11', 'v_lshrrev_b32 v12, 1, v6',
                  'v_lshl_add_u32 v11, v12, 3, v11', f'v_add_u32 v11, {s(sRING)}, v11']
            for ct in range(4):
                e += [f'v_xor_b32 v12, {ct}, v5', f'v_lshl_add_u32 {v(vWA + ct)}, v12, 6, v11']
            e += [f'v_and_b32 v14, 31, {L}', 'v_lshrrev_b32 v11, 3, v14', 'v_and_b32 v12, 7, v14',
                  'v_lshlrev_b32 v13, 10, v11', 'v_lshl_add_u32 v13, v12, 7, v13', f'v_add_u32 v13, {XB}, v13',
                  'v_lshrrev_b32 v12, 1, v12', 'v_and_b32 v11, 1, v11', 'v_lshlrev_b32 v11, 2, v11', 'v_xor_b32 v12, v12, v11', 'v_xor_b32 v12, v12, v3']
            for k in range(4):
                e += [f'v_xor_b32 v11, {2 * k}, v12', f'v_lshl_add_u32 {v(vXA + k)}, v11, 4, v13']
        else:
            e += ['v_lshlrev_b32 v11, 10, v1', 'v_lshl_add_u32 v11, v5, 7, v11', 'v_lshl_add_u32 v11, v6, 4, v11',
                  f'v_add_u32 v11, {s(sRING)}, v11', 'v_lshrrev_b32 v12, 1, v5', f'v_lshl_add_u32 {v(vWA)}, v12, 6, v11',
                  'v_xor_b32 v12, 1, v12', f'v_lshl_add_u32 {v(vWA + 1)}, v12, 6, v11']
            e += ['v_lshrrev_b32 v11, 3, v2', 'v_and_b32 v12, 7, v2', 'v_lshlrev_b32 v13, 10, v11', 'v_lshl_add_u32 v13, v12, 7, v13',
                  f'v_add_u32 v13, {XB}, v13', 'v_lshrrev_b32 v12, 1, v12', 'v_lshlrev_b32 v11, 2, v11', 'v_xor_b32 v12, v12, v11',
                  'v_xor_b32 v12, v12, v1', f'v_lshl_add_u32 {v(vXA)}, v12, 4, v13', 'v_xor_b32 v12, 4, v12',
                  f'v_lshl_add_u32 {v(vXA + 1)}, v12, 4, v13']
        e += [f's_mul_i32 {s(sT1)}, {s(sT0)}, {RING}', 'v_mul_u32_u24 v11, 1088, v5', 'v_lshl_add_u32 v11, v6, 8, v11',
              'v_xor_b32 v12, v1, v6', 'v_lshl_add_u32 v11, v12, 4, v11', f'v_add_u32 {v(vKA)}, {s(sT1)}, v11']
        e += [f's_add_u32 {s(sT1)}, {s(sT1)}, {2 * RING}',
              'v_mul_u32_u24 v11, 1088, v1', 'v_lshl_add_u32 v11, v5, 8, v11', 'v_lshl_add_u32 v11, v6, 3, v11',
              f'v_add_u32 v11, {s(sT1)}, v11',
              'v_and_b32 v12, 1, v5', 'v_lshrrev_b32 v13, 1, v5', 'v_lshl_or_b32 v12, v13, 2, v12']
        for k, d in enumerate((0, 1, 4, 5)):
            e += [f'v_xor_b32 v13, {d}, v12', f'v_lshl_add_u32 {v(vVA + k)}, v13, 5, v11']
        for k in range(4):
            e += [f's_sub_u32 {s(sT1)}, {k}, {s(sHH)}', f's_and_b32 {s(sT1)}, {s(sT1)}, 3', f's_mul_i32 {s(sT1)}, {s(sT1)}, {TS}',
                  f's_add_u32 {s(sTB + k)}, {s(sRING)}, {s(sT1)}']
        e += [f's_mul_i32 {s(sT2)}, {s(sPSB)}, 3072', f's_add_u32 {s(sPSt[0])}, {s(sT2)}, {8 * 98304}', f's_mul_i32 {s(sT3)}, {s(sJ)}, 98304',
              f's_mul_i32 {s(sSO)}, {s(sW)}, 3072', f's_add_u32 {s(sT3)}, {s(sT3)}, {s(sSO)}']
        for p in range(1, 8):
            e += [f's_add_u32 {s(sT1)}, {s(sJ)}, {p}', f's_and_b32 {s(sT1)}, {s(sT1)}, 7', f's_mul_i32 {s(sT1)}, {s(sT1)}, 98304',
                  f's_add_u32 {s(sPSt[p])}, {s(sT1)}, {s(sT2)}',
                  f's_sub_u32 {s(sT1)}, {s(sJ)}, {p}', f's_and_b32 {s(sT1)}, {s(sT1)}, 7', f's_mul_i32 {s(sT1)}, {s(sT1)}, 12288',
                  f's_add_u32 {s(sDAt[p])}, {s(sT1)}, {s(sT3)}']
        e += [f's_lshl_b32 {s(sT1)}, {s(sJ)}, 10', f's_add_u32 {s(sT1)}, {s(sT1)}, {s(sSO)}', f's_add_u32 {s(sT1)}, {s(sT1)}, {8 * 98304}',
              f's_cmp_lt_u32 {s(sJ)}, 3', f's_cselect_b32 {s(sDAt[0])}, {s(sT1)}, {GRP}',
              f's_lshl_b32 {s(sFS)}, {s(sPSB)}, 10', f's_mul_i32 {s(sOO)}, {s(sB)}, {96 * 2304}', f's_mul_i32 {s(sT3)}, {s(sBLK)}, 1152',
              f's_add_u32 {s(sOO)}, {s(sOO)}, {s(sT3)}', f's_lshl_b32 {s(sT3)}, {s(sW)}, 5', f's_add_u32 {s(sOO)}, {s(sOO)}, {s(sT3)}']
        for k in range(4):
            e += [f's_add_u32 {s(sT1)}, {s(sB)}, {k}' if c.krot else f's_mov_b32 {s(sT1)}, {k}', f's_and_b32 {s(sT1)}, {s(sT1)}, 3',
                  f's_mul_i32 {s(sH + k)}, {s(sT1)}, 147456']

    def wq_unit(self, u):
        hf = u & 1
        pre = [f's_add_u32 m0, {s(sRING)}, {4096 * ((u + 4) & 7)}', f's_add_u32 {s(sSO)}, {s(sWK)}, {(131072 if self.c.q32 else 128) * hf}']
        g = [pre + [self.dma(vWV, SRD_WQ, s(sSO), 0, self.c.w_nt, ('U', u))]]
        for n in range(1, 4):
            g.append([self.dma(vWV + n, SRD_WQ, s(sSO), 1024 * n, self.c.w_nt, ('U', u))])
        if hf and not self.c.fake_w:
            g.append([f's_add_u32 {s(sWK)}, {s(sWK)}, 262144', f's_cmp_eq_u32 {s(sWK)}, 4718592', f's_cselect_b32 {s(sWK)}, 0, {s(sWK)}'])
        return g

    def x_chunk(self, kc):
        g = []
        for m in range(3):
            g.append([f's_add_u32 m0, {s(sXL)}, {12288 * (kc & 1) + 4096 * m}', f's_add_u32 {s(sSO)}, {s(sXK)}, {36864 * m}',
                      self.dma(vXV, SRD_X, s(sSO), 0, self.c.x_nt, ('X', kc))])
        if not self.c.fake_w:
          g.append([f's_add_u32 {s(sXK)}, {s(sXK)}, 128', f's_cmp_eq_u32 {s(sXK)}, 1152', f's_cselect_b32 {s(sXK)}, 0, {s(sXK)}'])
        return g

    def a_reads(self, u, k):
        r = QA + 4 * k
        if self.c.q32:
            return [f'ds_read_b64_tr_b16 {v(r + 2 * e_, 2)}, {v(vWA + k)} offset:{4096 * ((u + 4) & 7) + 1024 * e_}' for e_ in range(2)]
        return [f'ds_read_b64_tr_b16 {v(r + 2 * e_, 2)}, {v(vWA + (k >> 1))} offset:{4096 * ((u + 4) & 7) + 512 * e_ + 8 * (k & 1)}' for e_ in range(2)]

    def b_read(self, st, t):
        if self.c.q32:
            return f'ds_read_b128 {a(QB + 12 * (st & 1) + 4 * t, 4)}, {v(vXA + (st & 3))} offset:{12288 * ((st >> 2) & 1) + 4096 * t}'
        kc = st >> 1
        return f'ds_read_b128 {a(QB + 24 * (st & 1) + 4 * t, 4)}, {v(vXA + (st & 1))} offset:{12288 * (kc & 1) + 2048 * t}'

    def qproj(self):
        c = self.c
        if c.trace:
            self.emit([f'v_writelane_b32 {v(vTRa)}, s98, 0', f'v_writelane_b32 {v(vTRb)}, s100, 0'])
            self.ntr = 1
            self.trnames.append('start')
        if c.trace_h:
            self.tr(name='sld')
        e = flat(self.x_chunk(0)) + flat(self.wq_unit(0)) + flat(self.wq_unit(1))
        if c.init_u >= 3:
            e += flat(self.x_chunk(1))
        for u in range(2, min(c.init_u, 4)):
            e += flat(self.wq_unit(u))
        if c.warm_code and not c.cw_late:
            e += self.code_warm()
        e += self.late_setup
        for u in range(4, c.init_u):
            e += flat(self.wq_unit(u))
        if c.trace_h:
            self.emit(e); e = []
            self.tr(name='iss')
            self.emit([self.wvm([('X', 0), ('U', 0)])])
            self.tr(name='land')
        e += [self.wvm([('X', 0), ('U', 0)]), 's_barrier']
        for t in range(3 if c.q32 else 6):
            e.append(self.b_read(0, t))
        for k in range(3):
            e += self.a_reads(0, k)
        self.emit(e, 'qpre')
        self.tr(name='first')
        mf, fl, dm = [], [], []
        NU = 36
        kvg = self.kv_stage()
        D = 12 if c.q32 else 24
        sc = lambda x: x * D // 24
        if c.init_u < 3:
            for k, g in enumerate(self.x_chunk(1)):
                dm.append(Filler(g, rel=sc(c.ramp) + 1, dl=sc(c.ramp) + 2 + k, pos=sc(c.ramp) + 0.7))
        for q in range(c.init_u, NU):
            x = max(D * (q - 8) + sc(18), sc(c.ramp) * (q - c.init_u) + (sc(6) if c.init_u < 3 and q > c.init_u + 1 else 0))
            steady = x == D * (q - 8) + sc(18)
            nxt_x = ((q - 7) & 3) == (3 if c.q32 else 2)
            sp = sc(c.wq_sp) if steady and not nxt_x else sc(2)
            if steady and nxt_x and c.q32:
                sp = 1.5
            for k, g in enumerate(self.wq_unit(q)):
                dm.append(Filler(g, rel=x + int(sp * k), dl=x + 1 + int(sp * k), pos=x + 0.5))
        if c.warm_code and c.cw_late:
            dm.append(Filler(self.code_warm(), rel=D + sc(8), dl=D + sc(10)))
        dm.append(Filler(self.flag_clear(), rel=D * 2 + sc(6), dl=D * 2 + sc(16)))
        for u in range(NU):
            st, hf = u >> 1, u & 1
            g0 = D * u
            if c.q32:
                for ct in range(4):
                    for t in range(3):
                        acc = v((ct * 3 + t) * 16, 16)
                        mf.append(I(f'{MF32} {acc}, {v(QA + 4 * ct, 4)}, {a(QB + 12 * (u & 1) + 4 * t, 4)}, {acc if u else 0}'))
            else:
                for k in range(4):
                    ct = 4 * hf + k
                    for t in range(6):
                        acc = v((ct * 6 + t) * 4, 4)
                        mf.append(I(f'{MF} {acc}, {v(QA + 4 * k, 4)}, {a(QB + 24 * (st & 1) + 4 * t, 4)}, {acc if st else 0}'))
            fl.append(Filler(self.a_reads(u, 3), rel=g0, dl=g0 + sc(4), stream='a', pos=g0 + sc(18) - 0.5))
            if u + 1 < NU:
                fl.append(Filler(self.wvm(('U', u + 1)), rel=g0 + sc(5), dl=g0 + sc(8), stream='a'))
                for k in range(3):
                    fl.append(Filler(self.a_reads(u + 1, k), rel=g0 + sc(6 * k + 6), dl=g0 + sc(6 * k + 10), stream='a', pos=g0 + D + sc(6 * k) - 0.5))
            xu = (u & 3 == 3) if c.q32 else (u & 3 == 2)
            if xu and u + 1 < NU:
                kc = u >> 2
                if kc < 8:
                    fl.append(Filler([self.wvm(('X', kc + 1)), 's_barrier'], rel=g0 + sc(6) - (1 if c.q32 else 0), dl=g0 + sc(8) - (1 if c.q32 else 0), stream='b'))
                if kc + 2 <= 8:
                    for k, g in enumerate(self.x_chunk(kc + 2)):
                        dm.append(Filler(g, rel=g0 + sc(9 + 3 * k), dl=g0 + sc(10 + 3 * k), pos=g0 + sc(9) + 0.5))
                if kc == c.xtouch:
                    dm.append(Filler(self.x_touch(kc + 3), rel=g0 + sc(17), dl=g0 + sc(18), pos=g0 + sc(17) + 0.2))
            if c.warm_wo and not c.warm_it and u in c.warm_at:
                dm.append(Filler(self.warm_wo(c.warm_at.index(u)), rel=g0 + sc(16), dl=g0 + sc(18), pos=g0 + sc(16) + 0.5))
            if c.q32 and u + 1 < NU:
                for t in range(3):
                    fl.append(Filler(self.b_read(u + 1, t), rel=g0 + 4 + t, dl=g0 + 7 + t, stream='b', pos=g0 + 11.5))
            if not c.q32 and hf == 0 and st + 1 < 18:
                for t in range(6):
                    fl.append(Filler(self.b_read(st + 1, t), rel=g0 + 9 + 5 * t, dl=g0 + 30 + t, stream='b', pos=g0 + 47.5))
            if u % 4 == 3 and u < 35:
                self.tr_filler(fl, g0 + D - 1, 'q')
        i = 0
        while kvg:
            x = int(D * c.kv_from + sc(4) + c.kv_sp * i * D / 24)
            if x > D * NU - 2:
                break
            fl.append(Filler(kvg.pop(0), rel=x, dl=x + 1, stream='kv')); i += 1
        assert i >= 16
        dm.sort(key=lambda f: f.pos)
        for f in dm:
            f.stream = 'dma'
        fl += dm
        puts = [(tl, n) for tl in range(c.n_stage) for n in range(8)]
        for k in range(c.put_q):
            tl, n = puts.pop(0)
            sl = (tl * TS + 1088 * n + 1023) // 4096
            x = min(max(D * (28 + min(sl, 7)) + sc(18), D * NU - sc(4) * (c.put_q - k)), D * NU - 1)
            fl.append(Filler(self.kv_put(tl, n), rel=x, dl=x + sc(2), stream='put'))
        if c.q32:
            seq = interleave(mf, fl, 24, c.verbose, 'qproj', rate=float(c.q32_budget), cap=40)
        else:
            seq = interleave(mf, fl, 8, c.verbose, 'qproj', rate=c.q_rate, cap=24)
        self.emit(seq, 'qproj')
        self.tr(name='q')
        e = []
        for t3 in ((2, 0, 1) if c.q32 else ()):
            for ct in range(4):
                b = (ct * 3 + t3) * 16
                e += [f'v_pk_mul_f32 {v(b + i, 2)}, {v(b + i, 2)}, {s(sC, 2)}' for i in range(0, 16, 2)]
                dst = [Q45 + 16 * (i >> 2) + 4 * ct + (i & 3) if t3 == 2 else b + i for i in range(8)]
                e += [f'v_cvt_pk_bf16_f32 {v(dst[i])}, {v(b + 2 * i)}, {v(b + 2 * i + 1)}' for i in range(8)]
                e += [f'v_permlane16_swap_b32 {v(dst[j])}, {v(dst[4 + j])}' for j in range(4)]
                if t3 < 2:
                    e += [f'v_accvgpr_write_b32 {a(192 + 16 * (2 * t3 + (i >> 2)) + 4 * ct + (i & 3))}, {v(dst[i])}' for i in range(8)]
        for t in (() if c.q32 else (4, 5, 0, 1, 2, 3)):
            for ct in range(8):
                b = (ct * 6 + t) * 4
                e += [f'v_pk_mul_f32 {v(b, 2)}, {v(b, 2)}, {s(sC, 2)}', f'v_pk_mul_f32 {v(b + 2, 2)}, {v(b + 2, 2)}, {s(sC, 2)}']
            for ct in range(8):
                b = (ct * 6 + t) * 4
                ks, uu = ct >> 1, ct & 1
                for h2 in range(2):
                    d = Q45 + 16 * (t - 4) + 4 * ks + 2 * uu + h2 if t >= 4 else b + h2
                    e.append(f'v_cvt_pk_bf16_f32 {v(d)}, {v(b + 2 * h2)}, {v(b + 2 * h2 + 1)}')
            if t < 4:
                for ct in range(8):
                    b = (ct * 6 + t) * 4
                    ks, uu = ct >> 1, ct & 1
                    for h2 in range(2):
                        e.append(f'v_accvgpr_write_b32 {a(192 + 16 * t + 4 * ks + 2 * uu + h2)}, {v(b + h2)}')
        nput = 16 - c.put_q
        for k in range(nput):
            tl, n = puts.pop(0)
            x = (k + 1) * (len(e) // (nput + 1))
            e[x:x] = self.kv_put(tl, n)
        self.puts = puts
        gs = [kvg.pop(0) for _ in range(min(c.kv_nc, len(kvg)))]
        self.kvg = kvg
        if c.n_stage == 2:
            t3 = [[f's_lshl_b32 {s(SRD_KV + 2)}, {s(sKL)}, 18']] + self.kv_tile(3, None)[:-1]
            t3 += [[f's_mov_b32 {s(SRD_KV + 2)}, 262144', f's_lshl_b32 {s(sT3)}, {s(sKL)}, 13', f's_add_u32 {s(sOFF)}, {s(sOFF)}, {s(sT3)}',
                    f's_and_b32 {s(sOFF)}, {s(sOFF)}, 0x3ffff', f's_add_u32 {s(sOFF2)}, {s(sOFF)}, 4096']]
            gs = self.kv_tile(2, None)
            if c.t3_late:
                self.kvg = t3
            else:
                gs += t3
        step = len(e) // (len(gs) + 1)
        for k in range(len(gs) - 1, -1, -1):
            e[k * step + 4:k * step + 4] = gs[k]
        e += ['s_waitcnt lgkmcnt(0)', 's_barrier']
        self.emit(e, 'qconv')
        self.tr(name='conv')

    def kv_reload(self):
        e = flat(self.kv_tile(0, None)) + flat(self.kv_tile(1, None)) + flat(self.kv_tile(2, None))
        e += [f's_cmp_lg_u32 {s(sHH)}, 0', 's_cbranch_scc1 L_skip_t3'] + flat(self.kv_tile(3, None)) + ['L_skip_t3:', 's_waitcnt vmcnt(0)', 's_barrier']
        self.emit(e)

    def frag_reads(self, phi, kslot, vslot):
        r = FR + 4 * (phi & 3)
        if phi < 8:
            c_, ks = phi >> 2, phi & 3
            return [f'ds_read_b128 {v(r, 4)}, {v(vKA)} offset:{kslot * TS + 4352 * c_ + 64 * ks}']
        dt = phi - 8
        reg = vVA + (dt & 1) + 2 * (dt >> 2)
        return [f'ds_read_b64_tr_b16 {v(r + 2 * e_, 2)}, {v(reg)} offset:{vslot * TS + 4352 * e_ + 64 * ((dt >> 1) & 1)}' for e_ in range(2)]

    def qk_mfmas(self, buf, czero=False):
        mf = []
        for c_ in range(2):
            for ks in range(4):
                for t in range(6):
                    d = v(Sr(buf, c_, t), 4)
                    cc = d if ks else ('0' if czero else v(NM + 4 * t, 4))
                    mf.append(I(f'{MF} {d}, {v(FR + 4 * ks, 4)}, {Qfrag(t, ks)}, {cc}'))
        return mf

    def pv_mfmas(self, czero=False):
        mf, first = [], []
        for dt in range(8):
            first.append(len(mf))
            for t in range(6):
                o = a(Oacc(dt, t), 4)
                mf.append(I(f'{MF} {o}, {v(FR + 4 * (dt & 3), 4)}, {v(P_ + 4 * t, 4)}, {0 if czero else o}'))
            if dt < 6 and not self.c.vsum and not self.c.nosum:
                l = v(L_ + 4 * dt, 4)
                mf.append(I(f'{MF} {l}, {v(ONES, 4)}, {v(P_ + 4 * dt, 4)}, {0 if czero else l}'))
        return mf, first

    def exp_order(self):
        return [(c_, t, i) for c_ in range(2) for t in range(6) for i in range(4)]

    def xlane_max(self, m, m2):
        return [f'v_mov_b32 {m2}, {m}', f'v_permlane32_swap_b32 {m}, {m2}', f'v_max_f32 {m}, {m}, {m2}',
                f'v_mov_b32 {m2}, {m}', f'v_permlane16_swap_b32 {m}, {m2}', f'v_max_f32 {m}, {m}, {m2}']

    def attn_pre(self, safe, lab):
        c = self.c
        self.emit(self.frag_reads(0, 0, 0) + self.frag_reads(1, 0, 0))
        fl = []
        for phi in range(2, 8):
            fl.append(Filler(self.frag_reads(phi, 0, 0), rel=max(6 * phi - 18, -1), dl=6 * phi - 10, stream='fr', pos=6 * phi - 0.5))
        for phi in range(2):
            fl.append(Filler(self.frag_reads(phi, 1, 0), rel=6 * (phi + 8) - 14, dl=6 * (phi + 8) - 10, stream='fr', pos=60))
        for i in range(4):
            fl.append(Filler(f'v_mov_b32 {v(ONES + i)}, 0x3f803f80', rel=0, dl=40, stream='i'))
        for k, g in enumerate(self.kvg):
            x = 2 + k * 44 // max(len(self.kvg), 1)
            fl.append(Filler(g, rel=x, dl=x + 1, stream='kv'))
        self.kvg = []
        self.emit(interleave(self.qk_mfmas(0, True), fl, 8, c.verbose, 'qk0', rate=8.0), 'qk0')
        e = []
        for t0 in (0, 3):
            ms = [(v(vMX + 2 * k), v(vMX + 2 * k + 1)) for k in range(3)]
            rows = []
            for k in range(3):
                t = t0 + k
                m, m2 = ms[k]
                r = [Sr(0, 0, t) + i for i in range(4)] + [Sr(0, 1, t) + i for i in range(4)]
                row = [f'v_max3_f32 {m}, {v(r[0])}, {v(r[1])}, {v(r[2])}', f'v_max3_f32 {m}, {m}, {v(r[3])}, {v(r[4])}',
                       f'v_max3_f32 {m}, {m}, {v(r[5])}, {v(r[6])}', f'v_max_f32 {m}, {m}, {v(r[7])}'] + self.xlane_max(m, m2)
                row += [f'v_sub_f32 {v(NM + 4 * t + i)}, 0, {m}' for i in range(4)]
                row += [f'v_sub_f32 {v(x)}, {v(x)}, {m}' for x in r]
                rows.append(row)
            for z in zip(*rows):
                e += list(z)
        if not safe:
            for (c_, t, i) in self.exp_order()[:c.npart1]:
                x = v(Sr(0, c_, t) + i)
                e.append(f'v_exp_f32 {x}, {x}')
        nput = min(c.put_m, len(self.puts))
        for k in range(nput):
            x = (k + 1) * (len(e) // (nput + 1))
            e[x:x] = self.kv_put(*self.puts.pop(0))
        e += ['s_waitcnt lgkmcnt(0)', 's_barrier']
        self.emit(e, 'max0')

    def cvt_fillers(self, cur, base, todo, rel0):
        fl = []
        todo = list(todo)
        for t in range(6):
            for c_ in range(2):
                for h2 in range(2):
                    b = Sr(cur, c_, t) + 2 * h2
                    for i in (2 * h2, 2 * h2 + 1):
                        if (c_, t, i) in todo:
                            fl.append(Filler(f'v_exp_f32 {v(Sr(cur, c_, t) + i)}, {v(Sr(cur, c_, t) + i)}', rel=rel0, dl=base + t - 4, stream='e', pos=-3))
                    fl.append(Filler(f'v_cvt_pk_bf16_f32 {v(P_ + 4 * t + 2 * c_ + h2)}, {v(b)}, {v(b + 1)}', rel=rel0, dl=base + t - 3,
                                     stream='c', pos=-2.5))
                    if self.c.vsum:
                        for i in range(2):
                            fl.append(Filler(f'v_add_f32 {v(L_ + 4 * t)}, {v(L_ + 4 * t)}, {v(b + i)}', rel=rel0, dl=base + 40, stream='s', pos=-2.4))
        return fl

    def attn_iter(self, j, safe, dma='kv', xwait='s_waitcnt vmcnt(8)', nextk=True, site=None, extra=(), win=None):
        c = self.c
        cur, new = j & 1, (j + 1) & 1
        pv, first = self.pv_mfmas(j == 0)
        mf = self.qk_mfmas(new) + pv
        n = len(mf)
        need = [6 * phi for phi in range(8)] + [48 + x for x in first] + [n, n + 6]
        fl = []
        for phi in range(2, 18):
            if phi >= 16:
                if not nextk: continue
                r = self.frag_reads(phi - 16, (j + 2) & 3, 0)
            else:
                r = self.frag_reads(phi, (j + 1) & 3, j & 3)
            fl.append(Filler(r, rel=max(need[phi] - 15, 0), dl=need[phi] - 10, stream='fr', pos=need[phi] - 0.5))
        order = self.exp_order()
        if safe:
            fl += self.cvt_fillers(cur, 48, order, 0)
            regs = [S_[new] + i for i in range(48)]
            m = v(vMX)
            fl.append(Filler(f'v_max3_f32 {m}, {v(regs[0])}, {v(regs[1])}, {v(regs[2])}', rel=52, dl=n - 4, stream='m', pos=200))
            for k in range(3, 48, 2):
                r2 = regs[min(k + 1, 47)]
                fl.append(Filler(f'v_max3_f32 {m}, {m}, {v(regs[k])}, {v(r2)}', rel=52, dl=n - 4, stream='m', pos=200))
            fl.append(Filler(f'v_cmp_lt_f32 vcc, {s(sTHR)}, {m}', rel=52, dl=n - 3, stream='m', pos=200))
        else:
            fl += self.cvt_fillers(cur, 48, order[c.npart1:], 0)
            for (c_, t, i) in order[:c.npart1]:
                x = v(Sr(new, c_, t) + i)
                fl.append(Filler(f'v_exp_f32 {x}, {x}', rel=(46 if c_ == 0 else 52), dl=n - 1, stream='e2', pos=200))
        if dma == 'kv':
            gs = self.kv_groups(sTB + (j & 3), 0, None, c.win if win is None else win)
            if j == 4:
                gs[0] = [f's_cmp_eq_u32 {s(sLOOP)}, {s(sKL)}', f's_cselect_b32 {s(SRD_KV + 2)}, 0, {s(SRD_KV + 2)}'] + gs[0]
            for k, g in enumerate(gs):
                fl.append(Filler(g, rel=max(11 * k - 9, 0), dl=min(11 * k - 3, 90) if k else 1, stream='dma'))
        fl += list(extra)
        if c.noexp:
            fl = [f for f in fl if not f.ins[0].op.startswith('v_exp')]
        xg = need[15]
        fl.append(Filler([xwait, 's_barrier'] if isinstance(xwait, str) else xwait + ['s_barrier'], rel=xg, dl=xg, stream='x'))
        seq = interleave(mf, fl, 8, c.verbose, f'iter{j}', rate=((c.a_rate if j else 9.5) if not safe else 10.0), cap=20)
        if safe:
            seq.append(I(f's_cbranch_vccnz L_rare_{site}'))
            seq.append(I(f'L_back_{site}:'))
            self.sites.append((site, new))
        return seq

    def warm_wo(self, part, tmp=vH + 4):
        L = v(vLANE)
        per = -(-72 // len(self.c.warm_at))
        assert per <= 64
        t0, t1 = v(tmp), v(tmp + 1)
        e = []
        if part == 0:
            e += [f'v_lshlrev_b32 {t0}, 7, {L}', f'v_mov_b32 {t1}, {OOB}', f'v_cmp_gt_u32 vcc, {per}, {L}', 's_nop 1', f'v_cndmask_b32 {t0}, {t1}, {t0}, vcc']
        e += [f's_lshl_b32 {s(sT1)}, {s(sB)}, 2', f's_add_u32 {s(sT1)}, {s(sT1)}, {s(sW)}', f's_mul_i32 {s(sT1)}, {s(sT1)}, 9216',
              f's_add_u32 {s(sT1)}, {s(sT1)}, {128 * per * part}',
              I(f'buffer_load_dword {v(vF) if self.c.warm_it == 31 else v(241)}, {t0}, {s(SRD_WO, 4)}, {s(sT1)} offen{self.c.warm_nt}', tag='W', cost=self.c.dma_cost)]
        return e

    def attention(self, safe):
        c = self.c
        lab = 's' if safe else 'f'
        self.emit([f's_mov_b32 {s(sLOOP)}, 7'])
        self.attn_pre(safe, lab)
        self.tr(name='pre')
        if self.puts:
            ex = [Filler(self.kv_put(tl, n), rel=int(k * c.put_sp), dl=int(k * c.put_sp) + 1, stream='put', pos=-1) for k, (tl, n) in enumerate(self.puts)]
            ex.append(Filler(['s_waitcnt lgkmcnt(0)', 's_barrier'], rel=84, dl=84, stream='put'))
            self.puts = []
            self.emit(self.attn_iter(0, safe, dma=None, site='0', extra=ex), 'iter0')
        else:
            self.emit(self.attn_iter(0, safe, site='0', extra=[Filler(['s_waitcnt vmcnt(8)', 's_barrier'], rel=84, dl=84, stream='fr0')]), 'iter0')
        self.vm_reset()
        self.tr(name='it')
        entry = [set(x) for x in self.lg]
        phases = [(c.win, 0)] if (safe or c.win_b is None) else [(c.win, 7 - c.n1), (c.win_b, 0)]
        if len(phases) == 2 and c.win_c is not None:
            phases = [(c.win, 7 - c.n1), (c.win_b, 7 - c.n1 - c.n2), (c.win_c, 0)]
        for ph, (win, stop) in enumerate(phases):
            self.raw(['.p2align 3', f'L_loop{lab}{ph}:'])
            start = len(self.out)
            for j in range(1, 5):
                self.emit(self.attn_iter(j, safe, site=f'{j}', win=win), f'iter{j}')
                self.tr(dyn=True, name='it')
            assert [set(x) for x in self.lg] == entry, (self.lg, entry)
            self.emit([f's_sub_u32 {s(sLOOP)}, {s(sLOOP)}, 1', f's_cmp_lg_u32 {s(sLOOP)}, {stop}', f's_cbranch_scc1 L_loop{lab}{ph}'])
            rep = []
            pad_hazards(self.out[start:start + 40], history=self.out[-40:], report=rep)
            assert not rep, rep
            if ph and c.trace and not c.trace_o and not c.trace_h:
                self.ntr -= 4
                self.trnames = self.trnames[:-4]
        self.vm_reset()
        if c.trace and not c.trace_o and not c.trace_h:
            self.ntr += 24
            self.trnames += ['it'] * 24
        ex = [Filler(self.clear_done(), rel=2, dl=6)] + [Filler(g, rel=8 + 6 * k, dl=12 + 6 * k, stream='ft') for k, g in enumerate(self.flag_touch())]
        wm = [Filler(self.warm_wo(k, vMX + 6), rel=8 + 4 * k, dl=12 + 4 * k, stream='wm') for k in range(len(c.warm_at))] if c.warm_wo and c.warm_it else []
        n29 = len(wm) if c.warm_it == 29 else 0
        n30 = len(wm) if c.warm_it in (29, 30) else 0
        self.emit(self.attn_iter(29, safe, dma=None, xwait=f's_waitcnt vmcnt({10 + n29})', site='29', extra=ex + (wm if n29 else [])), 'iter29')
        self.tr(name='it')
        self.emit(self.attn_iter(30, safe, dma=None, xwait=f's_waitcnt vmcnt({2 + n30})', nextk=False, site='30',
                                 extra=(wm if c.warm_it == 30 else [])), 'iter30')
        self.last_extra = wm if c.warm_it == 31 else []
        self.tr(name='it')
        self.vm_reset()
        self.attn_last(safe)

    def oproj_setup(self):
        L = v(vLANE)
        t0, t1, t2 = v(vT), v(vT + 1), v(vT + 2)
        e = [f'v_lshrrev_b32 {t0}, 3, {L}', f'v_and_b32 {t1}, 7, {L}', f'v_and_b32 {t2}, 6, {t0}', f'v_xor_b32 {t1}, {t1}, {t2}',
             f's_lshl_b32 {s(sT1)}, {s(sW)}, 3', f'v_add_u32 {t0}, {s(sT1)}, {t0}', f'v_mul_u32_u24 {t0}, 1152, {t0}',
             f'v_lshl_add_u32 {v(vOV)}, {t1}, 4, {t0}']
        e += [f'v_bfe_u32 {t0}, {L}, 2, 3', f'v_lshrrev_b32 {t1}, 1, {t0}', f'v_xor_b32 {t1}, {s(sW)}, {t1}', f'v_lshlrev_b32 {t1}, 5, {t1}',
              f'v_lshl_add_u32 {t0}, {t0}, 7, {t1}', f'v_and_b32 {t1}, 3, {L}', f'v_lshl_add_u32 {t0}, {t1}, 3, {t0}',
              f'v_lshrrev_b32 {t1}, 5, {L}', f'v_lshl_add_u32 {v(vOA)}, {t1}, 10, {t0}', f'v_add_u32 {v(vOA2)}, 65536, {v(vOA)}']
        e += [f'v_lshlrev_b32 {v(vPS)}, 4, {L}', f'v_mov_b32 {v(vPA)}, v246']
        for k in range(4):
            e += [f's_mul_hi_u32 {s(sT1)}, {s(sH + k)}, {(2 ** 32 + 5) // 6}', f's_add_u32 {s(sT1)}, {s(sT1)}, {OB}',
                  f'v_add_u32 {v(vBA + k)}, {s(sT1)}, {v(vPS)}']
        e += [f's_mul_i32 {s(sT1)}, {s(sW)}, 24576', f's_add_u32 {s(sT1)}, {s(sT1)}, {OB}', f'v_add_u32 {v(vOW)}, {s(sT1)}, {v(vPS)}']
        return e

    def flag_touch(self):
        L = v(vLANE)
        t0, t1 = v(244), v(245)
        return [[f'v_subrev_u32 {t0}, 7, {L}', f'v_sub_u32 {t1}, {s(sJ)}, {t0}', f'v_and_b32 {t1}, 7, {t1}', f'v_lshlrev_b32 {t1}, 12, {t1}',
                 f'v_lshl_add_u32 {t1}, {t0}, 7, {t1}'],
                [f'v_cmp_gt_u32 vcc, 15, {L}', f'v_lshlrev_b32 {t0}, 12, {L}', 's_nop 0', f'v_cndmask_b32 {t1}, 0, {t1}, vcc', f'v_cmp_gt_u32 vcc, 8, {L}', 's_nop 1',
                 f'v_cndmask_b32 v246, {t1}, {t0}, vcc'],
                [f's_lshl_b32 {s(sFA)}, {s(sW)}, 10', I(f'buffer_load_dword v247, v246, {s(SRD_FL, 4)}, {s(sFA)} offen{self.c.fl_mod}', cost=self.c.dma_cost)]]

    def late_consts(self):
        L = v(RR + 2)
        t0, t1 = v(RR), v(RR + 1)
        g = [[f'v_lshrrev_b32 {L}, 4, {v(vPS)}', f'v_mov_b32 {t0}, {OOB}', f'v_cmp_eq_u32 vcc, 0, {L}', 's_nop 1', f'v_cndmask_b32 {v(vL0)}, {t0}, {L}, vcc'],
             [f'v_and_b32 {t0}, 15, {L}', f'v_mul_u32_u24 {t0}, 2304, {t0}'], [f'v_lshrrev_b32 {t1}, 4, {L}', f'v_lshl_add_u32 {v(vOO)}, {t1}, 3, {t0}'],
             [f'v_bfe_u32 {t0}, {L}, 2, 2', f'v_cmp_eq_u32 vcc, {t0}, {t1}', f'v_and_b32 {t0}, 1, {L}', f'v_lshlrev_b32 {t0}, 4, {t0}',
              f'v_lshlrev_b32_e64 {t0}, {t0}, 1', f'v_mul_u32_u24 {t0}, 0x3f80, {t0}', f'v_cndmask_b32 {t0}, 0, {t0}, vcc'],
             [f'v_and_b32 {t1}, 2, {L}', f'v_cmp_eq_u32 vcc, 0, {t1}', f'v_mov_b32 {v(SEL)}, 0', f'v_mov_b32 {v(SEL + 1)}, 0',
              f'v_cndmask_b32 {v(SEL + 2)}, 0, {t0}, vcc', f'v_sub_u32 {v(SEL + 3)}, {t0}, {v(SEL + 2)}'],
             [f'v_mov_b32 {v(SEL + 4)}, 0', f'v_mov_b32 {v(SEL + 5)}, 0']]
        return g

    def check(self, reg, want, reload, name, allanes=False, two=False):
        k = len(self.spins)
        if two:
            test = [f'v_and_b32 {v(reg)}, {v(reg)}, {v(reg + 1)}', 's_nop 0', f'v_readfirstlane_b32 {s(sT3)}, {v(reg)}', 's_nop 1', f's_cmp_eq_u32 {s(sT3)}, {want}']
        elif allanes:
            test = [f'v_cmp_eq_u32 vcc, 0, {v(reg)}', 's_nop 1', f's_and_b32 {s(sT3)}, vcc_lo, {want:#x}', f's_cmp_eq_u32 {s(sT3)}, 0']
        else:
            test = [f'v_readfirstlane_b32 {s(sT3)}, {v(reg)}', 's_nop 1', f's_cmp_lg_u32 {s(sT3)}, 0']
        self.spins.append((k, reload, test))
        return test + [f's_cbranch_scc0 L_spin{k}', f'L_spun{k}:']

    def spin_blocks(self):
        for k, reload, test in self.spins:
            self.raw([f'L_spin{k}:', f's_mov_b32 {s(sSPIN)}, {self.c.spin_max}', f'L_spinl{k}:', 's_sleep 1', reload, 's_waitcnt vmcnt(0)'] + test +
                     ([f's_cbranch_scc0 L_spinc{k}', f's_sub_u32 {s(sSPIN)}, {self.c.spin_max + 1}, {s(sSPIN)}', f'v_writelane_b32 v126, {s(sSPIN)}, {58 + k}',
                       f's_branch L_spun{k}', f'L_spinc{k}:'] if self.c.trace else []) +
                     [f's_cbranch_scc1 L_spun{k}', f's_sub_u32 {s(sSPIN)}, {s(sSPIN)}, 1', f's_cmp_lg_u32 {s(sSPIN)}, 0', f's_cbranch_scc1 L_spinl{k}',
                      f's_branch L_spun{k}'])

    def plan_wo(self):
        self.slot_of = {0: 0, 1: 1, 2: 2}
        self.issue_at = {}
        free = [3]
        nxt = 3
        for sg in range(1, 36):
            if sg >= 2:
                free.append(self.slot_of[sg - 2])
            if sg == 5:
                free += list(range(4, self.c.oring))
            todo = []
            while nxt < 36 and free and len(todo) < 2:
                self.slot_of[nxt] = free.pop(0)
                todo.append(nxt); nxt += 1
            assert nxt >= min(sg + 2, 36)
            self.issue_at[sg] = todo

    def wo_slot(self, n):
        return 16384 * self.slot_of[n >> 2] + 4096 * (n & 3)

    def wo_unit(self, n):
        p, kk = n >> 4, n & 15
        g = [f's_add_u32 m0, {s(sWOL)}, {self.wo_slot(n)}']
        if kk == 0:
            if p == 0:
                g += [f's_mov_b32 {s(sCG)}, 1024']
            else:
                g += [f's_add_u32 {s(sCG)}, {s(sJ)}, {p}', f's_and_b32 {s(sCG)}, {s(sCG)}, 7', f's_lshl_b32 {s(sCG)}, {s(sCG)}, 7']
        elif kk & 3 == 0:
            g += [f's_add_u32 {s(sCG)}, {s(sCG)}, 36864']
        g += [f's_add_u32 {s(sSO)}, {s(sH + (kk & 3))}, {s(sCG)}']
        g.append(self.dma(vOV, SRD_WO, s(sSO), 0, self.c.wo_nt, ('O', n)))
        return g

    def attn_last(self, safe):
        c = self.c
        cur = 1
        e = self.frag_reads(8, 0, 3) + self.frag_reads(9, 0, 3) + self.oproj_setup()
        self.emit(e, 'last0')
        pv, first = self.pv_mfmas()
        fl = []
        for phi in range(10, 16):
            nd = first[phi - 8]
            fl.append(Filler(self.frag_reads(phi, 0, 3), rel=max(nd - 18, -1), dl=nd - 10, stream='fr', pos=nd - 0.5))
        order = self.exp_order()
        fl += self.cvt_fillers(cur, 0, order if safe else order[c.npart1:], -1)
        for n in range(12):
            fl.append(Filler(self.wo_unit(n), rel=3 * n, dl=3 * n + 8, stream='dma'))
        for k, f in enumerate(self.last_extra):
            f.rel = f.dl = 38 + 3 * k
            f.pos = f.rel + 0.5
            fl.append(f)
        fl.append(Filler('s_barrier', rel=first[7], dl=first[7], stream='x'))
        for t in range(6):
            fl.append(Filler(f'v_rcp_f32 {v(vR + 2 * t)}, {v(L_ + 4 * t)}', rel=first[min(t + 2, 7)] + 3, dl=60, stream='r', pos=100))
        self.emit(interleave(pv, fl, 8, c.verbose, 'last', rate=9.0), 'last')

    def ofrag(self, k, tb):
        u, t = divmod(k, 6)
        e = [[f'v_accvgpr_read_b32 {v(tb + i)}, {a(Oacc(2 * u + (i >> 2), t) + (i & 3))}'] for i in range(8)]
        e += [[f'v_pk_mul_f32 {v(tb + i, 2)}, {v(tb + i, 2)}, {v(vR + 2 * t, 2)} op_sel_hi:[1,0]'] for i in range(0, 8, 2)]
        e += [[f'v_cvt_pk_bf16_f32 {v(tb + i)}, {v(tb + 2 * i)}, {v(tb + 2 * i + 1)}'] for i in range(4)]
        e.append([I(f'ds_write_b128 {v(vOW)}, {v(tb, 4)} offset:{1024 * k}', cost=12)])
        return e

    def onorm(self):
        return flat(flat(self.ofrag(k, 8 * (k % 6)) for k in range(self.c.npre)))

    def oproj(self):
        c = self.c
        NS = 144

        def aread(n):
            r = OA_ + 4 * (n & 3)
            ad = self.wo_slot(n)
            return [f'ds_read_b64_tr_b16 {v(r + 2 * e_, 2)}, {v((vOA, vOA2)[ad >> 16])} offset:{(ad & 65535) + 2048 * e_}' for e_ in range(2)]

        def bread(kk, t):
            phi = 6 * kk + t
            return f'ds_read_b128 {Bfrag(phi)}, {v(vBA + (kk & 3))} offset:{1024 * (6 * (kk >> 2) + t)}'

        def prod(p, sd):
            return [f's_sub_u32 {s(sd)}, {s(sJ)}, {p}', f's_and_b32 {s(sd)}, {s(sd)}, 7', f's_lshl_b32 {s(sd)}, {s(sd)}, 2',
                    f's_add_u32 {s(sd)}, {s(sd)}, {s(sW)}']

        def fload(p):
            return f'buffer_load_dword {v(vF)}, {v(SEL)}, {s(SRD_FL, 4)}, {s(sFA)} offen offset:{128 * p}{c.fl_mod}'

        def poll(p):
            return prod(p, sFA) + [f's_lshl_b32 {s(sFA)}, {s(sFA)}, 10', I(fload(p), tag=('F', p), cost=c.dma_cost)]

        def dloads(p, dst):
            g = []
            for z in range(3):
                o = f' offset:{1024 * z}' if z else ''
                g.append([I(f'buffer_load_dwordx4 {dst(z)}, {v(vPS)}, {s(SRD_WS, 4)}, {s(sDAt[p])} offen{o}{c.d_mod}', tag=('D', p), cost=c.dma_cost)])
            return g

        def adds(src, first=False):
            r = []
            for z in range(3):
                for h in range(2):
                    acc = v(RR + 8 * z + 4 * h, 4)
                    r.append(I(f'{MF} {acc}, {v(SEL + 2 - 2 * h, 4)}, {src(z)}, {0 if first else acc}'))
            return r

        def signal(p):
            return [self.wvm(('P', p)),
                    I(f'buffer_store_dword {v(vOA2)}, {v(vL0)}, {s(SRD_FL, 4)}, {s(sFS)} offen offset:{128 * p}{c.fl_mod}', tag=('S', p), cost=c.dma_cost)]

        ldb = lambda z: v(LDB + 4 * z, 4)
        bufs = [ldb, lambda z: v(4 * z, 4), lambda z: v(12 + 4 * z, 4)] + [(lambda k: (lambda z: v(HB + 8 + 12 * k + 4 * z, 4)))(k) for k in range(4)]
        e = [bread(0, t) for t in range(6)] + aread(0) + aread(1) + [bread(1, t) for t in range(4)]
        self.emit(e, 'opre')
        mf, fl = [], []
        G = []
        A = {}
        for n in range(NS):
            p, kk = n >> 4, n & 15
            for k, nn in enumerate(c.add_at):
                if n == nn:
                    A[k] = len(mf)
                    for q in ((0,), (0,), (0,), (1, 2))[k]:
                        mf += adds(bufs[q], k == 0)
            G.append(len(mf))
            for t in range(6):
                acc = v((RR if p == 8 else OACC[p & 1]) + 4 * t, 4)
                mf.append(I(f'{MF} {acc}, {v(OA_ + 4 * (n & 3), 4)}, {Bfrag(6 * kk + t)}, {acc if kk or p == 8 else 0}'))
        G.append(len(mf))
        at = lambda p, x: min(G[16 * p + x // 6] + x % 6, len(mf) - 1) if 16 * p + x // 6 < NS else len(mf) - 1
        for t in range(4, 6):
            fl.append(Filler(bread(1, t), rel=0, dl=1, stream='b', pos=5.5))
        for k, g in enumerate(self.late_consts()):
            fl.append(Filler(g, rel=G[12] + 7 * k, dl=G[12] + 2 + 7 * k, stream='k'))
        for n in range(NS):
            p, kk = n >> 4, n & 15
            g0 = G[n]
            m = n + 2
            if m < NS:
                if m % 4 == 0:
                    sg = m // 4
                    pub = sg < 4 and 6 * (sg + 1) > c.npre
                    fl.append(Filler([self.wvm(('O', m + 3))] + (['s_waitcnt lgkmcnt(0)'] if pub else []) + ['s_barrier'], rel=g0 - 1, dl=g0,
                                     stream='a', pos=g0 - 0.4))
                    if sg < 4:
                        ks = [k for k in range(6 * sg, 6 * sg + 6) if k >= c.npre]
                        items = flat(self.ofrag(k, 24 + 8 * (k % 3)) for k in ks)
                        lo, hi = max(g0 - 24, 0), g0 - 2
                        for q, it in enumerate(items):
                            x = lo + q * (hi - lo) // len(items)
                            fl.append(Filler(it, rel=x, dl=x, stream='cv', pos=lo - 0.6 + 1e-4 * q))
                    units = [4 * q + k for q in self.issue_at[sg] for k in range(4)]
                    for k, uu in enumerate(units):
                        sp = 20 // max(len(units), 1)
                        fl.append(Filler(self.wo_unit(uu), rel=g0 + 2 + sp * k, dl=g0 + 4 + sp * k, stream='dma'))
                fl.append(Filler(aread(m), rel=g0, dl=g0 + 2, stream='a', pos=G[m] - 0.5))
                if m < 16:
                    for t in range(6):
                        fl.append(Filler(bread(m, t), rel=g0 + 1 + t, dl=g0 + 5 + t, stream='b', pos=G[m] - 0.5))
            if kk == 15 or (c.trace_o and kk & 3 == 3):
                self.tr_filler(fl, g0 + 5, 'o')
            if kk == 15 and p < 8:
                for z in range(3):
                    for i in range(4):
                        b = OACC[p & 1] + 8 * z + 2 * i
                        fl.append(Filler(f'v_cvt_pk_bf16_f32 {v(OPK + 4 * z + i)}, {v(b)}, {v(b + 1)}', rel=g0 + 10 + 3 * z, dl=g0 + 11 + 3 * z + (i >> 1),
                                         stream='st', pos=g0 + 5.5))
                    o = f' offset:{1024 * z}' if z else ''
                    fl.append(Filler(I(f'buffer_store_dwordx4 {v(OPK + 4 * z, 4)}, {v(vPS)}, {s(SRD_WS, 4)}, {s(sPSt[p])} offen{o}{c.st_mod}',
                                       tag=('P', p), cost=c.dma_cost), rel=g0 + 10 + 3 * z, dl=g0 + 13 + 3 * z, stream='st', pos=g0 + 5.5))
                sgm = c.sig[0] if p <= 4 else (c.sig[1] if p <= 6 else c.sig[2])
                x = min(g0 + 6 + sgm, len(mf) - 1)
                fl.append(Filler(signal(p), rel=x, dl=x, stream='sig'))
        red = []
        dbgl = f'buffer_load_dwordx2 {v(LDB, 2)}, {v(SEL)}, {s(SRD_DBG, 4)}, {s(sDA)} offen sc1'
        x = at(3, 62)
        red.append(Filler([f's_lshl_b32 {s(sDA)}, {s(sGRP)}, 3', I(dbgl, tag='DBG', cost=c.dma_cost)], rel=x, dl=x + 2))
        x = at(4, 56)
        red.append(Filler([self.wvm('DBG')] + self.check(LDB, 0x01010101, dbgl, 'dbg', two=True), rel=x, dl=x + 2))
        pal = f'buffer_load_dword {v(vF)}, {v(vPA)}, {s(SRD_FL, 4)}, {s(sFA)} offen{c.fl_mod}'

        def place(gs, x, sp=2):
            for k, g in enumerate(gs):
                red.append(Filler(g, rel=x + sp * k, dl=x + 2 + sp * k, pos=x + 0.5 + sp * k))
            return x + sp * len(gs)
        if c.prepoll:
            x = at(3, 64)
            red.append(Filler([f's_lshl_b32 {s(sFA)}, {s(sW)}, 10', I(pal, tag='F_', cost=c.dma_cost)], rel=x, dl=x + 2))
        x = at(5, c.pa[0])
        red.append(Filler([f's_lshl_b32 {s(sFA)}, {s(sW)}, 10', I(pal, tag='FA', cost=c.dma_cost)], rel=x, dl=x + 2))
        x = at(5, c.pa[1])
        red.append(Filler([self.wvm('FA')] + self.check(vF, 0x700, pal, 'fa', allanes=True), rel=x, dl=x + 2))
        place(dloads(1, ldb), x + 1)
        for k in range(3):
            red.append(Filler(self.wvm(('D', k + 1)), rel=A[k] - 1, dl=A[k] - 1))
            if k < 2:
                place(dloads(k + 2, ldb), A[k] + 6)
        x = at(7, c.pa[2])
        red.append(Filler([I(pal, tag='FB', cost=c.dma_cost)], rel=x, dl=x + 2))
        x = at(7, c.pa[3])
        red.append(Filler([self.wvm('FB')] + self.check(vF, 0x18ff, pal, 'fb', allanes=True), rel=x, dl=x + 2))
        place(dloads(4, bufs[1]) + dloads(5, bufs[2]), x + 1)
        x = at(8, c.pb[0])
        red.append(Filler(poll(6), rel=x, dl=x + 2))
        red.append(Filler(self.wvm(('D', 5)), rel=A[3] - 1, dl=A[3] - 1))
        x = G[128 + c.sh_at]
        k = 0
        g = []
        for i in range(8):
            g.append(I(f'buffer_load_dwordx4 {v(HB + 4 * i, 4)}, {v(vPS)}, {s(SRD_WS, 4)}, {s(sDAt[0])} offen{c.d_mod}', tag=('H', i), cost=c.dma_cost))
            if i < 7:
                g.append(f's_add_u32 {s(sDAt[0])}, {s(sDAt[0])}, 12288')
            red.append(Filler(g, rel=x + 2 * k, dl=x + 3 + 2 * k, pos=x + 0.5 + 2 * k)); k += 1
            g = []
        x = max(at(8, c.pb[1]), x + 2 * k)
        red.append(Filler([self.wvm(('F', 6))] + self.check(vF, 1, fload(6), 'f6'), rel=x, dl=x + 2))
        x = place(dloads(6, bufs[5]), x + 1)
        x = max(at(8, c.pb[2]), x)
        red.append(Filler(poll(7), rel=x, dl=x + 2))
        if c.red_off:
            red = []
            self.spins = []
            fl = [f for f in fl if f.stream != 'sig']
        if c.st_off:
            fl = [f for f in fl if not (f.stream == 'st' and f.ins[0].kind == 'vst')]
        for f in fl:
            if f.stream == 'red':
                red.append(f)
        fl = [f for f in fl if f.stream != 'red']
        red.sort(key=lambda f: f.rel)
        for f in red:
            f.stream = 'red'
        fl += red
        for f in fl:
            f.rel = min(f.rel, len(mf) - 1)
        self.emit(interleave(mf, fl, 8, c.verbose, 'oproj', rate=c.o_rate, cap=24), 'oproj')
        if c.red_off:
            return
        e = [self.wvm(('F', 7))] + self.check(vF, 1, fload(7), 'f7')
        e += flat(dloads(7, bufs[6]))
        for i in range(8):
            e.append(self.wvm(('H', i)))
            for h in range(2):
                acc = v(4 * h, 4)
                e.append(f'{MF} {acc}, {v(SEL + 2 - 2 * h, 4)}, {v(HB + 4 * i, 4)}, {acc if i else 0}')
        e += [self.wvm(('D', 6))] + adds(bufs[5])
        e += [f's_mul_i32 {s(sPS)}, {s(sJ)}, {32 * 2304}', f's_add_u32 {s(sPS)}, {s(sPS)}, {s(sOO)}', f's_add_u32 {s(sPS)}, {s(sPS)}, 1024',
              f's_add_u32 {s(sT3)}, {s(sPS)}, {16 * 2304}']
        e += [f'v_cvt_pk_bf16_f32 {v(8 + i)}, {v(2 * i)}, {v(2 * i + 1)}' for i in range(4)]
        e += [f's_cmp_lt_u32 {s(sJ)}, 3', 's_cbranch_scc0 L_nosh']
        self.emit(e, 'otail')
        self.raw([f'buffer_store_dwordx2 {v(8, 2)}, {v(vOO)}, {s(SRD_OUT, 4)}, {s(sPS)} offen{c.out_mod}',
                  f'buffer_store_dwordx2 {v(10, 2)}, {v(vOO)}, {s(SRD_OUT, 4)}, {s(sT3)} offen{c.out_mod}', 'L_nosh:'])
        e = []
        e += [f's_lshl_b32 {s(sPS)}, {s(sJ)}, 7', f's_add_u32 {s(sPS)}, {s(sPS)}, {s(sOO)}']
        e += [self.wvm(('D', 7))] + adds(bufs[6])
        for t in range(6):
            e += [f'v_cvt_pk_bf16_f32 {v(12 + 2 * t + i)}, {v(RR + 4 * t + 2 * i)}, {v(RR + 4 * t + 2 * i + 1)}' for i in range(2)]
            e.append(I(f'buffer_store_dwordx2 {v(12 + 2 * t, 2)}, {v(vOO)}, {s(SRD_OUT, 4)}, {s(sPS)} offen{c.out_mod}', tag='Z'))
            if t < 5:
                e.append(f's_add_u32 {s(sPS)}, {s(sPS)}, {16 * 2304}')
        self.emit(e, 'otail')

    def rare_paths(self):
        for site, new in self.sites:
            self.raw([f'L_rare_{site}:', f's_call_b64 {s(sRET, 2)}, L_rescale_{new}', f's_branch L_back_{site}'])
        if not self.sites:
            return
        for new in range(2):
            e = []
            self.raw([f'L_rescale_{new}:', 's_nop 15'])
            m, m2, f = v(vT), v(vT + 1), v(vT + 2)
            for t in range(6):
                r = [Sr(new, 0, t) + i for i in range(4)] + [Sr(new, 1, t) + i for i in range(4)]
                e += [f'v_max3_f32 {m}, {v(r[0])}, {v(r[1])}, {v(r[2])}', f'v_max3_f32 {m}, {m}, {v(r[3])}, {v(r[4])}',
                      f'v_max3_f32 {m}, {m}, {v(r[5])}, {v(r[6])}', f'v_max3_f32 {m}, {m}, {v(r[7])}, 0'] + self.xlane_max(m, m2)
                e += [f'v_exp_f32 {f}, -{m}']
                e += [f'v_sub_f32 {v(NM + 4 * t + i)}, {v(NM + 4 * t + i)}, {m}' for i in range(4)]
                e += [f'v_sub_f32 {v(x)}, {v(x)}, {m}' for x in r]
                e += [f'v_mul_f32 {v(L_ + 4 * t + i)}, {v(L_ + 4 * t + i)}, {f}' for i in range(4)]
                for dt in range(8):
                    for i in range(0, 4, 2):
                        o = Oacc(dt, t) + i
                        e += [f'v_accvgpr_read_b32 {v(vMX)}, {a(o)}', f'v_accvgpr_read_b32 {v(vMX + 1)}, {a(o + 1)}',
                              f'v_mul_f32 {v(vMX)}, {v(vMX)}, {f}', f'v_mul_f32 {v(vMX + 1)}, {v(vMX + 1)}, {f}',
                              f'v_accvgpr_write_b32 {a(o)}, {v(vMX)}', f'v_accvgpr_write_b32 {a(o + 1)}, {v(vMX + 1)}']
            e += ['s_nop 1', f's_setpc_b64 {s(sRET, 2)}']
            self.out += pad_hazards([mk(x) for x in e])

    def finish(self):
        self.raw(['L_end:', 's_endpgm'])

    def trace_move(self):
        if self.c.trace:
            self.tr(name='norm')
            self.emit([f'v_mov_b32 v126, {v(vTRa)}', f'v_mov_b32 v127, {v(vTRb)}'] + [f'v_writelane_b32 v126, 0, {58 + k}' for k in range(6)])
            self.trreg = (126, 127)

    def trace_out(self):
        if not self.c.trace:
            return
        self.tr(name='tail')
        self.emit(['s_waitcnt vmcnt(0)'])
        self.tr(name='drain')
        e = [f's_add_u32 s12, s58, {STAMP_OFF + 0x80000}', 's_addc_u32 s13, s59, 0', 's_mov_b32 s14, 0x80000', 's_mov_b32 s15, 0x20000',
             f's_lshl_b32 {s(sT1)}, s2, 2', f's_add_u32 {s(sT1)}, {s(sT1)}, {s(sW)}', f's_lshl_b32 {s(sT1)}, {s(sT1)}, 9',
             f'v_lshrrev_b32 v40, 1, {v(vPS)}', I(f'buffer_store_dwordx2 v[126:127], v40, s[12:15], {s(sT1)} offen', tag='TR')]
        if self.c.dbgout:
            names = self.trnames
            last = lambda n: len(names) - 1 - names[::-1].index(n)
            its = [i for i, n in enumerate(names) if n == 'it']
            sel = [last('first'), names.index('q'), last('q'), last('conv'), last('pre'), its[4], its[12], its[20], its[27], its[-1], last('last'), last('norm'),
                   last('o') - 4, last('o'), last('tail'), last('drain')]
            e += ['s_waitcnt vmcnt(0)', 's_or_b32 s4, s2, s3', 's_cmp_lg_u32 s4, 0', 's_cbranch_scc1 L_end', 'v_readlane_b32 s5, v126, 0', 'v_mov_b32 v41, 0']
            for k, i in enumerate(sel):
                e += [f'v_readlane_b32 s4, v126, {i}', 's_nop 1', 's_sub_u32 s4, s4, s5', f'v_writelane_b32 v41, s4, {k}']
            e += ['v_lshrrev_b32 v40, 2, v115', 's_mov_b64 exec, 0xffff', f'buffer_store_dword v41, v40, {s(SRD_DBG, 4)}, 0 offen']
        self.emit(e)

    def kernel1(self):
        c = self.c
        self.setup()
        self.qproj()
        self.attention(c.mode == 'safe')
        self.tr(name='last')
        vm_join = list(self.vm)
        self.raw(['L_norm:'])
        e = []
        if c.mode == 'fast':
            m = v(vT)
            e += [f'v_max3_f32 {m}, {v(L_)}, {v(L_ + 4)}, {v(L_ + 8)}', f'v_max3_f32 {m}, {m}, {v(L_ + 12)}, {v(L_ + 16)}',
                  f'v_max_f32 {m}, {m}, {v(L_ + 20)}', f'v_cmp_nge_f32 vcc, {s(sLTHR)}, {m}',
                  's_nop 1', 's_cmp_lg_u64 vcc, 0', f's_cselect_b32 {s(sT1)}, 1, 0', f's_andn2_b32 {s(sT1)}, {s(sT1)}, {s(sSAFE)}',
                  f'v_mov_b32 {v(vT + 1)}, {s(sT1)}', f's_lshl_b32 {s(sT1)}, {s(sW)}, 2', f's_add_u32 {s(sT1)}, {s(sT1)}, {49152}',
                  f'v_mov_b32 {v(vT + 2)}, {s(sT1)}', f'ds_write_b32 {v(vT + 2)}, {v(vT + 1)}']
        e += self.onorm()
        e += [self.wvm(('O', 3)), 's_waitcnt lgkmcnt(0)', 's_barrier']
        if c.mode == 'fast':
            e += [f'v_mov_b32 {v(vT + 2)}, 49152', f'ds_read_b128 {v(4, 4)}, {v(vT + 2)}', 'v_or3_b32 v4, v4, v5, v6', 'v_or_b32 v4, v4, v7',
                  f'v_readfirstlane_b32 {s(sT1)}, v4', f's_cmp_lg_u32 {s(sT1)}, 0', 's_cbranch_scc1 L_fallback']
        self.emit(e, 'onorm')
        self.trace_move()
        self.oproj()
        self.trace_out()
        self.finish()
        if c.mode == 'fast':
            self.raw(['L_fallback:'])
            self.lg = []; self.vm = []
            tr = c.trace
            c.trace = False
            e = ['s_waitcnt vmcnt(0) lgkmcnt(0)', 's_barrier', f's_mov_b32 {s(sSAFE)}, 1', f's_mov_b32 {s(sOFF)}, {s(sOFF0)}',
                 f's_add_u32 {s(sOFF2)}, {s(sOFF)}, 4096', f's_mov_b32 {s(SRD_KV + 2)}, 262144']
            self.emit(e)
            self.kv_reload()
            self.attention(True)
            assert [x[0] for x in self.vm] == [x[0] for x in vm_join], (self.vm, vm_join)
            self.emit(['s_waitcnt lgkmcnt(0)', 's_nop 15', 's_branch L_norm'])
            c.trace = tr
        self.rare_paths()
        self.spin_blocks()
        return self.out


def descriptor(name, vg, acc, sg=102):
    d = ['.section .rodata,"a"', '.p2align 6', f'.amdhsa_kernel {name}']
    for k, x in dict(next_free_vgpr=vg, next_free_sgpr=sg, accum_offset=acc, group_segment_fixed_size=0, kernarg_size=104,
                     user_sgpr_count=2, user_sgpr_kernarg_segment_ptr=1, system_sgpr_workgroup_id_x=1).items():
        d.append(f'  .amdhsa_{k} {x}')
    d.append('.end_amdhsa_kernel')
    return d


def build(cfg, path):
    g = Gen(cfg)
    k1 = g.kernel1()
    L = ['; @launch grid=(256,1,1) block=(256,1,1) lds=163840',
         '; Fused GQA block x2: Q projection + flash attention + O projection with an in-kernel reduce-scatter.',
         '.amdgcn_target "amdgcn-amd-amdhsa--gfx950"', '.text']
    L += [f'.globl {K1}', '.p2align 8', f'.type {K1},@function', f'{K1}:']
    L += [('' if x.kind in ('label', 'dir') else '    ') + x.text for x in k1]
    if cfg.trace:
        assert g.ntr == len(g.trnames) <= 58, (g.ntr, len(g.trnames))
        L += ['; trnames ' + ' '.join(g.trnames)]
    L += descriptor(K1, 512, 256)
    open(path, 'w').write('\n'.join(L) + '\n')
    return g

if __name__ == '__main__':
    kw = {}
    path = sys.argv[1]
    for x in sys.argv[2:]:
        k, val = x.split('=', 1)
        try:
            val = eval(val)
        except Exception:
            pass
        kw[k] = val
    build(Cfg(**kw), path)
```

```python
import re

REG_RE = re.compile(r'^(-|\|)?(v|a|s)(\d+)\|?$')
RNG_RE = re.compile(r'^(-|\|)?(v|a|s)\[(\d+):(\d+)\]\|?$')
TRANS = ('v_exp_f32', 'v_log_f32', 'v_rcp_f32', 'v_rsq_f32', 'v_sqrt_f32', 'v_sin_f32', 'v_cos_f32')


def regs_of(tok):
    tok = tok.strip()
    m = REG_RE.match(tok)
    if m:
        return [(m.group(2), int(m.group(3)))]
    m = RNG_RE.match(tok)
    if m:
        return [(m.group(2), i) for i in range(int(m.group(3)), int(m.group(4)) + 1)]
    if tok in ('vcc', 'vcc_lo', 'vcc_hi'):
        return [('x', 'vcc')]
    if tok == 'm0':
        return [('x', 'm0')]
    if tok in ('exec', 'exec_lo', 'exec_hi'):
        return [('x', 'exec')]
    return []


class I:
    __slots__ = ('text', 'op', 'kind', 'rd', 'wr', 'srcc', 'ab', 'cost', 'tag', 'passes', 'key')

    def __init__(self, text, tag=None, cost=None, key=None):
        self.text = text
        self.tag = tag
        self.key = key
        self.srcc = []
        self.ab = []
        self.passes = 0
        t = text.split(';')[0].strip()
        if t.endswith(':'):
            self.op = 'label'; self.kind = 'label'; self.rd = []; self.wr = []; self.cost = 0
            return
        if t.startswith('.') or t == '':
            self.op = 'dir'; self.kind = 'dir'; self.rd = []; self.wr = []; self.cost = 0
            return
        parts = t.split(None, 1)
        op = parts[0]
        self.op = op
        rest = parts[1] if len(parts) > 1 else ''
        toks = [x.strip() for x in rest.split(',')] if rest else []
        mods = []
        if toks:
            lt = toks[-1].split()
            toks[-1] = lt[0] if lt else ''
            mods = lt[1:]
        R = [regs_of(x) for x in toks]
        flat = lambda l: [r for x in l for r in x]
        rd, wr = [], []
        kind = None
        c = 4
        if op.startswith('v_mfma'):
            kind = 'mfma'
            wr = R[0]; rd = flat(R[1:]); self.srcc = R[3]; self.ab = R[1] + R[2]
            self.passes = 8 if '32x32' in op else (2 if '4x4x4' in op else 4)
            c = 8
        elif op.startswith('buffer_load') or op.startswith('global_load'):
            if 'lds' in mods or '_lds_' in op:
                kind = 'dma'; rd = flat(R) + [('x', 'm0')]
            else:
                kind = 'vld'; wr = R[0]; rd = flat(R[1:])
        elif op.startswith('buffer_store') or op.startswith('global_store'):
            kind = 'vst'; rd = flat(R)
        elif op.startswith('buffer_atomic') or op.startswith('global_atomic'):
            kind = 'vst'; rd = flat(R)
            if 'sc0' in mods:
                kind = 'vld'; wr = R[0]
        elif op.startswith('buffer_inv') or op.startswith('buffer_wbl2'):
            kind = 'vst'
        elif op.startswith('ds_read') or op.startswith('ds_bpermute') or op.startswith('ds_swizzle'):
            kind = 'dsr'; wr = R[0]; rd = flat(R[1:])
        elif op.startswith('ds_write') or op.startswith('ds_add'):
            kind = 'dsw'; rd = flat(R)
        elif op.startswith('s_load') or op.startswith('s_memtime') or op.startswith('s_memrealtime'):
            kind = 'smem'; wr = R[0]; rd = flat(R[1:])
        elif op == 's_waitcnt':
            kind = 'wait'
        elif op == 's_barrier':
            kind = 'barrier'
        elif op == 's_nop':
            kind = 'nop'; c = 4 * (int(toks[0], 0) + 1)
        elif op in ('s_endpgm', 's_sleep', 's_setprio'):
            kind = 'salu'
        elif op.startswith('s_cbranch') or op == 's_branch':
            kind = 'branch'
            if 'vcc' in op: rd = [('x', 'vcc')]
            if 'scc' in op: rd = [('x', 'scc')]
            if 'exec' in op: rd = [('x', 'exec')]
        elif op in ('s_call_b64', 's_swappc_b64'):
            kind = 'branch'; wr = R[0]
        elif op == 's_setpc_b64':
            kind = 'branch'; rd = R[0]
        elif op.startswith('s_cmp') or op.startswith('s_bitcmp'):
            kind = 'salu'; rd = flat(R); wr = [('x', 'scc')]
        elif op.startswith('s_'):
            kind = 'salu'; wr = list(R[0]); rd = flat(R[1:])
            if 'saveexec' in op:
                wr += [('x', 'exec')]; rd += [('x', 'exec')]
            if op.startswith('s_cselect') or op.startswith('s_addc') or op.startswith('s_subb'):
                rd += [('x', 'scc')]
            if not (op.startswith('s_mov') or op.startswith('s_cselect') or op.startswith('s_mul') or op.startswith('s_getreg')):
                wr += [('x', 'scc')]
            if op in ('s_addk_i32', 's_mulk_i32'):
                rd += R[0]
        elif op.startswith('v_'):
            kind = 'valu'
            base = op.replace('_e32', '').replace('_e64', '')
            if base in TRANS:
                kind = 'trans'; c = 8
            if op.startswith('v_permlane') and 'swap' in op:
                wr = flat(R); rd = flat(R)
            elif op.startswith('v_swap'):
                wr = flat(R); rd = flat(R)
            elif op.startswith('v_add_co') or op.startswith('v_sub_co'):
                wr = R[0] + R[1]; rd = flat(R[2:])
            elif op.startswith('v_addc_co'):
                wr = R[0] + R[1]; rd = flat(R[2:])
            else:
                wr = list(R[0]); rd = flat(R[1:])
                if op.startswith('v_fmac') or op.startswith('v_dot2c') or op.startswith('v_writelane'):
                    rd += R[0]
                if op.startswith('v_cmpx'):
                    wr += [('x', 'exec')]
        else:
            raise ValueError('unknown instruction: ' + text)
        self.kind = kind
        self.rd = rd
        self.wr = wr
        self.cost = c if cost is None else cost

    def __repr__(self):
        return self.text


def mk(x):
    return x if isinstance(x, I) else I(x)


def states(ins):
    if ins.kind in ('label', 'dir'):
        return 0
    if ins.kind == 'nop':
        return ins.cost // 4
    return 1


VALU_LIKE = ('valu', 'trans')
MEM_LIKE = ('vld', 'vst', 'dma', 'dsr', 'dsw')


def required(p, c):
    need = 0
    pw = set(p.wr); cr = set(c.rd); cw = set(c.wr)
    pv = {r for r in pw if r[0] in 'va'}
    ps = {r for r in pw if r[0] == 's' or r == ('x', 'vcc')}
    if p.kind in VALU_LIKE:
        if c.kind == 'mfma' and pv & cr:
            need = max(need, 2)
        if c.op.startswith('v_permlane') and pv & cr:
            need = max(need, 2)
        if ('dpp' in c.text or 'row_' in c.text) and pv & cr:
            need = max(need, 2)
        if (c.op.startswith('v_readlane') or c.op.startswith('v_readfirstlane')) and pv & cr:
            need = max(need, 1)
        if p.kind == 'trans' and c.kind == 'valu' and pv & cr:
            need = max(need, 1)
        if ps & cr:
            if c.kind in VALU_LIKE:
                need = max(need, 4 if c.op.startswith('v_readlane') or c.op.startswith('v_writelane') else 2)
            if c.kind in ('vld', 'vst', 'dma'):
                need = max(need, 5)
            if c.kind in ('salu', 'smem'):
                need = max(need, 2)
        if ('x', 'exec') in pw:
            if c.kind == 'mfma' or c.op.startswith('v_permlane') or c.op.startswith('v_read'):
                need = max(need, 4)
    if p.op.startswith('v_dot') and pv & (cr | cw) and c.op != p.op:
        need = max(need, 3)
    if p.kind == 'salu' and ('x', 'm0') in pw and c.kind == 'dma':
        need = max(need, 1)
    if p.kind == 'mfma':
        big = {8: 12, 4: 8, 2: 5}[p.passes]
        mid = {8: 10, 4: 6, 2: 4}[p.passes]
        war = {8: 7, 4: 3, 2: 1}[p.passes]
        if c.kind == 'mfma':
            if pw & set(c.ab):
                need = max(need, big)
            if pw & set(c.srcc):
                if not (list(p.wr) == list(c.srcc) and p.passes == c.passes):
                    need = max(need, mid)
                elif p.passes == 2:
                    need = max(need, 2)
            elif pw & cw:
                need = max(need, mid)
        elif c.kind in VALU_LIKE:
            if pw & (cr | cw):
                need = max(need, big)
            if set(p.srcc) & cw:
                need = max(need, war)
        elif c.kind in MEM_LIKE:
            if pw & (cr | cw):
                need = max(need, big)
            if set(p.srcc) & cw:
                need = max(need, war)
    if p.kind == 'vst' and ('x4' in p.op or 'x3' in p.op):
        data = set(regs_of(p.text.split(None, 1)[1].split(',')[0].strip())) if p.op.startswith('buffer') else set(p.rd)
        if data & cw:
            need = max(need, 2)
    return need


def pad_hazards(seq, history=None, report=None):
    out = list(history or [])
    h = len(out)
    for ins in seq:
        if ins.kind not in ('label', 'dir'):
            dist = 0
            short = 0
            culprit = None
            for k in range(len(out) - 1, -1, -1):
                p = out[k]
                need = required(p, ins) if p.kind not in ('label', 'dir', 'nop', 'wait', 'barrier') else 0
                if need - dist > short:
                    short = need - dist; culprit = p
                dist += states(p)
                if dist >= 13:
                    break
            if short > 0:
                if report is not None:
                    report.append((short, culprit.text, ins.text))
                out.append(I(f's_nop {short - 1}'))
        out.append(ins)
    return out[h:]


def auto_lgkm(seq, pending=None, maxout=15):
    q = [set(x) for x in (pending or [])]
    out = []
    for ins in seq:
        if ins.kind == 'wait':
            m = re.search(r'lgkmcnt\((\d+)\)', ins.text)
            if m:
                n = int(m.group(1))
                q = q[len(q) - n:] if n < len(q) else q
                if n == 0: q = []
            out.append(ins); continue
        if ins.kind == 'smem':
            assert not q, 'smem with LDS ops outstanding: ' + ins.text
            out.append(ins); continue
        touched = set(ins.rd) | set(ins.wr)
        idx = -1
        for k, d in enumerate(q):
            if d & touched:
                idx = k
        if idx >= 0:
            n = len(q) - 1 - idx
            assert n <= 15
            out.append(I(f's_waitcnt lgkmcnt({n})'))
            q = q[idx + 1:]
        if ins.kind in ('dsr', 'dsw'):
            if len(q) >= maxout:
                n = maxout - 1
                out.append(I(f's_waitcnt lgkmcnt({n})'))
                q = q[len(q) - n:]
            q.append(set(ins.wr))
        out.append(ins)
    return out, q


class Filler:
    def __init__(self, ins, rel=0, dl=10**9, stream=None, cost=None, pos=None):
        self.ins = [mk(x) for x in (ins if isinstance(ins, (list, tuple)) else [ins])]
        self.rel = rel; self.dl = dl; self.stream = stream
        self.cost = sum(x.cost for x in self.ins) if cost is None else cost
        self.pos = rel + 0.5 if pos is None else pos


def interleave(mfmas, fillers, budget=24, verbose=False, name='', rate=None, cap=None):
    items = [(g, 0, k, [m]) for k, (g, m) in enumerate(enumerate(mfmas))]
    items += [(f.pos, 1, k, f.ins) for k, f in enumerate(fillers)]
    items.sort(key=lambda x: (x[0], x[1], x[2]))
    ref = [i for it in items for i in it[3]]
    preds = {}
    lastw = {}
    readers = {}
    skip = (('x', 'scc'),)
    for ins in ref:
        p = set()
        for r in ins.rd:
            if r in lastw and r not in skip: p.add(lastw[r])
        for r in ins.wr:
            if r in skip: continue
            if r in lastw: p.add(lastw[r])
            p.update(readers.get(r, ()))
        p.discard(id(ins))
        preds[id(ins)] = p
        for r in ins.rd:
            readers.setdefault(r, []).append(id(ins))
        for r in ins.wr:
            lastw[r] = id(ins); readers[r] = []
    streams = {}
    for k, f in enumerate(fillers):
        streams.setdefault(f.stream if f.stream is not None else ('_', k), []).append(f)
    for s in streams.values():
        for k in range(len(s) - 2, -1, -1):
            s[k].dl = min(s[k].dl, s[k + 1].dl)
        for k in range(1, len(s)):
            s[k].rel = max(s[k].rel, s[k - 1].rel)
    heads = {k: 0 for k in streams}
    out = []
    done = set()
    n = len(mfmas)
    loads = []
    total = sum(f.cost for f in fillers)
    late = []
    cum = 0.0

    def ready(f):
        own = {id(x) for x in f.ins}
        return all(preds[id(x)] <= (done | own) for x in f.ins)

    for g in range(-1, n):
        if g >= 0:
            missing = preds[id(mfmas[g])] - done
            assert not missing, (name, g, mfmas[g].text, [x.text for x in ref if id(x) in missing])
            out.append(mfmas[g]); done.add(id(mfmas[g]))
        used = 0
        while True:
            cand = [(s[heads[k]].dl, k) for k, s in streams.items()
                    if heads[k] < len(s) and s[heads[k]].rel <= g and ready(s[heads[k]])]
            if not cand:
                break
            cand.sort(key=lambda x: x[0])
            placed = False
            for dl, k in cand:
                f = streams[k][heads[k]]
                b = 0 if g < 0 else budget
                if rate is not None:
                    ok = g >= 0 and cum + used + f.cost / 2.0 <= (g + 1) * rate and (cap is None or used == 0 or used + f.cost <= cap)
                else:
                    ok = used + f.cost <= b
                if dl <= g or g == n - 1 or ok:
                    if dl < g: late.append((g, dl, f.ins[0].text))
                    out.extend(f.ins); done.update(id(x) for x in f.ins)
                    used += f.cost; heads[k] += 1; placed = True
                    break
            if not placed:
                break
        loads.append(used)
        if g >= 0:
            cum += used
            if rate is not None:
                cum = max(cum, (g + 1) * rate - 2 * rate)
    for k, s in streams.items():
        assert heads[k] == len(s), f'unplaced fillers in stream {k}: {s[heads[k]].ins}'
    check_dataflow(ref, out)
    if verbose:
        print(f'[{name}] total filler cost {total}, gap loads {loads}')
        for x in late[:10]: print('   late:', x)
    return out


def check_dataflow(ref, sched):
    def producers(seq):
        last = {}
        res = {}
        for ins in seq:
            res[id(ins)] = {r: last.get(r) for r in ins.rd}
            for r in ins.wr:
                last[r] = id(ins)
        return res, last
    ids = {id(x) for x in ref}
    s2 = [x for x in sched if id(x) in ids]
    assert len(s2) == len(ref), (len(s2), len(ref))
    a, la = producers(ref)
    b, lb = producers(s2)
    byid = {id(x): x for x in ref}
    bad = 0
    for k in a:
        if a[k] != b[k]:
            for r in a[k]:
                if a[k][r] != b[k][r] and r != ('x', 'scc') and r != ('x', 'm0'):
                    print('DATAFLOW MISMATCH', byid[k].text, r, '| ref:', byid.get(a[k][r]), '| sched:', byid.get(b[k][r]))
                    bad += 1
    for r in la:
        if la[r] != lb[r] and r not in (('x', 'scc'), ('x', 'm0')):
            print('LAST WRITER MISMATCH', r, byid[la[r]].text, byid[lb[r]].text)
            bad += 1
    assert bad == 0


def v(n, c=1):
    return f'v{n}' if c == 1 else f'v[{n}:{n + c - 1}]'


def a(n, c=1):
    return f'a{n}' if c == 1 else f'a[{n}:{n + c - 1}]'


def s(n, c=1):
    return f's{n}' if c == 1 else f's[{n}:{n + c - 1}]'
```

```python
import sys, math, struct
from asmlib import *

NAME = 'concat_heads__gqa_block_cached__gqa_block_cached__near_ridge'
K1 = NAME + '_kernel'
K2 = 'reduce_partials_kernel'


def f2u(x):
    return struct.unpack('<I', struct.pack('<f', x))[0]


class Cfg:
    trace = False
    dma_cost = 20
    rot = True
    krot = True
    warm_wo = True
    warm_stride = 128
    kv_nt = ' nt'
    w_nt = ''
    x_nt = ''
    wo_nt = ''
    st_mod = ' sc1'
    fl_mod = ' sc1'
    d_mod = ' sc1'
    out_mod = ''
    thr = 8.0
    lthr = 2.0 ** 60
    verbose = False
    kv_from = 28
    kv_sp = 8
    t3_late = True
    win_c = 5
    n2 = 1
    npre = 24
    pre_fast = True
    norm_pk = True
    kv_nc = 9
    put_sp = 4
    put_m = 8
    kv_gap = 0
    put_q = 6
    win = (3, 4, 4)
    fake_kv = False
    mode = 'fast'
    force_fb = False
    q_rate = 8.0
    a_rate = 8.3
    o_rate = 8.0
    npart1 = 30
    oring = 5
    sig = (50, 50, 40)
    pa = (30, 70, 30, 70)
    pb = (10, 50, 68)
    add_at = (101, 111, 122, 138)
    sh_at = 4
    pc = 15
    wpad = 8
    burst = 1
    bsp = 2
    prepoll = False
    spin_max = 20000
    n_stage = 2
    trace_h = False
    win_b = 4
    n1 = 4
    dbgout = False
    q32 = False
    wq_sp = 6
    q32_budget = 24
    xtouch = -1
    warm_it = 31
    vsum = False
    summode = 'm16zz'
    dot_cost = 8
    nosum = False
    noexp = False
    krot_m = 9
    red2 = True
    warm_code = True
    trace_o = False
    red_off = False
    st_off = False
    warm_nt = ''
    warm_at = (0, 1)
    init_u = 4
    ramp = 18
    touch_at = ()
    early = (0, 8)
    x1_at = 16
    u4_at = 24
    touch_nt = ''
    cw_late = False
    cw_piece = 8192
    cw_n = 9
    fake_w = False

    def __init__(self, **kw):
        for k, x in kw.items():
            assert hasattr(self, k), k
            setattr(self, k, x)


TS = 8704
RING = 4 * TS
XB = 4 * RING
OB = 65536
GRP = 9 * 8 * 12288
FL_OFF = 32 * GRP
STAMP_OFF = 256 * 122880
assert FL_OFF + 32 * 32768 <= STAMP_OFF
OOB = 0x7ffffff0

sW = 3
sB, sJ, sBLK = 4, 5, 6
SRD_KV, SRD_WQ, SRD_X, SRD_WO, SRD_WS = 8, 12, 16, 20, 24
SRD_FL, SRD_DBG, SRD_OUT = 60, 64, 68
sRING = 28
sOFF, sOFF2 = 29, 30
sHH = 31
sLOOP = 32
sT0, sT1, sT2 = 33, 34, 35
sTB = 40
sH = 44
sWK, sXK = 48, 49
sOFF0 = 50
sSAFE = 51
sTR = 52
sSPIN = 53
sTM = 54
sXL, sSO = 72, 73
sC = 74
sTHR, sLTHR = 76, 77
sRET = 78
sFS = 90
sC1152 = 91
sWOL, sCG, sPS, sPSB, sKL, sFA, sDA, sT3, sGRP, sOO = 80, 81, 82, 83, 84, 85, 86, 87, 88, 89

S_ = [0, 48]
NM = 96
L_ = 120
P_ = 144
FR = 168
ONES = 184
vT = 188
vKA = 192
vVA = 193
vKV = 197
vLANE = 198
vKW = 199
Q45 = 200
vMX = 232
vKW4 = 233
vTRa, vTRb = 254, 255
QA = 200
vWA = 216
vXA = 244
vWV = 220
vXV = 224
vH = 226
QB = 192
OACC = [0, 24]
OA_ = 48
OPK = 64
RR = 76
vR = 80
LDB = 228
vBA = 234
vOW = 238
vWM = 239
vOV, vOA, vOA2, vPS, vF, vOO, vL0, vPA = 240, 241, 242, 243, 244, 245, 246, 247
vSG = 199
SEL = 248
OBV = 100
HB = 100

MF = 'v_mfma_f32_16x16x32_bf16'
MF32 = 'v_mfma_f32_32x32x16_bf16'


def Sr(buf, c, t):
    return S_[buf] + (c * 6 + t) * 4


def Qfrag(t, ks):
    return a(192 + 16 * t + 4 * ks, 4) if t < 4 else v(Q45 + 16 * (t - 4) + 4 * ks, 4)


def Oacc(dt, t):
    return (dt * 6 + t) * 4


def Bfrag(phi):
    if phi < 32:
        return v(OBV + 4 * phi, 4)
    if phi < 48:
        return a(192 + 4 * (phi - 32), 4)
    return a(4 * (phi - 48), 4)


sPSt = [0, 1, 36, 37, 38, 39, 92, 93]
sDAt = [94, 95, 96, 97, 98, 99, 100, 101]

flat = lambda gs: [x for g in gs for x in g]


class Gen:
    def __init__(self, cfg):
        self.c = cfg
        self.out = []
        self.lg = []
        self.vm = []
        self.spins = []
        self.sites = []
        self.ntr = 0
        self.trreg = (vTRa, vTRb)
        self.trnames = []
        self.plan_wo()

    def emit(self, seq, name=''):
        seq = [mk(x) for x in seq]
        seq, self.lg = auto_lgkm(seq, self.lg)
        seq = self.resolve_vm(seq)
        rep = []
        seq = pad_hazards(seq, history=self.out[-40:], report=rep)
        if rep and self.c.verbose:
            for r in rep:
                if 'm0' not in r[1]:
                    print(f'  nop[{name}]', r)
        self.out.extend(seq)

    def raw(self, seq):
        self.out.extend(mk(x) for x in seq)

    def vm_reset(self):
        self.vm = [x for x in self.vm if x[1]]

    def resolve_vm(self, seq):
        out = []
        for ins in seq:
            if ins.kind == 'wait' and 'vmcnt(?)' in ins.text:
                tags = ins.tag if isinstance(ins.tag, list) else [ins.tag]
                idx = -1
                for k, t in enumerate(self.vm):
                    if t[0] in tags:
                        idx = k
                if idx < 0:
                    continue
                n = min(len(self.vm) - 1 - idx, 63)
                self.vm = self.vm[len(self.vm) - n:] if n else []
                out.append(I(f's_waitcnt vmcnt({n})'))
                continue
            if ins.kind == 'wait':
                m = re.search(r'vmcnt\((\d+)\)', ins.text)
                if m:
                    n = int(m.group(1))
                    if n < len(self.vm):
                        self.vm = self.vm[len(self.vm) - n:] if n else []
            touched = set(ins.rd) | (set(ins.wr) if ins.kind != 'vld' else set())
            for t in self.vm:
                assert not (t[1] & touched), f'register of an outstanding load touched: {ins.text} / {t}'
            if ins.kind in ('dma', 'vld', 'vst'):
                self.vm.append((ins.tag, set(ins.wr) if ins.kind == 'vld' else set()))
            out.append(ins)
        return out

    def wvm(self, tags):
        return I('s_waitcnt vmcnt(?)', tag=tags)

    def dma(self, vreg, srd, soff, imm, mod, tag):
        o = f' offset:{imm}' if imm else ''
        return I(f'buffer_load_dwordx4 {v(vreg)}, {s(srd, 4)}, {soff} offen{o}{mod} lds', tag=tag, cost=self.c.dma_cost)

    def tr_code(self, dyn=False):
        k = self.ntr
        self.ntr += 1
        ra, rb = self.trreg
        e = ['s_waitcnt lgkmcnt(0)', f's_memrealtime {s(sTM, 2)}', f's_memtime {s(sTM + 2, 2)}', 's_waitcnt lgkmcnt(0)']
        if dyn:
            e += [f's_mov_b32 m0, {s(sTR)}', 's_nop 3', f'v_writelane_b32 {v(ra)}, {s(sTM)}, m0',
                  f'v_writelane_b32 {v(rb)}, {s(sTM + 2)}, m0', f's_add_u32 {s(sTR)}, {s(sTR)}, 1']
        else:
            e += [f'v_writelane_b32 {v(ra)}, {s(sTM)}, {k}', f'v_writelane_b32 {v(rb)}, {s(sTM + 2)}, {k}', f's_mov_b32 {s(sTR)}, {k + 1}']
        return e

    def tr(self, dyn=False, name=''):
        if not self.c.trace or ((self.c.trace_o or self.c.trace_h) and name == 'it'):
            return
        self.trnames.append(name)
        sv = [set(x) for x in self.lg]
        self.emit(self.tr_code(dyn))
        self.lg = sv

    def tr_filler(self, fl, g, name=''):
        if self.c.trace:
            self.trnames.append(name)
            fl.append(Filler(self.tr_code(), rel=g, dl=g, stream='tr', cost=0))

    def kv_groups(self, sb, base, tag, win=None):
        m0 = lambda n: f's_add_u32 m0, {s(sb)}, {base + 1088 * n - 1024 * (n & 3)}'
        groups = [[m0(0)]]
        for n in range(8):
            bu = self.c.burst
            g = [f's_waitcnt vmcnt({win[(n // bu) % len(win)] if isinstance(win, tuple) else win})'] if win is not None and n % bu == 0 else []
            g.append(self.dma(vKV, SRD_KV, s(sOFF if n < 4 else sOFF2), 1024 * (n & 3), self.c.kv_nt, tag))
            if n < 7:
                g.append(m0(n + 1))
            groups.append(g)
        groups.append([f's_add_u32 {s(sOFF)}, {s(sOFF)}, 8192', f's_and_b32 {s(sOFF)}, {s(sOFF)}, 0x3ffff',
                       f's_add_u32 {s(sOFF2)}, {s(sOFF)}, 4096'])
        return groups

    def kv_tile(self, slot, tag):
        return self.kv_groups(sRING, slot * TS, tag)

    def kv_stage(self):
        groups = []
        for tl in range(self.c.n_stage):
            for n in range(8):
                g = []
                so = sOFF if n < 4 else sOFF2
                if tl == 4 and n == 0:
                    g += [f's_lshl_b32 {s(SRD_KV + 2)}, {s(sKL)}, 18']
                o = f' offset:{1024 * (n & 3)}' if n & 3 else ''
                g.append(I(f'buffer_load_dwordx4 {a(32 * tl + 4 * n, 4)}, {v(vKV)}, {s(SRD_KV, 4)}, {s(so)} offen{o}{self.c.kv_nt}',
                           tag=('T', tl, n), cost=self.c.dma_cost))
                if n == 7:
                    if tl == 4:
                        g += [f's_mov_b32 {s(SRD_KV + 2)}, 262144', f's_lshl_b32 {s(sT3)}, {s(sKL)}, 13', f's_add_u32 {s(sOFF)}, {s(sOFF)}, {s(sT3)}']
                    else:
                        g += [f's_add_u32 {s(sOFF)}, {s(sOFF)}, 8192']
                    g += [f's_and_b32 {s(sOFF)}, {s(sOFF)}, 0x3ffff', f's_add_u32 {s(sOFF2)}, {s(sOFF)}, 4096']
                groups.append(g)
        return groups

    def kv_put(self, tl, n):
        ad = (vKW, tl * TS) if tl < 4 else (vKW4, 0)
        return [self.wvm(('T', tl, n)), I(f'ds_write_b128 {v(ad[0])}, {a(32 * tl + 4 * n, 4)} offset:{ad[1] + 1088 * n}', cost=12)]

    def code_warm(self):
        L = v(vLANE)
        return ['s_getpc_b64 s[96:97]', f's_lshl_b32 {s(sT1)}, s7, 2', f's_add_u32 {s(sT1)}, {s(sT1)}, {s(sW)}',
                f's_and_b32 {s(sT1)}, {s(sT1)}, 15', f's_min_u32 {s(sT1)}, {s(sT1)}, {self.c.cw_n - 1 if self.c.mode == "fast" else 5}', f's_mul_i32 {s(sT1)}, {s(sT1)}, {self.c.cw_piece}',
                f'v_mul_u32_u24 {v(vH + 2)}, {self.c.cw_piece // 64}, {L}',
                f'v_add_u32 {v(vH + 2)}, {s(sT1)}, {v(vH + 2)}', I(f'global_load_dword v253, {v(vH + 2)}, s[96:97]', tag='CW')]

    def x_touch(self, kc_now):
        L = v(vLANE)
        t0, t1 = v(vH + 2), v(vH + 3)
        d = 128 * (7 - kc_now)
        return [f'v_and_b32 {t0}, 1, {L}', f'v_lshlrev_b32 {t0}, 7, {t0}', f's_add_u32 {s(sT1)}, {s(sXK)}, {d}', f'v_add_u32 {t0}, {s(sT1)}, {t0}',
                f'v_subrev_u32 {t1}, 1152, {t0}', f'v_min_u32 {t0}, {t0}, {t1}',
                f'v_lshrrev_b32 {t1}, 1, {L}', f'v_min_u32 {t1}, 23, {t1}', f's_mul_i32 {s(sT1)}, {s(sW)}, {24 * 1152}',
                f'v_mad_u32_u24 {t0}, {t1}, {s(sC1152)}, {t0}',
                I(f'buffer_load_dword v239, {t0}, {s(SRD_X, 4)}, {s(sT1)} offen{self.c.x_nt}', tag='W', cost=self.c.dma_cost)]

    def kv_touch(self, k):
        e = []
        if k == 0:
            e += [f'v_lshlrev_b32 {v(vH + 4)}, 7, {v(vLANE)}', f's_add_u32 {s(sFA)}, {s(sKL)}, 3', f's_lshl_b32 {s(sFA)}, {s(sFA)}, 13',
                  f's_add_u32 {s(sFA)}, {s(sFA)}, {s(sOFF0)}']
        else:
            e += [f's_add_u32 {s(sFA)}, {s(sFA)}, 8192']
        e += [f's_and_b32 {s(sFA)}, {s(sFA)}, 0x3ffff',
              I(f'buffer_load_dword v238, {v(vH + 4)}, {s(SRD_KV, 4)}, {s(sFA)} offen{self.c.touch_nt}', tag='W', cost=self.c.dma_cost)]
        return e

    def flag_clear(self):
        L = v(vLANE)
        t0, t1 = v(vH), v(vH + 1)
        return [f'v_lshlrev_b32 {t0}, 7, {L}', f'v_mov_b32 {t1}, {OOB}', f's_cmp_eq_u32 {s(sW)}, 0', f's_cselect_b32 {s(sT3)}, 32, 0',
                f'v_cmp_gt_u32 vcc, {s(sT3)}, {L}', f's_lshl_b32 {s(sT3)}, {s(sJ)}, 12',
                's_nop 0', f'v_cndmask_b32 {t0}, {t1}, {t0}, vcc', f'v_mov_b32 {t1}, 0',
                I(f'buffer_store_dword {t1}, {t0}, {s(SRD_FL, 4)}, {s(sT3)} offen{self.c.fl_mod}', tag='CLR')]

    def clear_done(self):
        return [f'v_mov_b32 {v(vT)}, 1', f's_lshl_b32 {s(sT3)}, {s(sGRP)}, 3', f's_add_u32 {s(sT3)}, {s(sT3)}, {s(sJ)}',
                I(f'buffer_store_byte {v(vT)}, {v(vSG)}, {s(SRD_DBG, 4)}, {s(sT3)} offen sc1', tag='SIG', cost=self.c.dma_cost)]

    def setup(self):
        c = self.c
        e = ['s_cmp_ge_u32 s2, 256', 's_cbranch_scc1 L_end']
        if c.trace:
            e += [f's_memrealtime {s(98, 2)}', f's_memtime {s(100, 2)}']
        e += ['s_load_dwordx8 s[36:43], s[0:1], 0', 's_load_dwordx2 s[44:45], s[0:1], 32',
              's_load_dwordx8 s[48:55], s[0:1], 40', 's_load_dwordx2 s[56:57], s[0:1], 72',
              's_load_dwordx2 s[58:59], s[0:1], 96', 's_load_dwordx4 s[92:95], s[0:1], 80']
        e += ['v_lshrrev_b32 v1, 6, v0', f'v_and_b32 {v(vLANE)}, 63, v0', f'v_readfirstlane_b32 {s(sW)}, v1']
        e += ['s_lshr_b32 s7, s2, 3', f's_and_b32 {s(sB)}, s7, 15', f's_lshr_b32 {s(sJ)}, s7, 4', 's_and_b32 s6, s2, 3',
              's_lshl_b32 s6, s6, 1', f's_add_u32 {s(sJ)}, {s(sJ)}, s6', f's_bfe_u32 {s(sBLK)}, s2, 0x10002']
        e += [f's_and_b32 {s(sHH)}, {s(sW)}, 1', f's_lshr_b32 {s(sT0)}, {s(sW)}, 1']
        e += [f's_lshl_b32 {s(sT1)}, {s(sHH)}, 1', f's_add_u32 {s(sT1)}, {s(sT1)}, {s(sT0)}',
              f's_mul_i32 {s(sRING)}, {s(sT1)}, {RING}',
              f's_lshl_b32 {s(sWOL)}, {s(sW)}, 10', f's_add_u32 {s(sXL)}, {s(sWOL)}, {XB}']
        if c.rot:
            e += [f's_and_b32 {s(sOFF)}, s7, 31', f's_lshl_b32 {s(sOFF)}, {s(sOFF)}, 13']
        else:
            e += [f's_mov_b32 {s(sOFF)}, 0']
        e += [f's_add_u32 {s(sOFF2)}, {s(sOFF)}, 4096']
        L = v(vLANE)
        e += [f'v_lshrrev_b32 v1, 4, {L}',
              f'v_and_b32 v2, 15, {L}',
              f'v_lshrrev_b32 v5, 2, v2',
              f'v_and_b32 v6, 3, {L}',
              f'v_lshrrev_b32 v8, 3, {L}', f'v_and_b32 v9, 7, {L}',
              'v_lshrrev_b32 v10, 1, v8']
        e += ['v_xor_b32 v11, v9, v10', f's_lshl_b32 {s(sT1)}, {s(sHH)}, 2', f'v_xor_b32 v11, {s(sT1)}, v11', 'v_lshlrev_b32 v11, 4, v11',
              f's_lshl_b32 {s(sT1)}, {s(sW)}, 3', f'v_add_u32 v12, {s(sT1)}, v8', 'v_mul_u32_u24 v12, 1152, v12',
              f'v_add_u32 {v(vXV)}, v12, v11']
        if c.q32:
            e += ['v_lshlrev_b32 v11, 2, v1', 'v_xor_b32 v11, v2, v11', 'v_lshlrev_b32 v11, 4, v11', 'v_lshl_add_u32 v11, v1, 13, v11']
        else:
            e += ['v_and_b32 v11, 1, v10', 'v_lshlrev_b32 v11, 2, v11', 'v_xor_b32 v11, v9, v11', 'v_lshlrev_b32 v11, 4, v11',
                  'v_lshl_add_u32 v11, v8, 13, v11']
        e += [f's_lshl_b32 {s(sT1)}, {s(sJ)}, 2', f's_add_u32 {s(sT1)}, {s(sT1)}, {s(sW)}', f's_lshl_b32 {s(sT1)}, {s(sT1)}, 8',
              f'v_add_u32 {v(vWV)}, {s(sT1)}, v11']
        for n in range(1, 4):
            e += [f'v_add_u32 {v(vWV + n)}, {(31744 if c.q32 else 64512 - c.wpad) * n}, {v(vWV)}']
        e += ['s_waitcnt lgkmcnt(0)']
        e += [f's_cmp_eq_u32 {s(sBLK)}, 0']
        for d in range(10):
            e += [f's_cselect_b32 s{36 + d}, s{36 + d}, s{48 + d}']
        e += [f's_mul_i32 {s(sT1)}, {s(sB)}, 110592', f's_add_u32 {s(SRD_X)}, s36, {s(sT1)}', f's_addc_u32 {s(SRD_X + 1)}, s37, 0',
              f's_mov_b32 {s(SRD_X + 2)}, 110592', f's_mov_b32 {s(SRD_X + 3)}, 0x20000']
        e += [f's_mov_b32 {s(SRD_WQ)}, s42', f's_mov_b32 {s(SRD_WQ + 1)}, s43', f's_mov_b32 {s(SRD_WQ + 2)}, 4718592',
              f's_mov_b32 {s(SRD_WQ + 3)}, 0x20000']
        if c.krot and c.krot_m > 1:
            m = c.krot_m
            e += [f's_mul_hi_u32 {s(sT1)}, {s(sB)}, {(2 ** 32 + m - 1) // m}', f's_mul_i32 {s(sT1)}, {s(sT1)}, {m}', f's_sub_u32 {s(sT1)}, {s(sB)}, {s(sT1)}',
                  f's_mul_i32 {s(sT1)}, {s(sT1)}, {9 // m}', f's_lshl_b32 {s(sXK)}, {s(sT1)}, 7', f's_lshl_b32 {s(sWK)}, {s(sT1)}, 19']
        else:
            e += [f's_mov_b32 {s(sXK)}, 0', f's_mov_b32 {s(sWK)}, 0']
        self.emit(e, 'setup')
        e = self.late_setup = []
        e += [f's_cmp_eq_u32 {s(sHH)}, 0', 's_cselect_b32 s38, s38, s40', 's_cselect_b32 s39, s39, s41',
              f's_lshl_b32 {s(sT1)}, {s(sB)}, 4', f's_lshl_b32 {s(sT2)}, {s(sJ)}, 1', f's_add_u32 {s(sT1)}, {s(sT1)}, {s(sT2)}',
              f's_add_u32 {s(sT1)}, {s(sT1)}, {s(sT0)}',
              f's_lshl_b32 {s(sT1)}, {s(sT1)}, 18' if not c.fake_kv else f's_lshl_b32 {s(sT1)}, {s(sT0)}, 18',
              f's_add_u32 {s(SRD_KV)}, s38, {s(sT1)}', f's_addc_u32 {s(SRD_KV + 1)}, s39, 0',
              f's_mov_b32 {s(SRD_KV + 2)}, 262144', f's_mov_b32 {s(SRD_KV + 3)}, 0x20000']
        e += ['v_and_b32 v11, 1, v1', 'v_lshlrev_b32 v11, 1, v11', 'v_lshrrev_b32 v12, 1, v1', 'v_lshl_or_b32 v11, v12, 3, v11',
              f's_cmp_eq_u32 {s(sHH)}, 0', 's_cselect_b64 vcc, -1, 0', 's_nop 1', 'v_cndmask_b32 v11, v11, v1, vcc',
              'v_xor_b32 v11, v2, v11', 'v_lshlrev_b32 v11, 4, v11', f'v_lshl_add_u32 {v(vKV)}, v1, 8, v11']
        e += [f's_mul_i32 {s(sT1)}, {s(sJ)}, 589824', f's_add_u32 {s(SRD_WO)}, s44, {s(sT1)}', f's_addc_u32 {s(SRD_WO + 1)}, s45, 0',
              f's_mov_b32 {s(SRD_WO + 2)}, 589824', f's_mov_b32 {s(SRD_WO + 3)}, 0x20000']
        e += [f's_lshl_b32 {s(sGRP)}, {s(sBLK)}, 4', f's_add_u32 {s(sGRP)}, {s(sGRP)}, {s(sB)}', f's_lshl_b32 {s(sT1)}, {s(sGRP)}, 15',
              f's_add_u32 {s(sT1)}, {s(sT1)}, {FL_OFF}', f's_add_u32 {s(SRD_FL)}, s58, {s(sT1)}', f's_addc_u32 {s(SRD_FL + 1)}, s59, 0',
              f's_mov_b32 {s(SRD_FL + 2)}, 32768', f's_mov_b32 {s(SRD_FL + 3)}, 0x20000',
              f's_mov_b32 {s(SRD_DBG)}, s94', f's_mov_b32 {s(SRD_DBG + 1)}, s95', f's_mov_b32 {s(SRD_DBG + 2)}, 256', f's_mov_b32 {s(SRD_DBG + 3)}, 0x20000',
              f's_mov_b32 {s(SRD_OUT)}, s92', f's_mov_b32 {s(SRD_OUT + 1)}, s93', f's_mov_b32 {s(SRD_OUT + 2)}, 3538944', f's_mov_b32 {s(SRD_OUT + 3)}, 0x20000',
              f's_lshl_b32 {s(sPSB)}, {s(sJ)}, 2', f's_add_u32 {s(sPSB)}, {s(sPSB)}, {s(sW)}',
              f's_xor_b32 {s(sKL)}, {s(sHH)}, 1', f'v_lshlrev_b32 {v(vKW)}, 4, {L}', f's_cmp_eq_u32 {s(sHH)}, 0', f's_cselect_b32 {s(sT1)}, {s(sRING)}, {XB}', f'v_add_u32 {v(vKW4)}, {s(sT1)}, {v(vKW)}',
              f'v_add_u32 {v(vKW)}, {s(sRING)}, {v(vKW)}']
        e += [f's_mul_i32 {s(sT1)}, {s(sGRP)}, {GRP}',
              f's_add_u32 {s(SRD_WS)}, s58, {s(sT1)}', f's_addc_u32 {s(SRD_WS + 1)}, s59, 0',
              f's_mov_b32 {s(SRD_WS + 2)}, {GRP}', f's_mov_b32 {s(SRD_WS + 3)}, 0x20000']
        cs = f2u(math.log2(math.e) / math.sqrt(128.0))
        e += [f's_mov_b32 {s(sC)}, {cs:#x}', f's_mov_b32 {s(sC + 1)}, {cs:#x}', f's_mov_b32 {s(sTHR)}, {f2u(c.thr):#x}',
              f's_mov_b32 {s(sLTHR)}, {f2u(c.lthr if not c.force_fb else 1.0):#x}', f's_mov_b32 {s(sSAFE)}, 0', f's_mov_b32 {s(sC1152)}, 1152',
              f's_mov_b32 {s(sOFF0)}, {s(sOFF)}']
        if c.q32:
            e += [f'v_lshrrev_b32 v3, 5, {L}', 'v_and_b32 v4, 1, v1', 'v_lshlrev_b32 v11, 11, v3', 'v_lshl_add_u32 v11, v5, 8, v11',
                  'v_lshl_add_u32 v11, v4, 4, v11', 'v_and_b32 v12, 1, v6', 'v_lshl_add_u32 v11, v12, 5, v11', 'v_lshrrev_b32 v12, 1, v6',
                  'v_lshl_add_u32 v11, v12, 3, v11', f'v_add_u32 v11, {s(sRING)}, v11']
            for ct in range(4):
                e += [f'v_xor_b32 v12, {ct}, v5', f'v_lshl_add_u32 {v(vWA + ct)}, v12, 6, v11']
            e += [f'v_and_b32 v14, 31, {L}', 'v_lshrrev_b32 v11, 3, v14', 'v_and_b32 v12, 7, v14',
                  'v_lshlrev_b32 v13, 10, v11', 'v_lshl_add_u32 v13, v12, 7, v13', f'v_add_u32 v13, {XB}, v13',
                  'v_lshrrev_b32 v12, 1, v12', 'v_and_b32 v11, 1, v11', 'v_lshlrev_b32 v11, 2, v11', 'v_xor_b32 v12, v12, v11', 'v_xor_b32 v12, v12, v3']
            for k in range(4):
                e += [f'v_xor_b32 v11, {2 * k}, v12', f'v_lshl_add_u32 {v(vXA + k)}, v11, 4, v13']
        else:
            e += [f'v_mul_u32_u24 v11, {1024 + c.wpad}, v1', 'v_lshl_add_u32 v11, v5, 7, v11', 'v_lshl_add_u32 v11, v6, 4, v11',
                  f'v_add_u32 v11, {s(sRING)}, v11', 'v_lshrrev_b32 v12, 1, v5', f'v_lshl_add_u32 {v(vWA)}, v12, 6, v11',
                  'v_xor_b32 v12, 1, v12', f'v_lshl_add_u32 {v(vWA + 1)}, v12, 6, v11']
            e += ['v_lshrrev_b32 v11, 3, v2', 'v_and_b32 v12, 7, v2', 'v_lshlrev_b32 v13, 10, v11', 'v_lshl_add_u32 v13, v12, 7, v13',
                  f'v_add_u32 v13, {XB}, v13', 'v_lshrrev_b32 v12, 1, v12', 'v_lshlrev_b32 v11, 2, v11', 'v_xor_b32 v12, v12, v11',
                  'v_xor_b32 v12, v12, v1', f'v_lshl_add_u32 {v(vXA)}, v12, 4, v13', 'v_xor_b32 v12, 4, v12',
                  f'v_lshl_add_u32 {v(vXA + 1)}, v12, 4, v13']
        e += [f's_mul_i32 {s(sT1)}, {s(sT0)}, {RING}', 'v_mul_u32_u24 v11, 1088, v5', 'v_lshl_add_u32 v11, v6, 8, v11',
              'v_xor_b32 v12, v1, v6', 'v_lshl_add_u32 v11, v12, 4, v11', f'v_add_u32 {v(vKA)}, {s(sT1)}, v11']
        e += [f's_add_u32 {s(sT1)}, {s(sT1)}, {2 * RING}',
              'v_mul_u32_u24 v11, 1088, v1', 'v_lshl_add_u32 v11, v5, 8, v11', 'v_lshl_add_u32 v11, v6, 3, v11',
              f'v_add_u32 v11, {s(sT1)}, v11',
              'v_and_b32 v12, 1, v5', 'v_lshrrev_b32 v13, 1, v5', 'v_lshl_or_b32 v12, v13, 2, v12']
        for k, d in enumerate((0, 1, 4, 5)):
            e += [f'v_xor_b32 v13, {d}, v12', f'v_lshl_add_u32 {v(vVA + k)}, v13, 5, v11']
        for k in range(4):
            e += [f's_sub_u32 {s(sT1)}, {k}, {s(sHH)}', f's_and_b32 {s(sT1)}, {s(sT1)}, 3', f's_mul_i32 {s(sT1)}, {s(sT1)}, {TS}',
                  f's_add_u32 {s(sTB + k)}, {s(sRING)}, {s(sT1)}']
        e += [f's_mul_i32 {s(sT2)}, {s(sPSB)}, 3072', f's_add_u32 {s(sPSt[0])}, {s(sT2)}, {8 * 98304}', f's_mul_i32 {s(sT3)}, {s(sJ)}, 98304',
              f's_mul_i32 {s(sSO)}, {s(sW)}, 3072', f's_add_u32 {s(sT3)}, {s(sT3)}, {s(sSO)}']
        for p in range(1, 8):
            e += [f's_add_u32 {s(sT1)}, {s(sJ)}, {p}', f's_and_b32 {s(sT1)}, {s(sT1)}, 7', f's_mul_i32 {s(sT1)}, {s(sT1)}, 98304',
                  f's_add_u32 {s(sPSt[p])}, {s(sT1)}, {s(sT2)}',
                  f's_sub_u32 {s(sT1)}, {s(sJ)}, {p}', f's_and_b32 {s(sT1)}, {s(sT1)}, 7', f's_mul_i32 {s(sT1)}, {s(sT1)}, 12288',
                  f's_add_u32 {s(sDAt[p])}, {s(sT1)}, {s(sT3)}']
        e += [f's_lshl_b32 {s(sT1)}, {s(sJ)}, 10', f's_add_u32 {s(sT1)}, {s(sT1)}, {s(sSO)}', f's_add_u32 {s(sT1)}, {s(sT1)}, {8 * 98304}',
              f's_cmp_lt_u32 {s(sJ)}, 3', f's_cselect_b32 {s(sDAt[0])}, {s(sT1)}, {GRP}',
              f's_lshl_b32 {s(sFS)}, {s(sPSB)}, 10', f's_mul_i32 {s(sOO)}, {s(sB)}, {96 * 2304}', f's_mul_i32 {s(sT3)}, {s(sBLK)}, 1152',
              f's_add_u32 {s(sOO)}, {s(sOO)}, {s(sT3)}', f's_lshl_b32 {s(sT3)}, {s(sW)}, 5', f's_add_u32 {s(sOO)}, {s(sOO)}, {s(sT3)}']
        for k in range(4):
            e += [f's_add_u32 {s(sT1)}, {s(sB)}, {k}' if c.krot else f's_mov_b32 {s(sT1)}, {k}', f's_and_b32 {s(sT1)}, {s(sT1)}, 3',
                  f's_mul_i32 {s(sH + k)}, {s(sT1)}, 147456']

    def wq_unit(self, u):
        hf = u & 1
        pre = [f's_add_u32 m0, {s(sRING)}, {(4096 + 4 * self.c.wpad) * ((u + 4) & 7)}', f's_add_u32 {s(sSO)}, {s(sWK)}, {(131072 if self.c.q32 else 128) * hf}']
        g = [pre + [self.dma(vWV, SRD_WQ, s(sSO), 0, self.c.w_nt, ('U', u))]]
        for n in range(1, 4):
            g.append([self.dma(vWV + n, SRD_WQ, s(sSO), (1024 + self.c.wpad) * n, self.c.w_nt, ('U', u))])
        if hf and not self.c.fake_w:
            g.append([f's_add_u32 {s(sWK)}, {s(sWK)}, 262144', f's_cmp_eq_u32 {s(sWK)}, 4718592', f's_cselect_b32 {s(sWK)}, 0, {s(sWK)}'])
        return g

    def x_chunk(self, kc):
        g = []
        for m in range(3):
            g.append([f's_add_u32 m0, {s(sXL)}, {12288 * (kc & 1) + 4096 * m}', f's_add_u32 {s(sSO)}, {s(sXK)}, {36864 * m}',
                      self.dma(vXV, SRD_X, s(sSO), 0, self.c.x_nt, ('X', kc))])
        if not self.c.fake_w:
          g.append([f's_add_u32 {s(sXK)}, {s(sXK)}, 128', f's_cmp_eq_u32 {s(sXK)}, 1152', f's_cselect_b32 {s(sXK)}, 0, {s(sXK)}'])
        return g

    def a_reads(self, u, k):
        r = QA + 4 * k
        if self.c.q32:
            return [f'ds_read_b64_tr_b16 {v(r + 2 * e_, 2)}, {v(vWA + k)} offset:{4096 * ((u + 4) & 7) + 1024 * e_}' for e_ in range(2)]
        return [f'ds_read_b64_tr_b16 {v(r + 2 * e_, 2)}, {v(vWA + (k >> 1))} offset:{(4096 + 4 * self.c.wpad) * ((u + 4) & 7) + 512 * e_ + 8 * (k & 1)}' for e_ in range(2)]

    def b_read(self, st, t):
        if self.c.q32:
            return f'ds_read_b128 {a(QB + 12 * (st & 1) + 4 * t, 4)}, {v(vXA + (st & 3))} offset:{12288 * ((st >> 2) & 1) + 4096 * t}'
        kc = st >> 1
        return f'ds_read_b128 {a(QB + 24 * (st & 1) + 4 * t, 4)}, {v(vXA + (st & 1))} offset:{12288 * (kc & 1) + 2048 * t}'

    def qproj(self):
        c = self.c
        if c.trace:
            self.emit([f'v_writelane_b32 {v(vTRa)}, s98, 0', f'v_writelane_b32 {v(vTRb)}, s100, 0'])
            self.ntr = 1
            self.trnames.append('start')
        if c.trace_h:
            self.tr(name='sld')
        e = flat(self.x_chunk(0)) + flat(self.wq_unit(0)) + flat(self.wq_unit(1))
        if c.init_u >= 3:
            e += flat(self.x_chunk(1))
        for u in range(2, min(c.init_u, 4)):
            e += flat(self.wq_unit(u))
        if c.warm_code and not c.cw_late:
            e += self.code_warm()
        e += self.late_setup
        for u in range(4, c.init_u):
            e += flat(self.wq_unit(u))
        if c.trace_h:
            self.emit(e); e = []
            self.tr(name='iss')
            self.emit([self.wvm([('X', 0), ('U', 0)])])
            self.tr(name='land')
        e += [self.wvm([('X', 0), ('U', 0)]), 's_barrier']
        for t in range(3 if c.q32 else 6):
            e.append(self.b_read(0, t))
        for k in range(3):
            e += self.a_reads(0, k)
        self.emit(e, 'qpre')
        self.tr(name='first')
        mf, fl, dm = [], [], []
        NU = 36
        kvg = self.kv_stage()
        D = 12 if c.q32 else 24
        sc = lambda x: x * D // 24
        if c.init_u < 3:
            for k, g in enumerate(self.x_chunk(1)):
                dm.append(Filler(g, rel=sc(c.x1_at) + 2 * k, dl=sc(c.x1_at) + 1 + 2 * k, pos=sc(c.x1_at) + 0.7))
        for q in range(c.init_u, NU):
            if q < 4:
                x = sc(c.early[q - 2])
            else:
                x = max(D * (q - 8) + sc(18), sc(c.ramp) * (q - max(c.init_u, 4)) + (sc(c.u4_at) if c.init_u < 4 else 0))
            steady = x == D * (q - 8) + sc(18)
            nxt_x = ((q - 7) & 3) == (3 if c.q32 else 2)
            sp = sc(c.wq_sp) if steady and not nxt_x else sc(2)
            if steady and nxt_x and c.q32:
                sp = 1.5
            for k, g in enumerate(self.wq_unit(q)):
                dm.append(Filler(g, rel=x + int(sp * k), dl=x + 1 + int(sp * k), pos=x + 0.5))
        if c.warm_code and c.cw_late:
            dm.append(Filler(self.code_warm(), rel=D + sc(8), dl=D + sc(10)))
        dm.append(Filler(self.flag_clear(), rel=D * 2 + sc(6), dl=D * 2 + sc(16)))
        for u in range(NU):
            st, hf = u >> 1, u & 1
            g0 = D * u
            if c.q32:
                for ct in range(4):
                    for t in range(3):
                        acc = v((ct * 3 + t) * 16, 16)
                        mf.append(I(f'{MF32} {acc}, {v(QA + 4 * ct, 4)}, {a(QB + 12 * (u & 1) + 4 * t, 4)}, {acc if u else 0}'))
            else:
                for k in range(4):
                    ct = 4 * hf + k
                    for t in range(6):
                        acc = v((ct * 6 + t) * 4, 4)
                        mf.append(I(f'{MF} {acc}, {v(QA + 4 * k, 4)}, {a(QB + 24 * (st & 1) + 4 * t, 4)}, {acc if st else 0}'))
            fl.append(Filler(self.a_reads(u, 3), rel=g0, dl=g0 + sc(4), stream='a', pos=g0 + sc(18) - 0.5))
            if u + 1 < NU:
                fl.append(Filler(self.wvm(('U', u + 1)), rel=g0 + sc(5), dl=g0 + sc(8), stream='a'))
                for k in range(3):
                    fl.append(Filler(self.a_reads(u + 1, k), rel=g0 + sc(6 * k + 6), dl=g0 + sc(6 * k + 10), stream='a', pos=g0 + D + sc(6 * k) - 0.5))
            xu = (u & 3 == 3) if c.q32 else (u & 3 == 2)
            if xu and u + 1 < NU:
                kc = u >> 2
                if kc < 8:
                    fl.append(Filler([self.wvm(('X', kc + 1)), 's_barrier'], rel=g0 + sc(6) - (1 if c.q32 else 0), dl=g0 + sc(8) - (1 if c.q32 else 0), stream='b'))
                if kc + 2 <= 8:
                    for k, g in enumerate(self.x_chunk(kc + 2)):
                        dm.append(Filler(g, rel=g0 + sc(9 + 3 * k), dl=g0 + sc(10 + 3 * k), pos=g0 + sc(9) + 0.5))
                if kc == c.xtouch:
                    dm.append(Filler(self.x_touch(kc + 3), rel=g0 + sc(17), dl=g0 + sc(18), pos=g0 + sc(17) + 0.2))
            if u in c.touch_at:
                dm.append(Filler(self.kv_touch(c.touch_at.index(u)), rel=g0 + sc(16), dl=g0 + sc(18), pos=g0 + sc(16) + 0.6))
            if c.warm_wo and not c.warm_it and u in c.warm_at:
                dm.append(Filler(self.warm_wo(c.warm_at.index(u)), rel=g0 + sc(16), dl=g0 + sc(18), pos=g0 + sc(16) + 0.5))
            if c.q32 and u + 1 < NU:
                for t in range(3):
                    fl.append(Filler(self.b_read(u + 1, t), rel=g0 + 4 + t, dl=g0 + 7 + t, stream='b', pos=g0 + 11.5))
            if not c.q32 and hf == 0 and st + 1 < 18:
                for t in range(6):
                    fl.append(Filler(self.b_read(st + 1, t), rel=g0 + 9 + 5 * t, dl=g0 + 30 + t, stream='b', pos=g0 + 47.5))
            if u % 4 == 3 and u < 35:
                self.tr_filler(fl, g0 + D - 1, 'q')
        i = 0
        while kvg:
            x = int(D * c.kv_from + sc(4) + c.kv_sp * i * D / 24)
            if x > D * NU - 2:
                break
            fl.append(Filler(kvg.pop(0), rel=x, dl=x + 1, stream='kv')); i += 1
        assert i >= 16
        dm.sort(key=lambda f: f.pos)
        for f in dm:
            f.stream = 'dma'
        fl += dm
        puts = [(tl, n) for tl in range(c.n_stage) for n in range(8)]
        for k in range(c.put_q):
            tl, n = puts.pop(0)
            sl = (tl * TS + 1088 * n + 1023) // (4096 + 4 * c.wpad)
            x = min(max(D * (28 + min(sl, 7)) + sc(18), D * NU - sc(4) * (c.put_q - k)), D * NU - 1)
            fl.append(Filler(self.kv_put(tl, n), rel=x, dl=x + sc(2), stream='put'))
        if c.q32:
            seq = interleave(mf, fl, 24, c.verbose, 'qproj', rate=float(c.q32_budget), cap=40)
        else:
            seq = interleave(mf, fl, 8, c.verbose, 'qproj', rate=c.q_rate, cap=24)
        self.emit(seq, 'qproj')
        self.tr(name='q')
        e = []
        for t3 in ((2, 0, 1) if c.q32 else ()):
            for ct in range(4):
                b = (ct * 3 + t3) * 16
                e += [f'v_pk_mul_f32 {v(b + i, 2)}, {v(b + i, 2)}, {s(sC, 2)}' for i in range(0, 16, 2)]
                dst = [Q45 + 16 * (i >> 2) + 4 * ct + (i & 3) if t3 == 2 else b + i for i in range(8)]
                e += [f'v_cvt_pk_bf16_f32 {v(dst[i])}, {v(b + 2 * i)}, {v(b + 2 * i + 1)}' for i in range(8)]
                e += [f'v_permlane16_swap_b32 {v(dst[j])}, {v(dst[4 + j])}' for j in range(4)]
                if t3 < 2:
                    e += [f'v_accvgpr_write_b32 {a(192 + 16 * (2 * t3 + (i >> 2)) + 4 * ct + (i & 3))}, {v(dst[i])}' for i in range(8)]
        for t in (() if c.q32 else (4, 5, 0, 1, 2, 3)):
            for ct in range(8):
                b = (ct * 6 + t) * 4
                e += [f'v_pk_mul_f32 {v(b, 2)}, {v(b, 2)}, {s(sC, 2)}', f'v_pk_mul_f32 {v(b + 2, 2)}, {v(b + 2, 2)}, {s(sC, 2)}']
            for ct in range(8):
                b = (ct * 6 + t) * 4
                ks, uu = ct >> 1, ct & 1
                for h2 in range(2):
                    d = Q45 + 16 * (t - 4) + 4 * ks + 2 * uu + h2 if t >= 4 else b + h2
                    e.append(f'v_cvt_pk_bf16_f32 {v(d)}, {v(b + 2 * h2)}, {v(b + 2 * h2 + 1)}')
            if t < 4:
                for ct in range(8):
                    b = (ct * 6 + t) * 4
                    ks, uu = ct >> 1, ct & 1
                    for h2 in range(2):
                        e.append(f'v_accvgpr_write_b32 {a(192 + 16 * t + 4 * ks + 2 * uu + h2)}, {v(b + h2)}')
        nput = 16 - c.put_q
        for k in range(nput):
            tl, n = puts.pop(0)
            x = (k + 1) * (len(e) // (nput + 1))
            e[x:x] = self.kv_put(tl, n)
        self.puts = puts
        gs = [kvg.pop(0) for _ in range(min(c.kv_nc, len(kvg)))]
        self.kvg = kvg
        if c.n_stage == 2:
            t3 = [[f's_lshl_b32 {s(SRD_KV + 2)}, {s(sKL)}, 18']] + self.kv_tile(3, None)[:-1]
            t3 += [[f's_mov_b32 {s(SRD_KV + 2)}, 262144', f's_lshl_b32 {s(sT3)}, {s(sKL)}, 13', f's_add_u32 {s(sOFF)}, {s(sOFF)}, {s(sT3)}',
                    f's_and_b32 {s(sOFF)}, {s(sOFF)}, 0x3ffff', f's_add_u32 {s(sOFF2)}, {s(sOFF)}, 4096']]
            gs = self.kv_tile(2, None)
            if c.t3_late:
                self.kvg = t3
            else:
                gs += t3
        step = len(e) // (len(gs) + 1)
        for k in range(len(gs) - 1, -1, -1):
            e[k * step + 4:k * step + 4] = gs[k]
        e += ['s_waitcnt lgkmcnt(0)', 's_barrier']
        self.emit(e, 'qconv')
        self.tr(name='conv')

    def kv_reload(self):
        e = flat(self.kv_tile(0, None)) + flat(self.kv_tile(1, None)) + flat(self.kv_tile(2, None))
        e += [f's_cmp_lg_u32 {s(sHH)}, 0', 's_cbranch_scc1 L_skip_t3'] + flat(self.kv_tile(3, None)) + ['L_skip_t3:', 's_waitcnt vmcnt(0)', 's_barrier']
        self.emit(e)

    def frag_reads(self, phi, kslot, vslot):
        r = FR + 4 * (phi & 3)
        if phi < 8:
            c_, ks = phi >> 2, phi & 3
            return [f'ds_read_b128 {v(r, 4)}, {v(vKA)} offset:{kslot * TS + 4352 * c_ + 64 * ks}']
        dt = phi - 8
        reg = vVA + (dt & 1) + 2 * (dt >> 2)
        return [f'ds_read_b64_tr_b16 {v(r + 2 * e_, 2)}, {v(reg)} offset:{vslot * TS + 4352 * e_ + 64 * ((dt >> 1) & 1)}' for e_ in range(2)]

    def qk_mfmas(self, buf, czero=False):
        mf = []
        for c_ in range(2):
            for ks in range(4):
                for t in range(6):
                    d = v(Sr(buf, c_, t), 4)
                    cc = d if ks else ('0' if czero else v(NM + 4 * t, 4))
                    mf.append(I(f'{MF} {d}, {v(FR + 4 * ks, 4)}, {Qfrag(t, ks)}, {cc}'))
        return mf

    def pv_mfmas(self, czero=False):
        mf, first = [], []
        for dt in range(8):
            first.append(len(mf))
            for t in range(6):
                o = a(Oacc(dt, t), 4)
                mf.append(I(f'{MF} {o}, {v(FR + 4 * (dt & 3), 4)}, {v(P_ + 4 * t, 4)}, {0 if czero else o}'))
            if dt < 6 and not self.c.vsum and not self.c.nosum:
                l = v(L_ + 4 * dt, 4)
                if self.c.summode.startswith('m16'):
                    mf.append(I(f'{MF} {l}, {v(ONES, 4)}, {v(P_ + 4 * dt, 4)}, {0 if czero else l}'))
                elif self.c.summode == 'm4':
                    mf.insert(len(mf) - 3, I(f'v_mfma_f32_4x4x4_16b_bf16 {l}, {v(ONES, 2)}, {v(P_ + 4 * dt, 2)}, {0 if czero else l}'))
                    mf.append(I(f'v_mfma_f32_4x4x4_16b_bf16 {l}, {v(ONES, 2)}, {v(P_ + 4 * dt + 2, 2)}, {l}'))
        return mf, first

    def exp_order(self):
        return [(c_, t, i) for c_ in range(2) for t in range(6) for i in range(4)]

    def xlane_max(self, m, m2):
        return [f'v_mov_b32 {m2}, {m}', f'v_permlane32_swap_b32 {m}, {m2}', f'v_max_f32 {m}, {m}, {m2}',
                f'v_mov_b32 {m2}, {m}', f'v_permlane16_swap_b32 {m}, {m2}', f'v_max_f32 {m}, {m}, {m2}']

    def attn_pre(self, safe, lab):
        c = self.c
        self.emit(self.frag_reads(0, 0, 0) + self.frag_reads(1, 0, 0))
        fl = []
        for phi in range(2, 8):
            fl.append(Filler(self.frag_reads(phi, 0, 0), rel=max(6 * phi - 18, -1), dl=6 * phi - 10, stream='fr', pos=6 * phi - 0.5))
        for phi in range(2):
            fl.append(Filler(self.frag_reads(phi, 1, 0), rel=6 * (phi + 8) - 14, dl=6 * (phi + 8) - 10, stream='fr', pos=60))
        mask = {'m16': 0, 'dot': 0, 'm16z': 3, 'm4': 3, 'm16zz': 15}[c.summode]
        fl.append(Filler([f'v_and_b32 {v(ONES)}, {mask}, {v(vLANE)}', f'v_cmp_eq_u32 vcc, 0, {v(ONES)}', f'v_mov_b32 {v(ONES + 1)}, 0x3f803f80', 's_nop 0',
                          f'v_cndmask_b32 {v(ONES)}, 0, {v(ONES + 1)}, vcc'], rel=0, dl=4, stream='i'))
        for i in range(1, 4):
            fl.append(Filler(f'v_mov_b32 {v(ONES + i)}, {v(ONES)}', rel=0, dl=20, stream='i'))
        if c.summode == 'dot':
            for t in range(6):
                fl.append(Filler(f'v_mov_b32 {v(L_ + 4 * t)}, 0', rel=0, dl=20, stream='i'))
        for k, g in enumerate(self.kvg):
            x = 1 + k * (21 if c.pre_fast and not safe else 44) // max(len(self.kvg), 1)
            fl.append(Filler(g, rel=x, dl=x + 1, stream='kv'))
        self.kvg = []
        if not safe and c.pre_fast:
            mf = self.qk_mfmas(0, True)
            for t in range(6):
                d = v(Sr(0, 1, t), 4)
                mf[24 + t] = I(f'{MF} {d}, {v(FR, 4)}, {Qfrag(t, 0)}, {v(NM + 4 * t, 4)}')
            rows = []
            for t in range(6):
                m, m2 = v(S_[1] + 2 * t), v(S_[1] + 2 * t + 1)
                r = [Sr(0, 0, t) + i for i in range(4)]
                rows.append([f'v_max3_f32 {m}, {v(r[0])}, {v(r[1])}, {v(r[2])}', f'v_max_f32 {m}, {m}, {v(r[3])}'] + self.xlane_max(m, m2) +
                            [f'v_sub_f32 {v(NM + 4 * t + i)}, 0, {m}' for i in range(4)])
            for z in zip(*rows):
                for x in z:
                    fl.append(Filler(x, rel=23, dl=23, stream='m', pos=23.5))
            for t in range(6):
                for i in range(4):
                    x = v(Sr(0, 0, t) + i)
                    fl.append(Filler(f'v_add_f32 {x}, {x}, {v(NM + 4 * t)}', rel=24 + 4 * t, dl=24 + 4 * t + i // 4, stream='e', pos=23.6))
                for i in range(4):
                    x = v(Sr(0, 0, t) + i)
                    fl.append(Filler(f'v_exp_f32 {x}, {x}', rel=24 + 4 * t, dl=min(25 + 4 * t + (3 * i) // 4, 47), stream='e', pos=23.6))
            self.emit(interleave(mf, fl, 8, c.verbose, 'qk0', rate=12.0), 'qk0')
            e = [f'v_exp_f32 {v(Sr(0, c_, t) + i)}, {v(Sr(0, c_, t) + i)}' for (c_, t, i) in self.exp_order()[24:c.npart1]]
            self.emit(e + ['s_waitcnt lgkmcnt(0)', 's_barrier'], 'max0')
            return
        self.emit(interleave(self.qk_mfmas(0, True), fl, 8, c.verbose, 'qk0', rate=8.0), 'qk0')
        e = []
        for t0 in (0, 3):
            ms = [(v(vMX + 2 * k), v(vMX + 2 * k + 1)) for k in range(3)]
            rows = []
            for k in range(3):
                t = t0 + k
                m, m2 = ms[k]
                r = [Sr(0, 0, t) + i for i in range(4)] + [Sr(0, 1, t) + i for i in range(4)]
                row = [f'v_max3_f32 {m}, {v(r[0])}, {v(r[1])}, {v(r[2])}', f'v_max3_f32 {m}, {m}, {v(r[3])}, {v(r[4])}',
                       f'v_max3_f32 {m}, {m}, {v(r[5])}, {v(r[6])}', f'v_max_f32 {m}, {m}, {v(r[7])}'] + self.xlane_max(m, m2)
                row += [f'v_sub_f32 {v(NM + 4 * t + i)}, 0, {m}' for i in range(4)]
                row += [f'v_sub_f32 {v(x)}, {v(x)}, {m}' for x in r]
                rows.append(row)
            for z in zip(*rows):
                e += list(z)
        if not safe:
            for (c_, t, i) in self.exp_order()[:c.npart1]:
                x = v(Sr(0, c_, t) + i)
                e.append(f'v_exp_f32 {x}, {x}')
        nput = min(c.put_m, len(self.puts))
        for k in range(nput):
            x = (k + 1) * (len(e) // (nput + 1))
            e[x:x] = self.kv_put(*self.puts.pop(0))
        e += ['s_waitcnt lgkmcnt(0)', 's_barrier']
        self.emit(e, 'max0')

    def cvt_fillers(self, cur, base, todo, rel0):
        fl = []
        todo = list(todo)
        for t in range(6):
            for c_ in range(2):
                for h2 in range(2):
                    b = Sr(cur, c_, t) + 2 * h2
                    for i in (2 * h2, 2 * h2 + 1):
                        if (c_, t, i) in todo:
                            fl.append(Filler(f'v_exp_f32 {v(Sr(cur, c_, t) + i)}, {v(Sr(cur, c_, t) + i)}', rel=rel0, dl=base + t - 4, stream='e', pos=-3))
                    fl.append(Filler(f'v_cvt_pk_bf16_f32 {v(P_ + 4 * t + 2 * c_ + h2)}, {v(b)}, {v(b + 1)}', rel=rel0, dl=base + t - 3,
                                     stream='c', pos=-2.5))
                    if self.c.summode == 'dot':
                        fl.append(Filler(I(f'v_dot2c_f32_bf16 {v(L_ + 4 * t)}, {v(ONES)}, {v(P_ + 4 * t + 2 * c_ + h2)}', cost=self.c.dot_cost), rel=max(rel0, base - 2), dl=base + 36,
                                         stream='s', pos=-2.4))
                    if self.c.vsum:
                        for i in range(2):
                            fl.append(Filler(f'v_add_f32 {v(L_ + 4 * t)}, {v(L_ + 4 * t)}, {v(b + i)}', rel=rel0, dl=base + 40, stream='s', pos=-2.4))
        return fl

    def attn_iter(self, j, safe, dma='kv', xwait='s_waitcnt vmcnt(8)', nextk=True, site=None, extra=(), win=None):
        c = self.c
        cur, new = j & 1, (j + 1) & 1
        pv, first = self.pv_mfmas(j == 0)
        mf = self.qk_mfmas(new) + pv
        n = len(mf)
        need = [6 * phi for phi in range(8)] + [48 + x for x in first] + [n, n + 6]
        fl = []
        for phi in range(2, 18):
            if phi >= 16:
                if not nextk: continue
                r = self.frag_reads(phi - 16, (j + 2) & 3, 0)
            else:
                r = self.frag_reads(phi, (j + 1) & 3, j & 3)
            fl.append(Filler(r, rel=max(need[phi] - 15, 0), dl=need[phi] - 10, stream='fr', pos=need[phi] - 0.5))
        order = self.exp_order()
        if safe:
            fl += self.cvt_fillers(cur, 48, order, 0)
            regs = [S_[new] + i for i in range(48)]
            m = v(vMX)
            fl.append(Filler(f'v_max3_f32 {m}, {v(regs[0])}, {v(regs[1])}, {v(regs[2])}', rel=52, dl=n - 4, stream='m', pos=200))
            for k in range(3, 48, 2):
                r2 = regs[min(k + 1, 47)]
                fl.append(Filler(f'v_max3_f32 {m}, {m}, {v(regs[k])}, {v(r2)}', rel=52, dl=n - 4, stream='m', pos=200))
            fl.append(Filler(f'v_cmp_lt_f32 vcc, {s(sTHR)}, {m}', rel=52, dl=n - 3, stream='m', pos=200))
        else:
            fl += self.cvt_fillers(cur, 48, order[c.npart1:], 0)
            for (c_, t, i) in order[:c.npart1]:
                x = v(Sr(new, c_, t) + i)
                fl.append(Filler(f'v_exp_f32 {x}, {x}', rel=(46 if c_ == 0 else 52), dl=n - 1, stream='e2', pos=200))
        if dma == 'kv':
            gs = self.kv_groups(sTB + (j & 3), 0, None, c.win if win is None else win)
            if j == 4:
                gs[0] = [f's_cmp_eq_u32 {s(sLOOP)}, {s(sKL)}', f's_cselect_b32 {s(SRD_KV + 2)}, 0, {s(SRD_KV + 2)}'] + gs[0]
            for k, g in enumerate(gs):
                n = k - 1
                x = 2 + 11 * (n - n % c.burst) + c.bsp * (n % c.burst) if 0 <= n < 8 else (0 if n < 0 else 88)
                fl.append(Filler(g, rel=x, dl=min(x + (6 if c.burst == 1 else 1), 90) if k else 1, stream='dma'))
        for f in extra:
            if f.stream == 'fr0':
                f.rel = f.dl = need[16] - 17
        fl += list(extra)
        if c.noexp:
            fl = [f for f in fl if not f.ins[0].op.startswith('v_exp')]
        xg = need[15]
        fl.append(Filler([xwait, 's_barrier'] if isinstance(xwait, str) else xwait + ['s_barrier'], rel=xg, dl=xg, stream='x'))
        seq = interleave(mf, fl, 8, c.verbose, f'iter{j}', rate=((c.a_rate if j else 12.0) if not safe else 10.0), cap=(20 if j else 28))
        if safe:
            seq.append(I(f's_cbranch_vccnz L_rare_{site}'))
            seq.append(I(f'L_back_{site}:'))
            self.sites.append((site, new))
        return seq

    def warm_wo(self, part, tmp=vH + 4):
        L = v(vLANE)
        per = -(-72 // len(self.c.warm_at))
        assert per <= 64
        t0, t1 = v(tmp), v(tmp + 1)
        e = []
        if self.c.warm_it:
            t0 = v(vWM)
        elif part == 0:
            e += [f'v_lshlrev_b32 {t0}, 7, {L}', f'v_mov_b32 {t1}, {OOB}', f'v_cmp_gt_u32 vcc, {per}, {L}', 's_nop 1', f'v_cndmask_b32 {t0}, {t1}, {t0}, vcc']
        e += [f's_lshl_b32 {s(sT1)}, {s(sB)}, 2', f's_add_u32 {s(sT1)}, {s(sT1)}, {s(sW)}', f's_mul_i32 {s(sT1)}, {s(sT1)}, 9216',
              f's_add_u32 {s(sT1)}, {s(sT1)}, {128 * per * part}',
              I(f'buffer_load_dword {v(vF) if self.c.warm_it else v(253)}, {t0}, {s(SRD_WO, 4)}, {s(sT1)} offen{self.c.warm_nt}', tag='W', cost=self.c.dma_cost)]
        return e

    def attention(self, safe):
        c = self.c
        lab = 's' if safe else 'f'
        self.emit([f's_mov_b32 {s(sLOOP)}, 7'])
        self.attn_pre(safe, lab)
        self.tr(name='pre')
        assert c.n_stage == 2
        tc = [Filler(g, rel=4 + 3 * k, dl=(8 + 3 * k if safe else 90), stream='tc') for k, g in enumerate(self.tail_consts())]
        if self.puts:
            ex = [Filler(self.kv_put(tl, n), rel=int(k * c.put_sp), dl=int(k * c.put_sp) + 1, stream='put', pos=-1) for k, (tl, n) in enumerate(self.puts)]
            ex.append(Filler(['s_waitcnt lgkmcnt(0)', 's_barrier'], rel=84, dl=84, stream='put'))
            self.puts = []
            self.emit(self.attn_iter(0, safe, dma=None, site='0', extra=ex), 'iter0')
        else:
            self.emit(self.attn_iter(0, safe, site='0', extra=[Filler(['s_waitcnt vmcnt(8)', 's_barrier'], rel=84, dl=84, stream='fr0')] + tc), 'iter0')
        self.vm_reset()
        self.tr(name='it')
        entry = [set(x) for x in self.lg]
        phases = [(c.win, 0)] if (safe or c.win_b is None) else [(c.win, 7 - c.n1), (c.win_b, 0)]
        if len(phases) == 2 and c.win_c is not None:
            phases = [(c.win, 7 - c.n1), (c.win_b, 7 - c.n1 - c.n2), (c.win_c, 0)]
        for ph, (win, stop) in enumerate(phases):
            self.raw(['.p2align 3', f'L_loop{lab}{ph}:'])
            start = len(self.out)
            for j in range(1, 5):
                self.emit(self.attn_iter(j, safe, site=f'{j}', win=win), f'iter{j}')
                self.tr(dyn=True, name='it')
            assert [set(x) for x in self.lg] == entry, (self.lg, entry)
            self.emit([f's_sub_u32 {s(sLOOP)}, {s(sLOOP)}, 1', f's_cmp_lg_u32 {s(sLOOP)}, {stop}', f's_cbranch_scc1 L_loop{lab}{ph}'])
            rep = []
            pad_hazards(self.out[start:start + 40], history=self.out[-40:], report=rep)
            assert not rep, rep
            if ph and c.trace and not c.trace_o and not c.trace_h:
                self.ntr -= 4
                self.trnames = self.trnames[:-4]
        self.vm_reset()
        if c.trace and not c.trace_o and not c.trace_h:
            self.ntr += 24
            self.trnames += ['it'] * 24
        ex = [Filler(self.clear_done(), rel=2, dl=6)] + [Filler(self.flag_touch(), rel=12, dl=16)]
        wm = [Filler(self.warm_wo(k, vMX + 6), rel=8 + 4 * k, dl=12 + 4 * k, stream='wm') for k in range(len(c.warm_at))] if c.warm_wo and c.warm_it else []
        n29 = len(wm) if c.warm_it == 29 else 0
        n30 = len(wm) if c.warm_it in (29, 30) else 0
        self.emit(self.attn_iter(29, safe, dma=None, xwait=f's_waitcnt vmcnt({10 + n29})', site='29', extra=ex + (wm if n29 else [])), 'iter29')
        self.tr(name='it')
        self.emit(self.attn_iter(30, safe, dma=None, xwait=f's_waitcnt vmcnt({2 + n30})', nextk=False, site='30',
                                 extra=(wm if c.warm_it == 30 else [])), 'iter30')
        self.last_extra = wm if c.warm_it == 31 else []
        self.tr(name='it')
        self.vm_reset()
        self.attn_last(safe)

    def tail_consts(self):
        L = v(vLANE)
        t0, t1, t2 = v(vT), v(vT + 1), v(vT + 2)
        per = -(-72 // len(self.c.warm_at))
        g = [[f'v_lshrrev_b32 {t0}, 3, {L}', f'v_and_b32 {t1}, 7, {L}', f'v_and_b32 {t2}, 6, {t0}', f'v_xor_b32 {t1}, {t1}, {t2}'],
             [f's_lshl_b32 {s(sT1)}, {s(sW)}, 3', f'v_add_u32 {t0}, {s(sT1)}, {t0}', f'v_mul_u32_u24 {t0}, 1152, {t0}', f'v_lshl_add_u32 {v(vOV)}, {t1}, 4, {t0}'],
             [f'v_bfe_u32 {t0}, {L}, 2, 3', f'v_lshrrev_b32 {t1}, 1, {t0}', f'v_xor_b32 {t1}, {s(sW)}, {t1}', f'v_lshlrev_b32 {t1}, 5, {t1}'],
             [f'v_lshl_add_u32 {t0}, {t0}, 7, {t1}', f'v_and_b32 {t1}, 3, {L}', f'v_lshl_add_u32 {t0}, {t1}, 3, {t0}'],
             [f'v_lshrrev_b32 {t1}, 5, {L}', f'v_lshl_add_u32 {v(vOA)}, {t1}, 10, {t0}', f'v_add_u32 {v(vOA2)}, 65536, {v(vOA)}', f'v_lshlrev_b32 {v(vPS)}, 4, {L}']]
        for k in range(4):
            g.append([f's_mul_hi_u32 {s(sT1)}, {s(sH + k)}, {(2 ** 32 + 5) // 6}', f's_add_u32 {s(sT1)}, {s(sT1)}, {OB}', f'v_add_u32 {v(vBA + k)}, {s(sT1)}, {v(vPS)}'])
        g += [[f's_mul_i32 {s(sT1)}, {s(sW)}, 24576', f's_add_u32 {s(sT1)}, {s(sT1)}, {OB}', f'v_add_u32 {v(vOW)}, {s(sT1)}, {v(vPS)}'],
              [f'v_mov_b32 {t2}, {OOB}', f'v_cmp_eq_u32 vcc, 0, {L}', f's_cmp_eq_u32 {s(sW)}, 0', f's_cselect_b32 {s(sT1)}, 1, 0', f'v_cndmask_b32 {v(vL0)}, {t2}, {L}, vcc'],
              [f'v_cmp_gt_u32 vcc, {s(sT1)}, {L}', f'v_lshlrev_b32 {t0}, 7, {L}', 's_nop 0', f'v_cndmask_b32 {v(vSG)}, {t2}, {L}, vcc'],
              [f'v_cmp_gt_u32 vcc, {per}, {L}', 's_nop 1', f'v_cndmask_b32 {v(vWM)}, {t2}, {t0}, vcc'],
              [f'v_subrev_u32 {t0}, 7, {L}', f'v_sub_u32 {t1}, {s(sJ)}, {t0}', f'v_and_b32 {t1}, 7, {t1}', f'v_lshlrev_b32 {t1}, 12, {t1}'],
              [f'v_lshl_add_u32 {t1}, {t0}, 7, {t1}', f'v_cmp_gt_u32 vcc, 15, {L}', f'v_lshlrev_b32 {t0}, 12, {L}', 's_nop 0', f'v_cndmask_b32 {t1}, 0, {t1}, vcc'],
              [f'v_cmp_gt_u32 vcc, 8, {L}', 's_nop 1', f'v_cndmask_b32 {v(vPA)}, {t1}, {t0}, vcc'],
              [f'v_and_b32 {t0}, 15, {L}', f'v_mul_u32_u24 {t0}, 2304, {t0}', f'v_lshrrev_b32 {t1}, 4, {L}', f'v_lshl_add_u32 {v(vOO)}, {t1}, 3, {t0}'],
              [f'v_bfe_u32 {t0}, {L}, 2, 2', f'v_cmp_eq_u32 vcc, {t0}, {t1}', f'v_and_b32 {t0}, 1, {L}', f'v_lshlrev_b32 {t0}, 4, {t0}',
               f'v_lshlrev_b32_e64 {t0}, {t0}, 1', f'v_mul_u32_u24 {t0}, 0x3f80, {t0}', f'v_cndmask_b32 {t0}, 0, {t0}, vcc'],
              [f'v_and_b32 {t1}, 2, {L}', f'v_cmp_eq_u32 vcc, 0, {t1}', f'v_mov_b32 {v(SEL)}, 0', f'v_mov_b32 {v(SEL + 1)}, 0',
               f'v_cndmask_b32 {v(SEL + 2)}, 0, {t0}, vcc', f'v_sub_u32 {v(SEL + 3)}, {t0}, {v(SEL + 2)}'],
              [f'v_mov_b32 {v(SEL + 4)}, 0', f'v_mov_b32 {v(SEL + 5)}, 0', f's_lshl_b32 {s(sFA)}, {s(sW)}, 10']]
        return g

    def flag_touch(self):
        return [I(f'buffer_load_dword {v(vF)}, {v(vPA)}, {s(SRD_FL, 4)}, {s(sFA)} offen{self.c.fl_mod}', cost=self.c.dma_cost)]

    def check(self, reg, want, reload, name, allanes=False, two=False):
        k = len(self.spins)
        if two:
            test = [f'v_and_b32 {v(reg)}, {v(reg)}, {v(reg + 1)}', 's_nop 0', f'v_readfirstlane_b32 {s(sT3)}, {v(reg)}', 's_nop 1', f's_cmp_eq_u32 {s(sT3)}, {want}']
        elif allanes:
            test = [f'v_cmp_eq_u32 vcc, 0, {v(reg)}', 's_nop 1', f's_and_b32 {s(sT3)}, vcc_lo, {want:#x}', f's_cmp_eq_u32 {s(sT3)}, 0']
        else:
            test = [f'v_readfirstlane_b32 {s(sT3)}, {v(reg)}', 's_nop 1', f's_cmp_lg_u32 {s(sT3)}, 0']
        self.spins.append((k, reload, test))
        return test + [f's_cbranch_scc0 L_spin{k}', f'L_spun{k}:']

    def spin_blocks(self):
        for k, reload, test in self.spins:
            self.raw([f'L_spin{k}:', f's_mov_b32 {s(sSPIN)}, {self.c.spin_max}', f'L_spinl{k}:', 's_sleep 1', reload, 's_waitcnt vmcnt(0)'] + test +
                     ([f's_cbranch_scc0 L_spinc{k}', f's_sub_u32 {s(sSPIN)}, {self.c.spin_max + 1}, {s(sSPIN)}', f'v_writelane_b32 v254, {s(sSPIN)}, {58 + k}',
                       f's_branch L_spun{k}', f'L_spinc{k}:'] if self.c.trace else []) +
                     [f's_cbranch_scc1 L_spun{k}', f's_sub_u32 {s(sSPIN)}, {s(sSPIN)}, 1', f's_cmp_lg_u32 {s(sSPIN)}, 0', f's_cbranch_scc1 L_spinl{k}',
                      f's_branch L_spun{k}'])

    def plan_wo(self):
        self.slot_of = {0: 0, 1: 1, 2: 2}
        self.issue_at = {}
        free = [3]
        nxt = 3
        for sg in range(1, 36):
            if sg >= 2:
                free.append(self.slot_of[sg - 2])
            if sg == 5:
                free += list(range(4, self.c.oring))
            todo = []
            while nxt < 36 and free and len(todo) < 2:
                self.slot_of[nxt] = free.pop(0)
                todo.append(nxt); nxt += 1
            assert nxt >= min(sg + 2, 36)
            self.issue_at[sg] = todo

    def wo_slot(self, n):
        return 16384 * self.slot_of[n >> 2] + 4096 * (n & 3)

    def wo_unit(self, n):
        p, kk = n >> 4, n & 15
        g = [f's_add_u32 m0, {s(sWOL)}, {self.wo_slot(n)}']
        if kk == 0:
            if p == 0:
                g += [f's_mov_b32 {s(sCG)}, 1024']
            else:
                g += [f's_add_u32 {s(sCG)}, {s(sJ)}, {p}', f's_and_b32 {s(sCG)}, {s(sCG)}, 7', f's_lshl_b32 {s(sCG)}, {s(sCG)}, 7']
        elif kk & 3 == 0:
            g += [f's_add_u32 {s(sCG)}, {s(sCG)}, 36864']
        g += [f's_add_u32 {s(sSO)}, {s(sH + (kk & 3))}, {s(sCG)}']
        g.append(self.dma(vOV, SRD_WO, s(sSO), 0, self.c.wo_nt, ('O', n)))
        return g

    def attn_last(self, safe):
        c = self.c
        cur = 1
        e = self.frag_reads(8, 0, 3) + self.frag_reads(9, 0, 3)
        self.emit(e, 'last0')
        pv, first = self.pv_mfmas()
        fl = []
        for phi in range(10, 16):
            nd = first[phi - 8]
            fl.append(Filler(self.frag_reads(phi, 0, 3), rel=max(nd - 18, -1), dl=nd - 10, stream='fr', pos=nd - 0.5))
        order = self.exp_order()
        fl += self.cvt_fillers(cur, 0, order if safe else order[c.npart1:], -1)
        for n in range(12):
            fl.append(Filler(self.wo_unit(n), rel=3 * n, dl=3 * n + 8, stream='dma'))
        for k, f in enumerate(self.last_extra):
            f.rel = f.dl = 38 + 3 * k
            f.pos = f.rel + 0.5
            fl.append(f)
        fl.append(Filler('s_barrier', rel=first[7], dl=first[7], stream='x'))
        if c.summode in ('m4', 'dot', 'm16zz'):
            rows = []
            for t in range(6):
                m, m2 = v(L_ + 4 * t), v(L_ + 4 * t + 1)
                rows.append([x.replace('v_max_f32', 'v_add_f32') for x in self.xlane_max(m, m2)])
            for z in zip(*rows):
                for x in z:
                    fl.append(Filler(x, rel=first[6] + 2, dl=60, stream='r', pos=99))
        for t in range(6):
            fl.append(Filler(f'v_rcp_f32 {v(vR + 2 * t)}, {v(L_ + 4 * t)}', rel=first[min(t + 2, 7)] + 3, dl=60, stream='r', pos=100))
        self.emit(interleave(pv, fl, 8, c.verbose, 'last', rate=9.0), 'last')

    def ofrag(self, k, tb, pk=True):
        u, t = divmod(k, 6)
        e = [[f'v_accvgpr_read_b32 {v(tb + i)}, {a(Oacc(2 * u + (i >> 2), t) + (i & 3))}'] for i in range(8)]
        if pk:
            e += [[f'v_pk_mul_f32 {v(tb + i, 2)}, {v(tb + i, 2)}, {v(vR + 2 * t, 2)} op_sel_hi:[1,0]'] for i in range(0, 8, 2)]
        else:
            e += [[f'v_mul_f32 {v(tb + i)}, {v(tb + i)}, {v(vR + 2 * t)}'] for i in range(8)]
        e += [[f'v_cvt_pk_bf16_f32 {v(tb + i)}, {v(tb + 2 * i)}, {v(tb + 2 * i + 1)}'] for i in range(4)]
        e.append([I(f'ds_write_b128 {v(vOW)}, {v(tb, 4)} offset:{1024 * k}', cost=12)])
        return e

    def onorm(self):
        return flat(flat(self.ofrag(k, 8 * (k % 6), self.c.norm_pk) for k in range(self.c.npre)))

    def oproj(self):
        c = self.c
        NS = 144

        def aread(n):
            r = OA_ + 4 * (n & 3)
            ad = self.wo_slot(n)
            return [f'ds_read_b64_tr_b16 {v(r + 2 * e_, 2)}, {v((vOA, vOA2)[ad >> 16])} offset:{(ad & 65535) + 2048 * e_}' for e_ in range(2)]

        def bread(kk, t):
            phi = 6 * kk + t
            return f'ds_read_b128 {Bfrag(phi)}, {v(vBA + (kk & 3))} offset:{1024 * (6 * (kk >> 2) + t)}'

        def prod(p, sd):
            return [f's_sub_u32 {s(sd)}, {s(sJ)}, {p}', f's_and_b32 {s(sd)}, {s(sd)}, 7', f's_lshl_b32 {s(sd)}, {s(sd)}, 2',
                    f's_add_u32 {s(sd)}, {s(sd)}, {s(sW)}']

        def fload(p):
            return f'buffer_load_dword {v(vF)}, {v(SEL)}, {s(SRD_FL, 4)}, {s(sFA)} offen offset:{128 * p}{c.fl_mod}'

        def poll(p):
            return prod(p, sFA) + [f's_lshl_b32 {s(sFA)}, {s(sFA)}, 10', I(fload(p), tag=('F', p), cost=c.dma_cost)]

        def dloads(p, dst):
            g = []
            for z in range(3):
                o = f' offset:{1024 * z}' if z else ''
                g.append([I(f'buffer_load_dwordx4 {dst(z)}, {v(vPS)}, {s(SRD_WS, 4)}, {s(sDAt[p])} offen{o}{c.d_mod}', tag=('D', p), cost=c.dma_cost)])
            return g

        def adds(src, first=False):
            r = []
            for z in range(3):
                for h in range(2):
                    acc = v(RR + 8 * z + 4 * h, 4)
                    r.append(I(f'{MF} {acc}, {v(SEL + 2 - 2 * h, 4)}, {src(z)}, {0 if first else acc}'))
            return r

        def signal(p):
            return [self.wvm(('P', p)),
                    I(f'buffer_store_dword {v(vOA2)}, {v(vL0)}, {s(SRD_FL, 4)}, {s(sFS)} offen offset:{128 * p}{c.fl_mod}', tag=('S', p), cost=c.dma_cost)]

        ldb = lambda z: v(LDB + 4 * z, 4)
        bufs = [ldb, lambda z: v(4 * z, 4), lambda z: v(12 + 4 * z, 4)] + [(lambda k: (lambda z: v(HB + 8 + 12 * k + 4 * z, 4)))(k) for k in range(4)]
        e = [bread(0, t) for t in range(6)] + aread(0) + aread(1) + [bread(1, t) for t in range(3)] + self.fb_check + [bread(1, 3)]
        self.emit(e, 'opre')
        mf, fl = [], []
        G = []
        A = {}
        for n in range(NS):
            p, kk = n >> 4, n & 15
            for k, nn in enumerate(c.add_at):
                if n == nn:
                    A[k] = len(mf)
                    for q in ((0,), (0,), (0,), (1, 2))[k]:
                        mf += adds(bufs[q], k == 0)
            G.append(len(mf))
            for t in range(6):
                acc = v((RR if p == 8 else OACC[p & 1]) + 4 * t, 4)
                mf.append(I(f'{MF} {acc}, {v(OA_ + 4 * (n & 3), 4)}, {Bfrag(6 * kk + t)}, {acc if kk or p == 8 else 0}'))
        G.append(len(mf))
        at = lambda p, x: min(G[16 * p + x // 6] + x % 6, len(mf) - 1) if 16 * p + x // 6 < NS else len(mf) - 1
        for t in range(4, 6):
            fl.append(Filler(bread(1, t), rel=0, dl=1, stream='b', pos=5.5))
        for n in range(NS):
            p, kk = n >> 4, n & 15
            g0 = G[n]
            m = n + 2
            if m < NS:
                if m % 4 == 0:
                    sg = m // 4
                    pub = sg < 4 and 6 * (sg + 1) > c.npre
                    fl.append(Filler([self.wvm(('O', m + 3))] + (['s_waitcnt lgkmcnt(0)'] if pub else []) + ['s_barrier'], rel=g0 - 1, dl=g0,
                                     stream='a', pos=g0 - 0.4))
                    if sg < 4:
                        ks = [k for k in range(6 * sg, 6 * sg + 6) if k >= c.npre]
                        items = flat(self.ofrag(k, 24 + 8 * (k % 3), False) for k in ks)
                        lo, hi = max(g0 - 24, 0), g0 - 2
                        for q, it in enumerate(items):
                            x = lo + q * (hi - lo) // len(items)
                            fl.append(Filler(it, rel=x, dl=x, stream='cv', pos=lo - 0.6 + 1e-4 * q))
                    units = [4 * q + k for q in self.issue_at[sg] for k in range(4)]
                    for k, uu in enumerate(units):
                        sp = 20 // max(len(units), 1)
                        fl.append(Filler(self.wo_unit(uu), rel=g0 + 2 + sp * k, dl=g0 + 4 + sp * k, stream='dma'))
                fl.append(Filler(aread(m), rel=g0, dl=g0 + 2, stream='a', pos=G[m] - 0.5))
                if m < 16:
                    for t in range(6):
                        fl.append(Filler(bread(m, t), rel=g0 + 1 + t, dl=g0 + 5 + t, stream='b', pos=G[m] - 0.5))
            if kk == 15 or (c.trace_o and kk & 3 == 3):
                self.tr_filler(fl, g0 + 5, 'o')
            if kk == 15 and p < 8:
                for z in range(3):
                    for i in range(4):
                        b = OACC[p & 1] + 8 * z + 2 * i
                        fl.append(Filler(f'v_cvt_pk_bf16_f32 {v(OPK + 4 * z + i)}, {v(b)}, {v(b + 1)}', rel=g0 + 10 + 3 * z, dl=g0 + 11 + 3 * z + (i >> 1),
                                         stream='st', pos=g0 + 5.5))
                    o = f' offset:{1024 * z}' if z else ''
                    fl.append(Filler(I(f'buffer_store_dwordx4 {v(OPK + 4 * z, 4)}, {v(vPS)}, {s(SRD_WS, 4)}, {s(sPSt[p])} offen{o}{c.st_mod}',
                                       tag=('P', p), cost=c.dma_cost), rel=g0 + 10 + 3 * z, dl=g0 + 13 + 3 * z, stream='st', pos=g0 + 5.5))
                sgm = c.sig[0] if p <= 4 else (c.sig[1] if p <= 6 else c.sig[2])
                x = min(g0 + 6 + sgm, len(mf) - 1)
                fl.append(Filler(signal(p), rel=x, dl=x, stream='sig'))
        red = []
        dbgl = f'buffer_load_dwordx2 {v(LDB, 2)}, {v(SEL)}, {s(SRD_DBG, 4)}, {s(sDA)} offen sc1'
        x = at(3, 62)
        red.append(Filler([f's_lshl_b32 {s(sDA)}, {s(sGRP)}, 3', I(dbgl, tag='DBG', cost=c.dma_cost)], rel=x, dl=x + 2))
        x = at(4, 56)
        red.append(Filler([self.wvm('DBG')] + self.check(LDB, 0x01010101, dbgl, 'dbg', two=True), rel=x, dl=x + 2))
        pal = f'buffer_load_dword {v(vF)}, {v(vPA)}, {s(SRD_FL, 4)}, {s(sFA)} offen{c.fl_mod}'

        def place(gs, x, sp=2):
            for k, g in enumerate(gs):
                red.append(Filler(g, rel=x + sp * k, dl=x + 2 + sp * k, pos=x + 0.5 + sp * k))
            return x + sp * len(gs)
        if c.prepoll:
            x = at(3, 64)
            red.append(Filler([f's_lshl_b32 {s(sFA)}, {s(sW)}, 10', I(pal, tag='F_', cost=c.dma_cost)], rel=x, dl=x + 2))
        x = at(5, c.pa[0])
        red.append(Filler([f's_lshl_b32 {s(sFA)}, {s(sW)}, 10', I(pal, tag='FA', cost=c.dma_cost)], rel=x, dl=x + 2))
        x = at(5, c.pa[1])
        red.append(Filler([self.wvm('FA')] + self.check(vF, 0x700, pal, 'fa', allanes=True), rel=x, dl=x + 2))
        place(dloads(1, ldb), x + 1)
        for k in range(3):
            red.append(Filler(self.wvm(('D', k + 1)), rel=A[k] - 1, dl=A[k] - 1))
            if k < 2:
                place(dloads(k + 2, ldb), A[k] + 6)
        x = at(7, c.pa[2])
        red.append(Filler([I(pal, tag='FB', cost=c.dma_cost)], rel=x, dl=x + 2))
        x = at(7, c.pa[3])
        red.append(Filler([self.wvm('FB')] + self.check(vF, 0x18ff, pal, 'fb', allanes=True), rel=x, dl=x + 2))
        place(dloads(4, bufs[1]) + dloads(5, bufs[2]), x + 1)
        x = at(8, c.pb[0])
        red.append(Filler(poll(6), rel=x, dl=x + 2))
        red.append(Filler(self.wvm(('D', 5)), rel=A[3] - 1, dl=A[3] - 1))
        x = G[128 + c.sh_at]
        k = 0
        g = []
        for i in range(8):
            g.append(I(f'buffer_load_dwordx4 {v(HB + 4 * i, 4)}, {v(vPS)}, {s(SRD_WS, 4)}, {s(sDAt[0])} offen{c.d_mod}', tag=('H', i), cost=c.dma_cost))
            if i < 7:
                g.append(f's_add_u32 {s(sDAt[0])}, {s(sDAt[0])}, 12288')
            red.append(Filler(g, rel=x + 2 * k, dl=x + 3 + 2 * k, pos=x + 0.5 + 2 * k)); k += 1
            g = []
        x = max(at(8, c.pb[1]), x + 2 * k)
        red.append(Filler([self.wvm(('F', 6))] + self.check(vF, 1, fload(6), 'f6'), rel=x, dl=x + 2))
        x = place(dloads(6, bufs[5]), x + 1)
        x = max(at(8, c.pb[2]), x)
        red.append(Filler(poll(7), rel=x, dl=x + 2))
        if c.pc is not None:
            x = len(mf) - 1 - c.pc
            red.append(Filler([self.wvm(('F', 7))] + self.check(vF, 1, fload(7), 'f7'), rel=x, dl=x))
            place(dloads(7, bufs[6]), x + 1, 1)
        if c.red_off:
            red = []
            self.spins = []
            fl = [f for f in fl if f.stream != 'sig']
        if c.st_off:
            fl = [f for f in fl if not (f.stream == 'st' and f.ins[0].kind == 'vst')]
        for f in fl:
            if f.stream == 'red':
                red.append(f)
        fl = [f for f in fl if f.stream != 'red']
        red.sort(key=lambda f: f.rel)
        for f in red:
            f.stream = 'red'
        fl += red
        for f in fl:
            f.rel = min(f.rel, len(mf) - 1)
        self.emit(interleave(mf, fl, 8, c.verbose, 'oproj', rate=c.o_rate, cap=24), 'oproj')
        if c.red_off:
            return
        e = []
        if c.pc is None:
            e += [self.wvm(('F', 7))] + self.check(vF, 1, fload(7), 'f7') + flat(dloads(7, bufs[6]))
        for i in range(8):
            e.append(self.wvm(('H', i)))
            for h in range(2):
                acc = v(4 * h, 4)
                e.append(f'{MF} {acc}, {v(SEL + 2 - 2 * h, 4)}, {v(HB + 4 * i, 4)}, {acc if i else 0}')
        e += [self.wvm(('D', 6))] + adds(bufs[5])
        e += [f's_mul_i32 {s(sPS)}, {s(sJ)}, {32 * 2304}', f's_add_u32 {s(sPS)}, {s(sPS)}, {s(sOO)}', f's_add_u32 {s(sPS)}, {s(sPS)}, 1024',
              f's_add_u32 {s(sT3)}, {s(sPS)}, {16 * 2304}']
        e += [f'v_cvt_pk_bf16_f32 {v(8 + i)}, {v(2 * i)}, {v(2 * i + 1)}' for i in range(4)]
        e += [f's_cmp_lt_u32 {s(sJ)}, 3', 's_cbranch_scc0 L_nosh']
        self.emit(e, 'otail')
        self.raw([f'buffer_store_dwordx2 {v(8, 2)}, {v(vOO)}, {s(SRD_OUT, 4)}, {s(sPS)} offen{c.out_mod}',
                  f'buffer_store_dwordx2 {v(10, 2)}, {v(vOO)}, {s(SRD_OUT, 4)}, {s(sT3)} offen{c.out_mod}', 'L_nosh:'])
        e = []
        e += [f's_lshl_b32 {s(sPS)}, {s(sJ)}, 7', f's_add_u32 {s(sPS)}, {s(sPS)}, {s(sOO)}']
        e += [self.wvm(('D', 7))] + adds(bufs[6])
        for t in range(6):
            e += [f'v_cvt_pk_bf16_f32 {v(12 + 2 * t + i)}, {v(RR + 4 * t + 2 * i)}, {v(RR + 4 * t + 2 * i + 1)}' for i in range(2)]
            e.append(I(f'buffer_store_dwordx2 {v(12 + 2 * t, 2)}, {v(vOO)}, {s(SRD_OUT, 4)}, {s(sPS)} offen{c.out_mod}', tag='Z'))
            if t < 5:
                e.append(f's_add_u32 {s(sPS)}, {s(sPS)}, {16 * 2304}')
        self.emit(e, 'otail')

    def rare_paths(self):
        for site, new in self.sites:
            self.raw([f'L_rare_{site}:', f's_call_b64 {s(sRET, 2)}, L_rescale_{new}', f's_branch L_back_{site}'])
        if not self.sites:
            return
        for new in range(2):
            e = []
            self.raw([f'L_rescale_{new}:', 's_nop 15'])
            m, m2, f = v(vT), v(vT + 1), v(vT + 2)
            for t in range(6):
                r = [Sr(new, 0, t) + i for i in range(4)] + [Sr(new, 1, t) + i for i in range(4)]
                e += [f'v_max3_f32 {m}, {v(r[0])}, {v(r[1])}, {v(r[2])}', f'v_max3_f32 {m}, {m}, {v(r[3])}, {v(r[4])}',
                      f'v_max3_f32 {m}, {m}, {v(r[5])}, {v(r[6])}', f'v_max3_f32 {m}, {m}, {v(r[7])}, 0'] + self.xlane_max(m, m2)
                e += [f'v_exp_f32 {f}, -{m}']
                e += [f'v_sub_f32 {v(NM + 4 * t + i)}, {v(NM + 4 * t + i)}, {m}' for i in range(4)]
                e += [f'v_sub_f32 {v(x)}, {v(x)}, {m}' for x in r]
                e += [f'v_mul_f32 {v(L_ + 4 * t + i)}, {v(L_ + 4 * t + i)}, {f}' for i in range(4)]
                for dt in range(8):
                    for i in range(0, 4, 2):
                        o = Oacc(dt, t) + i
                        e += [f'v_accvgpr_read_b32 {v(vMX)}, {a(o)}', f'v_accvgpr_read_b32 {v(vMX + 1)}, {a(o + 1)}',
                              f'v_mul_f32 {v(vMX)}, {v(vMX)}, {f}', f'v_mul_f32 {v(vMX + 1)}, {v(vMX + 1)}, {f}',
                              f'v_accvgpr_write_b32 {a(o)}, {v(vMX)}', f'v_accvgpr_write_b32 {a(o + 1)}, {v(vMX + 1)}']
            e += ['s_nop 1', f's_setpc_b64 {s(sRET, 2)}']
            self.out += pad_hazards([mk(x) for x in e])

    def finish(self):
        self.raw(['L_end:', 's_endpgm'])

    def trace_move(self):
        if self.c.trace:
            self.tr(name='norm')
            self.emit([f'v_writelane_b32 v254, 0, {58 + k}' for k in range(6)])

    def trace_out(self):
        if not self.c.trace:
            return
        self.tr(name='tail')
        self.emit(['s_waitcnt vmcnt(0)'])
        self.tr(name='drain')
        e = [f's_add_u32 s12, s58, {STAMP_OFF + 0x80000}', 's_addc_u32 s13, s59, 0', 's_mov_b32 s14, 0x80000', 's_mov_b32 s15, 0x20000',
             f's_lshl_b32 {s(sT1)}, s2, 2', f's_add_u32 {s(sT1)}, {s(sT1)}, {s(sW)}', f's_lshl_b32 {s(sT1)}, {s(sT1)}, 9',
             f'v_lshrrev_b32 v40, 1, {v(vPS)}', I(f'buffer_store_dwordx2 v[254:255], v40, s[12:15], {s(sT1)} offen', tag='TR')]
        if self.c.dbgout:
            names = self.trnames
            last = lambda n: len(names) - 1 - names[::-1].index(n)
            its = [i for i, n in enumerate(names) if n == 'it']
            sel = [last('first'), names.index('q'), last('q'), last('conv'), last('pre'), its[4], its[12], its[20], its[27], its[-1], last('last'), last('norm'),
                   last('o') - 4, last('o'), last('tail'), last('drain')]
            e += ['s_waitcnt vmcnt(0)', 's_or_b32 s4, s2, s3', 's_cmp_lg_u32 s4, 0', 's_cbranch_scc1 L_end', 'v_readlane_b32 s5, v254, 0', 'v_mov_b32 v41, 0']
            for k, i in enumerate(sel):
                e += [f'v_readlane_b32 s4, v254, {i}', 's_nop 1', 's_sub_u32 s4, s4, s5', f'v_writelane_b32 v41, s4, {k}']
            e += [f'v_lshrrev_b32 v40, 2, {v(vPS)}', 's_mov_b64 exec, 0xffff', f'buffer_store_dword v41, v40, {s(SRD_DBG, 4)}, 0 offen']
        self.emit(e)

    def kernel1(self):
        c = self.c
        self.setup()
        self.qproj()
        self.attention(c.mode == 'safe')
        self.tr(name='last')
        vm_join = list(self.vm)
        self.raw(['L_norm:'])
        e = []
        if c.mode == 'fast':
            m = v(vT)
            e += [f'v_max3_f32 {m}, {v(L_)}, {v(L_ + 4)}, {v(L_ + 8)}', f'v_max3_f32 {m}, {m}, {v(L_ + 12)}, {v(L_ + 16)}',
                  f'v_max_f32 {m}, {m}, {v(L_ + 20)}', f'v_cmp_nge_f32 vcc, {s(sLTHR)}, {m}',
                  's_nop 1', 's_cmp_lg_u64 vcc, 0', f's_cselect_b32 {s(sT1)}, 1, 0', f's_andn2_b32 {s(sT1)}, {s(sT1)}, {s(sSAFE)}',
                  f'v_mov_b32 {v(vT + 1)}, {s(sT1)}', f's_lshl_b32 {s(sT1)}, {s(sW)}, 2', f's_add_u32 {s(sT1)}, {s(sT1)}, {49152}',
                  f'v_mov_b32 {v(vT + 2)}, {s(sT1)}', f'ds_write_b32 {v(vT + 2)}, {v(vT + 1)}']
        e += self.onorm()
        e += [self.wvm(('O', 3)), 's_waitcnt lgkmcnt(0)', 's_barrier']
        self.fb_check = []
        if c.mode == 'fast':
            e += [f'ds_read_b128 {v(OPK, 4)}, {v(SEL)} offset:49152']
            self.fb_check = [f'v_or3_b32 {v(OPK)}, {v(OPK)}, {v(OPK + 1)}, {v(OPK + 2)}', f'v_or_b32 {v(OPK)}, {v(OPK)}, {v(OPK + 3)}',
                             f'v_readfirstlane_b32 {s(sT1)}, {v(OPK)}', f's_cmp_lg_u32 {s(sT1)}, 0', 's_cbranch_scc1 L_fallback']
        self.emit(e, 'onorm')
        self.trace_move()
        self.oproj()
        self.trace_out()
        self.finish()
        if c.mode == 'fast':
            self.raw(['L_fallback:'])
            self.lg = []; self.vm = []
            tr = c.trace
            c.trace = False
            e = ['s_waitcnt vmcnt(0) lgkmcnt(0)', 's_barrier', f's_mov_b32 {s(sSAFE)}, 1', f's_mov_b32 {s(sOFF)}, {s(sOFF0)}',
                 f's_add_u32 {s(sOFF2)}, {s(sOFF)}, 4096', f's_mov_b32 {s(SRD_KV + 2)}, 262144']
            self.emit(e)
            self.kv_reload()
            self.attention(True)
            assert [x[0] for x in self.vm] == [x[0] for x in vm_join], (self.vm, vm_join)
            self.emit(['s_waitcnt lgkmcnt(0)', 's_nop 15', 's_branch L_norm'])
            c.trace = tr
        self.rare_paths()
        self.spin_blocks()
        return self.out


def descriptor(name, vg, acc, sg=102):
    d = ['.section .rodata,"a"', '.p2align 6', f'.amdhsa_kernel {name}']
    for k, x in dict(next_free_vgpr=vg, next_free_sgpr=sg, accum_offset=acc, group_segment_fixed_size=0, kernarg_size=104,
                     user_sgpr_count=2, user_sgpr_kernarg_segment_ptr=1, system_sgpr_workgroup_id_x=1).items():
        d.append(f'  .amdhsa_{k} {x}')
    d.append('.end_amdhsa_kernel')
    return d


def build(cfg, path):
    g = Gen(cfg)
    k1 = g.kernel1()
    L = ['; @launch grid=(256,1,1) block=(256,1,1) lds=163840',
         '; Fused GQA block x2: Q projection + flash attention + O projection with an in-kernel reduce-scatter.',
         '.amdgcn_target "amdgcn-amd-amdhsa--gfx950"', '.text']
    L += [f'.globl {K1}', '.p2align 8', f'.type {K1},@function', f'{K1}:']
    L += [('' if x.kind in ('label', 'dir') else '    ') + x.text for x in k1]
    if cfg.trace:
        assert g.ntr == len(g.trnames) <= 58, (g.ntr, len(g.trnames))
        L += ['; trnames ' + ' '.join(g.trnames)]
    L += descriptor(K1, 512, 256)
    open(path, 'w').write('\n'.join(L) + '\n')
    return g

if __name__ == '__main__':
    kw = {}
    path = sys.argv[1]
    for x in sys.argv[2:]:
        k, val = x.split('=', 1)
        try:
            val = eval(val)
        except Exception:
            pass
        kw[k] = val
    build(Cfg(**kw), path)
```

```python
import re

REG_RE = re.compile(r'^(-|\|)?(v|a|s)(\d+)\|?$')
RNG_RE = re.compile(r'^(-|\|)?(v|a|s)\[(\d+):(\d+)\]\|?$')
TRANS = ('v_exp_f32', 'v_log_f32', 'v_rcp_f32', 'v_rsq_f32', 'v_sqrt_f32', 'v_sin_f32', 'v_cos_f32')


def regs_of(tok):
    tok = tok.strip()
    m = REG_RE.match(tok)
    if m:
        return [(m.group(2), int(m.group(3)))]
    m = RNG_RE.match(tok)
    if m:
        return [(m.group(2), i) for i in range(int(m.group(3)), int(m.group(4)) + 1)]
    if tok in ('vcc', 'vcc_lo', 'vcc_hi'):
        return [('x', 'vcc')]
    if tok == 'm0':
        return [('x', 'm0')]
    if tok in ('exec', 'exec_lo', 'exec_hi'):
        return [('x', 'exec')]
    return []


class I:
    __slots__ = ('text', 'op', 'kind', 'rd', 'wr', 'srcc', 'ab', 'cost', 'tag', 'passes', 'key')

    def __init__(self, text, tag=None, cost=None, key=None):
        self.text = text
        self.tag = tag
        self.key = key
        self.srcc = []
        self.ab = []
        self.passes = 0
        t = text.split(';')[0].strip()
        if t.endswith(':'):
            self.op = 'label'; self.kind = 'label'; self.rd = []; self.wr = []; self.cost = 0
            return
        if t.startswith('.') or t == '':
            self.op = 'dir'; self.kind = 'dir'; self.rd = []; self.wr = []; self.cost = 0
            return
        parts = t.split(None, 1)
        op = parts[0]
        self.op = op
        rest = parts[1] if len(parts) > 1 else ''
        toks = [x.strip() for x in rest.split(',')] if rest else []
        mods = []
        if toks:
            lt = toks[-1].split()
            toks[-1] = lt[0] if lt else ''
            mods = lt[1:]
        R = [regs_of(x) for x in toks]
        flat = lambda l: [r for x in l for r in x]
        rd, wr = [], []
        kind = None
        c = 4
        if op.startswith('v_mfma'):
            kind = 'mfma'
            wr = R[0]; rd = flat(R[1:]); self.srcc = R[3]; self.ab = R[1] + R[2]
            self.passes = 8 if '32x32' in op else (2 if '4x4x4' in op else 4)
            c = 8
        elif op.startswith('buffer_load') or op.startswith('global_load'):
            if 'lds' in mods or '_lds_' in op:
                kind = 'dma'; rd = flat(R) + [('x', 'm0')]
            else:
                kind = 'vld'; wr = R[0]; rd = flat(R[1:])
        elif op.startswith('buffer_store') or op.startswith('global_store'):
            kind = 'vst'; rd = flat(R)
        elif op.startswith('buffer_atomic') or op.startswith('global_atomic'):
            kind = 'vst'; rd = flat(R)
            if 'sc0' in mods:
                kind = 'vld'; wr = R[0]
        elif op.startswith('buffer_inv') or op.startswith('buffer_wbl2'):
            kind = 'vst'
        elif op.startswith('ds_read') or op.startswith('ds_bpermute') or op.startswith('ds_swizzle'):
            kind = 'dsr'; wr = R[0]; rd = flat(R[1:])
        elif op.startswith('ds_write') or op.startswith('ds_add'):
            kind = 'dsw'; rd = flat(R)
        elif op.startswith('s_load') or op.startswith('s_memtime') or op.startswith('s_memrealtime'):
            kind = 'smem'; wr = R[0]; rd = flat(R[1:])
        elif op == 's_waitcnt':
            kind = 'wait'
        elif op == 's_barrier':
            kind = 'barrier'
        elif op == 's_nop':
            kind = 'nop'; c = 4 * (int(toks[0], 0) + 1)
        elif op in ('s_endpgm', 's_sleep', 's_setprio'):
            kind = 'salu'
        elif op.startswith('s_cbranch') or op == 's_branch':
            kind = 'branch'
            if 'vcc' in op: rd = [('x', 'vcc')]
            if 'scc' in op: rd = [('x', 'scc')]
            if 'exec' in op: rd = [('x', 'exec')]
        elif op in ('s_call_b64', 's_swappc_b64'):
            kind = 'branch'; wr = R[0]
        elif op == 's_setpc_b64':
            kind = 'branch'; rd = R[0]
        elif op.startswith('s_cmp') or op.startswith('s_bitcmp'):
            kind = 'salu'; rd = flat(R); wr = [('x', 'scc')]
        elif op.startswith('s_'):
            kind = 'salu'; wr = list(R[0]); rd = flat(R[1:])
            if 'saveexec' in op:
                wr += [('x', 'exec')]; rd += [('x', 'exec')]
            if op.startswith('s_cselect') or op.startswith('s_addc') or op.startswith('s_subb'):
                rd += [('x', 'scc')]
            if not (op.startswith('s_mov') or op.startswith('s_cselect') or op.startswith('s_mul') or op.startswith('s_getreg')):
                wr += [('x', 'scc')]
            if op in ('s_addk_i32', 's_mulk_i32'):
                rd += R[0]
        elif op.startswith('v_'):
            kind = 'valu'
            base = op.replace('_e32', '').replace('_e64', '')
            if base in TRANS:
                kind = 'trans'; c = 8
            if op.startswith('v_permlane') and 'swap' in op:
                wr = flat(R); rd = flat(R)
            elif op.startswith('v_swap'):
                wr = flat(R); rd = flat(R)
            elif op.startswith('v_add_co') or op.startswith('v_sub_co'):
                wr = R[0] + R[1]; rd = flat(R[2:])
            elif op.startswith('v_addc_co'):
                wr = R[0] + R[1]; rd = flat(R[2:])
            else:
                wr = list(R[0]); rd = flat(R[1:])
                if op.startswith('v_fmac') or op.startswith('v_dot2c') or op.startswith('v_writelane'):
                    rd += R[0]
                if op.startswith('v_cmpx'):
                    wr += [('x', 'exec')]
        else:
            raise ValueError('unknown instruction: ' + text)
        self.kind = kind
        self.rd = rd
        self.wr = wr
        self.cost = c if cost is None else cost

    def __repr__(self):
        return self.text


def mk(x):
    return x if isinstance(x, I) else I(x)


def states(ins):
    if ins.kind in ('label', 'dir'):
        return 0
    if ins.kind == 'nop':
        return ins.cost // 4
    return 1


VALU_LIKE = ('valu', 'trans')
MEM_LIKE = ('vld', 'vst', 'dma', 'dsr', 'dsw')


def required(p, c):
    need = 0
    pw = set(p.wr); cr = set(c.rd); cw = set(c.wr)
    pv = {r for r in pw if r[0] in 'va'}
    ps = {r for r in pw if r[0] == 's' or r == ('x', 'vcc')}
    if p.kind in VALU_LIKE:
        if c.kind == 'mfma' and pv & cr:
            need = max(need, 2)
        if c.op.startswith('v_permlane') and pv & cr:
            need = max(need, 2)
        if ('dpp' in c.text or 'row_' in c.text) and pv & cr:
            need = max(need, 2)
        if (c.op.startswith('v_readlane') or c.op.startswith('v_readfirstlane')) and pv & cr:
            need = max(need, 1)
        if p.kind == 'trans' and c.kind == 'valu' and pv & cr:
            need = max(need, 1)
        if ps & cr:
            if c.kind in VALU_LIKE:
                need = max(need, 4 if c.op.startswith('v_readlane') or c.op.startswith('v_writelane') else 2)
            if c.kind in ('vld', 'vst', 'dma'):
                need = max(need, 5)
            if c.kind in ('salu', 'smem'):
                need = max(need, 2)
        if ('x', 'exec') in pw:
            if c.kind == 'mfma' or c.op.startswith('v_permlane') or c.op.startswith('v_read'):
                need = max(need, 4)
    if p.op.startswith('v_dot') and pv & (cr | cw) and c.op != p.op:
        need = max(need, 3)
    if p.kind == 'salu' and ('x', 'm0') in pw and c.kind == 'dma':
        need = max(need, 1)
    if p.kind == 'mfma':
        big = {8: 12, 4: 8, 2: 5}[p.passes]
        mid = {8: 10, 4: 6, 2: 4}[p.passes]
        war = {8: 7, 4: 3, 2: 1}[p.passes]
        if c.kind == 'mfma':
            if pw & set(c.ab):
                need = max(need, big)
            if pw & set(c.srcc):
                if not (list(p.wr) == list(c.srcc) and p.passes == c.passes):
                    need = max(need, mid)
                elif p.passes == 2:
                    need = max(need, 2)
            elif pw & cw:
                need = max(need, mid)
        elif c.kind in VALU_LIKE:
            if pw & (cr | cw):
                need = max(need, big)
            if set(p.srcc) & cw:
                need = max(need, war)
        elif c.kind in MEM_LIKE:
            if pw & (cr | cw):
                need = max(need, big)
            if set(p.srcc) & cw:
                need = max(need, war)
    if p.kind == 'vst' and ('x4' in p.op or 'x3' in p.op):
        data = set(regs_of(p.text.split(None, 1)[1].split(',')[0].strip())) if p.op.startswith('buffer') else set(p.rd)
        if data & cw:
            need = max(need, 2)
    return need


def pad_hazards(seq, history=None, report=None):
    out = list(history or [])
    h = len(out)
    for ins in seq:
        if ins.kind not in ('label', 'dir'):
            dist = 0
            short = 0
            culprit = None
            for k in range(len(out) - 1, -1, -1):
                p = out[k]
                need = required(p, ins) if p.kind not in ('label', 'dir', 'nop', 'wait', 'barrier') else 0
                if need - dist > short:
                    short = need - dist; culprit = p
                dist += states(p)
                if dist >= 13:
                    break
            if short > 0:
                if report is not None:
                    report.append((short, culprit.text, ins.text))
                out.append(I(f's_nop {short - 1}'))
        out.append(ins)
    return out[h:]


def auto_lgkm(seq, pending=None, maxout=15):
    q = [set(x) for x in (pending or [])]
    out = []
    for ins in seq:
        if ins.kind == 'wait':
            m = re.search(r'lgkmcnt\((\d+)\)', ins.text)
            if m:
                n = int(m.group(1))
                q = q[len(q) - n:] if n < len(q) else q
                if n == 0: q = []
            out.append(ins); continue
        if ins.kind == 'smem':
            assert not q, 'smem with LDS ops outstanding: ' + ins.text
            out.append(ins); continue
        touched = set(ins.rd) | set(ins.wr)
        idx = -1
        for k, d in enumerate(q):
            if d & touched:
                idx = k
        if idx >= 0:
            n = len(q) - 1 - idx
            assert n <= 15
            out.append(I(f's_waitcnt lgkmcnt({n})'))
            q = q[idx + 1:]
        if ins.kind in ('dsr', 'dsw'):
            if len(q) >= maxout:
                n = maxout - 1
                out.append(I(f's_waitcnt lgkmcnt({n})'))
                q = q[len(q) - n:]
            q.append(set(ins.wr))
        out.append(ins)
    return out, q


class Filler:
    def __init__(self, ins, rel=0, dl=10**9, stream=None, cost=None, pos=None):
        self.ins = [mk(x) for x in (ins if isinstance(ins, (list, tuple)) else [ins])]
        self.rel = rel; self.dl = dl; self.stream = stream
        self.cost = sum(x.cost for x in self.ins) if cost is None else cost
        self.pos = rel + 0.5 if pos is None else pos


def split_fillers(fillers, lim=8):
    out = []
    for k, f in enumerate(fillers):
        ins = f.ins
        if len(ins) == 1 or any(x.kind in ('branch', 'label', 'nop', 'barrier', 'smem') for x in ins) or f.rel == f.dl:
            out.append(f); continue
        glue = [False] * len(ins)
        for i, x in enumerate(ins):
            if ('x', 'scc') in x.rd:
                j = i
                while j > 0:
                    glue[j] = True
                    j -= 1
                    if ('x', 'scc') in ins[j].wr: break
        pieces = []
        for i, x in enumerate(ins):
            if pieces and (glue[i] or sum(y.cost for y in pieces[-1]) + x.cost <= lim):
                pieces[-1].append(x)
            else:
                pieces.append([x])
        st = f.stream if f.stream is not None else ('sp', k)
        for i, p in enumerate(pieces):
            out.append(Filler(p, rel=f.rel, dl=f.dl + i, stream=st, pos=f.pos))
    return out


def interleave(mfmas, fillers, budget=24, verbose=False, name='', rate=None, cap=None, split=False, reserve=()):
    if split:
        fillers = split_fillers(fillers)
    items = [(g, 0, k, [m]) for k, (g, m) in enumerate(enumerate(mfmas))]
    items += [(f.pos, 1, k, f.ins) for k, f in enumerate(fillers)]
    items.sort(key=lambda x: (x[0], x[1], x[2]))
    ref = [i for it in items for i in it[3]]
    preds = {}
    lastw = {}
    readers = {}
    skip = (('x', 'scc'),)
    for ins in ref:
        p = set()
        for r in ins.rd:
            if r in lastw and r not in skip: p.add(lastw[r])
        for r in ins.wr:
            if r in skip: continue
            if r in lastw: p.add(lastw[r])
            p.update(readers.get(r, ()))
        p.discard(id(ins))
        preds[id(ins)] = p
        for r in ins.rd:
            readers.setdefault(r, []).append(id(ins))
        for r in ins.wr:
            lastw[r] = id(ins); readers[r] = []
    streams = {}
    for k, f in enumerate(fillers):
        streams.setdefault(f.stream if f.stream is not None else ('_', k), []).append(f)
    for s in streams.values():
        for k in range(len(s) - 2, -1, -1):
            s[k].dl = min(s[k].dl, s[k + 1].dl)
        for k in range(1, len(s)):
            s[k].rel = max(s[k].rel, s[k - 1].rel)
    heads = {k: 0 for k in streams}
    out = []
    done = set()
    n = len(mfmas)
    loads = []
    total = sum(f.cost for f in fillers)
    late = []
    cum = 0.0

    def ready(f):
        own = {id(x) for x in f.ins}
        return all(preds[id(x)] <= (done | own) for x in f.ins)

    for g in range(-1, n):
        if g >= 0:
            missing = preds[id(mfmas[g])] - done
            assert not missing, (name, g, mfmas[g].text, [x.text for x in ref if id(x) in missing])
            out.append(mfmas[g]); done.add(id(mfmas[g]))
        used = 0
        while True:
            cand = [(s[heads[k]].dl, k) for k, s in streams.items()
                    if heads[k] < len(s) and s[heads[k]].rel <= g and ready(s[heads[k]])]
            if not cand:
                break
            cand.sort(key=lambda x: x[0])
            placed = False
            for dl, k in cand:
                f = streams[k][heads[k]]
                b = 0 if g < 0 else budget
                if rate is not None:
                    ok = g >= 0 and cum + used + f.cost / 2.0 <= (g + 1) * rate and (cap is None or ((used == 0 and g not in reserve) or used + f.cost <= cap - (4 if g in reserve else 0)))
                else:
                    ok = used + f.cost <= b
                if dl <= g or g == n - 1 or ok:
                    if dl < g: late.append((g, dl, f.ins[0].text))
                    out.extend(f.ins); done.update(id(x) for x in f.ins)
                    used += f.cost; heads[k] += 1; placed = True
                    break
            if not placed:
                break
        loads.append(used)
        if g >= 0:
            cum += used
            if rate is not None:
                cum = max(cum, (g + 1) * rate - 2 * rate)
    for k, s in streams.items():
        assert heads[k] == len(s), f'unplaced fillers in stream {k}: {s[heads[k]].ins}'
    check_dataflow(ref, out)
    if verbose:
        print(f'[{name}] total filler cost {total}, gap loads {loads}')
        for x in late[:10]: print('   late:', x)
    return out


def check_dataflow(ref, sched):
    def producers(seq):
        last = {}
        res = {}
        for ins in seq:
            res[id(ins)] = {r: last.get(r) for r in ins.rd}
            for r in ins.wr:
                last[r] = id(ins)
        return res, last
    ids = {id(x) for x in ref}
    s2 = [x for x in sched if id(x) in ids]
    assert len(s2) == len(ref), (len(s2), len(ref))
    a, la = producers(ref)
    b, lb = producers(s2)
    byid = {id(x): x for x in ref}
    bad = 0
    for k in a:
        if a[k] != b[k]:
            for r in a[k]:
                if a[k][r] != b[k][r] and r != ('x', 'scc') and r != ('x', 'm0'):
                    print('DATAFLOW MISMATCH', byid[k].text, r, '| ref:', byid.get(a[k][r]), '| sched:', byid.get(b[k][r]))
                    bad += 1
    for r in la:
        if la[r] != lb[r] and r not in (('x', 'scc'), ('x', 'm0')):
            print('LAST WRITER MISMATCH', r, byid[la[r]].text, byid[lb[r]].text)
            bad += 1
    assert bad == 0


def v(n, c=1):
    return f'v{n}' if c == 1 else f'v[{n}:{n + c - 1}]'


def a(n, c=1):
    return f'a{n}' if c == 1 else f'a[{n}:{n + c - 1}]'


def s(n, c=1):
    return f's{n}' if c == 1 else f's[{n}:{n + c - 1}]'
```

```python
import sys, math, struct
from asmlib import *

NAME = 'concat_heads__gqa_block_cached__gqa_block_cached__near_ridge'
K1 = NAME + '_kernel'
K2 = 'reduce_partials_kernel'


def f2u(x):
    return struct.unpack('<I', struct.pack('<f', x))[0]


class Cfg:
    trace = False
    dma_cost = 8
    rot = True
    krot = True
    warm_wo = True
    warm_stride = 128
    kv_nt = ' nt'
    w_nt = ''
    x_nt = ''
    wo_nt = ''
    st_mod = ' sc1'
    fl_mod = ' sc1'
    d_mod = ' sc1'
    out_mod = ''
    thr = 8.0
    lthr = 2.0 ** 60
    verbose = False
    kv_from = 28
    kv_sp = 8
    t3_late = True
    win_c = 5
    n2 = 1
    npre = 24
    split = True
    reserve = True
    cap = 8
    pre_fast = True
    norm_pk = True
    kv_nc = 9
    put_sp = 4
    put_m = 8
    kv_gap = 0
    put_q = 6
    win = 4
    fake_kv = False
    mode = 'fast'
    force_fb = False
    q_rate = 8.0
    a_rate = 8.3
    o_rate = 8.0
    npart1 = 30
    oring = 6
    sig = (70, 60, 40)
    pa = (30, 70, 30, 70)
    pb = (10, 50, 68)
    add_at = (101, 111, 122, 138)
    sh_at = 4
    sh_early = False
    sh_pos = (58, 78, 4 * 16 + 5, 4 * 16 + 14)
    pc = 15
    wpad = 8
    burst = 1
    bsp = 2
    prepoll = False
    spin_max = 200000
    n_stage = 2
    trace_h = False
    win_b = (4, 5)
    n1 = 4
    dbgout = False
    q32 = False
    wq_sp = 6
    q32_budget = 24
    xtouch = -1
    warm_it = 31
    vsum = False
    summode = 'm16zz'
    dot_cost = 8
    nosum = False
    noexp = False
    krot_m = 9
    red2 = True
    warm_code = True
    trace_o = False
    red_off = False
    st_off = False
    warm_nt = ''
    warm_at = (0, 1)
    init_u = 4
    ramp = 18
    touch_at = ()
    early = (0, 8)
    x1_at = 16
    u4_at = 24
    touch_nt = ''
    cw_late = False
    cw_piece = 8192
    cw_n = 9
    fake_w = False

    def __init__(self, **kw):
        for k, x in kw.items():
            assert hasattr(self, k), k
            setattr(self, k, x)


TS = 8704
RING = 4 * TS
XB = 4 * RING
OB = 65536
GRP = 9 * 8 * 12288
FL_OFF = 32 * GRP
STAMP_OFF = 256 * 122880
assert FL_OFF + 32 * 32768 <= STAMP_OFF
OOB = 0x7ffffff0

sW = 3
sB, sJ, sBLK = 4, 5, 6
SRD_KV, SRD_WQ, SRD_X, SRD_WO, SRD_WS = 8, 12, 16, 20, 24
SRD_FL, SRD_DBG, SRD_OUT = 60, 64, 68
sRING = 28
sOFF, sOFF2 = 29, 30
sHH = 31
sLOOP = 32
sT0, sT1, sT2 = 33, 34, 35
sTB = 40
sH = 44
sWK, sXK = 48, 49
sOFF0 = 50
sSAFE = 51
sTR = 52
sSPIN = 53
sTM = 54
sXL, sSO = 72, 73
sC = 74
sTHR, sLTHR = 76, 77
sRET = 78
sFS = 90
sC1152 = 91
sWOL, sCG, sPS, sPSB, sKL, sFA, sDA, sT3, sGRP, sOO = 80, 81, 82, 83, 84, 85, 86, 87, 88, 89

S_ = [0, 48]
NM = 96
L_ = 120
P_ = 144
FR = 168
ONES = 184
vT = 188
vKA = 192
vVA = 193
vKV = 197
vLANE = 198
vKW = 199
Q45 = 200
vMX = 232
vKW4 = 233
vTRa, vTRb = 254, 255
QA = 200
vWA = 216
vXA = 244
vWV = 220
vXV = 224
vH = 226
QB = 192
OACC = [0, 24]
OA_ = 48
OPK = 64
RR = 76
vR = 80
LDB = 228
vBA = 234
vOW = 238
vWM = 239
vOV, vOA, vOA2, vPS, vF, vOO, vL0, vPA = 240, 241, 242, 243, 244, 245, 246, 247
vSG = 199
SEL = 248
OBV = 100
HB = 100

MF = 'v_mfma_f32_16x16x32_bf16'
MF32 = 'v_mfma_f32_32x32x16_bf16'


def Sr(buf, c, t):
    return S_[buf] + (c * 6 + t) * 4


def Qfrag(t, ks):
    return a(192 + 16 * t + 4 * ks, 4) if t < 4 else v(Q45 + 16 * (t - 4) + 4 * ks, 4)


def Oacc(dt, t):
    return (dt * 6 + t) * 4


def Bfrag(phi):
    if phi < 32:
        return v(OBV + 4 * phi, 4)
    if phi < 48:
        return a(192 + 4 * (phi - 32), 4)
    return a(4 * (phi - 48), 4)


sPSt = [0, 1, 36, 37, 38, 39, 92, 93]
sDAt = [94, 95, 96, 97, 98, 99, 100, 101]

flat = lambda gs: [x for g in gs for x in g]


class Gen:
    def __init__(self, cfg):
        self.c = cfg
        self.out = []
        self.lg = []
        self.vm = []
        self.spins = []
        self.sites = []
        self.ntr = 0
        self.trreg = (vTRa, vTRb)
        self.trnames = []
        self.plan_wo()

    def emit(self, seq, name=''):
        seq = [mk(x) for x in seq]
        seq, self.lg = auto_lgkm(seq, self.lg)
        seq = self.resolve_vm(seq)
        rep = []
        seq = pad_hazards(seq, history=self.out[-40:], report=rep)
        if rep and self.c.verbose:
            for r in rep:
                if 'm0' not in r[1]:
                    print(f'  nop[{name}]', r)
        self.out.extend(seq)

    def raw(self, seq):
        self.out.extend(mk(x) for x in seq)

    def vm_reset(self):
        self.vm = [x for x in self.vm if x[1]]

    def resolve_vm(self, seq):
        out = []
        for ins in seq:
            if ins.kind == 'wait' and 'vmcnt(?)' in ins.text:
                tags = ins.tag if isinstance(ins.tag, list) else [ins.tag]
                idx = -1
                for k, t in enumerate(self.vm):
                    if t[0] in tags:
                        idx = k
                if idx < 0:
                    continue
                n = min(len(self.vm) - 1 - idx, 63)
                self.vm = self.vm[len(self.vm) - n:] if n else []
                out.append(I(f's_waitcnt vmcnt({n})'))
                continue
            if ins.kind == 'wait':
                m = re.search(r'vmcnt\((\d+)\)', ins.text)
                if m:
                    n = int(m.group(1))
                    if n < len(self.vm):
                        self.vm = self.vm[len(self.vm) - n:] if n else []
            touched = set(ins.rd) | (set(ins.wr) if ins.kind != 'vld' else set())
            for t in self.vm:
                assert not (t[1] & touched), f'register of an outstanding load touched: {ins.text} / {t}'
            if ins.kind in ('dma', 'vld', 'vst') and ins.tag != 'UNCOUNTED':
                self.vm.append((ins.tag, set(ins.wr) if ins.kind == 'vld' else set()))
            out.append(ins)
        return out

    def wvm(self, tags):
        return I('s_waitcnt vmcnt(?)', tag=tags)

    def dma(self, vreg, srd, soff, imm, mod, tag):
        o = f' offset:{imm}' if imm else ''
        return I(f'buffer_load_dwordx4 {v(vreg)}, {s(srd, 4)}, {soff} offen{o}{mod} lds', tag=tag, cost=self.c.dma_cost)

    def tr_code(self, dyn=False):
        k = self.ntr
        self.ntr += 1
        ra, rb = self.trreg
        e = ['s_waitcnt lgkmcnt(0)', f's_memrealtime {s(sTM, 2)}', f's_memtime {s(sTM + 2, 2)}', 's_waitcnt lgkmcnt(0)']
        if dyn:
            e += [f's_mov_b32 m0, {s(sTR)}', 's_nop 3', f'v_writelane_b32 {v(ra)}, {s(sTM)}, m0',
                  f'v_writelane_b32 {v(rb)}, {s(sTM + 2)}, m0', f's_add_u32 {s(sTR)}, {s(sTR)}, 1']
        else:
            e += [f'v_writelane_b32 {v(ra)}, {s(sTM)}, {k}', f'v_writelane_b32 {v(rb)}, {s(sTM + 2)}, {k}', f's_mov_b32 {s(sTR)}, {k + 1}']
        return e

    def tr(self, dyn=False, name=''):
        if not self.c.trace or ((self.c.trace_o or self.c.trace_h) and name == 'it'):
            return
        self.trnames.append(name)
        sv = [set(x) for x in self.lg]
        self.emit(self.tr_code(dyn))
        self.lg = sv

    def tr_filler(self, fl, g, name=''):
        if self.c.trace:
            self.trnames.append(name)
            fl.append(Filler(self.tr_code(), rel=g, dl=g, stream='tr', cost=0))

    def kv_groups(self, sb, base, tag, win=None):
        m0 = lambda n: f's_add_u32 m0, {s(sb)}, {base + 1088 * n - 1024 * (n & 3)}'
        groups = [[m0(0)]]
        for n in range(8):
            bu = self.c.burst
            g = [f's_waitcnt vmcnt({win[(n // bu) % len(win)] if isinstance(win, tuple) else win})'] if win is not None and n % bu == 0 else []
            g.append(self.dma(vKV, SRD_KV, s(sOFF if n < 4 else sOFF2), 1024 * (n & 3), self.c.kv_nt, tag))
            if n < 7:
                g.append(m0(n + 1))
            groups.append(g)
        groups.append([f's_add_u32 {s(sOFF)}, {s(sOFF)}, 8192', f's_and_b32 {s(sOFF)}, {s(sOFF)}, 0x3ffff',
                       f's_add_u32 {s(sOFF2)}, {s(sOFF)}, 4096'])
        return groups

    def kv_tile(self, slot, tag):
        return self.kv_groups(sRING, slot * TS, tag)

    def kv_stage(self):
        groups = []
        for tl in range(self.c.n_stage):
            for n in range(8):
                g = []
                so = sOFF if n < 4 else sOFF2
                if tl == 4 and n == 0:
                    g += [f's_lshl_b32 {s(SRD_KV + 2)}, {s(sKL)}, 18']
                o = f' offset:{1024 * (n & 3)}' if n & 3 else ''
                g.append(I(f'buffer_load_dwordx4 {a(32 * tl + 4 * n, 4)}, {v(vKV)}, {s(SRD_KV, 4)}, {s(so)} offen{o}{self.c.kv_nt}',
                           tag=('T', tl, n), cost=self.c.dma_cost))
                if n == 7:
                    if tl == 4:
                        g += [f's_mov_b32 {s(SRD_KV + 2)}, 262144', f's_lshl_b32 {s(sT3)}, {s(sKL)}, 13', f's_add_u32 {s(sOFF)}, {s(sOFF)}, {s(sT3)}']
                    else:
                        g += [f's_add_u32 {s(sOFF)}, {s(sOFF)}, 8192']
                    g += [f's_and_b32 {s(sOFF)}, {s(sOFF)}, 0x3ffff', f's_add_u32 {s(sOFF2)}, {s(sOFF)}, 4096']
                groups.append(g)
        return groups

    def kv_put(self, tl, n):
        ad = (vKW, tl * TS) if tl < 4 else (vKW4, 0)
        return [self.wvm(('T', tl, n)), I(f'ds_write_b128 {v(ad[0])}, {a(32 * tl + 4 * n, 4)} offset:{ad[1] + 1088 * n}', cost=12)]

    def code_warm(self):
        L = v(vLANE)
        return ['s_getpc_b64 s[96:97]', f's_lshl_b32 {s(sT1)}, s7, 2', f's_add_u32 {s(sT1)}, {s(sT1)}, {s(sW)}',
                f's_and_b32 {s(sT1)}, {s(sT1)}, 15', f's_min_u32 {s(sT1)}, {s(sT1)}, {self.c.cw_n - 1 if self.c.mode == "fast" else 5}', f's_mul_i32 {s(sT1)}, {s(sT1)}, {self.c.cw_piece}',
                f'v_mul_u32_u24 {v(vH + 2)}, {self.c.cw_piece // 64}, {L}',
                f'v_add_u32 {v(vH + 2)}, {s(sT1)}, {v(vH + 2)}', I(f'global_load_dword v253, {v(vH + 2)}, s[96:97]', tag='CW')]

    def x_touch(self, kc_now):
        L = v(vLANE)
        t0, t1 = v(vH + 2), v(vH + 3)
        d = 128 * (7 - kc_now)
        return [f'v_and_b32 {t0}, 1, {L}', f'v_lshlrev_b32 {t0}, 7, {t0}', f's_add_u32 {s(sT1)}, {s(sXK)}, {d}', f'v_add_u32 {t0}, {s(sT1)}, {t0}',
                f'v_subrev_u32 {t1}, 1152, {t0}', f'v_min_u32 {t0}, {t0}, {t1}',
                f'v_lshrrev_b32 {t1}, 1, {L}', f'v_min_u32 {t1}, 23, {t1}', f's_mul_i32 {s(sT1)}, {s(sW)}, {24 * 1152}',
                f'v_mad_u32_u24 {t0}, {t1}, {s(sC1152)}, {t0}',
                I(f'buffer_load_dword v239, {t0}, {s(SRD_X, 4)}, {s(sT1)} offen{self.c.x_nt}', tag='W', cost=self.c.dma_cost)]

    def kv_touch(self, k):
        e = []
        if k == 0:
            e += [f'v_lshlrev_b32 {v(vH + 4)}, 7, {v(vLANE)}', f's_add_u32 {s(sFA)}, {s(sKL)}, 3', f's_lshl_b32 {s(sFA)}, {s(sFA)}, 13',
                  f's_add_u32 {s(sFA)}, {s(sFA)}, {s(sOFF0)}']
        else:
            e += [f's_add_u32 {s(sFA)}, {s(sFA)}, 8192']
        e += [f's_and_b32 {s(sFA)}, {s(sFA)}, 0x3ffff',
              I(f'buffer_load_dword v238, {v(vH + 4)}, {s(SRD_KV, 4)}, {s(sFA)} offen{self.c.touch_nt}', tag='W', cost=self.c.dma_cost)]
        return e

    def flag_clear(self):
        L = v(vLANE)
        t0, t1 = v(vH), v(vH + 1)
        return [f'v_lshlrev_b32 {t0}, 7, {L}', f'v_mov_b32 {t1}, {OOB}', f's_cmp_eq_u32 {s(sW)}, 0', f's_cselect_b32 {s(sT3)}, 32, 0',
                f'v_cmp_gt_u32 vcc, {s(sT3)}, {L}', f's_lshl_b32 {s(sT3)}, {s(sJ)}, 12',
                's_nop 0', f'v_cndmask_b32 {t0}, {t1}, {t0}, vcc', f'v_mov_b32 {t1}, 0',
                I(f'buffer_store_dword {t1}, {t0}, {s(SRD_FL, 4)}, {s(sT3)} offen{self.c.fl_mod}', tag='CLR')]

    def clear_done(self):
        return [f'v_mov_b32 {v(vT)}, 1', f's_lshl_b32 {s(sT3)}, {s(sGRP)}, 3', f's_add_u32 {s(sT3)}, {s(sT3)}, {s(sJ)}',
                I(f'buffer_store_byte {v(vT)}, {v(vSG)}, {s(SRD_DBG, 4)}, {s(sT3)} offen sc1', tag='SIG', cost=self.c.dma_cost)]

    def setup(self):
        c = self.c
        e = ['s_cmp_ge_u32 s2, 256', 's_cbranch_scc1 L_end']
        if c.trace:
            e += [f's_memrealtime {s(98, 2)}', f's_memtime {s(100, 2)}']
        e += ['s_load_dwordx8 s[36:43], s[0:1], 0', 's_load_dwordx2 s[44:45], s[0:1], 32',
              's_load_dwordx8 s[48:55], s[0:1], 40', 's_load_dwordx2 s[56:57], s[0:1], 72',
              's_load_dwordx2 s[58:59], s[0:1], 96', 's_load_dwordx4 s[92:95], s[0:1], 80']
        e += ['v_lshrrev_b32 v1, 6, v0', f'v_and_b32 {v(vLANE)}, 63, v0', f'v_readfirstlane_b32 {s(sW)}, v1']
        e += ['s_lshr_b32 s7, s2, 3', f's_and_b32 {s(sB)}, s7, 15', f's_lshr_b32 {s(sJ)}, s7, 4', 's_and_b32 s6, s2, 3',
              's_lshl_b32 s6, s6, 1', f's_add_u32 {s(sJ)}, {s(sJ)}, s6', f's_bfe_u32 {s(sBLK)}, s2, 0x10002']
        e += [f's_and_b32 {s(sHH)}, {s(sW)}, 1', f's_lshr_b32 {s(sT0)}, {s(sW)}, 1']
        e += [f's_lshl_b32 {s(sT1)}, {s(sHH)}, 1', f's_add_u32 {s(sT1)}, {s(sT1)}, {s(sT0)}',
              f's_mul_i32 {s(sRING)}, {s(sT1)}, {RING}',
              f's_lshl_b32 {s(sWOL)}, {s(sW)}, 10', f's_add_u32 {s(sXL)}, {s(sWOL)}, {XB}']
        if c.rot:
            e += [f's_and_b32 {s(sOFF)}, s7, 31', f's_lshl_b32 {s(sOFF)}, {s(sOFF)}, 13']
        else:
            e += [f's_mov_b32 {s(sOFF)}, 0']
        e += [f's_add_u32 {s(sOFF2)}, {s(sOFF)}, 4096']
        L = v(vLANE)
        e += [f'v_lshrrev_b32 v1, 4, {L}',
              f'v_and_b32 v2, 15, {L}',
              f'v_lshrrev_b32 v5, 2, v2',
              f'v_and_b32 v6, 3, {L}',
              f'v_lshrrev_b32 v8, 3, {L}', f'v_and_b32 v9, 7, {L}',
              'v_lshrrev_b32 v10, 1, v8']
        e += ['v_xor_b32 v11, v9, v10', f's_lshl_b32 {s(sT1)}, {s(sHH)}, 2', f'v_xor_b32 v11, {s(sT1)}, v11', 'v_lshlrev_b32 v11, 4, v11',
              f's_lshl_b32 {s(sT1)}, {s(sW)}, 3', f'v_add_u32 v12, {s(sT1)}, v8', 'v_mul_u32_u24 v12, 1152, v12',
              f'v_add_u32 {v(vXV)}, v12, v11']
        if c.q32:
            e += ['v_lshlrev_b32 v11, 2, v1', 'v_xor_b32 v11, v2, v11', 'v_lshlrev_b32 v11, 4, v11', 'v_lshl_add_u32 v11, v1, 13, v11']
        else:
            e += ['v_and_b32 v11, 1, v10', 'v_lshlrev_b32 v11, 2, v11', 'v_xor_b32 v11, v9, v11', 'v_lshlrev_b32 v11, 4, v11',
                  'v_lshl_add_u32 v11, v8, 13, v11']
        e += [f's_lshl_b32 {s(sT1)}, {s(sJ)}, 2', f's_add_u32 {s(sT1)}, {s(sT1)}, {s(sW)}', f's_lshl_b32 {s(sT1)}, {s(sT1)}, 8',
              f'v_add_u32 {v(vWV)}, {s(sT1)}, v11']
        for n in range(1, 4):
            e += [f'v_add_u32 {v(vWV + n)}, {(31744 if c.q32 else 64512 - c.wpad) * n}, {v(vWV)}']
        e += ['s_waitcnt lgkmcnt(0)']
        e += [f's_cmp_eq_u32 {s(sBLK)}, 0']
        for d in range(10):
            e += [f's_cselect_b32 s{36 + d}, s{36 + d}, s{48 + d}']
        e += [f's_mul_i32 {s(sT1)}, {s(sB)}, 110592', f's_add_u32 {s(SRD_X)}, s36, {s(sT1)}', f's_addc_u32 {s(SRD_X + 1)}, s37, 0',
              f's_mov_b32 {s(SRD_X + 2)}, 110592', f's_mov_b32 {s(SRD_X + 3)}, 0x20000']
        e += [f's_mov_b32 {s(SRD_WQ)}, s42', f's_mov_b32 {s(SRD_WQ + 1)}, s43', f's_mov_b32 {s(SRD_WQ + 2)}, 4718592',
              f's_mov_b32 {s(SRD_WQ + 3)}, 0x20000']
        if c.krot and c.krot_m > 1:
            m = c.krot_m
            e += [f's_mul_hi_u32 {s(sT1)}, {s(sB)}, {(2 ** 32 + m - 1) // m}', f's_mul_i32 {s(sT1)}, {s(sT1)}, {m}', f's_sub_u32 {s(sT1)}, {s(sB)}, {s(sT1)}',
                  f's_mul_i32 {s(sT1)}, {s(sT1)}, {9 // m}', f's_lshl_b32 {s(sXK)}, {s(sT1)}, 7', f's_lshl_b32 {s(sWK)}, {s(sT1)}, 19']
        else:
            e += [f's_mov_b32 {s(sXK)}, 0', f's_mov_b32 {s(sWK)}, 0']
        self.emit(e, 'setup')
        e = self.late_setup = []
        e += [f's_cmp_eq_u32 {s(sHH)}, 0', 's_cselect_b32 s38, s38, s40', 's_cselect_b32 s39, s39, s41',
              f's_lshl_b32 {s(sT1)}, {s(sB)}, 4', f's_lshl_b32 {s(sT2)}, {s(sJ)}, 1', f's_add_u32 {s(sT1)}, {s(sT1)}, {s(sT2)}',
              f's_add_u32 {s(sT1)}, {s(sT1)}, {s(sT0)}',
              f's_lshl_b32 {s(sT1)}, {s(sT1)}, 18' if not c.fake_kv else f's_lshl_b32 {s(sT1)}, {s(sT0)}, 18',
              f's_add_u32 {s(SRD_KV)}, s38, {s(sT1)}', f's_addc_u32 {s(SRD_KV + 1)}, s39, 0',
              f's_mov_b32 {s(SRD_KV + 2)}, 262144', f's_mov_b32 {s(SRD_KV + 3)}, 0x20000']
        e += ['v_and_b32 v11, 1, v1', 'v_lshlrev_b32 v11, 1, v11', 'v_lshrrev_b32 v12, 1, v1', 'v_lshl_or_b32 v11, v12, 3, v11',
              f's_cmp_eq_u32 {s(sHH)}, 0', 's_cselect_b64 vcc, -1, 0', 's_nop 1', 'v_cndmask_b32 v11, v11, v1, vcc',
              'v_xor_b32 v11, v2, v11', 'v_lshlrev_b32 v11, 4, v11', f'v_lshl_add_u32 {v(vKV)}, v1, 8, v11']
        e += [f's_mul_i32 {s(sT1)}, {s(sJ)}, 589824', f's_add_u32 {s(SRD_WO)}, s44, {s(sT1)}', f's_addc_u32 {s(SRD_WO + 1)}, s45, 0',
              f's_mov_b32 {s(SRD_WO + 2)}, 589824', f's_mov_b32 {s(SRD_WO + 3)}, 0x20000']
        e += [f's_lshl_b32 {s(sGRP)}, {s(sBLK)}, 4', f's_add_u32 {s(sGRP)}, {s(sGRP)}, {s(sB)}', f's_lshl_b32 {s(sT1)}, {s(sGRP)}, 15',
              f's_add_u32 {s(sT1)}, {s(sT1)}, {FL_OFF}', f's_add_u32 {s(SRD_FL)}, s58, {s(sT1)}', f's_addc_u32 {s(SRD_FL + 1)}, s59, 0',
              f's_mov_b32 {s(SRD_FL + 2)}, 32768', f's_mov_b32 {s(SRD_FL + 3)}, 0x20000',
              f's_mov_b32 {s(SRD_DBG)}, s94', f's_mov_b32 {s(SRD_DBG + 1)}, s95', f's_mov_b32 {s(SRD_DBG + 2)}, 256', f's_mov_b32 {s(SRD_DBG + 3)}, 0x20000',
              f's_mov_b32 {s(SRD_OUT)}, s92', f's_mov_b32 {s(SRD_OUT + 1)}, s93', f's_mov_b32 {s(SRD_OUT + 2)}, 3538944', f's_mov_b32 {s(SRD_OUT + 3)}, 0x20000',
              f's_lshl_b32 {s(sPSB)}, {s(sJ)}, 2', f's_add_u32 {s(sPSB)}, {s(sPSB)}, {s(sW)}',
              f's_xor_b32 {s(sKL)}, {s(sHH)}, 1', f'v_lshlrev_b32 {v(vKW)}, 4, {L}', f's_cmp_eq_u32 {s(sHH)}, 0', f's_cselect_b32 {s(sT1)}, {s(sRING)}, {XB}', f'v_add_u32 {v(vKW4)}, {s(sT1)}, {v(vKW)}',
              f'v_add_u32 {v(vKW)}, {s(sRING)}, {v(vKW)}']
        e += [f's_mul_i32 {s(sT1)}, {s(sGRP)}, {GRP}',
              f's_add_u32 {s(SRD_WS)}, s58, {s(sT1)}', f's_addc_u32 {s(SRD_WS + 1)}, s59, 0',
              f's_mov_b32 {s(SRD_WS + 2)}, {GRP}', f's_mov_b32 {s(SRD_WS + 3)}, 0x20000']
        cs = f2u(math.log2(math.e) / math.sqrt(128.0))
        e += [f's_mov_b32 {s(sC)}, {cs:#x}', f's_mov_b32 {s(sC + 1)}, {cs:#x}', f's_mov_b32 {s(sTHR)}, {f2u(c.thr):#x}',
              f's_mov_b32 {s(sLTHR)}, {f2u(c.lthr if not c.force_fb else 1.0):#x}', f's_mov_b32 {s(sSAFE)}, 0', f's_mov_b32 {s(sC1152)}, 1152',
              f's_mov_b32 {s(sOFF0)}, {s(sOFF)}']
        if c.q32:
            e += [f'v_lshrrev_b32 v3, 5, {L}', 'v_and_b32 v4, 1, v1', 'v_lshlrev_b32 v11, 11, v3', 'v_lshl_add_u32 v11, v5, 8, v11',
                  'v_lshl_add_u32 v11, v4, 4, v11', 'v_and_b32 v12, 1, v6', 'v_lshl_add_u32 v11, v12, 5, v11', 'v_lshrrev_b32 v12, 1, v6',
                  'v_lshl_add_u32 v11, v12, 3, v11', f'v_add_u32 v11, {s(sRING)}, v11']
            for ct in range(4):
                e += [f'v_xor_b32 v12, {ct}, v5', f'v_lshl_add_u32 {v(vWA + ct)}, v12, 6, v11']
            e += [f'v_and_b32 v14, 31, {L}', 'v_lshrrev_b32 v11, 3, v14', 'v_and_b32 v12, 7, v14',
                  'v_lshlrev_b32 v13, 10, v11', 'v_lshl_add_u32 v13, v12, 7, v13', f'v_add_u32 v13, {XB}, v13',
                  'v_lshrrev_b32 v12, 1, v12', 'v_and_b32 v11, 1, v11', 'v_lshlrev_b32 v11, 2, v11', 'v_xor_b32 v12, v12, v11', 'v_xor_b32 v12, v12, v3']
            for k in range(4):
                e += [f'v_xor_b32 v11, {2 * k}, v12', f'v_lshl_add_u32 {v(vXA + k)}, v11, 4, v13']
        else:
            e += [f'v_mul_u32_u24 v11, {1024 + c.wpad}, v1', 'v_lshl_add_u32 v11, v5, 7, v11', 'v_lshl_add_u32 v11, v6, 4, v11',
                  f'v_add_u32 v11, {s(sRING)}, v11', 'v_lshrrev_b32 v12, 1, v5', f'v_lshl_add_u32 {v(vWA)}, v12, 6, v11',
                  'v_xor_b32 v12, 1, v12', f'v_lshl_add_u32 {v(vWA + 1)}, v12, 6, v11']
            e += ['v_lshrrev_b32 v11, 3, v2', 'v_and_b32 v12, 7, v2', 'v_lshlrev_b32 v13, 10, v11', 'v_lshl_add_u32 v13, v12, 7, v13',
                  f'v_add_u32 v13, {XB}, v13', 'v_lshrrev_b32 v12, 1, v12', 'v_lshlrev_b32 v11, 2, v11', 'v_xor_b32 v12, v12, v11',
                  'v_xor_b32 v12, v12, v1', f'v_lshl_add_u32 {v(vXA)}, v12, 4, v13', 'v_xor_b32 v12, 4, v12',
                  f'v_lshl_add_u32 {v(vXA + 1)}, v12, 4, v13']
        e += [f's_mul_i32 {s(sT1)}, {s(sT0)}, {RING}', 'v_mul_u32_u24 v11, 1088, v5', 'v_lshl_add_u32 v11, v6, 8, v11',
              'v_xor_b32 v12, v1, v6', 'v_lshl_add_u32 v11, v12, 4, v11', f'v_add_u32 {v(vKA)}, {s(sT1)}, v11']
        e += [f's_add_u32 {s(sT1)}, {s(sT1)}, {2 * RING}',
              'v_mul_u32_u24 v11, 1088, v1', 'v_lshl_add_u32 v11, v5, 8, v11', 'v_lshl_add_u32 v11, v6, 3, v11',
              f'v_add_u32 v11, {s(sT1)}, v11',
              'v_and_b32 v12, 1, v5', 'v_lshrrev_b32 v13, 1, v5', 'v_lshl_or_b32 v12, v13, 2, v12']
        for k, d in enumerate((0, 1, 4, 5)):
            e += [f'v_xor_b32 v13, {d}, v12', f'v_lshl_add_u32 {v(vVA + k)}, v13, 5, v11']
        for k in range(4):
            e += [f's_sub_u32 {s(sT1)}, {k}, {s(sHH)}', f's_and_b32 {s(sT1)}, {s(sT1)}, 3', f's_mul_i32 {s(sT1)}, {s(sT1)}, {TS}',
                  f's_add_u32 {s(sTB + k)}, {s(sRING)}, {s(sT1)}']
        e += [f's_mul_i32 {s(sT2)}, {s(sPSB)}, 3072', f's_add_u32 {s(sPSt[0])}, {s(sT2)}, {8 * 98304}', f's_mul_i32 {s(sT3)}, {s(sJ)}, 98304',
              f's_mul_i32 {s(sSO)}, {s(sW)}, 3072', f's_add_u32 {s(sT3)}, {s(sT3)}, {s(sSO)}']
        for p in range(1, 8):
            e += [f's_add_u32 {s(sT1)}, {s(sJ)}, {p}', f's_and_b32 {s(sT1)}, {s(sT1)}, 7', f's_mul_i32 {s(sT1)}, {s(sT1)}, 98304',
                  f's_add_u32 {s(sPSt[p])}, {s(sT1)}, {s(sT2)}',
                  f's_sub_u32 {s(sT1)}, {s(sJ)}, {p}', f's_and_b32 {s(sT1)}, {s(sT1)}, 7', f's_mul_i32 {s(sT1)}, {s(sT1)}, 12288',
                  f's_add_u32 {s(sDAt[p])}, {s(sT1)}, {s(sT3)}']
        e += [f's_lshl_b32 {s(sT1)}, {s(sJ)}, 10', f's_add_u32 {s(sT1)}, {s(sT1)}, {s(sSO)}', f's_add_u32 {s(sT1)}, {s(sT1)}, {8 * 98304}',
              f's_cmp_lt_u32 {s(sJ)}, 3', f's_cselect_b32 {s(sDAt[0])}, {s(sT1)}, {GRP}',
              f's_lshl_b32 {s(sFS)}, {s(sPSB)}, 10', f's_mul_i32 {s(sOO)}, {s(sB)}, {96 * 2304}', f's_mul_i32 {s(sT3)}, {s(sBLK)}, 1152',
              f's_add_u32 {s(sOO)}, {s(sOO)}, {s(sT3)}', f's_lshl_b32 {s(sT3)}, {s(sW)}, 5', f's_add_u32 {s(sOO)}, {s(sOO)}, {s(sT3)}']
        for k in range(4):
            e += [f's_add_u32 {s(sT1)}, {s(sB)}, {k}' if c.krot else f's_mov_b32 {s(sT1)}, {k}', f's_and_b32 {s(sT1)}, {s(sT1)}, 3',
                  f's_mul_i32 {s(sH + k)}, {s(sT1)}, 147456']

    def wq_unit(self, u):
        hf = u & 1
        pre = [f's_add_u32 m0, {s(sRING)}, {(4096 + 4 * self.c.wpad) * ((u + 4) & 7)}', f's_add_u32 {s(sSO)}, {s(sWK)}, {(131072 if self.c.q32 else 128) * hf}']
        g = [pre + [self.dma(vWV, SRD_WQ, s(sSO), 0, self.c.w_nt, ('U', u))]]
        for n in range(1, 4):
            g.append([self.dma(vWV + n, SRD_WQ, s(sSO), (1024 + self.c.wpad) * n, self.c.w_nt, ('U', u))])
        if hf and not self.c.fake_w:
            g.append([f's_add_u32 {s(sWK)}, {s(sWK)}, 262144', f's_cmp_eq_u32 {s(sWK)}, 4718592', f's_cselect_b32 {s(sWK)}, 0, {s(sWK)}'])
        return g

    def x_chunk(self, kc):
        g = []
        for m in range(3):
            g.append([f's_add_u32 m0, {s(sXL)}, {12288 * (kc & 1) + 4096 * m}', f's_add_u32 {s(sSO)}, {s(sXK)}, {36864 * m}',
                      self.dma(vXV, SRD_X, s(sSO), 0, self.c.x_nt, ('X', kc))])
        if not self.c.fake_w:
          g.append([f's_add_u32 {s(sXK)}, {s(sXK)}, 128', f's_cmp_eq_u32 {s(sXK)}, 1152', f's_cselect_b32 {s(sXK)}, 0, {s(sXK)}'])
        return g

    def a_reads(self, u, k):
        r = QA + 4 * k
        if self.c.q32:
            return [f'ds_read_b64_tr_b16 {v(r + 2 * e_, 2)}, {v(vWA + k)} offset:{4096 * ((u + 4) & 7) + 1024 * e_}' for e_ in range(2)]
        return [f'ds_read_b64_tr_b16 {v(r + 2 * e_, 2)}, {v(vWA + (k >> 1))} offset:{(4096 + 4 * self.c.wpad) * ((u + 4) & 7) + 512 * e_ + 8 * (k & 1)}' for e_ in range(2)]

    def b_read(self, st, t):
        if self.c.q32:
            return f'ds_read_b128 {a(QB + 12 * (st & 1) + 4 * t, 4)}, {v(vXA + (st & 3))} offset:{12288 * ((st >> 2) & 1) + 4096 * t}'
        kc = st >> 1
        return f'ds_read_b128 {a(QB + 24 * (st & 1) + 4 * t, 4)}, {v(vXA + (st & 1))} offset:{12288 * (kc & 1) + 2048 * t}'

    def qproj(self):
        c = self.c
        if c.trace:
            self.emit([f'v_writelane_b32 {v(vTRa)}, s98, 0', f'v_writelane_b32 {v(vTRb)}, s100, 0'])
            self.ntr = 1
            self.trnames.append('start')
        if c.trace_h:
            self.tr(name='sld')
        e = flat(self.x_chunk(0)) + flat(self.wq_unit(0)) + flat(self.wq_unit(1))
        if c.init_u >= 3:
            e += flat(self.x_chunk(1))
        for u in range(2, min(c.init_u, 4)):
            e += flat(self.wq_unit(u))
        if c.warm_code and not c.cw_late:
            e += self.code_warm()
        e += self.late_setup
        for u in range(4, c.init_u):
            e += flat(self.wq_unit(u))
        if c.trace_h:
            self.emit(e); e = []
            self.tr(name='iss')
            self.emit([self.wvm([('X', 0), ('U', 0)])])
            self.tr(name='land')
        e += [self.wvm([('X', 0), ('U', 0)]), 's_barrier']
        for t in range(3 if c.q32 else 6):
            e.append(self.b_read(0, t))
        for k in range(3):
            e += self.a_reads(0, k)
        self.emit(e, 'qpre')
        self.tr(name='first')
        mf, fl, dm = [], [], []
        NU = 36
        kvg = self.kv_stage()
        D = 12 if c.q32 else 24
        sc = lambda x: x * D // 24
        if c.init_u < 3:
            for k, g in enumerate(self.x_chunk(1)):
                dm.append(Filler(g, rel=sc(c.x1_at) + 2 * k, dl=sc(c.x1_at) + 1 + 2 * k, pos=sc(c.x1_at) + 0.7))
        for q in range(c.init_u, NU):
            if q < 4:
                x = sc(c.early[q - 2])
            else:
                x = max(D * (q - 8) + sc(18), sc(c.ramp) * (q - max(c.init_u, 4)) + (sc(c.u4_at) if c.init_u < 4 else 0))
            steady = x == D * (q - 8) + sc(18)
            nxt_x = ((q - 7) & 3) == (3 if c.q32 else 2)
            sp = sc(c.wq_sp) if steady and not nxt_x else sc(2)
            if steady and nxt_x and c.q32:
                sp = 1.5
            for k, g in enumerate(self.wq_unit(q)):
                dm.append(Filler(g, rel=x + int(sp * k), dl=x + 1 + int(sp * k), pos=x + 0.5))
        if c.warm_code and c.cw_late:
            dm.append(Filler(self.code_warm(), rel=D + sc(8), dl=D + sc(10)))
        dm.append(Filler(self.flag_clear(), rel=D * 2 + sc(6), dl=D * 2 + sc(16)))
        for u in range(NU):
            st, hf = u >> 1, u & 1
            g0 = D * u
            if c.q32:
                for ct in range(4):
                    for t in range(3):
                        acc = v((ct * 3 + t) * 16, 16)
                        mf.append(I(f'{MF32} {acc}, {v(QA + 4 * ct, 4)}, {a(QB + 12 * (u & 1) + 4 * t, 4)}, {acc if u else 0}'))
            else:
                for k in range(4):
                    ct = 4 * hf + k
                    for t in range(6):
                        acc = v((ct * 6 + t) * 4, 4)
                        mf.append(I(f'{MF} {acc}, {v(QA + 4 * k, 4)}, {a(QB + 24 * (st & 1) + 4 * t, 4)}, {acc if st else 0}'))
            fl.append(Filler(self.a_reads(u, 3), rel=g0, dl=g0 + sc(4), stream='a', pos=g0 + sc(18) - 0.5))
            if u + 1 < NU:
                fl.append(Filler(self.wvm(('U', u + 1)), rel=g0 + sc(5), dl=g0 + sc(8), stream='a'))
                for k in range(3):
                    fl.append(Filler(self.a_reads(u + 1, k), rel=g0 + sc(6 * k + 6), dl=g0 + sc(6 * k + 10), stream='a', pos=g0 + D + sc(6 * k) - 0.5))
            xu = (u & 3 == 3) if c.q32 else (u & 3 == 2)
            if xu and u + 1 < NU:
                kc = u >> 2
                if kc < 8:
                    fl.append(Filler([self.wvm(('X', kc + 1)), 's_barrier'], rel=g0 + sc(6) - (1 if c.q32 else 0), dl=g0 + sc(8) - (1 if c.q32 else 0), stream='b'))
                if kc + 2 <= 8:
                    for k, g in enumerate(self.x_chunk(kc + 2)):
                        dm.append(Filler(g, rel=g0 + sc(9 + 3 * k), dl=g0 + sc(10 + 3 * k), pos=g0 + sc(9) + 0.5))
                if kc == c.xtouch:
                    dm.append(Filler(self.x_touch(kc + 3), rel=g0 + sc(17), dl=g0 + sc(18), pos=g0 + sc(17) + 0.2))
            if u in c.touch_at:
                dm.append(Filler(self.kv_touch(c.touch_at.index(u)), rel=g0 + sc(16), dl=g0 + sc(18), pos=g0 + sc(16) + 0.6))
            if c.warm_wo and not c.warm_it and u in c.warm_at:
                dm.append(Filler(self.warm_wo(c.warm_at.index(u)), rel=g0 + sc(16), dl=g0 + sc(18), pos=g0 + sc(16) + 0.5))
            if c.q32 and u + 1 < NU:
                for t in range(3):
                    fl.append(Filler(self.b_read(u + 1, t), rel=g0 + 4 + t, dl=g0 + 7 + t, stream='b', pos=g0 + 11.5))
            if not c.q32 and hf == 0 and st + 1 < 18:
                for t in range(6):
                    fl.append(Filler(self.b_read(st + 1, t), rel=g0 + 9 + 5 * t, dl=g0 + 30 + t, stream='b', pos=g0 + 47.5))
            if u % 4 == 3 and u < 35:
                self.tr_filler(fl, g0 + D - 1, 'q')
        i = 0
        while kvg:
            x = int(D * c.kv_from + sc(4) + c.kv_sp * i * D / 24)
            if x > D * NU - 2:
                break
            fl.append(Filler(kvg.pop(0), rel=x, dl=x + 1, stream='kv')); i += 1
        assert i >= 16
        dm.sort(key=lambda f: f.pos)
        for f in dm:
            f.stream = 'dma'
        fl += dm
        puts = [(tl, n) for tl in range(c.n_stage) for n in range(8)]
        for k in range(c.put_q):
            tl, n = puts.pop(0)
            sl = (tl * TS + 1088 * n + 1023) // (4096 + 4 * c.wpad)
            x = min(max(D * (28 + min(sl, 7)) + sc(18), D * NU - sc(4) * (c.put_q - k)), D * NU - 1)
            fl.append(Filler(self.kv_put(tl, n), rel=x, dl=x + sc(2), stream='put'))
        if c.q32:
            seq = interleave(mf, fl, 24, c.verbose, 'qproj', rate=float(c.q32_budget), cap=40)
        else:
            seq = interleave(mf, fl, 8, c.verbose, 'qproj', rate=c.q_rate, cap=(c.cap if c.split else 24), split=c.split,
                             reserve=(set(range(5, len(mf), 6)) if c.reserve else ()))
        self.emit(seq, 'qproj')
        self.tr(name='q')
        e = []
        for t3 in ((2, 0, 1) if c.q32 else ()):
            for ct in range(4):
                b = (ct * 3 + t3) * 16
                e += [f'v_pk_mul_f32 {v(b + i, 2)}, {v(b + i, 2)}, {s(sC, 2)}' for i in range(0, 16, 2)]
                dst = [Q45 + 16 * (i >> 2) + 4 * ct + (i & 3) if t3 == 2 else b + i for i in range(8)]
                e += [f'v_cvt_pk_bf16_f32 {v(dst[i])}, {v(b + 2 * i)}, {v(b + 2 * i + 1)}' for i in range(8)]
                e += [f'v_permlane16_swap_b32 {v(dst[j])}, {v(dst[4 + j])}' for j in range(4)]
                if t3 < 2:
                    e += [f'v_accvgpr_write_b32 {a(192 + 16 * (2 * t3 + (i >> 2)) + 4 * ct + (i & 3))}, {v(dst[i])}' for i in range(8)]
        for t in (() if c.q32 else (4, 5, 0, 1, 2, 3)):
            for ct in range(8):
                b = (ct * 6 + t) * 4
                e += [f'v_pk_mul_f32 {v(b, 2)}, {v(b, 2)}, {s(sC, 2)}', f'v_pk_mul_f32 {v(b + 2, 2)}, {v(b + 2, 2)}, {s(sC, 2)}']
            for ct in range(8):
                b = (ct * 6 + t) * 4
                ks, uu = ct >> 1, ct & 1
                for h2 in range(2):
                    d = Q45 + 16 * (t - 4) + 4 * ks + 2 * uu + h2 if t >= 4 else b + h2
                    e.append(f'v_cvt_pk_bf16_f32 {v(d)}, {v(b + 2 * h2)}, {v(b + 2 * h2 + 1)}')
            if t < 4:
                for ct in range(8):
                    b = (ct * 6 + t) * 4
                    ks, uu = ct >> 1, ct & 1
                    for h2 in range(2):
                        e.append(f'v_accvgpr_write_b32 {a(192 + 16 * t + 4 * ks + 2 * uu + h2)}, {v(b + h2)}')
        nput = 16 - c.put_q
        for k in range(nput):
            tl, n = puts.pop(0)
            x = (k + 1) * (len(e) // (nput + 1))
            e[x:x] = self.kv_put(tl, n)
        self.puts = puts
        gs = [kvg.pop(0) for _ in range(min(c.kv_nc, len(kvg)))]
        self.kvg = kvg
        if c.n_stage == 2:
            t3 = [[f's_lshl_b32 {s(SRD_KV + 2)}, {s(sKL)}, 18']] + self.kv_tile(3, None)[:-1]
            t3 += [[f's_mov_b32 {s(SRD_KV + 2)}, 262144', f's_lshl_b32 {s(sT3)}, {s(sKL)}, 13', f's_add_u32 {s(sOFF)}, {s(sOFF)}, {s(sT3)}',
                    f's_and_b32 {s(sOFF)}, {s(sOFF)}, 0x3ffff', f's_add_u32 {s(sOFF2)}, {s(sOFF)}, 4096']]
            gs = self.kv_tile(2, None)
            if c.t3_late:
                self.kvg = t3
            else:
                gs += t3
        step = len(e) // (len(gs) + 1)
        for k in range(len(gs) - 1, -1, -1):
            e[k * step + 4:k * step + 4] = gs[k]
        e += ['s_waitcnt lgkmcnt(0)', 's_barrier']
        self.emit(e, 'qconv')
        self.tr(name='conv')

    def kv_reload(self):
        e = flat(self.kv_tile(0, None)) + flat(self.kv_tile(1, None)) + flat(self.kv_tile(2, None))
        e += [f's_cmp_lg_u32 {s(sHH)}, 0', 's_cbranch_scc1 L_skip_t3'] + flat(self.kv_tile(3, None)) + ['L_skip_t3:', 's_waitcnt vmcnt(0)', 's_barrier']
        self.emit(e)

    def frag_reads(self, phi, kslot, vslot):
        r = FR + 4 * (phi & 3)
        if phi < 8:
            c_, ks = phi >> 2, phi & 3
            return [f'ds_read_b128 {v(r, 4)}, {v(vKA)} offset:{kslot * TS + 4352 * c_ + 64 * ks}']
        dt = phi - 8
        reg = vVA + (dt & 1) + 2 * (dt >> 2)
        return [f'ds_read_b64_tr_b16 {v(r + 2 * e_, 2)}, {v(reg)} offset:{vslot * TS + 4352 * e_ + 64 * ((dt >> 1) & 1)}' for e_ in range(2)]

    def qk_mfmas(self, buf, czero=False):
        mf = []
        for c_ in range(2):
            for ks in range(4):
                for t in range(6):
                    d = v(Sr(buf, c_, t), 4)
                    cc = d if ks else ('0' if czero else v(NM + 4 * t, 4))
                    mf.append(I(f'{MF} {d}, {v(FR + 4 * ks, 4)}, {Qfrag(t, ks)}, {cc}'))
        return mf

    def pv_mfmas(self, czero=False):
        mf, first = [], []
        for dt in range(8):
            first.append(len(mf))
            for t in range(6):
                o = a(Oacc(dt, t), 4)
                mf.append(I(f'{MF} {o}, {v(FR + 4 * (dt & 3), 4)}, {v(P_ + 4 * t, 4)}, {0 if czero else o}'))
            if dt < 6 and not self.c.vsum and not self.c.nosum:
                l = v(L_ + 4 * dt, 4)
                if self.c.summode.startswith('m16'):
                    mf.append(I(f'{MF} {l}, {v(ONES, 4)}, {v(P_ + 4 * dt, 4)}, {0 if czero else l}'))
                elif self.c.summode == 'm4':
                    mf.insert(len(mf) - 3, I(f'v_mfma_f32_4x4x4_16b_bf16 {l}, {v(ONES, 2)}, {v(P_ + 4 * dt, 2)}, {0 if czero else l}'))
                    mf.append(I(f'v_mfma_f32_4x4x4_16b_bf16 {l}, {v(ONES, 2)}, {v(P_ + 4 * dt + 2, 2)}, {l}'))
        return mf, first

    def exp_order(self):
        return [(c_, t, i) for c_ in range(2) for t in range(6) for i in range(4)]

    def xlane_max(self, m, m2):
        return [f'v_mov_b32 {m2}, {m}', f'v_permlane32_swap_b32 {m}, {m2}', f'v_max_f32 {m}, {m}, {m2}',
                f'v_mov_b32 {m2}, {m}', f'v_permlane16_swap_b32 {m}, {m2}', f'v_max_f32 {m}, {m}, {m2}']

    def attn_pre(self, safe, lab):
        c = self.c
        self.emit(self.frag_reads(0, 0, 0) + self.frag_reads(1, 0, 0))
        fl = []
        for phi in range(2, 8):
            fl.append(Filler(self.frag_reads(phi, 0, 0), rel=max(6 * phi - 18, -1), dl=6 * phi - 10, stream='fr', pos=6 * phi - 0.5))
        for phi in range(2):
            fl.append(Filler(self.frag_reads(phi, 1, 0), rel=6 * (phi + 8) - 14, dl=6 * (phi + 8) - 10, stream='fr', pos=60))
        mask = {'m16': 0, 'dot': 0, 'm16z': 3, 'm4': 3, 'm16zz': 15}[c.summode]
        fl.append(Filler([f'v_and_b32 {v(ONES)}, {mask}, {v(vLANE)}', f'v_cmp_eq_u32 vcc, 0, {v(ONES)}', f'v_mov_b32 {v(ONES + 1)}, 0x3f803f80', 's_nop 0',
                          f'v_cndmask_b32 {v(ONES)}, 0, {v(ONES + 1)}, vcc'], rel=0, dl=4, stream='i'))
        for i in range(1, 4):
            fl.append(Filler(f'v_mov_b32 {v(ONES + i)}, {v(ONES)}', rel=0, dl=20, stream='i'))
        if c.summode == 'dot':
            for t in range(6):
                fl.append(Filler(f'v_mov_b32 {v(L_ + 4 * t)}, 0', rel=0, dl=20, stream='i'))
        for k, g in enumerate(self.kvg):
            x = 1 + k * (21 if c.pre_fast and not safe else 44) // max(len(self.kvg), 1)
            fl.append(Filler(g, rel=x, dl=x + 1, stream='kv'))
        self.kvg = []
        if not safe and c.pre_fast:
            mf = self.qk_mfmas(0, True)
            for t in range(6):
                d = v(Sr(0, 1, t), 4)
                mf[24 + t] = I(f'{MF} {d}, {v(FR, 4)}, {Qfrag(t, 0)}, {v(NM + 4 * t, 4)}')
            rows = []
            for t in range(6):
                m, m2 = v(S_[1] + 2 * t), v(S_[1] + 2 * t + 1)
                r = [Sr(0, 0, t) + i for i in range(4)]
                rows.append([f'v_max3_f32 {m}, {v(r[0])}, {v(r[1])}, {v(r[2])}', f'v_max_f32 {m}, {m}, {v(r[3])}'] + self.xlane_max(m, m2) +
                            [f'v_sub_f32 {v(NM + 4 * t + i)}, 0, {m}' for i in range(4)])
            for z in zip(*rows):
                for x in z:
                    fl.append(Filler(x, rel=23, dl=23, stream='m', pos=23.5))
            for t in range(6):
                for i in range(4):
                    x = v(Sr(0, 0, t) + i)
                    fl.append(Filler(f'v_add_f32 {x}, {x}, {v(NM + 4 * t)}', rel=24 + 4 * t, dl=24 + 4 * t + i // 4, stream='e', pos=23.6))
                for i in range(4):
                    x = v(Sr(0, 0, t) + i)
                    fl.append(Filler(f'v_exp_f32 {x}, {x}', rel=24 + 4 * t, dl=min(25 + 4 * t + (3 * i) // 4, 47), stream='e', pos=23.6))
            self.emit(interleave(mf, fl, 8, c.verbose, 'qk0', rate=12.0), 'qk0')
            e = [f'v_exp_f32 {v(Sr(0, c_, t) + i)}, {v(Sr(0, c_, t) + i)}' for (c_, t, i) in self.exp_order()[24:c.npart1]]
            self.emit(e + ['s_waitcnt lgkmcnt(0)', 's_barrier'], 'max0')
            return
        self.emit(interleave(self.qk_mfmas(0, True), fl, 8, c.verbose, 'qk0', rate=8.0), 'qk0')
        e = []
        for t0 in (0, 3):
            ms = [(v(vMX + 2 * k), v(vMX + 2 * k + 1)) for k in range(3)]
            rows = []
            for k in range(3):
                t = t0 + k
                m, m2 = ms[k]
                r = [Sr(0, 0, t) + i for i in range(4)] + [Sr(0, 1, t) + i for i in range(4)]
                row = [f'v_max3_f32 {m}, {v(r[0])}, {v(r[1])}, {v(r[2])}', f'v_max3_f32 {m}, {m}, {v(r[3])}, {v(r[4])}',
                       f'v_max3_f32 {m}, {m}, {v(r[5])}, {v(r[6])}', f'v_max_f32 {m}, {m}, {v(r[7])}'] + self.xlane_max(m, m2)
                row += [f'v_sub_f32 {v(NM + 4 * t + i)}, 0, {m}' for i in range(4)]
                row += [f'v_sub_f32 {v(x)}, {v(x)}, {m}' for x in r]
                rows.append(row)
            for z in zip(*rows):
                e += list(z)
        if not safe:
            for (c_, t, i) in self.exp_order()[:c.npart1]:
                x = v(Sr(0, c_, t) + i)
                e.append(f'v_exp_f32 {x}, {x}')
        nput = min(c.put_m, len(self.puts))
        for k in range(nput):
            x = (k + 1) * (len(e) // (nput + 1))
            e[x:x] = self.kv_put(*self.puts.pop(0))
        e += ['s_waitcnt lgkmcnt(0)', 's_barrier']
        self.emit(e, 'max0')

    def cvt_fillers(self, cur, base, todo, rel0):
        fl = []
        todo = list(todo)
        for t in range(6):
            for c_ in range(2):
                for h2 in range(2):
                    b = Sr(cur, c_, t) + 2 * h2
                    for i in (2 * h2, 2 * h2 + 1):
                        if (c_, t, i) in todo:
                            fl.append(Filler(f'v_exp_f32 {v(Sr(cur, c_, t) + i)}, {v(Sr(cur, c_, t) + i)}', rel=rel0, dl=base + t - 4, stream='e', pos=-3))
                    fl.append(Filler(f'v_cvt_pk_bf16_f32 {v(P_ + 4 * t + 2 * c_ + h2)}, {v(b)}, {v(b + 1)}', rel=rel0, dl=base + t - 3,
                                     stream='c', pos=-2.5))
                    if self.c.summode == 'dot':
                        fl.append(Filler(I(f'v_dot2c_f32_bf16 {v(L_ + 4 * t)}, {v(ONES)}, {v(P_ + 4 * t + 2 * c_ + h2)}', cost=self.c.dot_cost), rel=max(rel0, base - 2), dl=base + 36,
                                         stream='s', pos=-2.4))
                    if self.c.vsum:
                        for i in range(2):
                            fl.append(Filler(f'v_add_f32 {v(L_ + 4 * t)}, {v(L_ + 4 * t)}, {v(b + i)}', rel=rel0, dl=base + 40, stream='s', pos=-2.4))
        return fl

    def attn_iter(self, j, safe, dma='kv', xwait='s_waitcnt vmcnt(8)', nextk=True, site=None, extra=(), win=None):
        c = self.c
        cur, new = j & 1, (j + 1) & 1
        pv, first = self.pv_mfmas(j == 0)
        mf = self.qk_mfmas(new) + pv
        n = len(mf)
        need = [6 * phi for phi in range(8)] + [48 + x for x in first] + [n, n + 6]
        fl = []
        for phi in range(2, 18):
            if phi >= 16:
                if not nextk: continue
                r = self.frag_reads(phi - 16, (j + 2) & 3, 0)
            else:
                r = self.frag_reads(phi, (j + 1) & 3, j & 3)
            fl.append(Filler(r, rel=max(need[phi] - 15, 0), dl=need[phi] - 10, stream='fr', pos=need[phi] - 0.5))
        order = self.exp_order()
        if safe:
            fl += self.cvt_fillers(cur, 48, order, 0)
            regs = [S_[new] + i for i in range(48)]
            m = v(vMX)
            fl.append(Filler(f'v_max3_f32 {m}, {v(regs[0])}, {v(regs[1])}, {v(regs[2])}', rel=52, dl=n - 4, stream='m', pos=200))
            for k in range(3, 48, 2):
                r2 = regs[min(k + 1, 47)]
                fl.append(Filler(f'v_max3_f32 {m}, {m}, {v(regs[k])}, {v(r2)}', rel=52, dl=n - 4, stream='m', pos=200))
            fl.append(Filler(f'v_cmp_lt_f32 vcc, {s(sTHR)}, {m}', rel=52, dl=n - 3, stream='m', pos=200))
        else:
            fl += self.cvt_fillers(cur, 48, order[c.npart1:], 0)
            for (c_, t, i) in order[:c.npart1]:
                x = v(Sr(new, c_, t) + i)
                fl.append(Filler(f'v_exp_f32 {x}, {x}', rel=(46 if c_ == 0 else 52), dl=n - 1, stream='e2', pos=200))
        if dma == 'kv':
            gs = self.kv_groups(sTB + (j & 3), 0, None, c.win if win is None else win)
            if j == 4:
                gs[0] = [f's_cmp_eq_u32 {s(sLOOP)}, {s(sKL)}', f's_cselect_b32 {s(SRD_KV + 2)}, 0, {s(SRD_KV + 2)}'] + gs[0]
            for k, g in enumerate(gs):
                n = k - 1
                x = 2 + 11 * (n - n % c.burst) + c.bsp * (n % c.burst) if 0 <= n < 8 else (0 if n < 0 else 88)
                fl.append(Filler(g, rel=x, dl=min(x + (6 if c.burst == 1 else 1), 90) if k else 1, stream='dma'))
        for f in extra:
            if f.stream == 'fr0':
                f.rel = f.dl = need[16] - 17
        fl += list(extra)
        if c.noexp:
            fl = [f for f in fl if not f.ins[0].op.startswith('v_exp')]
        xg = need[15]
        fl.append(Filler([xwait, 's_barrier'] if isinstance(xwait, str) else xwait + ['s_barrier'], rel=xg, dl=xg, stream='x'))
        seq = interleave(mf, fl, 8, c.verbose, f'iter{j}', rate=((c.a_rate if j else 12.0) if not safe else 10.0), cap=((c.cap if c.split and not safe else 20) if j else (16 if c.split else 28)), split=c.split,
                         reserve=({x - 1 for x in need} if c.reserve and not safe else ()))
        if safe:
            seq.append(I(f's_cbranch_vccnz L_rare_{site}'))
            seq.append(I(f'L_back_{site}:'))
            self.sites.append((site, new))
        return seq

    def warm_wo(self, part, tmp=vH + 4):
        L = v(vLANE)
        per = -(-72 // len(self.c.warm_at))
        assert per <= 64
        t0, t1 = v(tmp), v(tmp + 1)
        e = []
        if self.c.warm_it:
            t0 = v(vWM)
        elif part == 0:
            e += [f'v_lshlrev_b32 {t0}, 7, {L}', f'v_mov_b32 {t1}, {OOB}', f'v_cmp_gt_u32 vcc, {per}, {L}', 's_nop 1', f'v_cndmask_b32 {t0}, {t1}, {t0}, vcc']
        e += [f's_lshl_b32 {s(sT1)}, {s(sB)}, 2', f's_add_u32 {s(sT1)}, {s(sT1)}, {s(sW)}', f's_mul_i32 {s(sT1)}, {s(sT1)}, 9216',
              f's_add_u32 {s(sT1)}, {s(sT1)}, {128 * per * part}',
              I(f'buffer_load_dword {v(vF) if self.c.warm_it else v(253)}, {t0}, {s(SRD_WO, 4)}, {s(sT1)} offen{self.c.warm_nt}', tag='W', cost=self.c.dma_cost)]
        return e

    def attention(self, safe):
        c = self.c
        lab = 's' if safe else 'f'
        self.emit([f's_mov_b32 {s(sLOOP)}, 7'])
        self.attn_pre(safe, lab)
        self.tr(name='pre')
        assert c.n_stage == 2
        tc = [Filler(g, rel=4 + 3 * k, dl=(8 + 3 * k if safe else 90), stream='tc') for k, g in enumerate(self.tail_consts())]
        if self.puts:
            ex = [Filler(self.kv_put(tl, n), rel=int(k * c.put_sp), dl=int(k * c.put_sp) + 1, stream='put', pos=-1) for k, (tl, n) in enumerate(self.puts)]
            ex.append(Filler(['s_waitcnt lgkmcnt(0)', 's_barrier'], rel=84, dl=84, stream='put'))
            self.puts = []
            self.emit(self.attn_iter(0, safe, dma=None, site='0', extra=ex), 'iter0')
        else:
            self.emit(self.attn_iter(0, safe, site='0', extra=[Filler(['s_waitcnt vmcnt(8)', 's_barrier'], rel=84, dl=84, stream='fr0')] + tc), 'iter0')
        self.vm_reset()
        self.tr(name='it')
        entry = [set(x) for x in self.lg]
        phases = [(c.win, 0)] if (safe or c.win_b is None) else [(c.win, 7 - c.n1), (c.win_b, 0)]
        if len(phases) == 2 and c.win_c is not None:
            phases = [(c.win, 7 - c.n1), (c.win_b, 7 - c.n1 - c.n2), (c.win_c, 0)]
        for ph, (win, stop) in enumerate(phases):
            self.raw(['.p2align 3', f'L_loop{lab}{ph}:'])
            start = len(self.out)
            for j in range(1, 5):
                self.emit(self.attn_iter(j, safe, site=f'{j}', win=win), f'iter{j}')
                self.tr(dyn=True, name='it')
            assert [set(x) for x in self.lg] == entry, (self.lg, entry)
            self.emit([f's_sub_u32 {s(sLOOP)}, {s(sLOOP)}, 1', f's_cmp_lg_u32 {s(sLOOP)}, {stop}', f's_cbranch_scc1 L_loop{lab}{ph}'])
            rep = []
            pad_hazards(self.out[start:start + 40], history=self.out[-40:], report=rep)
            assert not rep, rep
            if ph and c.trace and not c.trace_o and not c.trace_h:
                self.ntr -= 4
                self.trnames = self.trnames[:-4]
        self.vm_reset()
        if c.trace and not c.trace_o and not c.trace_h:
            self.ntr += 24
            self.trnames += ['it'] * 24
        ex = [Filler(self.clear_done(), rel=2, dl=6)] + [Filler(self.flag_touch(), rel=12, dl=16)]
        wm = [Filler(self.warm_wo(k, vMX + 6), rel=8 + 4 * k, dl=12 + 4 * k, stream='wm') for k in range(len(c.warm_at))] if c.warm_wo and c.warm_it else []
        n29 = len(wm) if c.warm_it == 29 else 0
        n30 = len(wm) if c.warm_it in (29, 30) else 0
        self.emit(self.attn_iter(29, safe, dma=None, xwait=f's_waitcnt vmcnt({10 + n29})', site='29', extra=ex + (wm if n29 else [])), 'iter29')
        self.tr(name='it')
        self.emit(self.attn_iter(30, safe, dma=None, xwait=f's_waitcnt vmcnt({2 + n30})', nextk=False, site='30',
                                 extra=(wm if c.warm_it == 30 else [])), 'iter30')
        self.last_extra = wm if c.warm_it == 31 else []
        self.tr(name='it')
        self.vm_reset()
        self.attn_last(safe)

    def tail_consts(self):
        L = v(vLANE)
        t0, t1, t2 = v(vT), v(vT + 1), v(vT + 2)
        per = -(-72 // len(self.c.warm_at))
        g = [[f'v_lshrrev_b32 {t0}, 3, {L}', f'v_and_b32 {t1}, 7, {L}', f'v_and_b32 {t2}, 6, {t0}', f'v_xor_b32 {t1}, {t1}, {t2}'],
             [f's_lshl_b32 {s(sT1)}, {s(sW)}, 3', f'v_add_u32 {t0}, {s(sT1)}, {t0}', f'v_mul_u32_u24 {t0}, 1152, {t0}', f'v_lshl_add_u32 {v(vOV)}, {t1}, 4, {t0}'],
             [f'v_bfe_u32 {t0}, {L}, 2, 3', f'v_lshrrev_b32 {t1}, 1, {t0}', f'v_xor_b32 {t1}, {s(sW)}, {t1}', f'v_lshlrev_b32 {t1}, 5, {t1}'],
             [f'v_lshl_add_u32 {t0}, {t0}, 7, {t1}', f'v_and_b32 {t1}, 3, {L}', f'v_lshl_add_u32 {t0}, {t1}, 3, {t0}'],
             [f'v_lshrrev_b32 {t1}, 5, {L}', f'v_lshl_add_u32 {v(vOA)}, {t1}, 10, {t0}', f'v_add_u32 {v(vOA2)}, 65536, {v(vOA)}', f'v_lshlrev_b32 {v(vPS)}, 4, {L}']]
        for k in range(4):
            g.append([f's_mul_hi_u32 {s(sT1)}, {s(sH + k)}, {(2 ** 32 + 5) // 6}', f's_add_u32 {s(sT1)}, {s(sT1)}, {OB}', f'v_add_u32 {v(vBA + k)}, {s(sT1)}, {v(vPS)}'])
        g += [[f's_mul_i32 {s(sT1)}, {s(sW)}, 24576', f's_add_u32 {s(sT1)}, {s(sT1)}, {OB}', f'v_add_u32 {v(vOW)}, {s(sT1)}, {v(vPS)}'],
              [f'v_mov_b32 {t2}, {OOB}', f'v_cmp_eq_u32 vcc, 0, {L}', f's_cmp_eq_u32 {s(sW)}, 0', f's_cselect_b32 {s(sT1)}, 1, 0', f'v_cndmask_b32 {v(vL0)}, {t2}, {L}, vcc'],
              [f'v_cmp_gt_u32 vcc, {s(sT1)}, {L}', f'v_lshlrev_b32 {t0}, 7, {L}', 's_nop 0', f'v_cndmask_b32 {v(vSG)}, {t2}, {L}, vcc'],
              [f'v_cmp_gt_u32 vcc, {per}, {L}', 's_nop 1', f'v_cndmask_b32 {v(vWM)}, {t2}, {t0}, vcc'],
              [f'v_subrev_u32 {t0}, 7, {L}', f'v_sub_u32 {t1}, {s(sJ)}, {t0}', f'v_and_b32 {t1}, 7, {t1}', f'v_lshlrev_b32 {t1}, 12, {t1}'],
              [f'v_lshl_add_u32 {t1}, {t0}, 7, {t1}', f'v_cmp_gt_u32 vcc, 15, {L}', f'v_lshlrev_b32 {t0}, 12, {L}', 's_nop 0', f'v_cndmask_b32 {t1}, 0, {t1}, vcc'],
              [f'v_cmp_gt_u32 vcc, 8, {L}', 's_nop 1', f'v_cndmask_b32 {v(vPA)}, {t1}, {t0}, vcc'],
              [f'v_and_b32 {t0}, 15, {L}', f'v_mul_u32_u24 {t0}, 2304, {t0}', f'v_lshrrev_b32 {t1}, 4, {L}', f'v_lshl_add_u32 {v(vOO)}, {t1}, 3, {t0}'],
              [f'v_bfe_u32 {t0}, {L}, 2, 2', f'v_cmp_eq_u32 vcc, {t0}, {t1}', f'v_and_b32 {t0}, 1, {L}', f'v_lshlrev_b32 {t0}, 4, {t0}',
               f'v_lshlrev_b32_e64 {t0}, {t0}, 1', f'v_mul_u32_u24 {t0}, 0x3f80, {t0}', f'v_cndmask_b32 {t0}, 0, {t0}, vcc'],
              [f'v_and_b32 {t1}, 2, {L}', f'v_cmp_eq_u32 vcc, 0, {t1}', f'v_mov_b32 {v(SEL)}, 0', f'v_mov_b32 {v(SEL + 1)}, 0',
               f'v_cndmask_b32 {v(SEL + 2)}, 0, {t0}, vcc', f'v_sub_u32 {v(SEL + 3)}, {t0}, {v(SEL + 2)}'],
              [f'v_mov_b32 {v(SEL + 4)}, 0', f'v_mov_b32 {v(SEL + 5)}, 0', f's_lshl_b32 {s(sFA)}, {s(sW)}, 10']]
        return g

    def flag_touch(self):
        return [I(f'buffer_load_dword {v(vF)}, {v(vPA)}, {s(SRD_FL, 4)}, {s(sFA)} offen{self.c.fl_mod}', cost=self.c.dma_cost)]

    def check(self, reg, want, reload, name, allanes=False, two=False):
        k = len(self.spins)
        if two:
            test = [f'v_and_b32 {v(reg)}, {v(reg)}, {v(reg + 1)}', 's_nop 0', f'v_readfirstlane_b32 {s(sT3)}, {v(reg)}', 's_nop 1', f's_cmp_eq_u32 {s(sT3)}, {want}']
        elif allanes:
            test = [f'v_cmp_eq_u32 vcc, 0, {v(reg)}', 's_nop 1', f's_and_b32 {s(sT3)}, vcc_lo, {want:#x}', f's_cmp_eq_u32 {s(sT3)}, 0']
        else:
            test = [f'v_readfirstlane_b32 {s(sT3)}, {v(reg)}', 's_nop 1', f's_cmp_lg_u32 {s(sT3)}, 0']
        self.spins.append((k, reload, test))
        return test + [f's_cbranch_scc0 L_spin{k}', f'L_spun{k}:']

    def spin_blocks(self):
        for k, reload, test in self.spins:
            self.raw([f'L_spin{k}:', f's_mov_b32 {s(sSPIN)}, {self.c.spin_max}', f'L_spinl{k}:', 's_sleep 1', reload, 's_waitcnt vmcnt(0)'] + test +
                     ([f's_cbranch_scc0 L_spinc{k}', f's_sub_u32 {s(sSPIN)}, {self.c.spin_max + 1}, {s(sSPIN)}', f'v_writelane_b32 v254, {s(sSPIN)}, {58 + k}',
                       f's_branch L_spun{k}', f'L_spinc{k}:'] if self.c.trace else []) +
                     [f's_cbranch_scc1 L_spun{k}', f's_sub_u32 {s(sSPIN)}, {s(sSPIN)}, 1', f's_cmp_lg_u32 {s(sSPIN)}, 0', f's_cbranch_scc1 L_spinl{k}',
                      f's_branch L_spun{k}'])

    def plan_wo(self):
        self.slot_of = {0: 0, 1: 1, 2: 2}
        self.issue_at = {}
        free = [3]
        nxt = 3
        for sg in range(1, 36):
            if sg >= 2:
                free.append(self.slot_of[sg - 2])
            if sg == 5:
                free += list(range(4, self.c.oring))
            todo = []
            while nxt < 36 and free and len(todo) < 2:
                self.slot_of[nxt] = free.pop(0)
                todo.append(nxt); nxt += 1
            assert nxt >= min(sg + 2, 36)
            self.issue_at[sg] = todo

    def wo_slot(self, n):
        return 16384 * self.slot_of[n >> 2] + 4096 * (n & 3)

    def wo_unit(self, n):
        p, kk = n >> 4, n & 15
        g = [f's_add_u32 m0, {s(sWOL)}, {self.wo_slot(n)}']
        if kk == 0:
            if p == 0:
                g += [f's_mov_b32 {s(sCG)}, 1024']
            else:
                g += [f's_add_u32 {s(sCG)}, {s(sJ)}, {p}', f's_and_b32 {s(sCG)}, {s(sCG)}, 7', f's_lshl_b32 {s(sCG)}, {s(sCG)}, 7']
        elif kk & 3 == 0:
            g += [f's_add_u32 {s(sCG)}, {s(sCG)}, 36864']
        g += [f's_add_u32 {s(sSO)}, {s(sH + (kk & 3))}, {s(sCG)}']
        g.append(self.dma(vOV, SRD_WO, s(sSO), 0, self.c.wo_nt, ('O', n)))
        return g

    def attn_last(self, safe):
        c = self.c
        cur = 1
        e = self.frag_reads(8, 0, 3) + self.frag_reads(9, 0, 3)
        self.emit(e, 'last0')
        pv, first = self.pv_mfmas()
        fl = []
        for phi in range(10, 16):
            nd = first[phi - 8]
            fl.append(Filler(self.frag_reads(phi, 0, 3), rel=max(nd - 18, -1), dl=nd - 10, stream='fr', pos=nd - 0.5))
        order = self.exp_order()
        fl += self.cvt_fillers(cur, 0, order if safe else order[c.npart1:], -1)
        for n in range(12):
            fl.append(Filler(self.wo_unit(n), rel=3 * n, dl=3 * n + 8, stream='dma'))
        for k, f in enumerate(self.last_extra):
            f.rel = f.dl = 38 + 3 * k
            f.pos = f.rel + 0.5
            fl.append(f)
        fl.append(Filler('s_barrier', rel=first[7], dl=first[7], stream='x'))
        if c.summode in ('m4', 'dot', 'm16zz'):
            rows = []
            for t in range(6):
                m, m2 = v(L_ + 4 * t), v(L_ + 4 * t + 1)
                rows.append([x.replace('v_max_f32', 'v_add_f32') for x in self.xlane_max(m, m2)])
            for z in zip(*rows):
                for x in z:
                    fl.append(Filler(x, rel=first[6] + 2, dl=60, stream='r', pos=99))
        for t in range(6):
            fl.append(Filler(f'v_rcp_f32 {v(vR + 2 * t)}, {v(L_ + 4 * t)}', rel=first[min(t + 2, 7)] + 3, dl=60, stream='r', pos=100))
        self.emit(interleave(pv, fl, 8, c.verbose, 'last', rate=9.0, cap=(12 if c.split else None), split=c.split), 'last')

    def ofrag(self, k, tb, pk=True):
        u, t = divmod(k, 6)
        e = [[f'v_accvgpr_read_b32 {v(tb + i)}, {a(Oacc(2 * u + (i >> 2), t) + (i & 3))}'] for i in range(8)]
        if pk:
            e += [[f'v_pk_mul_f32 {v(tb + i, 2)}, {v(tb + i, 2)}, {v(vR + 2 * t, 2)} op_sel_hi:[1,0]'] for i in range(0, 8, 2)]
        else:
            e += [[f'v_mul_f32 {v(tb + i)}, {v(tb + i)}, {v(vR + 2 * t)}'] for i in range(8)]
        e += [[f'v_cvt_pk_bf16_f32 {v(tb + i)}, {v(tb + 2 * i)}, {v(tb + 2 * i + 1)}'] for i in range(4)]
        e.append([I(f'ds_write_b128 {v(vOW)}, {v(tb, 4)} offset:{1024 * k}', cost=12)])
        return e

    def onorm(self):
        return flat(flat(self.ofrag(k, 8 * (k % 6), self.c.norm_pk) for k in range(self.c.npre)))

    def oproj(self):
        c = self.c
        NS = 144

        def aread(n):
            r = OA_ + 4 * (n & 3)
            ad = self.wo_slot(n)
            return [f'ds_read_b64_tr_b16 {v(r + 2 * e_, 2)}, {v((vOA, vOA2)[ad >> 16])} offset:{(ad & 65535) + 2048 * e_}' for e_ in range(2)]

        def bread(kk, t):
            phi = 6 * kk + t
            return f'ds_read_b128 {Bfrag(phi)}, {v(vBA + (kk & 3))} offset:{1024 * (6 * (kk >> 2) + t)}'

        def prod(p, sd):
            return [f's_sub_u32 {s(sd)}, {s(sJ)}, {p}', f's_and_b32 {s(sd)}, {s(sd)}, 7', f's_lshl_b32 {s(sd)}, {s(sd)}, 2',
                    f's_add_u32 {s(sd)}, {s(sd)}, {s(sW)}']

        def fload(p):
            return f'buffer_load_dword {v(vF)}, {v(SEL)}, {s(SRD_FL, 4)}, {s(sFA)} offen offset:{128 * p}{c.fl_mod}'

        def poll(p):
            return prod(p, sFA) + [f's_lshl_b32 {s(sFA)}, {s(sFA)}, 10', I(fload(p), tag=('F', p), cost=c.dma_cost)]

        def dloads(p, dst):
            g = []
            for z in range(3):
                o = f' offset:{1024 * z}' if z else ''
                g.append([I(f'buffer_load_dwordx4 {dst(z)}, {v(vPS)}, {s(SRD_WS, 4)}, {s(sDAt[p])} offen{o}{c.d_mod}', tag=('D', p), cost=c.dma_cost)])
            return g

        def adds(src, first=False):
            r = []
            for z in range(3):
                for h in range(2):
                    acc = v(RR + 8 * z + 4 * h, 4)
                    r.append(I(f'{MF} {acc}, {v(SEL + 2 - 2 * h, 4)}, {src(z)}, {0 if first else acc}'))
            return r

        def signal(p):
            return [self.wvm(('P', p)),
                    I(f'buffer_store_dword {v(vOA2)}, {v(vL0)}, {s(SRD_FL, 4)}, {s(sFS)} offen offset:{128 * p}{c.fl_mod}', tag=('S', p), cost=c.dma_cost)]

        ldb = lambda z: v(LDB + 4 * z, 4)
        bufs = [ldb, lambda z: v(4 * z, 4), lambda z: v(12 + 4 * z, 4)] + [(lambda k: (lambda z: v(HB + 8 + 12 * k + 4 * z, 4)))(k) for k in range(4)]
        e = [bread(0, t) for t in range(6)] + aread(0) + aread(1) + [bread(1, t) for t in range(3)] + self.fb_check + [bread(1, 3)]
        self.emit(e, 'opre')
        mf, fl = [], []
        G = []
        A = {}
        SH = {}
        hreg = lambda i: v(RR + 8 + 4 * i, 4) if i < 4 else (v(LDB + 4 * (i - 4), 4) if i < 7 else v(RR + 8, 4))
        for n in range(NS):
            p, kk = n >> 4, n & 15
            for k, nn in enumerate(c.add_at):
                if n == nn:
                    A[k] = len(mf)
                    for q in ((0,), (0,), (0,), (1, 2))[k]:
                        mf += adds(bufs[q], k == 0)
            if c.sh_early and n in c.sh_pos[2:]:
                k = c.sh_pos[2:].index(n)
                SH[k] = len(mf)
                for i in (range(7) if k == 0 else (7,)):
                    for h in range(2):
                        acc = v(RR + 4 * h, 4)
                        mf.append(I(f'{MF} {acc}, {v(SEL + 2 - 2 * h, 4)}, {hreg(i)}, {acc if i else 0}'))
            G.append(len(mf))
            for t in range(6):
                acc = v((RR if p == 8 else OACC[p & 1]) + 4 * t, 4)
                mf.append(I(f'{MF} {acc}, {v(OA_ + 4 * (n & 3), 4)}, {Bfrag(6 * kk + t)}, {acc if kk or p == 8 else 0}'))
        G.append(len(mf))
        at = lambda p, x: min(G[16 * p + x // 6] + x % 6, len(mf) - 1) if 16 * p + x // 6 < NS else len(mf) - 1
        for t in range(4, 6):
            fl.append(Filler(bread(1, t), rel=0, dl=1, stream='b', pos=5.5))
        for n in range(NS):
            p, kk = n >> 4, n & 15
            g0 = G[n]
            m = n + 2
            if m < NS:
                if m % 4 == 0:
                    sg = m // 4
                    pub = sg < 4 and 6 * (sg + 1) > c.npre
                    fl.append(Filler([self.wvm(('O', m + 3))] + (['s_waitcnt lgkmcnt(0)'] if pub else []) + ['s_barrier'], rel=g0 - 1, dl=g0,
                                     stream='a', pos=g0 - 0.4))
                    if sg < 4:
                        ks = [k for k in range(6 * sg, 6 * sg + 6) if k >= c.npre]
                        items = flat(self.ofrag(k, 24 + 8 * (k % 3), False) for k in ks)
                        lo, hi = max(g0 - 24, 0), g0 - 2
                        for q, it in enumerate(items):
                            x = lo + q * (hi - lo) // len(items)
                            fl.append(Filler(it, rel=x, dl=x, stream='cv', pos=lo - 0.6 + 1e-4 * q))
                    units = [4 * q + k for q in self.issue_at[sg] for k in range(4)]
                    for k, uu in enumerate(units):
                        sp = 24 // max(len(units), 1)
                        fl.append(Filler(self.wo_unit(uu), rel=g0 + 2 + sp * k, dl=g0 + 3 + sp * k, stream='dma'))
                fl.append(Filler(aread(m), rel=g0, dl=g0 + 2, stream='a', pos=G[m] - 0.5))
                if m < 16:
                    for t in range(6):
                        fl.append(Filler(bread(m, t), rel=g0 + 1 + t, dl=g0 + 5 + t, stream='b', pos=G[m] - 0.5))
            if kk == 15 or (c.trace_o and kk & 3 == 3):
                self.tr_filler(fl, g0 + 5, 'o')
            if kk == 15 and p < 8:
                for z in range(3):
                    for i in range(4):
                        b = OACC[p & 1] + 8 * z + 2 * i
                        fl.append(Filler(f'v_cvt_pk_bf16_f32 {v(OPK + 4 * z + i)}, {v(b)}, {v(b + 1)}', rel=g0 + 10 + 3 * z, dl=g0 + 11 + 3 * z + (i >> 1),
                                         stream='st', pos=g0 + 5.5))
                    o = f' offset:{1024 * z}' if z else ''
                    fl.append(Filler(I(f'buffer_store_dwordx4 {v(OPK + 4 * z, 4)}, {v(vPS)}, {s(SRD_WS, 4)}, {s(sPSt[p])} offen{o}{c.st_mod}',
                                       tag=('P', p), cost=c.dma_cost), rel=g0 + 10 + 3 * z, dl=g0 + 13 + 3 * z, stream='st', pos=g0 + 5.5))
                sgm = c.sig[0] if p <= 4 else (c.sig[1] if p <= 6 else c.sig[2])
                x = min(g0 + 6 + sgm, len(mf) - 1)
                fl.append(Filler(signal(p), rel=x, dl=x, stream='sig'))
        red = []
        dbgl = f'buffer_load_dwordx2 {v(LDB, 2)}, {v(SEL)}, {s(SRD_DBG, 4)}, {s(sDA)} offen sc1'
        x = at(1, 84) if c.sh_early else at(3, 62)
        red.append(Filler([f's_lshl_b32 {s(sDA)}, {s(sGRP)}, 3', I(dbgl, tag='DBG', cost=c.dma_cost)], rel=x, dl=x + 2))
        x = at(2, 80) if c.sh_early else at(4, 56)
        red.append(Filler([self.wvm('DBG')] + self.check(LDB, 0x01010101, dbgl, 'dbg', two=True), rel=x, dl=x + 2))
        pal = f'buffer_load_dword {v(vF)}, {v(vPA)}, {s(SRD_FL, 4)}, {s(sFA)} offen{c.fl_mod}'

        def place(gs, x, sp=2):
            for k, g in enumerate(gs):
                red.append(Filler(g, rel=x + sp * k, dl=x + 2 + sp * k, pos=x + 0.5 + sp * k))
            return x + sp * len(gs)
        if c.prepoll:
            x = at(3, 64)
            red.append(Filler([f's_lshl_b32 {s(sFA)}, {s(sW)}, 10', I(pal, tag='F_', cost=c.dma_cost)], rel=x, dl=x + 2))
        if c.sh_early:
            hl = lambda i: [I(f'buffer_load_dwordx4 {hreg(i)}, {v(vPS)}, {s(SRD_WS, 4)}, {s(sDAt[0])} offen{c.d_mod}', tag=('H', i), cost=c.dma_cost)] + \
                ([f's_add_u32 {s(sDAt[0])}, {s(sDAt[0])}, 12288'] if i < 7 else [])
            x = at(3, 10)
            red.append(Filler([I(pal, tag='F0', cost=c.dma_cost)], rel=x, dl=x + 2))
            x = at(3, c.sh_pos[0])
            red.append(Filler([self.wvm('F0')] + self.check(vF, 0xff, pal, 'f0', allanes=True), rel=x, dl=x + 2))
            place([hl(i) for i in range(7)], x + 1, 3)
            red.append(Filler(self.wvm(('H', 6)), rel=SH[0] - 1, dl=SH[0] - 1))
            place([hl(7)], SH[0] + 4)
            red.append(Filler(self.wvm(('H', 7)), rel=SH[1] - 1, dl=SH[1] - 1))
            x = SH[1] + 12
            place([[f'v_cvt_pk_bf16_f32 {v(RR + 8 + i)}, {v(RR + 2 * i)}, {v(RR + 2 * i + 1)}'] for i in range(4)], x, 1)
            st = [I(f'buffer_store_dwordx2 {v(RR + 8 + 2 * h, 2)}, {v(vOO)}, {s(SRD_OUT, 4)}, {s((sPS, sT3)[h])} offen{c.out_mod}', tag='UNCOUNTED') for h in range(2)]
            red.append(Filler([f's_mul_i32 {s(sPS)}, {s(sJ)}, {32 * 2304}', f's_add_u32 {s(sPS)}, {s(sPS)}, {s(sOO)}', f's_add_u32 {s(sPS)}, {s(sPS)}, 1024',
                               f's_add_u32 {s(sT3)}, {s(sPS)}, {16 * 2304}', f's_cmp_lt_u32 {s(sJ)}, 3', 's_cbranch_scc0 L_nosh'] + st + ['L_nosh:'],
                              rel=x + 5, dl=x + 7, pos=x + 5.5))
        x = at(5, c.pa[0])
        red.append(Filler([f's_lshl_b32 {s(sFA)}, {s(sW)}, 10', I(pal, tag='FA', cost=c.dma_cost)], rel=x, dl=x + 2))
        x = at(5, c.pa[1])
        red.append(Filler([self.wvm('FA')] + self.check(vF, 0x700, pal, 'fa', allanes=True), rel=x, dl=x + 2))
        place(dloads(1, ldb), x + 1)
        for k in range(3):
            red.append(Filler(self.wvm(('D', k + 1)), rel=A[k] - 1, dl=A[k] - 1))
            if k < 2:
                place(dloads(k + 2, ldb), A[k] + 6)
        x = at(7, c.pa[2])
        red.append(Filler([I(pal, tag='FB', cost=c.dma_cost)], rel=x, dl=x + 2))
        x = at(7, c.pa[3])
        red.append(Filler([self.wvm('FB')] + self.check(vF, 0x1800 if c.sh_early else 0x18ff, pal, 'fb', allanes=True), rel=x, dl=x + 2))
        place(dloads(4, bufs[1]) + dloads(5, bufs[2]), x + 1)
        x = at(8, c.pb[0])
        red.append(Filler(poll(6), rel=x, dl=x + 2))
        red.append(Filler(self.wvm(('D', 5)), rel=A[3] - 1, dl=A[3] - 1))
        x = G[128 + c.sh_at]
        k = 0
        g = []
        for i in range(0 if c.sh_early else 8):
            g.append(I(f'buffer_load_dwordx4 {v(HB + 4 * i, 4)}, {v(vPS)}, {s(SRD_WS, 4)}, {s(sDAt[0])} offen{c.d_mod}', tag=('H', i), cost=c.dma_cost))
            if i < 7:
                g.append(f's_add_u32 {s(sDAt[0])}, {s(sDAt[0])}, 12288')
            red.append(Filler(g, rel=x + 2 * k, dl=x + 3 + 2 * k, pos=x + 0.5 + 2 * k)); k += 1
            g = []
        x = max(at(8, c.pb[1]), x + 2 * k)
        red.append(Filler([self.wvm(('F', 6))] + self.check(vF, 1, fload(6), 'f6'), rel=x, dl=x + 2))
        x = place(dloads(6, bufs[5]), x + 1)
        x = max(at(8, c.pb[2]), x)
        red.append(Filler(poll(7), rel=x, dl=x + 2))
        if c.pc is not None:
            x = len(mf) - 1 - c.pc
            red.append(Filler([self.wvm(('F', 7))] + self.check(vF, 1, fload(7), 'f7'), rel=x, dl=x))
            place(dloads(7, bufs[6]), x + 1, 1)
        if c.red_off:
            red = []
            self.spins = []
            fl = [f for f in fl if f.stream != 'sig']
        if c.st_off:
            fl = [f for f in fl if not (f.stream == 'st' and f.ins[0].kind == 'vst')]
        for f in fl:
            if f.stream == 'red':
                red.append(f)
        fl = [f for f in fl if f.stream != 'red']
        red.sort(key=lambda f: f.rel)
        for f in red:
            f.stream = 'red'
        fl += red
        for f in fl:
            f.rel = min(f.rel, len(mf) - 1)
        self.emit(interleave(mf, fl, 8, c.verbose, 'oproj', rate=c.o_rate, cap=(c.cap if c.split else 24), split=c.split,
                             reserve=({x - 1 for x in G[16:]} if c.reserve else ())), 'oproj')
        if c.red_off:
            return
        e = []
        if c.pc is None:
            e += [self.wvm(('F', 7))] + self.check(vF, 1, fload(7), 'f7') + flat(dloads(7, bufs[6]))
        for i in range(0 if c.sh_early else 8):
            e.append(self.wvm(('H', i)))
            for h in range(2):
                acc = v(4 * h, 4)
                e.append(f'{MF} {acc}, {v(SEL + 2 - 2 * h, 4)}, {v(HB + 4 * i, 4)}, {acc if i else 0}')
        e += [self.wvm(('D', 6))] + adds(bufs[5])
        if not c.sh_early:
            e += [f's_mul_i32 {s(sPS)}, {s(sJ)}, {32 * 2304}', f's_add_u32 {s(sPS)}, {s(sPS)}, {s(sOO)}', f's_add_u32 {s(sPS)}, {s(sPS)}, 1024',
                  f's_add_u32 {s(sT3)}, {s(sPS)}, {16 * 2304}']
            e += [f'v_cvt_pk_bf16_f32 {v(8 + i)}, {v(2 * i)}, {v(2 * i + 1)}' for i in range(4)]
            e += [f's_cmp_lt_u32 {s(sJ)}, 3', 's_cbranch_scc0 L_nosh']
            self.emit(e, 'otail')
            self.raw([f'buffer_store_dwordx2 {v(8, 2)}, {v(vOO)}, {s(SRD_OUT, 4)}, {s(sPS)} offen{c.out_mod}',
                      f'buffer_store_dwordx2 {v(10, 2)}, {v(vOO)}, {s(SRD_OUT, 4)}, {s(sT3)} offen{c.out_mod}', 'L_nosh:'])
            e = []
        e += [f's_lshl_b32 {s(sPS)}, {s(sJ)}, 7', f's_add_u32 {s(sPS)}, {s(sPS)}, {s(sOO)}']
        e += [self.wvm(('D', 7))] + adds(bufs[6])
        for t in range(6):
            e += [f'v_cvt_pk_bf16_f32 {v(12 + 2 * t + i)}, {v(RR + 4 * t + 2 * i)}, {v(RR + 4 * t + 2 * i + 1)}' for i in range(2)]
            e.append(I(f'buffer_store_dwordx2 {v(12 + 2 * t, 2)}, {v(vOO)}, {s(SRD_OUT, 4)}, {s(sPS)} offen{c.out_mod}', tag='Z'))
            if t < 5:
                e.append(f's_add_u32 {s(sPS)}, {s(sPS)}, {16 * 2304}')
        self.emit(e, 'otail')

    def rare_paths(self):
        for site, new in self.sites:
            self.raw([f'L_rare_{site}:', f's_call_b64 {s(sRET, 2)}, L_rescale_{new}', f's_branch L_back_{site}'])
        if not self.sites:
            return
        for new in range(2):
            e = []
            self.raw([f'L_rescale_{new}:', 's_nop 15'])
            m, m2, f = v(vT), v(vT + 1), v(vT + 2)
            for t in range(6):
                r = [Sr(new, 0, t) + i for i in range(4)] + [Sr(new, 1, t) + i for i in range(4)]
                e += [f'v_max3_f32 {m}, {v(r[0])}, {v(r[1])}, {v(r[2])}', f'v_max3_f32 {m}, {m}, {v(r[3])}, {v(r[4])}',
                      f'v_max3_f32 {m}, {m}, {v(r[5])}, {v(r[6])}', f'v_max3_f32 {m}, {m}, {v(r[7])}, 0'] + self.xlane_max(m, m2)
                e += [f'v_exp_f32 {f}, -{m}']
                e += [f'v_sub_f32 {v(NM + 4 * t + i)}, {v(NM + 4 * t + i)}, {m}' for i in range(4)]
                e += [f'v_sub_f32 {v(x)}, {v(x)}, {m}' for x in r]
                e += [f'v_mul_f32 {v(L_ + 4 * t + i)}, {v(L_ + 4 * t + i)}, {f}' for i in range(4)]
                for dt in range(8):
                    for i in range(0, 4, 2):
                        o = Oacc(dt, t) + i
                        e += [f'v_accvgpr_read_b32 {v(vMX)}, {a(o)}', f'v_accvgpr_read_b32 {v(vMX + 1)}, {a(o + 1)}',
                              f'v_mul_f32 {v(vMX)}, {v(vMX)}, {f}', f'v_mul_f32 {v(vMX + 1)}, {v(vMX + 1)}, {f}',
                              f'v_accvgpr_write_b32 {a(o)}, {v(vMX)}', f'v_accvgpr_write_b32 {a(o + 1)}, {v(vMX + 1)}']
            e += ['s_nop 1', f's_setpc_b64 {s(sRET, 2)}']
            self.out += pad_hazards([mk(x) for x in e])

    def finish(self):
        self.raw(['L_end:', 's_endpgm'])

    def trace_move(self):
        if self.c.trace:
            self.tr(name='norm')
            self.emit([f'v_writelane_b32 v254, 0, {58 + k}' for k in range(6)])

    def trace_out(self):
        if not self.c.trace:
            return
        self.tr(name='tail')
        self.emit(['s_waitcnt vmcnt(0)'])
        self.tr(name='drain')
        e = [f's_add_u32 s12, s58, {STAMP_OFF + 0x80000}', 's_addc_u32 s13, s59, 0', 's_mov_b32 s14, 0x80000', 's_mov_b32 s15, 0x20000',
             f's_lshl_b32 {s(sT1)}, s2, 2', f's_add_u32 {s(sT1)}, {s(sT1)}, {s(sW)}', f's_lshl_b32 {s(sT1)}, {s(sT1)}, 9',
             f'v_lshrrev_b32 v40, 1, {v(vPS)}', I(f'buffer_store_dwordx2 v[254:255], v40, s[12:15], {s(sT1)} offen', tag='TR')]
        if self.c.dbgout:
            names = self.trnames
            last = lambda n: len(names) - 1 - names[::-1].index(n)
            its = [i for i, n in enumerate(names) if n == 'it']
            sel = [last('first'), names.index('q'), last('q'), last('conv'), last('pre'), its[4], its[12], its[20], its[27], its[-1], last('last'), last('norm'),
                   last('o') - 4, last('o'), last('tail'), last('drain')]
            e += ['s_waitcnt vmcnt(0)', 's_or_b32 s4, s2, s3', 's_cmp_lg_u32 s4, 0', 's_cbranch_scc1 L_end', 'v_readlane_b32 s5, v254, 0', 'v_mov_b32 v41, 0']
            for k, i in enumerate(sel):
                e += [f'v_readlane_b32 s4, v254, {i}', 's_nop 1', 's_sub_u32 s4, s4, s5', f'v_writelane_b32 v41, s4, {k}']
            e += [f'v_lshrrev_b32 v40, 2, {v(vPS)}', 's_mov_b64 exec, 0xffff', f'buffer_store_dword v41, v40, {s(SRD_DBG, 4)}, 0 offen']
        self.emit(e)

    def kernel1(self):
        c = self.c
        self.setup()
        self.qproj()
        self.attention(c.mode == 'safe')
        self.tr(name='last')
        vm_join = list(self.vm)
        self.raw(['L_norm:'])
        e = []
        if c.mode == 'fast':
            m = v(vT)
            e += [f'v_max3_f32 {m}, {v(L_)}, {v(L_ + 4)}, {v(L_ + 8)}', f'v_max3_f32 {m}, {m}, {v(L_ + 12)}, {v(L_ + 16)}',
                  f'v_max_f32 {m}, {m}, {v(L_ + 20)}', f'v_cmp_nge_f32 vcc, {s(sLTHR)}, {m}',
                  's_nop 1', 's_cmp_lg_u64 vcc, 0', f's_cselect_b32 {s(sT1)}, 1, 0', f's_andn2_b32 {s(sT1)}, {s(sT1)}, {s(sSAFE)}',
                  f'v_mov_b32 {v(vT + 1)}, {s(sT1)}', f's_lshl_b32 {s(sT1)}, {s(sW)}, 2', f's_add_u32 {s(sT1)}, {s(sT1)}, {49152}',
                  f'v_mov_b32 {v(vT + 2)}, {s(sT1)}', f'ds_write_b32 {v(vT + 2)}, {v(vT + 1)}']
        e += self.onorm()
        e += [self.wvm(('O', 3)), 's_waitcnt lgkmcnt(0)', 's_barrier']
        self.fb_check = []
        if c.mode == 'fast':
            e += [f'ds_read_b128 {v(OPK, 4)}, {v(SEL)} offset:49152']
            self.fb_check = [f'v_or3_b32 {v(OPK)}, {v(OPK)}, {v(OPK + 1)}, {v(OPK + 2)}', f'v_or_b32 {v(OPK)}, {v(OPK)}, {v(OPK + 3)}',
                             f'v_readfirstlane_b32 {s(sT1)}, {v(OPK)}', f's_cmp_lg_u32 {s(sT1)}, 0', 's_cbranch_scc1 L_fallback']
        self.emit(e, 'onorm')
        self.trace_move()
        self.oproj()
        self.trace_out()
        self.finish()
        if c.mode == 'fast':
            self.raw(['L_fallback:'])
            self.lg = []; self.vm = []
            tr = c.trace
            c.trace = False
            e = ['s_waitcnt vmcnt(0) lgkmcnt(0)', 's_barrier', f's_mov_b32 {s(sSAFE)}, 1', f's_mov_b32 {s(sOFF)}, {s(sOFF0)}',
                 f's_add_u32 {s(sOFF2)}, {s(sOFF)}, 4096', f's_mov_b32 {s(SRD_KV + 2)}, 262144']
            self.emit(e)
            self.kv_reload()
            self.attention(True)
            assert [x[0] for x in self.vm] == [x[0] for x in vm_join], (self.vm, vm_join)
            self.emit(['s_waitcnt lgkmcnt(0)', 's_nop 15', 's_branch L_norm'])
            c.trace = tr
        self.rare_paths()
        self.spin_blocks()
        return self.out


def descriptor(name, vg, acc, sg=102):
    d = ['.section .rodata,"a"', '.p2align 6', f'.amdhsa_kernel {name}']
    for k, x in dict(next_free_vgpr=vg, next_free_sgpr=sg, accum_offset=acc, group_segment_fixed_size=0, kernarg_size=104,
                     user_sgpr_count=2, user_sgpr_kernarg_segment_ptr=1, system_sgpr_workgroup_id_x=1).items():
        d.append(f'  .amdhsa_{k} {x}')
    d.append('.end_amdhsa_kernel')
    return d


def build(cfg, path):
    g = Gen(cfg)
    k1 = g.kernel1()
    L = ['; @launch grid=(256,1,1) block=(256,1,1) lds=163840',
         '; Fused GQA block x2: Q projection + flash attention + O projection with an in-kernel reduce-scatter.',
         '.amdgcn_target "amdgcn-amd-amdhsa--gfx950"', '.text']
    L += [f'.globl {K1}', '.p2align 8', f'.type {K1},@function', f'{K1}:']
    L += [('' if x.kind in ('label', 'dir') else '    ') + x.text for x in k1]
    if cfg.trace:
        assert g.ntr == len(g.trnames) <= 58, (g.ntr, len(g.trnames))
        L += ['; trnames ' + ' '.join(g.trnames)]
    L += descriptor(K1, 512, 256)
    open(path, 'w').write('\n'.join(L) + '\n')
    return g

if __name__ == '__main__':
    kw = {}
    path = sys.argv[1]
    for x in sys.argv[2:]:
        k, val = x.split('=', 1)
        try:
            val = eval(val)
        except Exception:
            pass
        kw[k] = val
    build(Cfg(**kw), path)
```

```python
import sys, math, struct
from asmlib import *

NAME = 'concat_heads__gqa_block_cached__gqa_block_cached__near_ridge'
K1 = NAME + '_kernel'
K2 = 'reduce_partials_kernel'


def f2u(x):
    return struct.unpack('<I', struct.pack('<f', x))[0]


class Cfg:
    trace = False
    dma_cost = 8
    rot = True
    krot = True
    warm_wo = True
    warm_stride = 128
    kv_nt = ' nt'
    w_nt = ''
    x_nt = ''
    wo_nt = ''
    st_mod = ' sc1'
    fl_mod = ' sc1'
    d_mod = ' sc1'
    out_mod = ''
    thr = 8.0
    lthr = 2.0 ** 40
    last_opt = True
    verbose = False
    kv_from = 28
    kv_sp = 8
    t3_late = True
    win_c = 5
    n2 = 1
    npre = 24
    split = True
    reserve = True
    cap = 8
    pre_fast = True
    norm_pk = True
    kv_nc = 9
    put_sp = 4
    put_m = 8
    kv_gap = 0
    put_q = 6
    win = (3, 4, 4)
    fake_kv = False
    mode = 'fast'
    force_fb = False
    q_rate = 8.0
    a_rate = 8.3
    o_rate = 8.0
    npart1 = 30
    oring = 6
    sig = (70, 60, 40)
    pa = (30, 70, 30, 70)
    pb = (10, 50, 68)
    add_at = (101, 111, 122, 138)
    sh_at = 4
    sh_early = False
    sh_pos = (58, 78, 4 * 16 + 5, 4 * 16 + 14)
    pc = 15
    wpad = 8
    burst = 1
    bsp = 2
    prepoll = False
    spin_max = 200000
    n_stage = 2
    trace_h = False
    win_b = 4
    n1 = 4
    dbgout = False
    q32 = False
    wq_sp = 6
    q32_budget = 24
    xtouch = -1
    warm_it = 31
    vsum = False
    summode = 'm16zz'
    dot_cost = 8
    nosum = False
    noexp = False
    krot_m = 9
    red2 = True
    warm_code = True
    trace_o = False
    red_off = False
    st_off = False
    warm_nt = ''
    warm_at = (0, 1)
    init_u = 4
    ramp = 18
    touch_at = ()
    early = (0, 8)
    x1_at = 16
    u4_at = 24
    touch_nt = ''
    cw_late = False
    cw_piece = 8192
    cw_n = 9
    fake_w = False

    def __init__(self, **kw):
        for k, x in kw.items():
            assert hasattr(self, k), k
            setattr(self, k, x)


TS = 8704
RING = 4 * TS
XB = 4 * RING
OB = 65536
GRP = 9 * 8 * 12288
FL_OFF = 32 * GRP
STAMP_OFF = 256 * 122880
assert FL_OFF + 32 * 32768 <= STAMP_OFF
OOB = 0x7ffffff0

sW = 3
sB, sJ, sBLK = 4, 5, 6
SRD_KV, SRD_WQ, SRD_X, SRD_WO, SRD_WS = 8, 12, 16, 20, 24
SRD_FL, SRD_DBG, SRD_OUT = 60, 64, 68
sRING = 28
sOFF, sOFF2 = 29, 30
sHH = 31
sLOOP = 32
sT0, sT1, sT2 = 33, 34, 35
sTB = 40
sH = 44
sWK, sXK = 48, 49
sOFF0 = 50
sSAFE = 51
sTR = 52
sSPIN = 53
sTM = 54
sXL, sSO = 72, 73
sC = 74
sTHR, sLTHR = 76, 77
sRET = 78
sFS = 90
sC1152 = 91
sWOL, sCG, sPS, sPSB, sKL, sFA, sDA, sT3, sGRP, sOO = 80, 81, 82, 83, 84, 85, 86, 87, 88, 89

S_ = [0, 48]
NM = 96
L_ = 120
P_ = 144
FR = 168
ONES = 184
vT = 188
vKA = 192
vVA = 193
vKV = 197
vLANE = 198
vKW = 199
Q45 = 200
vMX = 232
vKW4 = 233
vTRa, vTRb = 254, 255
QA = 200
vWA = 216
vXA = 244
vWV = 220
vXV = 224
vH = 226
QB = 192
OACC = [0, 24]
OA_ = 48
OPK = 64
RR = 76
vR = 80
LDB = 228
vBA = 234
vOW = 238
vWM = 239
vOV, vOA, vOA2, vPS, vF, vOO, vL0, vPA = 240, 241, 242, 243, 244, 245, 246, 247
vSG = 199
SEL = 248
OBV = 100
HB = 100

MF = 'v_mfma_f32_16x16x32_bf16'
MF32 = 'v_mfma_f32_32x32x16_bf16'


def Sr(buf, c, t):
    return S_[buf] + (c * 6 + t) * 4


def Qfrag(t, ks):
    return a(192 + 16 * t + 4 * ks, 4) if t < 4 else v(Q45 + 16 * (t - 4) + 4 * ks, 4)


def Oacc(dt, t):
    return (dt * 6 + t) * 4


def Bfrag(phi):
    if phi < 32:
        return v(OBV + 4 * phi, 4)
    if phi < 48:
        return a(192 + 4 * (phi - 32), 4)
    return a(4 * (phi - 48), 4)


sPSt = [0, 1, 36, 37, 38, 39, 92, 93]
sDAt = [94, 95, 96, 97, 98, 99, 100, 101]

flat = lambda gs: [x for g in gs for x in g]


class Gen:
    def __init__(self, cfg):
        self.c = cfg
        self.out = []
        self.lg = []
        self.vm = []
        self.spins = []
        self.sites = []
        self.ntr = 0
        self.trreg = (vTRa, vTRb)
        self.trnames = []
        self.plan_wo()

    def emit(self, seq, name=''):
        seq = [mk(x) for x in seq]
        seq, self.lg = auto_lgkm(seq, self.lg)
        seq = self.resolve_vm(seq)
        rep = []
        seq = pad_hazards(seq, history=self.out[-40:], report=rep)
        if rep and self.c.verbose:
            for r in rep:
                if 'm0' not in r[1]:
                    print(f'  nop[{name}]', r)
        self.out.extend(seq)

    def raw(self, seq):
        self.out.extend(mk(x) for x in seq)

    def vm_reset(self):
        self.vm = [x for x in self.vm if x[1]]

    def resolve_vm(self, seq):
        out = []
        for ins in seq:
            if ins.kind == 'wait' and 'vmcnt(?)' in ins.text:
                tags = ins.tag if isinstance(ins.tag, list) else [ins.tag]
                idx = -1
                for k, t in enumerate(self.vm):
                    if t[0] in tags:
                        idx = k
                if idx < 0:
                    continue
                n = min(len(self.vm) - 1 - idx, 63)
                self.vm = self.vm[len(self.vm) - n:] if n else []
                out.append(I(f's_waitcnt vmcnt({n})'))
                continue
            if ins.kind == 'wait':
                m = re.search(r'vmcnt\((\d+)\)', ins.text)
                if m:
                    n = int(m.group(1))
                    if n < len(self.vm):
                        self.vm = self.vm[len(self.vm) - n:] if n else []
            touched = set(ins.rd) | (set(ins.wr) if ins.kind != 'vld' else set())
            for t in self.vm:
                assert not (t[1] & touched), f'register of an outstanding load touched: {ins.text} / {t}'
            if ins.kind in ('dma', 'vld', 'vst') and ins.tag != 'UNCOUNTED':
                self.vm.append((ins.tag, set(ins.wr) if ins.kind == 'vld' else set()))
            out.append(ins)
        return out

    def wvm(self, tags):
        return I('s_waitcnt vmcnt(?)', tag=tags)

    def dma(self, vreg, srd, soff, imm, mod, tag):
        o = f' offset:{imm}' if imm else ''
        return I(f'buffer_load_dwordx4 {v(vreg)}, {s(srd, 4)}, {soff} offen{o}{mod} lds', tag=tag, cost=self.c.dma_cost)

    def tr_code(self, dyn=False):
        k = self.ntr
        self.ntr += 1
        ra, rb = self.trreg
        e = ['s_waitcnt lgkmcnt(0)', f's_memrealtime {s(sTM, 2)}', f's_memtime {s(sTM + 2, 2)}', 's_waitcnt lgkmcnt(0)']
        if dyn:
            e += [f's_mov_b32 m0, {s(sTR)}', 's_nop 3', f'v_writelane_b32 {v(ra)}, {s(sTM)}, m0',
                  f'v_writelane_b32 {v(rb)}, {s(sTM + 2)}, m0', f's_add_u32 {s(sTR)}, {s(sTR)}, 1']
        else:
            e += [f'v_writelane_b32 {v(ra)}, {s(sTM)}, {k}', f'v_writelane_b32 {v(rb)}, {s(sTM + 2)}, {k}', f's_mov_b32 {s(sTR)}, {k + 1}']
        return e

    def tr(self, dyn=False, name=''):
        if not self.c.trace or ((self.c.trace_o or self.c.trace_h) and name == 'it'):
            return
        self.trnames.append(name)
        sv = [set(x) for x in self.lg]
        self.emit(self.tr_code(dyn))
        self.lg = sv

    def tr_filler(self, fl, g, name=''):
        if self.c.trace:
            self.trnames.append(name)
            fl.append(Filler(self.tr_code(), rel=g, dl=g, stream='tr', cost=0))

    def kv_groups(self, sb, base, tag, win=None):
        m0 = lambda n: f's_add_u32 m0, {s(sb)}, {base + 1088 * n - 1024 * (n & 3)}'
        groups = [[m0(0)]]
        for n in range(8):
            bu = self.c.burst
            g = [f's_waitcnt vmcnt({win[(n // bu) % len(win)] if isinstance(win, tuple) else win})'] if win is not None and n % bu == 0 else []
            g.append(self.dma(vKV, SRD_KV, s(sOFF if n < 4 else sOFF2), 1024 * (n & 3), self.c.kv_nt, tag))
            if n < 7:
                g.append(m0(n + 1))
            groups.append(g)
        groups.append([f's_add_u32 {s(sOFF)}, {s(sOFF)}, 8192', f's_and_b32 {s(sOFF)}, {s(sOFF)}, 0x3ffff',
                       f's_add_u32 {s(sOFF2)}, {s(sOFF)}, 4096'])
        return groups

    def kv_tile(self, slot, tag):
        return self.kv_groups(sRING, slot * TS, tag)

    def kv_stage(self):
        groups = []
        for tl in range(self.c.n_stage):
            for n in range(8):
                g = []
                so = sOFF if n < 4 else sOFF2
                if tl == 4 and n == 0:
                    g += [f's_lshl_b32 {s(SRD_KV + 2)}, {s(sKL)}, 18']
                o = f' offset:{1024 * (n & 3)}' if n & 3 else ''
                g.append(I(f'buffer_load_dwordx4 {a(32 * tl + 4 * n, 4)}, {v(vKV)}, {s(SRD_KV, 4)}, {s(so)} offen{o}{self.c.kv_nt}',
                           tag=('T', tl, n), cost=self.c.dma_cost))
                if n == 7:
                    if tl == 4:
                        g += [f's_mov_b32 {s(SRD_KV + 2)}, 262144', f's_lshl_b32 {s(sT3)}, {s(sKL)}, 13', f's_add_u32 {s(sOFF)}, {s(sOFF)}, {s(sT3)}']
                    else:
                        g += [f's_add_u32 {s(sOFF)}, {s(sOFF)}, 8192']
                    g += [f's_and_b32 {s(sOFF)}, {s(sOFF)}, 0x3ffff', f's_add_u32 {s(sOFF2)}, {s(sOFF)}, 4096']
                groups.append(g)
        return groups

    def kv_put(self, tl, n):
        ad = (vKW, tl * TS) if tl < 4 else (vKW4, 0)
        return [self.wvm(('T', tl, n)), I(f'ds_write_b128 {v(ad[0])}, {a(32 * tl + 4 * n, 4)} offset:{ad[1] + 1088 * n}', cost=12)]

    def code_warm(self):
        L = v(vLANE)
        return ['s_getpc_b64 s[96:97]', f's_lshl_b32 {s(sT1)}, s7, 2', f's_add_u32 {s(sT1)}, {s(sT1)}, {s(sW)}',
                f's_and_b32 {s(sT1)}, {s(sT1)}, 15', f's_min_u32 {s(sT1)}, {s(sT1)}, {self.c.cw_n - 1 if self.c.mode == "fast" else 5}', f's_mul_i32 {s(sT1)}, {s(sT1)}, {self.c.cw_piece}',
                f'v_mul_u32_u24 {v(vH + 2)}, {self.c.cw_piece // 64}, {L}',
                f'v_add_u32 {v(vH + 2)}, {s(sT1)}, {v(vH + 2)}', I(f'global_load_dword v253, {v(vH + 2)}, s[96:97]', tag='CW')]

    def x_touch(self, kc_now):
        L = v(vLANE)
        t0, t1 = v(vH + 2), v(vH + 3)
        d = 128 * (7 - kc_now)
        return [f'v_and_b32 {t0}, 1, {L}', f'v_lshlrev_b32 {t0}, 7, {t0}', f's_add_u32 {s(sT1)}, {s(sXK)}, {d}', f'v_add_u32 {t0}, {s(sT1)}, {t0}',
                f'v_subrev_u32 {t1}, 1152, {t0}', f'v_min_u32 {t0}, {t0}, {t1}',
                f'v_lshrrev_b32 {t1}, 1, {L}', f'v_min_u32 {t1}, 23, {t1}', f's_mul_i32 {s(sT1)}, {s(sW)}, {24 * 1152}',
                f'v_mad_u32_u24 {t0}, {t1}, {s(sC1152)}, {t0}',
                I(f'buffer_load_dword v239, {t0}, {s(SRD_X, 4)}, {s(sT1)} offen{self.c.x_nt}', tag='W', cost=self.c.dma_cost)]

    def kv_touch(self, k):
        e = []
        if k == 0:
            e += [f'v_lshlrev_b32 {v(vH + 4)}, 7, {v(vLANE)}', f's_add_u32 {s(sFA)}, {s(sKL)}, 3', f's_lshl_b32 {s(sFA)}, {s(sFA)}, 13',
                  f's_add_u32 {s(sFA)}, {s(sFA)}, {s(sOFF0)}']
        else:
            e += [f's_add_u32 {s(sFA)}, {s(sFA)}, 8192']
        e += [f's_and_b32 {s(sFA)}, {s(sFA)}, 0x3ffff',
              I(f'buffer_load_dword v238, {v(vH + 4)}, {s(SRD_KV, 4)}, {s(sFA)} offen{self.c.touch_nt}', tag='W', cost=self.c.dma_cost)]
        return e

    def flag_clear(self):
        L = v(vLANE)
        t0, t1 = v(vH), v(vH + 1)
        return [f'v_lshlrev_b32 {t0}, 7, {L}', f'v_mov_b32 {t1}, {OOB}', f's_cmp_eq_u32 {s(sW)}, 0', f's_cselect_b32 {s(sT3)}, 32, 0',
                f'v_cmp_gt_u32 vcc, {s(sT3)}, {L}', f's_lshl_b32 {s(sT3)}, {s(sJ)}, 12',
                's_nop 0', f'v_cndmask_b32 {t0}, {t1}, {t0}, vcc', f'v_mov_b32 {t1}, 0',
                I(f'buffer_store_dword {t1}, {t0}, {s(SRD_FL, 4)}, {s(sT3)} offen{self.c.fl_mod}', tag='CLR')]

    def clear_done(self):
        return [f'v_mov_b32 {v(vT)}, 1', f's_lshl_b32 {s(sT3)}, {s(sGRP)}, 3', f's_add_u32 {s(sT3)}, {s(sT3)}, {s(sJ)}',
                I(f'buffer_store_byte {v(vT)}, {v(vSG)}, {s(SRD_DBG, 4)}, {s(sT3)} offen sc1', tag='SIG', cost=self.c.dma_cost)]

    def setup(self):
        c = self.c
        e = ['s_cmp_ge_u32 s2, 256', 's_cbranch_scc1 L_end']
        if c.trace:
            e += [f's_memrealtime {s(98, 2)}', f's_memtime {s(100, 2)}']
        e += ['s_load_dwordx8 s[36:43], s[0:1], 0', 's_load_dwordx2 s[44:45], s[0:1], 32',
              's_load_dwordx8 s[48:55], s[0:1], 40', 's_load_dwordx2 s[56:57], s[0:1], 72',
              's_load_dwordx2 s[58:59], s[0:1], 96', 's_load_dwordx4 s[92:95], s[0:1], 80']
        e += ['v_lshrrev_b32 v1, 6, v0', f'v_and_b32 {v(vLANE)}, 63, v0', f'v_readfirstlane_b32 {s(sW)}, v1']
        e += ['s_lshr_b32 s7, s2, 3', f's_and_b32 {s(sB)}, s7, 15', f's_lshr_b32 {s(sJ)}, s7, 4', 's_and_b32 s6, s2, 3',
              's_lshl_b32 s6, s6, 1', f's_add_u32 {s(sJ)}, {s(sJ)}, s6', f's_bfe_u32 {s(sBLK)}, s2, 0x10002']
        e += [f's_and_b32 {s(sHH)}, {s(sW)}, 1', f's_lshr_b32 {s(sT0)}, {s(sW)}, 1']
        e += [f's_lshl_b32 {s(sT1)}, {s(sHH)}, 1', f's_add_u32 {s(sT1)}, {s(sT1)}, {s(sT0)}',
              f's_mul_i32 {s(sRING)}, {s(sT1)}, {RING}',
              f's_lshl_b32 {s(sWOL)}, {s(sW)}, 10', f's_add_u32 {s(sXL)}, {s(sWOL)}, {XB}']
        if c.rot:
            e += [f's_and_b32 {s(sOFF)}, s7, 31', f's_lshl_b32 {s(sOFF)}, {s(sOFF)}, 13']
        else:
            e += [f's_mov_b32 {s(sOFF)}, 0']
        e += [f's_add_u32 {s(sOFF2)}, {s(sOFF)}, 4096']
        L = v(vLANE)
        e += [f'v_lshrrev_b32 v1, 4, {L}',
              f'v_and_b32 v2, 15, {L}',
              f'v_lshrrev_b32 v5, 2, v2',
              f'v_and_b32 v6, 3, {L}',
              f'v_lshrrev_b32 v8, 3, {L}', f'v_and_b32 v9, 7, {L}',
              'v_lshrrev_b32 v10, 1, v8']
        e += ['v_xor_b32 v11, v9, v10', f's_lshl_b32 {s(sT1)}, {s(sHH)}, 2', f'v_xor_b32 v11, {s(sT1)}, v11', 'v_lshlrev_b32 v11, 4, v11',
              f's_lshl_b32 {s(sT1)}, {s(sW)}, 3', f'v_add_u32 v12, {s(sT1)}, v8', 'v_mul_u32_u24 v12, 1152, v12',
              f'v_add_u32 {v(vXV)}, v12, v11']
        if c.q32:
            e += ['v_lshlrev_b32 v11, 2, v1', 'v_xor_b32 v11, v2, v11', 'v_lshlrev_b32 v11, 4, v11', 'v_lshl_add_u32 v11, v1, 13, v11']
        else:
            e += ['v_and_b32 v11, 1, v10', 'v_lshlrev_b32 v11, 2, v11', 'v_xor_b32 v11, v9, v11', 'v_lshlrev_b32 v11, 4, v11',
                  'v_lshl_add_u32 v11, v8, 13, v11']
        e += [f's_lshl_b32 {s(sT1)}, {s(sJ)}, 2', f's_add_u32 {s(sT1)}, {s(sT1)}, {s(sW)}', f's_lshl_b32 {s(sT1)}, {s(sT1)}, 8',
              f'v_add_u32 {v(vWV)}, {s(sT1)}, v11']
        for n in range(1, 4):
            e += [f'v_add_u32 {v(vWV + n)}, {(31744 if c.q32 else 64512 - c.wpad) * n}, {v(vWV)}']
        e += ['s_waitcnt lgkmcnt(0)']
        e += [f's_cmp_eq_u32 {s(sBLK)}, 0']
        for d in range(10):
            e += [f's_cselect_b32 s{36 + d}, s{36 + d}, s{48 + d}']
        e += [f's_mul_i32 {s(sT1)}, {s(sB)}, 110592', f's_add_u32 {s(SRD_X)}, s36, {s(sT1)}', f's_addc_u32 {s(SRD_X + 1)}, s37, 0',
              f's_mov_b32 {s(SRD_X + 2)}, 110592', f's_mov_b32 {s(SRD_X + 3)}, 0x20000']
        e += [f's_mov_b32 {s(SRD_WQ)}, s42', f's_mov_b32 {s(SRD_WQ + 1)}, s43', f's_mov_b32 {s(SRD_WQ + 2)}, 4718592',
              f's_mov_b32 {s(SRD_WQ + 3)}, 0x20000']
        if c.krot and c.krot_m > 1:
            m = c.krot_m
            e += [f's_mul_hi_u32 {s(sT1)}, {s(sB)}, {(2 ** 32 + m - 1) // m}', f's_mul_i32 {s(sT1)}, {s(sT1)}, {m}', f's_sub_u32 {s(sT1)}, {s(sB)}, {s(sT1)}',
                  f's_mul_i32 {s(sT1)}, {s(sT1)}, {9 // m}', f's_lshl_b32 {s(sXK)}, {s(sT1)}, 7', f's_lshl_b32 {s(sWK)}, {s(sT1)}, 19']
        else:
            e += [f's_mov_b32 {s(sXK)}, 0', f's_mov_b32 {s(sWK)}, 0']
        self.emit(e, 'setup')
        e = self.late_setup = []
        e += [f's_cmp_eq_u32 {s(sHH)}, 0', 's_cselect_b32 s38, s38, s40', 's_cselect_b32 s39, s39, s41',
              f's_lshl_b32 {s(sT1)}, {s(sB)}, 4', f's_lshl_b32 {s(sT2)}, {s(sJ)}, 1', f's_add_u32 {s(sT1)}, {s(sT1)}, {s(sT2)}',
              f's_add_u32 {s(sT1)}, {s(sT1)}, {s(sT0)}',
              f's_lshl_b32 {s(sT1)}, {s(sT1)}, 18' if not c.fake_kv else f's_lshl_b32 {s(sT1)}, {s(sT0)}, 18',
              f's_add_u32 {s(SRD_KV)}, s38, {s(sT1)}', f's_addc_u32 {s(SRD_KV + 1)}, s39, 0',
              f's_mov_b32 {s(SRD_KV + 2)}, 262144', f's_mov_b32 {s(SRD_KV + 3)}, 0x20000']
        e += ['v_and_b32 v11, 1, v1', 'v_lshlrev_b32 v11, 1, v11', 'v_lshrrev_b32 v12, 1, v1', 'v_lshl_or_b32 v11, v12, 3, v11',
              f's_cmp_eq_u32 {s(sHH)}, 0', 's_cselect_b64 vcc, -1, 0', 's_nop 1', 'v_cndmask_b32 v11, v11, v1, vcc',
              'v_xor_b32 v11, v2, v11', 'v_lshlrev_b32 v11, 4, v11', f'v_lshl_add_u32 {v(vKV)}, v1, 8, v11']
        e += [f's_mul_i32 {s(sT1)}, {s(sJ)}, 589824', f's_add_u32 {s(SRD_WO)}, s44, {s(sT1)}', f's_addc_u32 {s(SRD_WO + 1)}, s45, 0',
              f's_mov_b32 {s(SRD_WO + 2)}, 589824', f's_mov_b32 {s(SRD_WO + 3)}, 0x20000']
        e += [f's_lshl_b32 {s(sGRP)}, {s(sBLK)}, 4', f's_add_u32 {s(sGRP)}, {s(sGRP)}, {s(sB)}', f's_lshl_b32 {s(sT1)}, {s(sGRP)}, 15',
              f's_add_u32 {s(sT1)}, {s(sT1)}, {FL_OFF}', f's_add_u32 {s(SRD_FL)}, s58, {s(sT1)}', f's_addc_u32 {s(SRD_FL + 1)}, s59, 0',
              f's_mov_b32 {s(SRD_FL + 2)}, 32768', f's_mov_b32 {s(SRD_FL + 3)}, 0x20000',
              f's_mov_b32 {s(SRD_DBG)}, s94', f's_mov_b32 {s(SRD_DBG + 1)}, s95', f's_mov_b32 {s(SRD_DBG + 2)}, 256', f's_mov_b32 {s(SRD_DBG + 3)}, 0x20000',
              f's_mov_b32 {s(SRD_OUT)}, s92', f's_mov_b32 {s(SRD_OUT + 1)}, s93', f's_mov_b32 {s(SRD_OUT + 2)}, 3538944', f's_mov_b32 {s(SRD_OUT + 3)}, 0x20000',
              f's_lshl_b32 {s(sPSB)}, {s(sJ)}, 2', f's_add_u32 {s(sPSB)}, {s(sPSB)}, {s(sW)}',
              f's_xor_b32 {s(sKL)}, {s(sHH)}, 1', f'v_lshlrev_b32 {v(vKW)}, 4, {L}', f's_cmp_eq_u32 {s(sHH)}, 0', f's_cselect_b32 {s(sT1)}, {s(sRING)}, {XB}', f'v_add_u32 {v(vKW4)}, {s(sT1)}, {v(vKW)}',
              f'v_add_u32 {v(vKW)}, {s(sRING)}, {v(vKW)}']
        e += [f's_mul_i32 {s(sT1)}, {s(sGRP)}, {GRP}',
              f's_add_u32 {s(SRD_WS)}, s58, {s(sT1)}', f's_addc_u32 {s(SRD_WS + 1)}, s59, 0',
              f's_mov_b32 {s(SRD_WS + 2)}, {GRP}', f's_mov_b32 {s(SRD_WS + 3)}, 0x20000']
        cs = f2u(math.log2(math.e) / math.sqrt(128.0))
        e += [f's_mov_b32 {s(sC)}, {cs:#x}', f's_mov_b32 {s(sC + 1)}, {cs:#x}', f's_mov_b32 {s(sTHR)}, {f2u(c.thr):#x}',
              f's_mov_b32 {s(sLTHR)}, {f2u(c.lthr if not c.force_fb else 1.0):#x}', f's_mov_b32 {s(sSAFE)}, 0', f's_mov_b32 {s(sC1152)}, 1152',
              f's_mov_b32 {s(sOFF0)}, {s(sOFF)}']
        if c.q32:
            e += [f'v_lshrrev_b32 v3, 5, {L}', 'v_and_b32 v4, 1, v1', 'v_lshlrev_b32 v11, 11, v3', 'v_lshl_add_u32 v11, v5, 8, v11',
                  'v_lshl_add_u32 v11, v4, 4, v11', 'v_and_b32 v12, 1, v6', 'v_lshl_add_u32 v11, v12, 5, v11', 'v_lshrrev_b32 v12, 1, v6',
                  'v_lshl_add_u32 v11, v12, 3, v11', f'v_add_u32 v11, {s(sRING)}, v11']
            for ct in range(4):
                e += [f'v_xor_b32 v12, {ct}, v5', f'v_lshl_add_u32 {v(vWA + ct)}, v12, 6, v11']
            e += [f'v_and_b32 v14, 31, {L}', 'v_lshrrev_b32 v11, 3, v14', 'v_and_b32 v12, 7, v14',
                  'v_lshlrev_b32 v13, 10, v11', 'v_lshl_add_u32 v13, v12, 7, v13', f'v_add_u32 v13, {XB}, v13',
                  'v_lshrrev_b32 v12, 1, v12', 'v_and_b32 v11, 1, v11', 'v_lshlrev_b32 v11, 2, v11', 'v_xor_b32 v12, v12, v11', 'v_xor_b32 v12, v12, v3']
            for k in range(4):
                e += [f'v_xor_b32 v11, {2 * k}, v12', f'v_lshl_add_u32 {v(vXA + k)}, v11, 4, v13']
        else:
            e += [f'v_mul_u32_u24 v11, {1024 + c.wpad}, v1', 'v_lshl_add_u32 v11, v5, 7, v11', 'v_lshl_add_u32 v11, v6, 4, v11',
                  f'v_add_u32 v11, {s(sRING)}, v11', 'v_lshrrev_b32 v12, 1, v5', f'v_lshl_add_u32 {v(vWA)}, v12, 6, v11',
                  'v_xor_b32 v12, 1, v12', f'v_lshl_add_u32 {v(vWA + 1)}, v12, 6, v11']
            e += ['v_lshrrev_b32 v11, 3, v2', 'v_and_b32 v12, 7, v2', 'v_lshlrev_b32 v13, 10, v11', 'v_lshl_add_u32 v13, v12, 7, v13',
                  f'v_add_u32 v13, {XB}, v13', 'v_lshrrev_b32 v12, 1, v12', 'v_lshlrev_b32 v11, 2, v11', 'v_xor_b32 v12, v12, v11',
                  'v_xor_b32 v12, v12, v1', f'v_lshl_add_u32 {v(vXA)}, v12, 4, v13', 'v_xor_b32 v12, 4, v12',
                  f'v_lshl_add_u32 {v(vXA + 1)}, v12, 4, v13']
        e += [f's_mul_i32 {s(sT1)}, {s(sT0)}, {RING}', 'v_mul_u32_u24 v11, 1088, v5', 'v_lshl_add_u32 v11, v6, 8, v11',
              'v_xor_b32 v12, v1, v6', 'v_lshl_add_u32 v11, v12, 4, v11', f'v_add_u32 {v(vKA)}, {s(sT1)}, v11']
        e += [f's_add_u32 {s(sT1)}, {s(sT1)}, {2 * RING}',
              'v_mul_u32_u24 v11, 1088, v1', 'v_lshl_add_u32 v11, v5, 8, v11', 'v_lshl_add_u32 v11, v6, 3, v11',
              f'v_add_u32 v11, {s(sT1)}, v11',
              'v_and_b32 v12, 1, v5', 'v_lshrrev_b32 v13, 1, v5', 'v_lshl_or_b32 v12, v13, 2, v12']
        for k, d in enumerate((0, 1, 4, 5)):
            e += [f'v_xor_b32 v13, {d}, v12', f'v_lshl_add_u32 {v(vVA + k)}, v13, 5, v11']
        for k in range(4):
            e += [f's_sub_u32 {s(sT1)}, {k}, {s(sHH)}', f's_and_b32 {s(sT1)}, {s(sT1)}, 3', f's_mul_i32 {s(sT1)}, {s(sT1)}, {TS}',
                  f's_add_u32 {s(sTB + k)}, {s(sRING)}, {s(sT1)}']
        e += [f's_mul_i32 {s(sT2)}, {s(sPSB)}, 3072', f's_add_u32 {s(sPSt[0])}, {s(sT2)}, {8 * 98304}', f's_mul_i32 {s(sT3)}, {s(sJ)}, 98304',
              f's_mul_i32 {s(sSO)}, {s(sW)}, 3072', f's_add_u32 {s(sT3)}, {s(sT3)}, {s(sSO)}']
        for p in range(1, 8):
            e += [f's_add_u32 {s(sT1)}, {s(sJ)}, {p}', f's_and_b32 {s(sT1)}, {s(sT1)}, 7', f's_mul_i32 {s(sT1)}, {s(sT1)}, 98304',
                  f's_add_u32 {s(sPSt[p])}, {s(sT1)}, {s(sT2)}',
                  f's_sub_u32 {s(sT1)}, {s(sJ)}, {p}', f's_and_b32 {s(sT1)}, {s(sT1)}, 7', f's_mul_i32 {s(sT1)}, {s(sT1)}, 12288',
                  f's_add_u32 {s(sDAt[p])}, {s(sT1)}, {s(sT3)}']
        e += [f's_lshl_b32 {s(sT1)}, {s(sJ)}, 10', f's_add_u32 {s(sT1)}, {s(sT1)}, {s(sSO)}', f's_add_u32 {s(sT1)}, {s(sT1)}, {8 * 98304}',
              f's_cmp_lt_u32 {s(sJ)}, 3', f's_cselect_b32 {s(sDAt[0])}, {s(sT1)}, {GRP}',
              f's_lshl_b32 {s(sFS)}, {s(sPSB)}, 10', f's_mul_i32 {s(sOO)}, {s(sB)}, {96 * 2304}', f's_mul_i32 {s(sT3)}, {s(sBLK)}, 1152',
              f's_add_u32 {s(sOO)}, {s(sOO)}, {s(sT3)}', f's_lshl_b32 {s(sT3)}, {s(sW)}, 5', f's_add_u32 {s(sOO)}, {s(sOO)}, {s(sT3)}']
        for k in range(4):
            e += [f's_add_u32 {s(sT1)}, {s(sB)}, {k}' if c.krot else f's_mov_b32 {s(sT1)}, {k}', f's_and_b32 {s(sT1)}, {s(sT1)}, 3',
                  f's_mul_i32 {s(sH + k)}, {s(sT1)}, 147456']

    def wq_unit(self, u):
        hf = u & 1
        pre = [f's_add_u32 m0, {s(sRING)}, {(4096 + 4 * self.c.wpad) * ((u + 4) & 7)}', f's_add_u32 {s(sSO)}, {s(sWK)}, {(131072 if self.c.q32 else 128) * hf}']
        g = [pre + [self.dma(vWV, SRD_WQ, s(sSO), 0, self.c.w_nt, ('U', u))]]
        for n in range(1, 4):
            g.append([self.dma(vWV + n, SRD_WQ, s(sSO), (1024 + self.c.wpad) * n, self.c.w_nt, ('U', u))])
        if hf and not self.c.fake_w:
            g.append([f's_add_u32 {s(sWK)}, {s(sWK)}, 262144', f's_cmp_eq_u32 {s(sWK)}, 4718592', f's_cselect_b32 {s(sWK)}, 0, {s(sWK)}'])
        return g

    def x_chunk(self, kc):
        g = []
        for m in range(3):
            g.append([f's_add_u32 m0, {s(sXL)}, {12288 * (kc & 1) + 4096 * m}', f's_add_u32 {s(sSO)}, {s(sXK)}, {36864 * m}',
                      self.dma(vXV, SRD_X, s(sSO), 0, self.c.x_nt, ('X', kc))])
        if not self.c.fake_w:
          g.append([f's_add_u32 {s(sXK)}, {s(sXK)}, 128', f's_cmp_eq_u32 {s(sXK)}, 1152', f's_cselect_b32 {s(sXK)}, 0, {s(sXK)}'])
        return g

    def a_reads(self, u, k):
        r = QA + 4 * k
        if self.c.q32:
            return [f'ds_read_b64_tr_b16 {v(r + 2 * e_, 2)}, {v(vWA + k)} offset:{4096 * ((u + 4) & 7) + 1024 * e_}' for e_ in range(2)]
        return [f'ds_read_b64_tr_b16 {v(r + 2 * e_, 2)}, {v(vWA + (k >> 1))} offset:{(4096 + 4 * self.c.wpad) * ((u + 4) & 7) + 512 * e_ + 8 * (k & 1)}' for e_ in range(2)]

    def b_read(self, st, t):
        if self.c.q32:
            return f'ds_read_b128 {a(QB + 12 * (st & 1) + 4 * t, 4)}, {v(vXA + (st & 3))} offset:{12288 * ((st >> 2) & 1) + 4096 * t}'
        kc = st >> 1
        return f'ds_read_b128 {a(QB + 24 * (st & 1) + 4 * t, 4)}, {v(vXA + (st & 1))} offset:{12288 * (kc & 1) + 2048 * t}'

    def qproj(self):
        c = self.c
        if c.trace:
            self.emit([f'v_writelane_b32 {v(vTRa)}, s98, 0', f'v_writelane_b32 {v(vTRb)}, s100, 0'])
            self.ntr = 1
            self.trnames.append('start')
        if c.trace_h:
            self.tr(name='sld')
        e = flat(self.x_chunk(0)) + flat(self.wq_unit(0)) + flat(self.wq_unit(1))
        if c.init_u >= 3:
            e += flat(self.x_chunk(1))
        for u in range(2, min(c.init_u, 4)):
            e += flat(self.wq_unit(u))
        if c.warm_code and not c.cw_late:
            e += self.code_warm()
        e += self.late_setup
        for u in range(4, c.init_u):
            e += flat(self.wq_unit(u))
        if c.trace_h:
            self.emit(e); e = []
            self.tr(name='iss')
            self.emit([self.wvm([('X', 0), ('U', 0)])])
            self.tr(name='land')
        e += [self.wvm([('X', 0), ('U', 0)]), 's_barrier']
        for t in range(3 if c.q32 else 6):
            e.append(self.b_read(0, t))
        for k in range(3):
            e += self.a_reads(0, k)
        self.emit(e, 'qpre')
        self.tr(name='first')
        mf, fl, dm = [], [], []
        NU = 36
        kvg = self.kv_stage()
        D = 12 if c.q32 else 24
        sc = lambda x: x * D // 24
        if c.init_u < 3:
            for k, g in enumerate(self.x_chunk(1)):
                dm.append(Filler(g, rel=sc(c.x1_at) + 2 * k, dl=sc(c.x1_at) + 1 + 2 * k, pos=sc(c.x1_at) + 0.7))
        for q in range(c.init_u, NU):
            if q < 4:
                x = sc(c.early[q - 2])
            else:
                x = max(D * (q - 8) + sc(18), sc(c.ramp) * (q - max(c.init_u, 4)) + (sc(c.u4_at) if c.init_u < 4 else 0))
            steady = x == D * (q - 8) + sc(18)
            nxt_x = ((q - 7) & 3) == (3 if c.q32 else 2)
            sp = sc(c.wq_sp) if steady and not nxt_x else sc(2)
            if steady and nxt_x and c.q32:
                sp = 1.5
            for k, g in enumerate(self.wq_unit(q)):
                dm.append(Filler(g, rel=x + int(sp * k), dl=x + 1 + int(sp * k), pos=x + 0.5))
        if c.warm_code and c.cw_late:
            dm.append(Filler(self.code_warm(), rel=D + sc(8), dl=D + sc(10)))
        dm.append(Filler(self.flag_clear(), rel=D * 2 + sc(6), dl=D * 2 + sc(16)))
        for u in range(NU):
            st, hf = u >> 1, u & 1
            g0 = D * u
            if c.q32:
                for ct in range(4):
                    for t in range(3):
                        acc = v((ct * 3 + t) * 16, 16)
                        mf.append(I(f'{MF32} {acc}, {v(QA + 4 * ct, 4)}, {a(QB + 12 * (u & 1) + 4 * t, 4)}, {acc if u else 0}'))
            else:
                for k in range(4):
                    ct = 4 * hf + k
                    for t in range(6):
                        acc = v((ct * 6 + t) * 4, 4)
                        mf.append(I(f'{MF} {acc}, {v(QA + 4 * k, 4)}, {a(QB + 24 * (st & 1) + 4 * t, 4)}, {acc if st else 0}'))
            fl.append(Filler(self.a_reads(u, 3), rel=g0, dl=g0 + sc(4), stream='a', pos=g0 + sc(18) - 0.5))
            if u + 1 < NU:
                fl.append(Filler(self.wvm(('U', u + 1)), rel=g0 + sc(5), dl=g0 + sc(8), stream='a'))
                for k in range(3):
                    fl.append(Filler(self.a_reads(u + 1, k), rel=g0 + sc(6 * k + 6), dl=g0 + sc(6 * k + 10), stream='a', pos=g0 + D + sc(6 * k) - 0.5))
            xu = (u & 3 == 3) if c.q32 else (u & 3 == 2)
            if xu and u + 1 < NU:
                kc = u >> 2
                if kc < 8:
                    fl.append(Filler([self.wvm(('X', kc + 1)), 's_barrier'], rel=g0 + sc(6) - (1 if c.q32 else 0), dl=g0 + sc(8) - (1 if c.q32 else 0), stream='b'))
                if kc + 2 <= 8:
                    for k, g in enumerate(self.x_chunk(kc + 2)):
                        dm.append(Filler(g, rel=g0 + sc(9 + 3 * k), dl=g0 + sc(10 + 3 * k), pos=g0 + sc(9) + 0.5))
                if kc == c.xtouch:
                    dm.append(Filler(self.x_touch(kc + 3), rel=g0 + sc(17), dl=g0 + sc(18), pos=g0 + sc(17) + 0.2))
            if u in c.touch_at:
                dm.append(Filler(self.kv_touch(c.touch_at.index(u)), rel=g0 + sc(16), dl=g0 + sc(18), pos=g0 + sc(16) + 0.6))
            if c.warm_wo and not c.warm_it and u in c.warm_at:
                dm.append(Filler(self.warm_wo(c.warm_at.index(u)), rel=g0 + sc(16), dl=g0 + sc(18), pos=g0 + sc(16) + 0.5))
            if c.q32 and u + 1 < NU:
                for t in range(3):
                    fl.append(Filler(self.b_read(u + 1, t), rel=g0 + 4 + t, dl=g0 + 7 + t, stream='b', pos=g0 + 11.5))
            if not c.q32 and hf == 0 and st + 1 < 18:
                for t in range(6):
                    fl.append(Filler(self.b_read(st + 1, t), rel=g0 + 9 + 5 * t, dl=g0 + 30 + t, stream='b', pos=g0 + 47.5))
            if u % 4 == 3 and u < 35:
                self.tr_filler(fl, g0 + D - 1, 'q')
        i = 0
        while kvg:
            x = int(D * c.kv_from + sc(4) + c.kv_sp * i * D / 24)
            if x > D * NU - 2:
                break
            fl.append(Filler(kvg.pop(0), rel=x, dl=x + 1, stream='kv')); i += 1
        assert i >= 16
        dm.sort(key=lambda f: f.pos)
        for f in dm:
            f.stream = 'dma'
        fl += dm
        puts = [(tl, n) for tl in range(c.n_stage) for n in range(8)]
        for k in range(c.put_q):
            tl, n = puts.pop(0)
            sl = (tl * TS + 1088 * n + 1023) // (4096 + 4 * c.wpad)
            x = min(max(D * (28 + min(sl, 7)) + sc(18), D * NU - sc(4) * (c.put_q - k)), D * NU - 1)
            fl.append(Filler(self.kv_put(tl, n), rel=x, dl=x + sc(2), stream='put'))
        if c.q32:
            seq = interleave(mf, fl, 24, c.verbose, 'qproj', rate=float(c.q32_budget), cap=40)
        else:
            seq = interleave(mf, fl, 8, c.verbose, 'qproj', rate=c.q_rate, cap=(c.cap if c.split else 24), split=c.split,
                             reserve=(set(range(5, len(mf), 6)) if c.reserve else ()))
        self.emit(seq, 'qproj')
        self.tr(name='q')
        e = []
        for t3 in ((2, 0, 1) if c.q32 else ()):
            for ct in range(4):
                b = (ct * 3 + t3) * 16
                e += [f'v_pk_mul_f32 {v(b + i, 2)}, {v(b + i, 2)}, {s(sC, 2)}' for i in range(0, 16, 2)]
                dst = [Q45 + 16 * (i >> 2) + 4 * ct + (i & 3) if t3 == 2 else b + i for i in range(8)]
                e += [f'v_cvt_pk_bf16_f32 {v(dst[i])}, {v(b + 2 * i)}, {v(b + 2 * i + 1)}' for i in range(8)]
                e += [f'v_permlane16_swap_b32 {v(dst[j])}, {v(dst[4 + j])}' for j in range(4)]
                if t3 < 2:
                    e += [f'v_accvgpr_write_b32 {a(192 + 16 * (2 * t3 + (i >> 2)) + 4 * ct + (i & 3))}, {v(dst[i])}' for i in range(8)]
        for t in (() if c.q32 else (4, 5, 0, 1, 2, 3)):
            for ct in range(8):
                b = (ct * 6 + t) * 4
                e += [f'v_pk_mul_f32 {v(b, 2)}, {v(b, 2)}, {s(sC, 2)}', f'v_pk_mul_f32 {v(b + 2, 2)}, {v(b + 2, 2)}, {s(sC, 2)}']
            for ct in range(8):
                b = (ct * 6 + t) * 4
                ks, uu = ct >> 1, ct & 1
                for h2 in range(2):
                    d = Q45 + 16 * (t - 4) + 4 * ks + 2 * uu + h2 if t >= 4 else b + h2
                    e.append(f'v_cvt_pk_bf16_f32 {v(d)}, {v(b + 2 * h2)}, {v(b + 2 * h2 + 1)}')
            if t < 4:
                for ct in range(8):
                    b = (ct * 6 + t) * 4
                    ks, uu = ct >> 1, ct & 1
                    for h2 in range(2):
                        e.append(f'v_accvgpr_write_b32 {a(192 + 16 * t + 4 * ks + 2 * uu + h2)}, {v(b + h2)}')
        nput = 16 - c.put_q
        for k in range(nput):
            tl, n = puts.pop(0)
            x = (k + 1) * (len(e) // (nput + 1))
            e[x:x] = self.kv_put(tl, n)
        self.puts = puts
        gs = [kvg.pop(0) for _ in range(min(c.kv_nc, len(kvg)))]
        self.kvg = kvg
        if c.n_stage == 2:
            t3 = [[f's_lshl_b32 {s(SRD_KV + 2)}, {s(sKL)}, 18']] + self.kv_tile(3, None)[:-1]
            t3 += [[f's_mov_b32 {s(SRD_KV + 2)}, 262144', f's_lshl_b32 {s(sT3)}, {s(sKL)}, 13', f's_add_u32 {s(sOFF)}, {s(sOFF)}, {s(sT3)}',
                    f's_and_b32 {s(sOFF)}, {s(sOFF)}, 0x3ffff', f's_add_u32 {s(sOFF2)}, {s(sOFF)}, 4096']]
            gs = self.kv_tile(2, None)
            if c.t3_late:
                self.kvg = t3
            else:
                gs += t3
        step = len(e) // (len(gs) + 1)
        for k in range(len(gs) - 1, -1, -1):
            e[k * step + 4:k * step + 4] = gs[k]
        e += ['s_waitcnt lgkmcnt(0)', 's_barrier']
        self.emit(e, 'qconv')
        self.tr(name='conv')

    def kv_reload(self):
        e = flat(self.kv_tile(0, None)) + flat(self.kv_tile(1, None)) + flat(self.kv_tile(2, None))
        e += [f's_cmp_lg_u32 {s(sHH)}, 0', 's_cbranch_scc1 L_skip_t3'] + flat(self.kv_tile(3, None)) + ['L_skip_t3:', 's_waitcnt vmcnt(0)', 's_barrier']
        self.emit(e)

    def frag_reads(self, phi, kslot, vslot):
        r = FR + 4 * (phi & 3)
        if phi < 8:
            c_, ks = phi >> 2, phi & 3
            return [f'ds_read_b128 {v(r, 4)}, {v(vKA)} offset:{kslot * TS + 4352 * c_ + 64 * ks}']
        dt = phi - 8
        reg = vVA + (dt & 1) + 2 * (dt >> 2)
        return [f'ds_read_b64_tr_b16 {v(r + 2 * e_, 2)}, {v(reg)} offset:{vslot * TS + 4352 * e_ + 64 * ((dt >> 1) & 1)}' for e_ in range(2)]

    def qk_mfmas(self, buf, czero=False):
        mf = []
        for c_ in range(2):
            for ks in range(4):
                for t in range(6):
                    d = v(Sr(buf, c_, t), 4)
                    cc = d if ks else ('0' if czero else v(NM + 4 * t, 4))
                    mf.append(I(f'{MF} {d}, {v(FR + 4 * ks, 4)}, {Qfrag(t, ks)}, {cc}'))
        return mf

    def pv_mfmas(self, czero=False, sumfirst=False):
        mf, first = [], []
        for dt in range(8):
            first.append(len(mf))
            for t in range(6):
                o = a(Oacc(dt, t), 4)
                mf.append(I(f'{MF} {o}, {v(FR + 4 * (dt & 3), 4)}, {v(P_ + 4 * t, 4)}, {0 if czero else o}'))
            if sumfirst and dt == 0:
                for t in range(6):
                    l = v(L_ + 4 * t, 4)
                    mf.append(I(f'{MF} {l}, {v(ONES, 4)}, {v(P_ + 4 * t, 4)}, {l}'))
            if dt < 6 and not self.c.vsum and not self.c.nosum and not sumfirst:
                l = v(L_ + 4 * dt, 4)
                if self.c.summode.startswith('m16'):
                    mf.append(I(f'{MF} {l}, {v(ONES, 4)}, {v(P_ + 4 * dt, 4)}, {0 if czero else l}'))
                elif self.c.summode == 'm4':
                    mf.insert(len(mf) - 3, I(f'v_mfma_f32_4x4x4_16b_bf16 {l}, {v(ONES, 2)}, {v(P_ + 4 * dt, 2)}, {0 if czero else l}'))
                    mf.append(I(f'v_mfma_f32_4x4x4_16b_bf16 {l}, {v(ONES, 2)}, {v(P_ + 4 * dt + 2, 2)}, {l}'))
        return mf, first

    def exp_order(self):
        return [(c_, t, i) for c_ in range(2) for t in range(6) for i in range(4)]

    def xlane_max(self, m, m2):
        return [f'v_mov_b32 {m2}, {m}', f'v_permlane32_swap_b32 {m}, {m2}', f'v_max_f32 {m}, {m}, {m2}',
                f'v_mov_b32 {m2}, {m}', f'v_permlane16_swap_b32 {m}, {m2}', f'v_max_f32 {m}, {m}, {m2}']

    def attn_pre(self, safe, lab):
        c = self.c
        self.emit(self.frag_reads(0, 0, 0) + self.frag_reads(1, 0, 0))
        fl = []
        for phi in range(2, 8):
            fl.append(Filler(self.frag_reads(phi, 0, 0), rel=max(6 * phi - 18, -1), dl=6 * phi - 10, stream='fr', pos=6 * phi - 0.5))
        for phi in range(2):
            fl.append(Filler(self.frag_reads(phi, 1, 0), rel=6 * (phi + 8) - 14, dl=6 * (phi + 8) - 10, stream='fr', pos=60))
        mask = {'m16': 0, 'dot': 0, 'm16z': 3, 'm4': 3, 'm16zz': 15}[c.summode]
        fl.append(Filler([f'v_and_b32 {v(ONES)}, {mask}, {v(vLANE)}', f'v_cmp_eq_u32 vcc, 0, {v(ONES)}', f'v_mov_b32 {v(ONES + 1)}, 0x3f803f80', 's_nop 0',
                          f'v_cndmask_b32 {v(ONES)}, 0, {v(ONES + 1)}, vcc'], rel=0, dl=4, stream='i'))
        for i in range(1, 4):
            fl.append(Filler(f'v_mov_b32 {v(ONES + i)}, {v(ONES)}', rel=0, dl=20, stream='i'))
        if c.summode == 'dot':
            for t in range(6):
                fl.append(Filler(f'v_mov_b32 {v(L_ + 4 * t)}, 0', rel=0, dl=20, stream='i'))
        for k, g in enumerate(self.kvg):
            x = 1 + k * (21 if c.pre_fast and not safe else 44) // max(len(self.kvg), 1)
            fl.append(Filler(g, rel=x, dl=x + 1, stream='kv'))
        self.kvg = []
        if not safe and c.pre_fast:
            mf = self.qk_mfmas(0, True)
            for t in range(6):
                d = v(Sr(0, 1, t), 4)
                mf[24 + t] = I(f'{MF} {d}, {v(FR, 4)}, {Qfrag(t, 0)}, {v(NM + 4 * t, 4)}')
            rows = []
            for t in range(6):
                m, m2 = v(S_[1] + 2 * t), v(S_[1] + 2 * t + 1)
                r = [Sr(0, 0, t) + i for i in range(4)]
                rows.append([f'v_max3_f32 {m}, {v(r[0])}, {v(r[1])}, {v(r[2])}', f'v_max_f32 {m}, {m}, {v(r[3])}'] + self.xlane_max(m, m2) +
                            [f'v_sub_f32 {v(NM + 4 * t + i)}, 0, {m}' for i in range(4)])
            for z in zip(*rows):
                for x in z:
                    fl.append(Filler(x, rel=23, dl=23, stream='m', pos=23.5))
            for t in range(6):
                for i in range(4):
                    x = v(Sr(0, 0, t) + i)
                    fl.append(Filler(f'v_add_f32 {x}, {x}, {v(NM + 4 * t)}', rel=24 + 4 * t, dl=24 + 4 * t + i // 4, stream='e', pos=23.6))
                for i in range(4):
                    x = v(Sr(0, 0, t) + i)
                    fl.append(Filler(f'v_exp_f32 {x}, {x}', rel=24 + 4 * t, dl=min(25 + 4 * t + (3 * i) // 4, 47), stream='e', pos=23.6))
            self.emit(interleave(mf, fl, 8, c.verbose, 'qk0', rate=12.0), 'qk0')
            e = [f'v_exp_f32 {v(Sr(0, c_, t) + i)}, {v(Sr(0, c_, t) + i)}' for (c_, t, i) in self.exp_order()[24:c.npart1]]
            self.emit(e + ['s_waitcnt lgkmcnt(0)', 's_barrier'], 'max0')
            return
        self.emit(interleave(self.qk_mfmas(0, True), fl, 8, c.verbose, 'qk0', rate=8.0), 'qk0')
        e = []
        for t0 in (0, 3):
            ms = [(v(vMX + 2 * k), v(vMX + 2 * k + 1)) for k in range(3)]
            rows = []
            for k in range(3):
                t = t0 + k
                m, m2 = ms[k]
                r = [Sr(0, 0, t) + i for i in range(4)] + [Sr(0, 1, t) + i for i in range(4)]
                row = [f'v_max3_f32 {m}, {v(r[0])}, {v(r[1])}, {v(r[2])}', f'v_max3_f32 {m}, {m}, {v(r[3])}, {v(r[4])}',
                       f'v_max3_f32 {m}, {m}, {v(r[5])}, {v(r[6])}', f'v_max_f32 {m}, {m}, {v(r[7])}'] + self.xlane_max(m, m2)
                row += [f'v_sub_f32 {v(NM + 4 * t + i)}, 0, {m}' for i in range(4)]
                row += [f'v_sub_f32 {v(x)}, {v(x)}, {m}' for x in r]
                rows.append(row)
            for z in zip(*rows):
                e += list(z)
        if not safe:
            for (c_, t, i) in self.exp_order()[:c.npart1]:
                x = v(Sr(0, c_, t) + i)
                e.append(f'v_exp_f32 {x}, {x}')
        nput = min(c.put_m, len(self.puts))
        for k in range(nput):
            x = (k + 1) * (len(e) // (nput + 1))
            e[x:x] = self.kv_put(*self.puts.pop(0))
        e += ['s_waitcnt lgkmcnt(0)', 's_barrier']
        self.emit(e, 'max0')

    def cvt_fillers(self, cur, base, todo, rel0):
        fl = []
        todo = list(todo)
        for t in range(6):
            for c_ in range(2):
                for h2 in range(2):
                    b = Sr(cur, c_, t) + 2 * h2
                    for i in (2 * h2, 2 * h2 + 1):
                        if (c_, t, i) in todo:
                            fl.append(Filler(f'v_exp_f32 {v(Sr(cur, c_, t) + i)}, {v(Sr(cur, c_, t) + i)}', rel=rel0, dl=base + t - 4, stream='e', pos=-3))
                    fl.append(Filler(f'v_cvt_pk_bf16_f32 {v(P_ + 4 * t + 2 * c_ + h2)}, {v(b)}, {v(b + 1)}', rel=rel0, dl=base + t - 3,
                                     stream='c', pos=-2.5))
                    if self.c.summode == 'dot':
                        fl.append(Filler(I(f'v_dot2c_f32_bf16 {v(L_ + 4 * t)}, {v(ONES)}, {v(P_ + 4 * t + 2 * c_ + h2)}', cost=self.c.dot_cost), rel=max(rel0, base - 2), dl=base + 36,
                                         stream='s', pos=-2.4))
                    if self.c.vsum:
                        for i in range(2):
                            fl.append(Filler(f'v_add_f32 {v(L_ + 4 * t)}, {v(L_ + 4 * t)}, {v(b + i)}', rel=rel0, dl=base + 40, stream='s', pos=-2.4))
        return fl

    def attn_iter(self, j, safe, dma='kv', xwait='s_waitcnt vmcnt(8)', nextk=True, site=None, extra=(), win=None, npart=None):
        c = self.c
        cur, new = j & 1, (j + 1) & 1
        pv, first = self.pv_mfmas(j == 0)
        mf = self.qk_mfmas(new) + pv
        n = len(mf)
        need = [6 * phi for phi in range(8)] + [48 + x for x in first] + [n, n + 6]
        fl = []
        for phi in range(2, 18):
            if phi >= 16:
                if not nextk: continue
                r = self.frag_reads(phi - 16, (j + 2) & 3, 0)
            else:
                r = self.frag_reads(phi, (j + 1) & 3, j & 3)
            fl.append(Filler(r, rel=max(need[phi] - 15, 0), dl=need[phi] - 10, stream='fr', pos=need[phi] - 0.5))
        order = self.exp_order()
        if safe:
            fl += self.cvt_fillers(cur, 48, order, 0)
            regs = [S_[new] + i for i in range(48)]
            m = v(vMX)
            fl.append(Filler(f'v_max3_f32 {m}, {v(regs[0])}, {v(regs[1])}, {v(regs[2])}', rel=52, dl=n - 4, stream='m', pos=200))
            for k in range(3, 48, 2):
                r2 = regs[min(k + 1, 47)]
                fl.append(Filler(f'v_max3_f32 {m}, {m}, {v(regs[k])}, {v(r2)}', rel=52, dl=n - 4, stream='m', pos=200))
            fl.append(Filler(f'v_cmp_lt_f32 vcc, {s(sTHR)}, {m}', rel=52, dl=n - 3, stream='m', pos=200))
        else:
            fl += self.cvt_fillers(cur, 48, order[c.npart1:], 0)
            for (c_, t, i) in order[:npart or c.npart1]:
                x = v(Sr(new, c_, t) + i)
                fl.append(Filler(f'v_exp_f32 {x}, {x}', rel=((30 if npart else 46) if c_ == 0 else 52), dl=n - 1, stream='e2', pos=200))
        if dma == 'kv':
            gs = self.kv_groups(sTB + (j & 3), 0, None, c.win if win is None else win)
            if j == 4:
                gs[0] = [f's_cmp_eq_u32 {s(sLOOP)}, {s(sKL)}', f's_cselect_b32 {s(SRD_KV + 2)}, 0, {s(SRD_KV + 2)}'] + gs[0]
            for k, g in enumerate(gs):
                n = k - 1
                x = 2 + 11 * (n - n % c.burst) + c.bsp * (n % c.burst) if 0 <= n < 8 else (0 if n < 0 else 88)
                fl.append(Filler(g, rel=x, dl=min(x + (6 if c.burst == 1 else 1), 90) if k else 1, stream='dma'))
        for f in extra:
            if f.stream == 'fr0':
                f.rel = f.dl = need[16] - 17
        fl += list(extra)
        if c.noexp:
            fl = [f for f in fl if not f.ins[0].op.startswith('v_exp')]
        xg = need[15]
        fl.append(Filler([xwait, 's_barrier'] if isinstance(xwait, str) else xwait + ['s_barrier'], rel=xg, dl=xg, stream='x'))
        seq = interleave(mf, fl, 8, c.verbose, f'iter{j}', rate=((c.a_rate if j else 12.0) if not safe else 10.0), cap=((c.cap if c.split and not safe else 20) if j else (16 if c.split else 28)), split=c.split,
                         reserve=({x - 1 for x in need} if c.reserve and not safe else ()))
        if safe:
            seq.append(I(f's_cbranch_vccnz L_rare_{site}'))
            seq.append(I(f'L_back_{site}:'))
            self.sites.append((site, new))
        return seq

    def warm_wo(self, part, tmp=vH + 4):
        L = v(vLANE)
        per = -(-72 // len(self.c.warm_at))
        assert per <= 64
        t0, t1 = v(tmp), v(tmp + 1)
        e = []
        if self.c.warm_it:
            t0 = v(vWM)
        elif part == 0:
            e += [f'v_lshlrev_b32 {t0}, 7, {L}', f'v_mov_b32 {t1}, {OOB}', f'v_cmp_gt_u32 vcc, {per}, {L}', 's_nop 1', f'v_cndmask_b32 {t0}, {t1}, {t0}, vcc']
        e += [f's_lshl_b32 {s(sT1)}, {s(sB)}, 2', f's_add_u32 {s(sT1)}, {s(sT1)}, {s(sW)}', f's_mul_i32 {s(sT1)}, {s(sT1)}, 9216',
              f's_add_u32 {s(sT1)}, {s(sT1)}, {128 * per * part}',
              I(f'buffer_load_dword {v(vF) if self.c.warm_it else v(253)}, {t0}, {s(SRD_WO, 4)}, {s(sT1)} offen{self.c.warm_nt}', tag='W', cost=self.c.dma_cost)]
        return e

    def attention(self, safe):
        c = self.c
        lab = 's' if safe else 'f'
        self.emit([f's_mov_b32 {s(sLOOP)}, 7'])
        self.attn_pre(safe, lab)
        self.tr(name='pre')
        assert c.n_stage == 2
        tc = [Filler(g, rel=4 + 3 * k, dl=(8 + 3 * k if safe else 90), stream='tc') for k, g in enumerate(self.tail_consts())]
        if self.puts:
            ex = [Filler(self.kv_put(tl, n), rel=int(k * c.put_sp), dl=int(k * c.put_sp) + 1, stream='put', pos=-1) for k, (tl, n) in enumerate(self.puts)]
            ex.append(Filler(['s_waitcnt lgkmcnt(0)', 's_barrier'], rel=84, dl=84, stream='put'))
            self.puts = []
            self.emit(self.attn_iter(0, safe, dma=None, site='0', extra=ex), 'iter0')
        else:
            self.emit(self.attn_iter(0, safe, site='0', extra=[Filler(['s_waitcnt vmcnt(8)', 's_barrier'], rel=84, dl=84, stream='fr0')] + tc), 'iter0')
        self.vm_reset()
        self.tr(name='it')
        entry = [set(x) for x in self.lg]
        phases = [(c.win, 0)] if (safe or c.win_b is None) else [(c.win, 7 - c.n1), (c.win_b, 0)]
        if len(phases) == 2 and c.win_c is not None:
            phases = [(c.win, 7 - c.n1), (c.win_b, 7 - c.n1 - c.n2), (c.win_c, 0)]
        for ph, (win, stop) in enumerate(phases):
            self.raw(['.p2align 3', f'L_loop{lab}{ph}:'])
            start = len(self.out)
            for j in range(1, 5):
                self.emit(self.attn_iter(j, safe, site=f'{j}', win=win), f'iter{j}')
                self.tr(dyn=True, name='it')
            assert [set(x) for x in self.lg] == entry, (self.lg, entry)
            self.emit([f's_sub_u32 {s(sLOOP)}, {s(sLOOP)}, 1', f's_cmp_lg_u32 {s(sLOOP)}, {stop}', f's_cbranch_scc1 L_loop{lab}{ph}'])
            rep = []
            pad_hazards(self.out[start:start + 40], history=self.out[-40:], report=rep)
            assert not rep, rep
            if ph and c.trace and not c.trace_o and not c.trace_h:
                self.ntr -= 4
                self.trnames = self.trnames[:-4]
        self.vm_reset()
        if c.trace and not c.trace_o and not c.trace_h:
            self.ntr += 24
            self.trnames += ['it'] * 24
        ex = [Filler(self.clear_done(), rel=2, dl=6)] + [Filler(self.flag_touch(), rel=12, dl=16)]
        wm = [Filler(self.warm_wo(k, vMX + 6), rel=8 + 4 * k, dl=12 + 4 * k, stream='wm') for k in range(len(c.warm_at))] if c.warm_wo and c.warm_it else []
        n29 = len(wm) if c.warm_it == 29 else 0
        n30 = len(wm) if c.warm_it in (29, 30) else 0
        self.emit(self.attn_iter(29, safe, dma=None, xwait=f's_waitcnt vmcnt({10 + n29})', site='29', extra=ex + (wm if n29 else [])), 'iter29')
        self.tr(name='it')
        self.emit(self.attn_iter(30, safe, dma=None, xwait=f's_waitcnt vmcnt({2 + n30})', nextk=False, site='30',
                                 extra=(wm if c.warm_it == 30 else []), npart=(48 if c.last_opt else None)), 'iter30')
        self.last_extra = wm if c.warm_it == 31 else []
        self.tr(name='it')
        self.vm_reset()
        self.attn_last(safe)

    def tail_consts(self):
        L = v(vLANE)
        t0, t1, t2 = v(vT), v(vT + 1), v(vT + 2)
        per = -(-72 // len(self.c.warm_at))
        g = [[f'v_lshrrev_b32 {t0}, 3, {L}', f'v_and_b32 {t1}, 7, {L}', f'v_and_b32 {t2}, 6, {t0}', f'v_xor_b32 {t1}, {t1}, {t2}'],
             [f's_lshl_b32 {s(sT1)}, {s(sW)}, 3', f'v_add_u32 {t0}, {s(sT1)}, {t0}', f'v_mul_u32_u24 {t0}, 1152, {t0}', f'v_lshl_add_u32 {v(vOV)}, {t1}, 4, {t0}'],
             [f'v_bfe_u32 {t0}, {L}, 2, 3', f'v_lshrrev_b32 {t1}, 1, {t0}', f'v_xor_b32 {t1}, {s(sW)}, {t1}', f'v_lshlrev_b32 {t1}, 5, {t1}'],
             [f'v_lshl_add_u32 {t0}, {t0}, 7, {t1}', f'v_and_b32 {t1}, 3, {L}', f'v_lshl_add_u32 {t0}, {t1}, 3, {t0}'],
             [f'v_lshrrev_b32 {t1}, 5, {L}', f'v_lshl_add_u32 {v(vOA)}, {t1}, 10, {t0}', f'v_add_u32 {v(vOA2)}, 65536, {v(vOA)}', f'v_lshlrev_b32 {v(vPS)}, 4, {L}']]
        for k in range(4):
            g.append([f's_mul_hi_u32 {s(sT1)}, {s(sH + k)}, {(2 ** 32 + 5) // 6}', f's_add_u32 {s(sT1)}, {s(sT1)}, {OB}', f'v_add_u32 {v(vBA + k)}, {s(sT1)}, {v(vPS)}'])
        g += [[f's_mul_i32 {s(sT1)}, {s(sW)}, 24576', f's_add_u32 {s(sT1)}, {s(sT1)}, {OB}', f'v_add_u32 {v(vOW)}, {s(sT1)}, {v(vPS)}'],
              [f'v_mov_b32 {t2}, {OOB}', f'v_cmp_eq_u32 vcc, 0, {L}', f's_cmp_eq_u32 {s(sW)}, 0', f's_cselect_b32 {s(sT1)}, 1, 0', f'v_cndmask_b32 {v(vL0)}, {t2}, {L}, vcc'],
              [f'v_cmp_gt_u32 vcc, {s(sT1)}, {L}', f'v_lshlrev_b32 {t0}, 7, {L}', 's_nop 0', f'v_cndmask_b32 {v(vSG)}, {t2}, {L}, vcc'],
              [f'v_cmp_gt_u32 vcc, {per}, {L}', 's_nop 1', f'v_cndmask_b32 {v(vWM)}, {t2}, {t0}, vcc'],
              [f'v_subrev_u32 {t0}, 7, {L}', f'v_sub_u32 {t1}, {s(sJ)}, {t0}', f'v_and_b32 {t1}, 7, {t1}', f'v_lshlrev_b32 {t1}, 12, {t1}'],
              [f'v_lshl_add_u32 {t1}, {t0}, 7, {t1}', f'v_cmp_gt_u32 vcc, 15, {L}', f'v_lshlrev_b32 {t0}, 12, {L}', 's_nop 0', f'v_cndmask_b32 {t1}, 0, {t1}, vcc'],
              [f'v_cmp_gt_u32 vcc, 8, {L}', 's_nop 1', f'v_cndmask_b32 {v(vPA)}, {t1}, {t0}, vcc'],
              [f'v_and_b32 {t0}, 15, {L}', f'v_mul_u32_u24 {t0}, 2304, {t0}', f'v_lshrrev_b32 {t1}, 4, {L}', f'v_lshl_add_u32 {v(vOO)}, {t1}, 3, {t0}'],
              [f'v_bfe_u32 {t0}, {L}, 2, 2', f'v_cmp_eq_u32 vcc, {t0}, {t1}', f'v_and_b32 {t0}, 1, {L}', f'v_lshlrev_b32 {t0}, 4, {t0}',
               f'v_lshlrev_b32_e64 {t0}, {t0}, 1', f'v_mul_u32_u24 {t0}, 0x3f80, {t0}', f'v_cndmask_b32 {t0}, 0, {t0}, vcc'],
              [f'v_and_b32 {t1}, 2, {L}', f'v_cmp_eq_u32 vcc, 0, {t1}', f'v_mov_b32 {v(SEL)}, 0', f'v_mov_b32 {v(SEL + 1)}, 0',
               f'v_cndmask_b32 {v(SEL + 2)}, 0, {t0}, vcc', f'v_sub_u32 {v(SEL + 3)}, {t0}, {v(SEL + 2)}'],
              [f'v_mov_b32 {v(SEL + 4)}, 0', f'v_mov_b32 {v(SEL + 5)}, 0', f's_lshl_b32 {s(sFA)}, {s(sW)}, 10']]
        return g

    def flag_touch(self):
        return [I(f'buffer_load_dword {v(vF)}, {v(vPA)}, {s(SRD_FL, 4)}, {s(sFA)} offen{self.c.fl_mod}', cost=self.c.dma_cost)]

    def check(self, reg, want, reload, name, allanes=False, two=False):
        k = len(self.spins)
        if two:
            test = [f'v_and_b32 {v(reg)}, {v(reg)}, {v(reg + 1)}', 's_nop 0', f'v_readfirstlane_b32 {s(sT3)}, {v(reg)}', 's_nop 1', f's_cmp_eq_u32 {s(sT3)}, {want}']
        elif allanes:
            test = [f'v_cmp_eq_u32 vcc, 0, {v(reg)}', 's_nop 1', f's_and_b32 {s(sT3)}, vcc_lo, {want:#x}', f's_cmp_eq_u32 {s(sT3)}, 0']
        else:
            test = [f'v_readfirstlane_b32 {s(sT3)}, {v(reg)}', 's_nop 1', f's_cmp_lg_u32 {s(sT3)}, 0']
        self.spins.append((k, reload, test))
        return test + [f's_cbranch_scc0 L_spin{k}', f'L_spun{k}:']

    def spin_blocks(self):
        for k, reload, test in self.spins:
            self.raw([f'L_spin{k}:', f's_mov_b32 {s(sSPIN)}, {self.c.spin_max}', f'L_spinl{k}:', 's_sleep 1', reload, 's_waitcnt vmcnt(0)'] + test +
                     ([f's_cbranch_scc0 L_spinc{k}', f's_sub_u32 {s(sSPIN)}, {self.c.spin_max + 1}, {s(sSPIN)}', f'v_writelane_b32 v254, {s(sSPIN)}, {58 + k}',
                       f's_branch L_spun{k}', f'L_spinc{k}:'] if self.c.trace else []) +
                     [f's_cbranch_scc1 L_spun{k}', f's_sub_u32 {s(sSPIN)}, {s(sSPIN)}, 1', f's_cmp_lg_u32 {s(sSPIN)}, 0', f's_cbranch_scc1 L_spinl{k}',
                      f's_branch L_spun{k}'])

    def plan_wo(self):
        self.slot_of = {0: 0, 1: 1, 2: 2}
        self.issue_at = {}
        free = [3]
        nxt = 3
        for sg in range(1, 36):
            if sg >= 2:
                free.append(self.slot_of[sg - 2])
            if sg == 5:
                free += list(range(4, self.c.oring))
            todo = []
            while nxt < 36 and free and len(todo) < 2:
                self.slot_of[nxt] = free.pop(0)
                todo.append(nxt); nxt += 1
            assert nxt >= min(sg + 2, 36)
            self.issue_at[sg] = todo

    def wo_slot(self, n):
        return 16384 * self.slot_of[n >> 2] + 4096 * (n & 3)

    def wo_unit(self, n):
        p, kk = n >> 4, n & 15
        g = [f's_add_u32 m0, {s(sWOL)}, {self.wo_slot(n)}']
        if kk == 0:
            if p == 0:
                g += [f's_mov_b32 {s(sCG)}, 1024']
            else:
                g += [f's_add_u32 {s(sCG)}, {s(sJ)}, {p}', f's_and_b32 {s(sCG)}, {s(sCG)}, 7', f's_lshl_b32 {s(sCG)}, {s(sCG)}, 7']
        elif kk & 3 == 0:
            g += [f's_add_u32 {s(sCG)}, {s(sCG)}, 36864']
        g += [f's_add_u32 {s(sSO)}, {s(sH + (kk & 3))}, {s(sCG)}']
        g.append(self.dma(vOV, SRD_WO, s(sSO), 0, self.c.wo_nt, ('O', n)))
        return g

    def attn_last(self, safe):
        c = self.c
        cur = 1
        e = self.frag_reads(8, 0, 3) + self.frag_reads(9, 0, 3)
        self.emit(e, 'last0')
        sf = c.last_opt and c.summode.startswith('m16')
        pv, first = self.pv_mfmas(sumfirst=sf)
        fl = []
        for phi in range(10, 16):
            nd = first[phi - 8]
            fl.append(Filler(self.frag_reads(phi, 0, 3), rel=max(nd - 18, -1), dl=nd - 10, stream='fr', pos=nd - 0.5))
        order = self.exp_order()
        fl += self.cvt_fillers(cur, 0, order if safe else order[(48 if c.last_opt else c.npart1):], -1)
        for n in range(12):
            fl.append(Filler(self.wo_unit(n), rel=3 * n, dl=3 * n + 8, stream='dma'))
        for k, f in enumerate(self.last_extra):
            f.rel = 38 + 4 * k
            f.dl = f.rel + 6
            f.pos = f.rel + 0.5
            f.stream = 'dma'
            fl.append(f)
        fl.append(Filler('s_barrier', rel=first[7], dl=first[7], stream='x'))
        if c.summode in ('m4', 'dot', 'm16zz'):
            rows = []
            for t in range(6):
                m, m2 = v(L_ + 4 * t), v(L_ + 4 * t + 1)
                rows.append([x.replace('v_max_f32', 'v_add_f32') for x in self.xlane_max(m, m2)])
            for z in zip(*rows):
                for x in z:
                    fl.append(Filler(x, rel=(16 if sf else first[6] + 2), dl=60, stream='r', pos=99))
        for t in range(6):
            fl.append(Filler(f'v_rcp_f32 {v(vR + 2 * t)}, {v(L_ + 4 * t)}', rel=(16 if sf else first[min(t + 2, 7)] + 3), dl=60, stream='r', pos=100))
        self.emit(interleave(pv, fl, 8, c.verbose, 'last', rate=9.0, cap=(12 if c.split else None), split=c.split), 'last')

    def ofrag(self, k, tb, pk=True):
        u, t = divmod(k, 6)
        e = [[f'v_accvgpr_read_b32 {v(tb + i)}, {a(Oacc(2 * u + (i >> 2), t) + (i & 3))}'] for i in range(8)]
        if pk:
            e += [[f'v_pk_mul_f32 {v(tb + i, 2)}, {v(tb + i, 2)}, {v(vR + 2 * t, 2)} op_sel_hi:[1,0]'] for i in range(0, 8, 2)]
        else:
            e += [[f'v_mul_f32 {v(tb + i)}, {v(tb + i)}, {v(vR + 2 * t)}'] for i in range(8)]
        e += [[f'v_cvt_pk_bf16_f32 {v(tb + i)}, {v(tb + 2 * i)}, {v(tb + 2 * i + 1)}'] for i in range(4)]
        e.append([I(f'ds_write_b128 {v(vOW)}, {v(tb, 4)} offset:{1024 * k}', cost=12)])
        return e

    def onorm(self):
        return flat(flat(self.ofrag(k, 8 * (k % 6), self.c.norm_pk) for k in range(self.c.npre)))

    def oproj(self):
        c = self.c
        NS = 144

        def aread(n):
            r = OA_ + 4 * (n & 3)
            ad = self.wo_slot(n)
            return [f'ds_read_b64_tr_b16 {v(r + 2 * e_, 2)}, {v((vOA, vOA2)[ad >> 16])} offset:{(ad & 65535) + 2048 * e_}' for e_ in range(2)]

        def bread(kk, t):
            phi = 6 * kk + t
            return f'ds_read_b128 {Bfrag(phi)}, {v(vBA + (kk & 3))} offset:{1024 * (6 * (kk >> 2) + t)}'

        def prod(p, sd):
            return [f's_sub_u32 {s(sd)}, {s(sJ)}, {p}', f's_and_b32 {s(sd)}, {s(sd)}, 7', f's_lshl_b32 {s(sd)}, {s(sd)}, 2',
                    f's_add_u32 {s(sd)}, {s(sd)}, {s(sW)}']

        def fload(p):
            return f'buffer_load_dword {v(vF)}, {v(SEL)}, {s(SRD_FL, 4)}, {s(sFA)} offen offset:{128 * p}{c.fl_mod}'

        def poll(p):
            return prod(p, sFA) + [f's_lshl_b32 {s(sFA)}, {s(sFA)}, 10', I(fload(p), tag=('F', p), cost=c.dma_cost)]

        def dloads(p, dst):
            g = []
            for z in range(3):
                o = f' offset:{1024 * z}' if z else ''
                g.append([I(f'buffer_load_dwordx4 {dst(z)}, {v(vPS)}, {s(SRD_WS, 4)}, {s(sDAt[p])} offen{o}{c.d_mod}', tag=('D', p), cost=c.dma_cost)])
            return g

        def adds(src, first=False):
            r = []
            for z in range(3):
                for h in range(2):
                    acc = v(RR + 8 * z + 4 * h, 4)
                    r.append(I(f'{MF} {acc}, {v(SEL + 2 - 2 * h, 4)}, {src(z)}, {0 if first else acc}'))
            return r

        def signal(p):
            return [self.wvm(('P', p)),
                    I(f'buffer_store_dword {v(vOA2)}, {v(vL0)}, {s(SRD_FL, 4)}, {s(sFS)} offen offset:{128 * p}{c.fl_mod}', tag=('S', p), cost=c.dma_cost)]

        ldb = lambda z: v(LDB + 4 * z, 4)
        bufs = [ldb, lambda z: v(4 * z, 4), lambda z: v(12 + 4 * z, 4)] + [(lambda k: (lambda z: v(HB + 8 + 12 * k + 4 * z, 4)))(k) for k in range(4)]
        e = [bread(0, t) for t in range(6)] + aread(0) + aread(1) + [bread(1, t) for t in range(3)] + self.fb_check + [bread(1, 3)]
        self.emit(e, 'opre')
        mf, fl = [], []
        G = []
        A = {}
        SH = {}
        hreg = lambda i: v(RR + 8 + 4 * i, 4) if i < 4 else (v(LDB + 4 * (i - 4), 4) if i < 7 else v(RR + 8, 4))
        for n in range(NS):
            p, kk = n >> 4, n & 15
            for k, nn in enumerate(c.add_at):
                if n == nn:
                    A[k] = len(mf)
                    for q in ((0,), (0,), (0,), (1, 2))[k]:
                        mf += adds(bufs[q], k == 0)
            if c.sh_early and n in c.sh_pos[2:]:
                k = c.sh_pos[2:].index(n)
                SH[k] = len(mf)
                for i in (range(7) if k == 0 else (7,)):
                    for h in range(2):
                        acc = v(RR + 4 * h, 4)
                        mf.append(I(f'{MF} {acc}, {v(SEL + 2 - 2 * h, 4)}, {hreg(i)}, {acc if i else 0}'))
            G.append(len(mf))
            for t in range(6):
                acc = v((RR if p == 8 else OACC[p & 1]) + 4 * t, 4)
                mf.append(I(f'{MF} {acc}, {v(OA_ + 4 * (n & 3), 4)}, {Bfrag(6 * kk + t)}, {acc if kk or p == 8 else 0}'))
        G.append(len(mf))
        at = lambda p, x: min(G[16 * p + x // 6] + x % 6, len(mf) - 1) if 16 * p + x // 6 < NS else len(mf) - 1
        for t in range(4, 6):
            fl.append(Filler(bread(1, t), rel=0, dl=1, stream='b', pos=5.5))
        for n in range(NS):
            p, kk = n >> 4, n & 15
            g0 = G[n]
            m = n + 2
            if m < NS:
                if m % 4 == 0:
                    sg = m // 4
                    pub = sg < 4 and 6 * (sg + 1) > c.npre
                    fl.append(Filler([self.wvm(('O', m + 3))] + (['s_waitcnt lgkmcnt(0)'] if pub else []) + ['s_barrier'], rel=g0 - 1, dl=g0,
                                     stream='a', pos=g0 - 0.4))
                    if sg < 4:
                        ks = [k for k in range(6 * sg, 6 * sg + 6) if k >= c.npre]
                        items = flat(self.ofrag(k, 24 + 8 * (k % 3), False) for k in ks)
                        lo, hi = max(g0 - 24, 0), g0 - 2
                        for q, it in enumerate(items):
                            x = lo + q * (hi - lo) // len(items)
                            fl.append(Filler(it, rel=x, dl=x, stream='cv', pos=lo - 0.6 + 1e-4 * q))
                    units = [4 * q + k for q in self.issue_at[sg] for k in range(4)]
                    for k, uu in enumerate(units):
                        sp = 24 // max(len(units), 1)
                        fl.append(Filler(self.wo_unit(uu), rel=g0 + 2 + sp * k, dl=g0 + 3 + sp * k, stream='dma'))
                fl.append(Filler(aread(m), rel=g0, dl=g0 + 2, stream='a', pos=G[m] - 0.5))
                if m < 16:
                    for t in range(6):
                        fl.append(Filler(bread(m, t), rel=g0 + 1 + t, dl=g0 + 5 + t, stream='b', pos=G[m] - 0.5))
            if kk == 15 or (c.trace_o and kk & 3 == 3):
                self.tr_filler(fl, g0 + 5, 'o')
            if kk == 15 and p < 8:
                for z in range(3):
                    for i in range(4):
                        b = OACC[p & 1] + 8 * z + 2 * i
                        fl.append(Filler(f'v_cvt_pk_bf16_f32 {v(OPK + 4 * z + i)}, {v(b)}, {v(b + 1)}', rel=g0 + 10 + 3 * z, dl=g0 + 11 + 3 * z + (i >> 1),
                                         stream='st', pos=g0 + 5.5))
                    o = f' offset:{1024 * z}' if z else ''
                    fl.append(Filler(I(f'buffer_store_dwordx4 {v(OPK + 4 * z, 4)}, {v(vPS)}, {s(SRD_WS, 4)}, {s(sPSt[p])} offen{o}{c.st_mod}',
                                       tag=('P', p), cost=c.dma_cost), rel=g0 + 10 + 3 * z, dl=g0 + 13 + 3 * z, stream='st', pos=g0 + 5.5))
                sgm = c.sig[0] if p <= 4 else (c.sig[1] if p <= 6 else c.sig[2])
                x = min(g0 + 6 + sgm, len(mf) - 1)
                fl.append(Filler(signal(p), rel=x, dl=x, stream='sig'))
        red = []
        dbgl = f'buffer_load_dwordx2 {v(LDB, 2)}, {v(SEL)}, {s(SRD_DBG, 4)}, {s(sDA)} offen sc1'
        x = at(1, 84) if c.sh_early else at(3, 62)
        red.append(Filler([f's_lshl_b32 {s(sDA)}, {s(sGRP)}, 3', I(dbgl, tag='DBG', cost=c.dma_cost)], rel=x, dl=x + 2))
        x = at(2, 80) if c.sh_early else at(4, 56)
        red.append(Filler([self.wvm('DBG')] + self.check(LDB, 0x01010101, dbgl, 'dbg', two=True), rel=x, dl=x + 2))
        pal = f'buffer_load_dword {v(vF)}, {v(vPA)}, {s(SRD_FL, 4)}, {s(sFA)} offen{c.fl_mod}'

        def place(gs, x, sp=2):
            for k, g in enumerate(gs):
                red.append(Filler(g, rel=x + sp * k, dl=x + 2 + sp * k, pos=x + 0.5 + sp * k))
            return x + sp * len(gs)
        if c.prepoll:
            x = at(3, 64)
            red.append(Filler([f's_lshl_b32 {s(sFA)}, {s(sW)}, 10', I(pal, tag='F_', cost=c.dma_cost)], rel=x, dl=x + 2))
        if c.sh_early:
            hl = lambda i: [I(f'buffer_load_dwordx4 {hreg(i)}, {v(vPS)}, {s(SRD_WS, 4)}, {s(sDAt[0])} offen{c.d_mod}', tag=('H', i), cost=c.dma_cost)] + \
                ([f's_add_u32 {s(sDAt[0])}, {s(sDAt[0])}, 12288'] if i < 7 else [])
            x = at(3, 10)
            red.append(Filler([I(pal, tag='F0', cost=c.dma_cost)], rel=x, dl=x + 2))
            x = at(3, c.sh_pos[0])
            red.append(Filler([self.wvm('F0')] + self.check(vF, 0xff, pal, 'f0', allanes=True), rel=x, dl=x + 2))
            place([hl(i) for i in range(7)], x + 1, 3)
            red.append(Filler(self.wvm(('H', 6)), rel=SH[0] - 1, dl=SH[0] - 1))
            place([hl(7)], SH[0] + 4)
            red.append(Filler(self.wvm(('H', 7)), rel=SH[1] - 1, dl=SH[1] - 1))
            x = SH[1] + 12
            place([[f'v_cvt_pk_bf16_f32 {v(RR + 8 + i)}, {v(RR + 2 * i)}, {v(RR + 2 * i + 1)}'] for i in range(4)], x, 1)
            st = [I(f'buffer_store_dwordx2 {v(RR + 8 + 2 * h, 2)}, {v(vOO)}, {s(SRD_OUT, 4)}, {s((sPS, sT3)[h])} offen{c.out_mod}', tag='UNCOUNTED') for h in range(2)]
            red.append(Filler([f's_mul_i32 {s(sPS)}, {s(sJ)}, {32 * 2304}', f's_add_u32 {s(sPS)}, {s(sPS)}, {s(sOO)}', f's_add_u32 {s(sPS)}, {s(sPS)}, 1024',
                               f's_add_u32 {s(sT3)}, {s(sPS)}, {16 * 2304}', f's_cmp_lt_u32 {s(sJ)}, 3', 's_cbranch_scc0 L_nosh'] + st + ['L_nosh:'],
                              rel=x + 5, dl=x + 7, pos=x + 5.5))
        x = at(5, c.pa[0])
        red.append(Filler([f's_lshl_b32 {s(sFA)}, {s(sW)}, 10', I(pal, tag='FA', cost=c.dma_cost)], rel=x, dl=x + 2))
        x = at(5, c.pa[1])
        red.append(Filler([self.wvm('FA')] + self.check(vF, 0x700, pal, 'fa', allanes=True), rel=x, dl=x + 2))
        place(dloads(1, ldb), x + 1)
        for k in range(3):
            red.append(Filler(self.wvm(('D', k + 1)), rel=A[k] - 1, dl=A[k] - 1))
            if k < 2:
                place(dloads(k + 2, ldb), A[k] + 6)
        x = at(7, c.pa[2])
        red.append(Filler([I(pal, tag='FB', cost=c.dma_cost)], rel=x, dl=x + 2))
        x = at(7, c.pa[3])
        red.append(Filler([self.wvm('FB')] + self.check(vF, 0x1800 if c.sh_early else 0x18ff, pal, 'fb', allanes=True), rel=x, dl=x + 2))
        place(dloads(4, bufs[1]) + dloads(5, bufs[2]), x + 1)
        x = at(8, c.pb[0])
        red.append(Filler(poll(6), rel=x, dl=x + 2))
        red.append(Filler(self.wvm(('D', 5)), rel=A[3] - 1, dl=A[3] - 1))
        x = G[128 + c.sh_at]
        k = 0
        g = []
        for i in range(0 if c.sh_early else 8):
            g.append(I(f'buffer_load_dwordx4 {v(HB + 4 * i, 4)}, {v(vPS)}, {s(SRD_WS, 4)}, {s(sDAt[0])} offen{c.d_mod}', tag=('H', i), cost=c.dma_cost))
            if i < 7:
                g.append(f's_add_u32 {s(sDAt[0])}, {s(sDAt[0])}, 12288')
            red.append(Filler(g, rel=x + 2 * k, dl=x + 3 + 2 * k, pos=x + 0.5 + 2 * k)); k += 1
            g = []
        x = max(at(8, c.pb[1]), x + 2 * k)
        red.append(Filler([self.wvm(('F', 6))] + self.check(vF, 1, fload(6), 'f6'), rel=x, dl=x + 2))
        x = place(dloads(6, bufs[5]), x + 1)
        x = max(at(8, c.pb[2]), x)
        red.append(Filler(poll(7), rel=x, dl=x + 2))
        if c.pc is not None:
            x = len(mf) - 1 - c.pc
            red.append(Filler([self.wvm(('F', 7))] + self.check(vF, 1, fload(7), 'f7'), rel=x, dl=x))
            place(dloads(7, bufs[6]), x + 1, 1)
        if c.red_off:
            red = []
            self.spins = []
            fl = [f for f in fl if f.stream != 'sig']
        if c.st_off:
            fl = [f for f in fl if not (f.stream == 'st' and f.ins[0].kind == 'vst')]
        for f in fl:
            if f.stream == 'red':
                red.append(f)
        fl = [f for f in fl if f.stream != 'red']
        red.sort(key=lambda f: f.rel)
        for f in red:
            f.stream = 'red'
        fl += red
        for f in fl:
            f.rel = min(f.rel, len(mf) - 1)
        self.emit(interleave(mf, fl, 8, c.verbose, 'oproj', rate=c.o_rate, cap=(c.cap if c.split else 24), split=c.split,
                             reserve=({x - 1 for x in G[16:]} if c.reserve else ())), 'oproj')
        if c.red_off:
            return
        e = []
        if c.pc is None:
            e += [self.wvm(('F', 7))] + self.check(vF, 1, fload(7), 'f7') + flat(dloads(7, bufs[6]))
        for i in range(0 if c.sh_early else 8):
            e.append(self.wvm(('H', i)))
            for h in range(2):
                acc = v(4 * h, 4)
                e.append(f'{MF} {acc}, {v(SEL + 2 - 2 * h, 4)}, {v(HB + 4 * i, 4)}, {acc if i else 0}')
        e += [self.wvm(('D', 6))] + adds(bufs[5])
        if not c.sh_early:
            e += [f's_mul_i32 {s(sPS)}, {s(sJ)}, {32 * 2304}', f's_add_u32 {s(sPS)}, {s(sPS)}, {s(sOO)}', f's_add_u32 {s(sPS)}, {s(sPS)}, 1024',
                  f's_add_u32 {s(sT3)}, {s(sPS)}, {16 * 2304}']
            e += [f'v_cvt_pk_bf16_f32 {v(8 + i)}, {v(2 * i)}, {v(2 * i + 1)}' for i in range(4)]
            e += [f's_cmp_lt_u32 {s(sJ)}, 3', 's_cbranch_scc0 L_nosh']
            self.emit(e, 'otail')
            self.raw([f'buffer_store_dwordx2 {v(8, 2)}, {v(vOO)}, {s(SRD_OUT, 4)}, {s(sPS)} offen{c.out_mod}',
                      f'buffer_store_dwordx2 {v(10, 2)}, {v(vOO)}, {s(SRD_OUT, 4)}, {s(sT3)} offen{c.out_mod}', 'L_nosh:'])
            e = []
        e += [f's_lshl_b32 {s(sPS)}, {s(sJ)}, 7', f's_add_u32 {s(sPS)}, {s(sPS)}, {s(sOO)}']
        e += [self.wvm(('D', 7))] + adds(bufs[6])
        for t in range(6):
            e += [f'v_cvt_pk_bf16_f32 {v(12 + 2 * t + i)}, {v(RR + 4 * t + 2 * i)}, {v(RR + 4 * t + 2 * i + 1)}' for i in range(2)]
            e.append(I(f'buffer_store_dwordx2 {v(12 + 2 * t, 2)}, {v(vOO)}, {s(SRD_OUT, 4)}, {s(sPS)} offen{c.out_mod}', tag='Z'))
            if t < 5:
                e.append(f's_add_u32 {s(sPS)}, {s(sPS)}, {16 * 2304}')
        self.emit(e, 'otail')

    def rare_paths(self):
        for site, new in self.sites:
            self.raw([f'L_rare_{site}:', f's_call_b64 {s(sRET, 2)}, L_rescale_{new}', f's_branch L_back_{site}'])
        if not self.sites:
            return
        for new in range(2):
            e = []
            self.raw([f'L_rescale_{new}:', 's_nop 15'])
            m, m2, f = v(vT), v(vT + 1), v(vT + 2)
            for t in range(6):
                r = [Sr(new, 0, t) + i for i in range(4)] + [Sr(new, 1, t) + i for i in range(4)]
                e += [f'v_max3_f32 {m}, {v(r[0])}, {v(r[1])}, {v(r[2])}', f'v_max3_f32 {m}, {m}, {v(r[3])}, {v(r[4])}',
                      f'v_max3_f32 {m}, {m}, {v(r[5])}, {v(r[6])}', f'v_max3_f32 {m}, {m}, {v(r[7])}, 0'] + self.xlane_max(m, m2)
                e += [f'v_exp_f32 {f}, -{m}']
                e += [f'v_sub_f32 {v(NM + 4 * t + i)}, {v(NM + 4 * t + i)}, {m}' for i in range(4)]
                e += [f'v_sub_f32 {v(x)}, {v(x)}, {m}' for x in r]
                e += [f'v_mul_f32 {v(L_ + 4 * t + i)}, {v(L_ + 4 * t + i)}, {f}' for i in range(4)]
                for dt in range(8):
                    for i in range(0, 4, 2):
                        o = Oacc(dt, t) + i
                        e += [f'v_accvgpr_read_b32 {v(vMX)}, {a(o)}', f'v_accvgpr_read_b32 {v(vMX + 1)}, {a(o + 1)}',
                              f'v_mul_f32 {v(vMX)}, {v(vMX)}, {f}', f'v_mul_f32 {v(vMX + 1)}, {v(vMX + 1)}, {f}',
                              f'v_accvgpr_write_b32 {a(o)}, {v(vMX)}', f'v_accvgpr_write_b32 {a(o + 1)}, {v(vMX + 1)}']
            e += ['s_nop 1', f's_setpc_b64 {s(sRET, 2)}']
            self.out += pad_hazards([mk(x) for x in e])

    def finish(self):
        self.raw(['L_end:', 's_endpgm'])

    def trace_move(self):
        if self.c.trace:
            self.tr(name='norm')
            self.emit([f'v_writelane_b32 v254, 0, {58 + k}' for k in range(6)])

    def trace_out(self):
        if not self.c.trace:
            return
        self.tr(name='tail')
        self.emit(['s_waitcnt vmcnt(0)'])
        self.tr(name='drain')
        e = [f's_add_u32 s12, s58, {STAMP_OFF + 0x80000}', 's_addc_u32 s13, s59, 0', 's_mov_b32 s14, 0x80000', 's_mov_b32 s15, 0x20000',
             f's_lshl_b32 {s(sT1)}, s2, 2', f's_add_u32 {s(sT1)}, {s(sT1)}, {s(sW)}', f's_lshl_b32 {s(sT1)}, {s(sT1)}, 9',
             f'v_lshrrev_b32 v40, 1, {v(vPS)}', I(f'buffer_store_dwordx2 v[254:255], v40, s[12:15], {s(sT1)} offen', tag='TR')]
        if self.c.dbgout:
            names = self.trnames
            last = lambda n: len(names) - 1 - names[::-1].index(n)
            its = [i for i, n in enumerate(names) if n == 'it']
            sel = [last('first'), names.index('q'), last('q'), last('conv'), last('pre'), its[4], its[12], its[20], its[27], its[-1], last('last'), last('norm'),
                   last('o') - 4, last('o'), last('tail'), last('drain')]
            e += ['s_waitcnt vmcnt(0)', 's_or_b32 s4, s2, s3', 's_cmp_lg_u32 s4, 0', 's_cbranch_scc1 L_end', 'v_readlane_b32 s5, v254, 0', 'v_mov_b32 v41, 0']
            for k, i in enumerate(sel):
                e += [f'v_readlane_b32 s4, v254, {i}', 's_nop 1', 's_sub_u32 s4, s4, s5', f'v_writelane_b32 v41, s4, {k}']
            e += [f'v_lshrrev_b32 v40, 2, {v(vPS)}', 's_mov_b64 exec, 0xffff', f'buffer_store_dword v41, v40, {s(SRD_DBG, 4)}, 0 offen']
        self.emit(e)

    def kernel1(self):
        c = self.c
        self.setup()
        self.qproj()
        self.attention(c.mode == 'safe')
        self.tr(name='last')
        vm_join = list(self.vm)
        self.raw(['L_norm:'])
        e = []
        if c.mode == 'fast':
            m = v(vT)
            e += [f'v_max3_f32 {m}, {v(L_)}, {v(L_ + 4)}, {v(L_ + 8)}', f'v_max3_f32 {m}, {m}, {v(L_ + 12)}, {v(L_ + 16)}',
                  f'v_max_f32 {m}, {m}, {v(L_ + 20)}', f'v_cmp_nge_f32 vcc, {s(sLTHR)}, {m}',
                  's_nop 1', 's_cmp_lg_u64 vcc, 0', f's_cselect_b32 {s(sT1)}, 1, 0', f's_andn2_b32 {s(sT1)}, {s(sT1)}, {s(sSAFE)}',
                  f'v_mov_b32 {v(vT + 1)}, {s(sT1)}', f's_lshl_b32 {s(sT1)}, {s(sW)}, 2', f's_add_u32 {s(sT1)}, {s(sT1)}, {49152}',
                  f'v_mov_b32 {v(vT + 2)}, {s(sT1)}', f'ds_write_b32 {v(vT + 2)}, {v(vT + 1)}']
        e += self.onorm()
        e += [self.wvm(('O', 3)), 's_waitcnt lgkmcnt(0)', 's_barrier']
        self.fb_check = []
        if c.mode == 'fast':
            e += [f'ds_read_b128 {v(OPK, 4)}, {v(SEL)} offset:49152']
            self.fb_check = [f'v_or3_b32 {v(OPK)}, {v(OPK)}, {v(OPK + 1)}, {v(OPK + 2)}', f'v_or_b32 {v(OPK)}, {v(OPK)}, {v(OPK + 3)}',
                             f'v_readfirstlane_b32 {s(sT1)}, {v(OPK)}', f's_cmp_lg_u32 {s(sT1)}, 0', 's_cbranch_scc1 L_fallback']
        self.emit(e, 'onorm')
        self.trace_move()
        self.oproj()
        self.trace_out()
        self.finish()
        if c.mode == 'fast':
            self.raw(['L_fallback:'])
            self.lg = []; self.vm = []
            tr = c.trace
            c.trace = False
            e = ['s_waitcnt vmcnt(0) lgkmcnt(0)', 's_barrier', f's_mov_b32 {s(sSAFE)}, 1', f's_mov_b32 {s(sOFF)}, {s(sOFF0)}',
                 f's_add_u32 {s(sOFF2)}, {s(sOFF)}, 4096', f's_mov_b32 {s(SRD_KV + 2)}, 262144']
            self.emit(e)
            self.kv_reload()
            self.attention(True)
            assert [x[0] for x in self.vm] == [x[0] for x in vm_join], (self.vm, vm_join)
            self.emit(['s_waitcnt lgkmcnt(0)', 's_nop 15', 's_branch L_norm'])
            c.trace = tr
        self.rare_paths()
        self.spin_blocks()
        return self.out


def descriptor(name, vg, acc, sg=102):
    d = ['.section .rodata,"a"', '.p2align 6', f'.amdhsa_kernel {name}']
    for k, x in dict(next_free_vgpr=vg, next_free_sgpr=sg, accum_offset=acc, group_segment_fixed_size=0, kernarg_size=104,
                     user_sgpr_count=2, user_sgpr_kernarg_segment_ptr=1, system_sgpr_workgroup_id_x=1).items():
        d.append(f'  .amdhsa_{k} {x}')
    d.append('.end_amdhsa_kernel')
    return d


def build(cfg, path):
    g = Gen(cfg)
    k1 = g.kernel1()
    L = ['; @launch grid=(256,1,1) block=(256,1,1) lds=163840',
         '; Two GQA blocks, one launch.  Workgroup = (block, batch, 4 query heads / 2 kv heads), one wave per query head.',
         ';   1. Q^T = wq^T x^T (wq, x staged by LDS-DMA; wq read with the transposing LDS load), scaled by log2(e)/sqrt(128), kept in registers',
         ';   2. flash attention over 32 blocks of 32 keys, S^T = K Q^T - m and O^T += V^T P^T on 16x16x32 MFMAs; K/V stream through LDS rings,',
         ';      the number of loads in flight is bounded by counted vmcnt waits.  m is the row maximum of the first keys; a row sum beyond 2^40',
         ';      (or not finite) sends the workgroup to L_fallback, which redoes the loop with a running maximum and rescaling',
         ';   3. out^T partial = wo^T O^T over the 512 local features, nine groups of 64 columns, own group last; bf16 partials go to d_ws',
         ';      (sc1 stores, then a flag), the owner polls the flags (cleared at entry, confirmed through d_debug) and adds them with MFMAs',
         '; Generated by a script of the author (instruction placement between MFMAs, wait counts and wait states are computed there).',
         '.amdgcn_target "amdgcn-amd-amdhsa--gfx950"', '.text']
    L += [f'.globl {K1}', '.p2align 8', f'.type {K1},@function', f'{K1}:']
    L += [('' if x.kind in ('label', 'dir') else '    ') + x.text for x in k1]
    if cfg.trace:
        assert g.ntr == len(g.trnames) <= 58, (g.ntr, len(g.trnames))
        L += ['; trnames ' + ' '.join(g.trnames)]
    L += descriptor(K1, 512, 256)
    open(path, 'w').write('\n'.join(L) + '\n')
    return g

if __name__ == '__main__':
    kw = {}
    path = sys.argv[1]
    for x in sys.argv[2:]:
        k, val = x.split('=', 1)
        try:
            val = eval(val)
        except Exception:
            pass
        kw[k] = val
    build(Cfg(**kw), path)
```

```python
import sys, math, struct
from asmlib import *

NAME = 'concat_heads__gqa_block_cached__gqa_block_cached__near_ridge'
K1 = NAME + '_kernel'
K2 = 'reduce_partials_kernel'


def f2u(x):
    return struct.unpack('<I', struct.pack('<f', x))[0]


class Cfg:
    trace = False
    dma_cost = 8
    rot = True
    krot = True
    warm_wo = True
    warm_stride = 128
    kv_nt = ' nt'
    w_nt = ''
    x_nt = ''
    wo_nt = ''
    st_mod = ' sc1'
    fl_mod = ' sc1'
    d_mod = ' sc1'
    out_mod = ''
    thr = 8.0
    lthr = 2.0 ** 40
    last_opt = True
    verbose = False
    kv_from = 28
    kv_sp = 8
    t3_late = True
    win_c = 5
    n2 = 1
    npre = 24
    split = True
    reserve = True
    cap = 8
    pre_fast = True
    norm_pk = True
    kv_nc = 9
    put_sp = 4
    put_m = 8
    kv_gap = 0
    put_q = 6
    win = (3, 4, 4)
    fake_kv = False
    mode = 'fast'
    force_fb = False
    q_rate = 8.0
    a_rate = 8.3
    o_rate = 8.0
    npart1 = 30
    oring = 6
    big_from = 99
    tlb = 0
    dbg_early = False
    sig = (70, 60, 40)
    pa = (30, 70, 30, 70)
    pb = (10, 50, 68)
    add_at = (101, 111, 122, 138)
    sh_at = 4
    sh_early = False
    sh_pos = (58, 78, 4 * 16 + 5, 4 * 16 + 14)
    pc = 15
    wpad = 8
    burst = 1
    bsp = 2
    prepoll = False
    spin_max = 200000
    n_stage = 2
    trace_h = False
    win_b = 4
    n1 = 4
    dbgout = False
    q32 = False
    wq_sp = 6
    q32_budget = 24
    xtouch = -1
    warm_it = 30
    vsum = False
    summode = 'm16zz'
    dot_cost = 8
    nosum = False
    noexp = False
    krot_m = 9
    red2 = True
    warm_code = True
    trace_o = False
    red_off = False
    st_off = False
    warm_nt = ''
    warm_at = (0, 1)
    init_u = 4
    ramp = 18
    touch_at = ()
    early = (0, 8)
    x1_at = 16
    u4_at = 24
    touch_nt = ''
    cw_late = False
    cw_piece = 8192
    cw_n = 9
    fake_w = False

    def __init__(self, **kw):
        for k, x in kw.items():
            assert hasattr(self, k), k
            setattr(self, k, x)


TS = 8704
RING = 4 * TS
XB = 4 * RING
OB = 65536
GRP = 9 * 8 * 12288
FL_OFF = 32 * GRP
STAMP_OFF = 256 * 122880
assert FL_OFF + 32 * 32768 <= STAMP_OFF
OOB = 0x7ffffff0

sW = 3
sB, sJ, sBLK = 4, 5, 6
SRD_KV, SRD_WQ, SRD_X, SRD_WO, SRD_WS = 8, 12, 16, 20, 24
SRD_FL, SRD_DBG, SRD_OUT = 60, 64, 68
sRING = 28
sOFF, sOFF2 = 29, 30
sHH = 31
sLOOP = 32
sT0, sT1, sT2 = 33, 34, 35
sTB = 40
sH = 44
sWK, sXK = 48, 49
sOFF0 = 50
sSAFE = 51
sTR = 52
sSPIN = 53
sTM = 54
sXL, sSO = 72, 73
sC = 74
sTHR, sLTHR = 76, 77
sRET = 78
sFS = 90
sC1152 = 91
sWOL, sCG, sPS, sPSB, sKL, sFA, sDA, sT3, sGRP, sOO = 80, 81, 82, 83, 84, 85, 86, 87, 88, 89

S_ = [0, 48]
NM = 96
L_ = 120
P_ = 144
FR = 168
ONES = 184
vT = 188
vKA = 192
vVA = 193
vKV = 197
vLANE = 198
vKW = 199
Q45 = 200
vMX = 232
vKW4 = 233
vTRa, vTRb = 254, 255
QA = 200
vWA = 216
vXA = 244
vWV = 220
vXV = 224
vH = 226
QB = 192
OACC = [0, 24]
OA_ = 48
OPK = 64
RR = 76
vR = 80
LDB = 228
vBA = 234
vOW = 238
vWM = 239
vOV, vOA, vOA2, vPS, vF, vOO, vL0, vPA = 240, 241, 242, 243, 244, 245, 246, 247
vSG = 199
SEL = 248
OBV = 100
HB = 100

MF = 'v_mfma_f32_16x16x32_bf16'
MF32 = 'v_mfma_f32_32x32x16_bf16'


def Sr(buf, c, t):
    return S_[buf] + (c * 6 + t) * 4


def Qfrag(t, ks):
    return a(192 + 16 * t + 4 * ks, 4) if t < 4 else v(Q45 + 16 * (t - 4) + 4 * ks, 4)


def Oacc(dt, t):
    return (dt * 6 + t) * 4


def Bfrag(phi):
    if phi < 32:
        return v(OBV + 4 * phi, 4)
    if phi < 48:
        return a(192 + 4 * (phi - 32), 4)
    return a(4 * (phi - 48), 4)


sPSt = [0, 1, 36, 37, 38, 39, 92, 93]
sDAt = [94, 95, 96, 97, 98, 99, 100, 101]

flat = lambda gs: [x for g in gs for x in g]


class Gen:
    def __init__(self, cfg):
        self.c = cfg
        self.out = []
        self.lg = []
        self.vm = []
        self.spins = []
        self.sites = []
        self.ntr = 0
        self.trreg = (vTRa, vTRb)
        self.trnames = []
        self.plan_wo()

    def emit(self, seq, name=''):
        seq = [mk(x) for x in seq]
        seq, self.lg = auto_lgkm(seq, self.lg)
        seq = self.resolve_vm(seq)
        rep = []
        seq = pad_hazards(seq, history=self.out[-40:], report=rep)
        if rep and self.c.verbose:
            for r in rep:
                if 'm0' not in r[1]:
                    print(f'  nop[{name}]', r)
        self.out.extend(seq)

    def raw(self, seq):
        self.out.extend(mk(x) for x in seq)

    def vm_reset(self):
        self.vm = [x for x in self.vm if x[1]]

    def resolve_vm(self, seq):
        out = []
        for ins in seq:
            if ins.kind == 'wait' and 'vmcnt(?)' in ins.text:
                tags = ins.tag if isinstance(ins.tag, list) else [ins.tag]
                idx = -1
                for k, t in enumerate(self.vm):
                    if t[0] in tags:
                        idx = k
                if idx < 0:
                    continue
                n = min(len(self.vm) - 1 - idx, 63)
                self.vm = self.vm[len(self.vm) - n:] if n else []
                out.append(I(f's_waitcnt vmcnt({n})'))
                continue
            if ins.kind == 'wait':
                m = re.search(r'vmcnt\((\d+)\)', ins.text)
                if m:
                    n = int(m.group(1))
                    if n < len(self.vm):
                        self.vm = self.vm[len(self.vm) - n:] if n else []
            touched = set(ins.rd) | (set(ins.wr) if ins.kind != 'vld' else set())
            for t in self.vm:
                assert not (t[1] & touched), f'register of an outstanding load touched: {ins.text} / {t}'
            if ins.kind in ('dma', 'vld', 'vst') and ins.tag != 'UNCOUNTED':
                self.vm.append((ins.tag, set(ins.wr) if ins.kind == 'vld' else set()))
            out.append(ins)
        return out

    def wvm(self, tags):
        return I('s_waitcnt vmcnt(?)', tag=tags)

    def dma(self, vreg, srd, soff, imm, mod, tag):
        o = f' offset:{imm}' if imm else ''
        return I(f'buffer_load_dwordx4 {v(vreg)}, {s(srd, 4)}, {soff} offen{o}{mod} lds', tag=tag, cost=self.c.dma_cost)

    def tr_code(self, dyn=False):
        k = self.ntr
        self.ntr += 1
        ra, rb = self.trreg
        e = ['s_waitcnt lgkmcnt(0)', f's_memrealtime {s(sTM, 2)}', f's_memtime {s(sTM + 2, 2)}', 's_waitcnt lgkmcnt(0)']
        if dyn:
            e += [f's_mov_b32 m0, {s(sTR)}', 's_nop 3', f'v_writelane_b32 {v(ra)}, {s(sTM)}, m0',
                  f'v_writelane_b32 {v(rb)}, {s(sTM + 2)}, m0', f's_add_u32 {s(sTR)}, {s(sTR)}, 1']
        else:
            e += [f'v_writelane_b32 {v(ra)}, {s(sTM)}, {k}', f'v_writelane_b32 {v(rb)}, {s(sTM + 2)}, {k}', f's_mov_b32 {s(sTR)}, {k + 1}']
        return e

    def tr(self, dyn=False, name=''):
        if not self.c.trace or ((self.c.trace_o or self.c.trace_h) and name == 'it'):
            return
        self.trnames.append(name)
        sv = [set(x) for x in self.lg]
        self.emit(self.tr_code(dyn))
        self.lg = sv

    def tr_filler(self, fl, g, name=''):
        if self.c.trace:
            self.trnames.append(name)
            fl.append(Filler(self.tr_code(), rel=g, dl=g, stream='tr', cost=0))

    def kv_groups(self, sb, base, tag, win=None):
        m0 = lambda n: f's_add_u32 m0, {s(sb)}, {base + 1088 * n - 1024 * (n & 3)}'
        groups = [[m0(0)]]
        for n in range(8):
            bu = self.c.burst
            g = [f's_waitcnt vmcnt({win[(n // bu) % len(win)] if isinstance(win, tuple) else win})'] if win is not None and n % bu == 0 else []
            g.append(self.dma(vKV, SRD_KV, s(sOFF if n < 4 else sOFF2), 1024 * (n & 3), self.c.kv_nt, tag))
            if n < 7:
                g.append(m0(n + 1))
            groups.append(g)
        groups.append([f's_add_u32 {s(sOFF)}, {s(sOFF)}, 8192', f's_and_b32 {s(sOFF)}, {s(sOFF)}, 0x3ffff',
                       f's_add_u32 {s(sOFF2)}, {s(sOFF)}, 4096'])
        return groups

    def kv_tile(self, slot, tag):
        return self.kv_groups(sRING, slot * TS, tag)

    def kv_stage(self):
        groups = []
        for tl in range(self.c.n_stage):
            for n in range(8):
                g = []
                so = sOFF if n < 4 else sOFF2
                if tl == 4 and n == 0:
                    g += [f's_lshl_b32 {s(SRD_KV + 2)}, {s(sKL)}, 18']
                o = f' offset:{1024 * (n & 3)}' if n & 3 else ''
                g.append(I(f'buffer_load_dwordx4 {a(32 * tl + 4 * n, 4)}, {v(vKV)}, {s(SRD_KV, 4)}, {s(so)} offen{o}{self.c.kv_nt}',
                           tag=('T', tl, n), cost=self.c.dma_cost))
                if n == 7:
                    if tl == 4:
                        g += [f's_mov_b32 {s(SRD_KV + 2)}, 262144', f's_lshl_b32 {s(sT3)}, {s(sKL)}, 13', f's_add_u32 {s(sOFF)}, {s(sOFF)}, {s(sT3)}']
                    else:
                        g += [f's_add_u32 {s(sOFF)}, {s(sOFF)}, 8192']
                    g += [f's_and_b32 {s(sOFF)}, {s(sOFF)}, 0x3ffff', f's_add_u32 {s(sOFF2)}, {s(sOFF)}, 4096']
                groups.append(g)
        return groups

    def kv_put(self, tl, n):
        ad = (vKW, tl * TS) if tl < 4 else (vKW4, 0)
        return [self.wvm(('T', tl, n)), I(f'ds_write_b128 {v(ad[0])}, {a(32 * tl + 4 * n, 4)} offset:{ad[1] + 1088 * n}', cost=12)]

    def code_warm(self):
        L = v(vLANE)
        return ['s_getpc_b64 s[96:97]', f's_lshl_b32 {s(sT1)}, s7, 2', f's_add_u32 {s(sT1)}, {s(sT1)}, {s(sW)}',
                f's_and_b32 {s(sT1)}, {s(sT1)}, 15', f's_min_u32 {s(sT1)}, {s(sT1)}, {self.c.cw_n - 1 if self.c.mode == "fast" else 5}', f's_mul_i32 {s(sT1)}, {s(sT1)}, {self.c.cw_piece}',
                f'v_mul_u32_u24 {v(vH + 2)}, {self.c.cw_piece // 64}, {L}',
                f'v_add_u32 {v(vH + 2)}, {s(sT1)}, {v(vH + 2)}', I(f'global_load_dword v253, {v(vH + 2)}, s[96:97]', tag='CW')]

    def x_touch(self, kc_now):
        L = v(vLANE)
        t0, t1 = v(vH + 2), v(vH + 3)
        d = 128 * (7 - kc_now)
        return [f'v_and_b32 {t0}, 1, {L}', f'v_lshlrev_b32 {t0}, 7, {t0}', f's_add_u32 {s(sT1)}, {s(sXK)}, {d}', f'v_add_u32 {t0}, {s(sT1)}, {t0}',
                f'v_subrev_u32 {t1}, 1152, {t0}', f'v_min_u32 {t0}, {t0}, {t1}',
                f'v_lshrrev_b32 {t1}, 1, {L}', f'v_min_u32 {t1}, 23, {t1}', f's_mul_i32 {s(sT1)}, {s(sW)}, {24 * 1152}',
                f'v_mad_u32_u24 {t0}, {t1}, {s(sC1152)}, {t0}',
                I(f'buffer_load_dword v239, {t0}, {s(SRD_X, 4)}, {s(sT1)} offen{self.c.x_nt}', tag='W', cost=self.c.dma_cost)]

    def kv_touch(self, k):
        e = []
        if k == 0:
            e += [f'v_lshlrev_b32 {v(vH + 4)}, 7, {v(vLANE)}', f's_add_u32 {s(sFA)}, {s(sKL)}, 3', f's_lshl_b32 {s(sFA)}, {s(sFA)}, 13',
                  f's_add_u32 {s(sFA)}, {s(sFA)}, {s(sOFF0)}']
        else:
            e += [f's_add_u32 {s(sFA)}, {s(sFA)}, 8192']
        e += [f's_and_b32 {s(sFA)}, {s(sFA)}, 0x3ffff',
              I(f'buffer_load_dword v238, {v(vH + 4)}, {s(SRD_KV, 4)}, {s(sFA)} offen{self.c.touch_nt}', tag='W', cost=self.c.dma_cost)]
        return e

    def flag_clear(self):
        L = v(vLANE)
        t0, t1 = v(vH), v(vH + 1)
        return [f'v_lshlrev_b32 {t0}, 7, {L}', f'v_mov_b32 {t1}, {OOB}', f's_cmp_eq_u32 {s(sW)}, 0', f's_cselect_b32 {s(sT3)}, 32, 0',
                f'v_cmp_gt_u32 vcc, {s(sT3)}, {L}', f's_lshl_b32 {s(sT3)}, {s(sJ)}, 12',
                's_nop 0', f'v_cndmask_b32 {t0}, {t1}, {t0}, vcc', f'v_mov_b32 {t1}, 0',
                I(f'buffer_store_dword {t1}, {t0}, {s(SRD_FL, 4)}, {s(sT3)} offen{self.c.fl_mod}', tag='CLR')]

    def clear_done(self):
        return [f'v_mov_b32 {v(vT)}, 1', f's_lshl_b32 {s(sT3)}, {s(sGRP)}, 3', f's_add_u32 {s(sT3)}, {s(sT3)}, {s(sJ)}',
                I(f'buffer_store_byte {v(vT)}, {v(vSG)}, {s(SRD_DBG, 4)}, {s(sT3)} offen sc1', tag='SIG', cost=self.c.dma_cost)]

    def setup(self):
        c = self.c
        e = ['s_cmp_ge_u32 s2, 256', 's_cbranch_scc1 L_end']
        if c.trace:
            e += [f's_memrealtime {s(98, 2)}', f's_memtime {s(100, 2)}']
        e += ['s_load_dwordx8 s[36:43], s[0:1], 0', 's_load_dwordx2 s[44:45], s[0:1], 32',
              's_load_dwordx8 s[48:55], s[0:1], 40', 's_load_dwordx2 s[56:57], s[0:1], 72',
              's_load_dwordx2 s[58:59], s[0:1], 96', 's_load_dwordx4 s[92:95], s[0:1], 80']
        e += ['v_lshrrev_b32 v1, 6, v0', f'v_and_b32 {v(vLANE)}, 63, v0', f'v_readfirstlane_b32 {s(sW)}, v1']
        e += ['s_lshr_b32 s7, s2, 3', f's_and_b32 {s(sB)}, s7, 15', f's_lshr_b32 {s(sJ)}, s7, 4', 's_and_b32 s6, s2, 3',
              's_lshl_b32 s6, s6, 1', f's_add_u32 {s(sJ)}, {s(sJ)}, s6', f's_bfe_u32 {s(sBLK)}, s2, 0x10002']
        e += [f's_and_b32 {s(sHH)}, {s(sW)}, 1', f's_lshr_b32 {s(sT0)}, {s(sW)}, 1']
        e += [f's_lshl_b32 {s(sT1)}, {s(sHH)}, 1', f's_add_u32 {s(sT1)}, {s(sT1)}, {s(sT0)}',
              f's_mul_i32 {s(sRING)}, {s(sT1)}, {RING}',
              f's_lshl_b32 {s(sWOL)}, {s(sW)}, 10', f's_add_u32 {s(sXL)}, {s(sWOL)}, {XB}']
        if c.rot:
            e += [f's_and_b32 {s(sOFF)}, s7, 31', f's_lshl_b32 {s(sOFF)}, {s(sOFF)}, 13']
        else:
            e += [f's_mov_b32 {s(sOFF)}, 0']
        e += [f's_add_u32 {s(sOFF2)}, {s(sOFF)}, 4096']
        L = v(vLANE)
        e += [f'v_lshrrev_b32 v1, 4, {L}',
              f'v_and_b32 v2, 15, {L}',
              f'v_lshrrev_b32 v5, 2, v2',
              f'v_and_b32 v6, 3, {L}',
              f'v_lshrrev_b32 v8, 3, {L}', f'v_and_b32 v9, 7, {L}',
              'v_lshrrev_b32 v10, 1, v8']
        e += ['v_xor_b32 v11, v9, v10', f's_lshl_b32 {s(sT1)}, {s(sHH)}, 2', f'v_xor_b32 v11, {s(sT1)}, v11', 'v_lshlrev_b32 v11, 4, v11',
              f's_lshl_b32 {s(sT1)}, {s(sW)}, 3', f'v_add_u32 v12, {s(sT1)}, v8', 'v_mul_u32_u24 v12, 1152, v12',
              f'v_add_u32 {v(vXV)}, v12, v11']
        if c.q32:
            e += ['v_lshlrev_b32 v11, 2, v1', 'v_xor_b32 v11, v2, v11', 'v_lshlrev_b32 v11, 4, v11', 'v_lshl_add_u32 v11, v1, 13, v11']
        else:
            e += ['v_and_b32 v11, 1, v10', 'v_lshlrev_b32 v11, 2, v11', 'v_xor_b32 v11, v9, v11', 'v_lshlrev_b32 v11, 4, v11',
                  'v_lshl_add_u32 v11, v8, 13, v11']
        e += [f's_lshl_b32 {s(sT1)}, {s(sJ)}, 2', f's_add_u32 {s(sT1)}, {s(sT1)}, {s(sW)}', f's_lshl_b32 {s(sT1)}, {s(sT1)}, 8',
              f'v_add_u32 {v(vWV)}, {s(sT1)}, v11']
        for n in range(1, 4):
            e += [f'v_add_u32 {v(vWV + n)}, {(31744 if c.q32 else 64512 - c.wpad) * n}, {v(vWV)}']
        e += ['s_waitcnt lgkmcnt(0)']
        e += [f's_cmp_eq_u32 {s(sBLK)}, 0']
        for d in range(10):
            e += [f's_cselect_b32 s{36 + d}, s{36 + d}, s{48 + d}']
        e += [f's_mul_i32 {s(sT1)}, {s(sB)}, 110592', f's_add_u32 {s(SRD_X)}, s36, {s(sT1)}', f's_addc_u32 {s(SRD_X + 1)}, s37, 0',
              f's_mov_b32 {s(SRD_X + 2)}, 110592', f's_mov_b32 {s(SRD_X + 3)}, 0x20000']
        e += [f's_mov_b32 {s(SRD_WQ)}, s42', f's_mov_b32 {s(SRD_WQ + 1)}, s43', f's_mov_b32 {s(SRD_WQ + 2)}, 4718592',
              f's_mov_b32 {s(SRD_WQ + 3)}, 0x20000']
        if c.krot and c.krot_m > 1:
            m = c.krot_m
            e += [f's_mul_hi_u32 {s(sT1)}, {s(sB)}, {(2 ** 32 + m - 1) // m}', f's_mul_i32 {s(sT1)}, {s(sT1)}, {m}', f's_sub_u32 {s(sT1)}, {s(sB)}, {s(sT1)}',
                  f's_mul_i32 {s(sT1)}, {s(sT1)}, {9 // m}', f's_lshl_b32 {s(sXK)}, {s(sT1)}, 7', f's_lshl_b32 {s(sWK)}, {s(sT1)}, 19']
        else:
            e += [f's_mov_b32 {s(sXK)}, 0', f's_mov_b32 {s(sWK)}, 0']
        self.emit(e, 'setup')
        e = self.late_setup = []
        e += [f's_cmp_eq_u32 {s(sHH)}, 0', 's_cselect_b32 s38, s38, s40', 's_cselect_b32 s39, s39, s41',
              f's_lshl_b32 {s(sT1)}, {s(sB)}, 4', f's_lshl_b32 {s(sT2)}, {s(sJ)}, 1', f's_add_u32 {s(sT1)}, {s(sT1)}, {s(sT2)}',
              f's_add_u32 {s(sT1)}, {s(sT1)}, {s(sT0)}',
              f's_lshl_b32 {s(sT1)}, {s(sT1)}, 18' if not c.fake_kv else f's_lshl_b32 {s(sT1)}, {s(sT0)}, 18',
              f's_add_u32 {s(SRD_KV)}, s38, {s(sT1)}', f's_addc_u32 {s(SRD_KV + 1)}, s39, 0',
              f's_mov_b32 {s(SRD_KV + 2)}, 262144', f's_mov_b32 {s(SRD_KV + 3)}, 0x20000']
        e += ['v_and_b32 v11, 1, v1', 'v_lshlrev_b32 v11, 1, v11', 'v_lshrrev_b32 v12, 1, v1', 'v_lshl_or_b32 v11, v12, 3, v11',
              f's_cmp_eq_u32 {s(sHH)}, 0', 's_cselect_b64 vcc, -1, 0', 's_nop 1', 'v_cndmask_b32 v11, v11, v1, vcc',
              'v_xor_b32 v11, v2, v11', 'v_lshlrev_b32 v11, 4, v11', f'v_lshl_add_u32 {v(vKV)}, v1, 8, v11']
        e += [f's_mul_i32 {s(sT1)}, {s(sJ)}, 589824', f's_add_u32 {s(SRD_WO)}, s44, {s(sT1)}', f's_addc_u32 {s(SRD_WO + 1)}, s45, 0',
              f's_mov_b32 {s(SRD_WO + 2)}, 589824', f's_mov_b32 {s(SRD_WO + 3)}, 0x20000']
        e += [f's_lshl_b32 {s(sGRP)}, {s(sBLK)}, 4', f's_add_u32 {s(sGRP)}, {s(sGRP)}, {s(sB)}', f's_lshl_b32 {s(sT1)}, {s(sGRP)}, 15',
              f's_add_u32 {s(sT1)}, {s(sT1)}, {FL_OFF}', f's_add_u32 {s(SRD_FL)}, s58, {s(sT1)}', f's_addc_u32 {s(SRD_FL + 1)}, s59, 0',
              f's_mov_b32 {s(SRD_FL + 2)}, 32768', f's_mov_b32 {s(SRD_FL + 3)}, 0x20000',
              f's_mov_b32 {s(SRD_DBG)}, s94', f's_mov_b32 {s(SRD_DBG + 1)}, s95', f's_mov_b32 {s(SRD_DBG + 2)}, 256', f's_mov_b32 {s(SRD_DBG + 3)}, 0x20000',
              f's_mov_b32 {s(SRD_OUT)}, s92', f's_mov_b32 {s(SRD_OUT + 1)}, s93', f's_mov_b32 {s(SRD_OUT + 2)}, 3538944', f's_mov_b32 {s(SRD_OUT + 3)}, 0x20000',
              f's_lshl_b32 {s(sPSB)}, {s(sJ)}, 2', f's_add_u32 {s(sPSB)}, {s(sPSB)}, {s(sW)}',
              f's_xor_b32 {s(sKL)}, {s(sHH)}, 1', f'v_lshlrev_b32 {v(vKW)}, 4, {L}', f's_cmp_eq_u32 {s(sHH)}, 0', f's_cselect_b32 {s(sT1)}, {s(sRING)}, {XB}', f'v_add_u32 {v(vKW4)}, {s(sT1)}, {v(vKW)}',
              f'v_add_u32 {v(vKW)}, {s(sRING)}, {v(vKW)}']
        e += [f's_mul_i32 {s(sT1)}, {s(sGRP)}, {GRP}',
              f's_add_u32 {s(SRD_WS)}, s58, {s(sT1)}', f's_addc_u32 {s(SRD_WS + 1)}, s59, 0',
              f's_mov_b32 {s(SRD_WS + 2)}, {GRP}', f's_mov_b32 {s(SRD_WS + 3)}, 0x20000']
        cs = f2u(math.log2(math.e) / math.sqrt(128.0))
        e += [f's_mov_b32 {s(sC)}, {cs:#x}', f's_mov_b32 {s(sC + 1)}, {cs:#x}', f's_mov_b32 {s(sTHR)}, {f2u(c.thr):#x}',
              f's_mov_b32 {s(sLTHR)}, {f2u(c.lthr if not c.force_fb else 1.0):#x}', f's_mov_b32 {s(sSAFE)}, 0', f's_mov_b32 {s(sC1152)}, 1152',
              f's_mov_b32 {s(sOFF0)}, {s(sOFF)}']
        if c.q32:
            e += [f'v_lshrrev_b32 v3, 5, {L}', 'v_and_b32 v4, 1, v1', 'v_lshlrev_b32 v11, 11, v3', 'v_lshl_add_u32 v11, v5, 8, v11',
                  'v_lshl_add_u32 v11, v4, 4, v11', 'v_and_b32 v12, 1, v6', 'v_lshl_add_u32 v11, v12, 5, v11', 'v_lshrrev_b32 v12, 1, v6',
                  'v_lshl_add_u32 v11, v12, 3, v11', f'v_add_u32 v11, {s(sRING)}, v11']
            for ct in range(4):
                e += [f'v_xor_b32 v12, {ct}, v5', f'v_lshl_add_u32 {v(vWA + ct)}, v12, 6, v11']
            e += [f'v_and_b32 v14, 31, {L}', 'v_lshrrev_b32 v11, 3, v14', 'v_and_b32 v12, 7, v14',
                  'v_lshlrev_b32 v13, 10, v11', 'v_lshl_add_u32 v13, v12, 7, v13', f'v_add_u32 v13, {XB}, v13',
                  'v_lshrrev_b32 v12, 1, v12', 'v_and_b32 v11, 1, v11', 'v_lshlrev_b32 v11, 2, v11', 'v_xor_b32 v12, v12, v11', 'v_xor_b32 v12, v12, v3']
            for k in range(4):
                e += [f'v_xor_b32 v11, {2 * k}, v12', f'v_lshl_add_u32 {v(vXA + k)}, v11, 4, v13']
        else:
            e += [f'v_mul_u32_u24 v11, {1024 + c.wpad}, v1', 'v_lshl_add_u32 v11, v5, 7, v11', 'v_lshl_add_u32 v11, v6, 4, v11',
                  f'v_add_u32 v11, {s(sRING)}, v11', 'v_lshrrev_b32 v12, 1, v5', f'v_lshl_add_u32 {v(vWA)}, v12, 6, v11',
                  'v_xor_b32 v12, 1, v12', f'v_lshl_add_u32 {v(vWA + 1)}, v12, 6, v11']
            e += ['v_lshrrev_b32 v11, 3, v2', 'v_and_b32 v12, 7, v2', 'v_lshlrev_b32 v13, 10, v11', 'v_lshl_add_u32 v13, v12, 7, v13',
                  f'v_add_u32 v13, {XB}, v13', 'v_lshrrev_b32 v12, 1, v12', 'v_lshlrev_b32 v11, 2, v11', 'v_xor_b32 v12, v12, v11',
                  'v_xor_b32 v12, v12, v1', f'v_lshl_add_u32 {v(vXA)}, v12, 4, v13', 'v_xor_b32 v12, 4, v12',
                  f'v_lshl_add_u32 {v(vXA + 1)}, v12, 4, v13']
        e += [f's_mul_i32 {s(sT1)}, {s(sT0)}, {RING}', 'v_mul_u32_u24 v11, 1088, v5', 'v_lshl_add_u32 v11, v6, 8, v11',
              'v_xor_b32 v12, v1, v6', 'v_lshl_add_u32 v11, v12, 4, v11', f'v_add_u32 {v(vKA)}, {s(sT1)}, v11']
        e += [f's_add_u32 {s(sT1)}, {s(sT1)}, {2 * RING}',
              'v_mul_u32_u24 v11, 1088, v1', 'v_lshl_add_u32 v11, v5, 8, v11', 'v_lshl_add_u32 v11, v6, 3, v11',
              f'v_add_u32 v11, {s(sT1)}, v11',
              'v_and_b32 v12, 1, v5', 'v_lshrrev_b32 v13, 1, v5', 'v_lshl_or_b32 v12, v13, 2, v12']
        for k, d in enumerate((0, 1, 4, 5)):
            e += [f'v_xor_b32 v13, {d}, v12', f'v_lshl_add_u32 {v(vVA + k)}, v13, 5, v11']
        for k in range(4):
            e += [f's_sub_u32 {s(sT1)}, {k}, {s(sHH)}', f's_and_b32 {s(sT1)}, {s(sT1)}, 3', f's_mul_i32 {s(sT1)}, {s(sT1)}, {TS}',
                  f's_add_u32 {s(sTB + k)}, {s(sRING)}, {s(sT1)}']
        e += [f's_mul_i32 {s(sT2)}, {s(sPSB)}, 3072', f's_add_u32 {s(sPSt[0])}, {s(sT2)}, {8 * 98304}', f's_mul_i32 {s(sT3)}, {s(sJ)}, 98304',
              f's_mul_i32 {s(sSO)}, {s(sW)}, 3072', f's_add_u32 {s(sT3)}, {s(sT3)}, {s(sSO)}']
        for p in range(1, 8):
            e += [f's_add_u32 {s(sT1)}, {s(sJ)}, {p}', f's_and_b32 {s(sT1)}, {s(sT1)}, 7', f's_mul_i32 {s(sT1)}, {s(sT1)}, 98304',
                  f's_add_u32 {s(sPSt[p])}, {s(sT1)}, {s(sT2)}',
                  f's_sub_u32 {s(sT1)}, {s(sJ)}, {p}', f's_and_b32 {s(sT1)}, {s(sT1)}, 7', f's_mul_i32 {s(sT1)}, {s(sT1)}, 12288',
                  f's_add_u32 {s(sDAt[p])}, {s(sT1)}, {s(sT3)}']
        e += [f's_lshl_b32 {s(sT1)}, {s(sJ)}, 10', f's_add_u32 {s(sT1)}, {s(sT1)}, {s(sSO)}', f's_add_u32 {s(sT1)}, {s(sT1)}, {8 * 98304}',
              f's_cmp_lt_u32 {s(sJ)}, 3', f's_cselect_b32 {s(sDAt[0])}, {s(sT1)}, {GRP}',
              f's_lshl_b32 {s(sFS)}, {s(sPSB)}, 10', f's_mul_i32 {s(sOO)}, {s(sB)}, {96 * 2304}', f's_mul_i32 {s(sT3)}, {s(sBLK)}, 1152',
              f's_add_u32 {s(sOO)}, {s(sOO)}, {s(sT3)}', f's_lshl_b32 {s(sT3)}, {s(sW)}, 5', f's_add_u32 {s(sOO)}, {s(sOO)}, {s(sT3)}']
        for k in range(4):
            e += [f's_add_u32 {s(sT1)}, {s(sB)}, {k}' if c.krot else f's_mov_b32 {s(sT1)}, {k}', f's_and_b32 {s(sT1)}, {s(sT1)}, 3',
                  f's_mul_i32 {s(sH + k)}, {s(sT1)}, 147456']

    def wq_unit(self, u):
        hf = u & 1
        pre = [f's_add_u32 m0, {s(sRING)}, {(4096 + 4 * self.c.wpad) * ((u + 4) & 7)}', f's_add_u32 {s(sSO)}, {s(sWK)}, {(131072 if self.c.q32 else 128) * hf}']
        g = [pre + [self.dma(vWV, SRD_WQ, s(sSO), 0, self.c.w_nt, ('U', u))]]
        for n in range(1, 4):
            g.append([self.dma(vWV + n, SRD_WQ, s(sSO), (1024 + self.c.wpad) * n, self.c.w_nt, ('U', u))])
        if hf and not self.c.fake_w:
            g.append([f's_add_u32 {s(sWK)}, {s(sWK)}, 262144', f's_cmp_eq_u32 {s(sWK)}, 4718592', f's_cselect_b32 {s(sWK)}, 0, {s(sWK)}'])
        return g

    def x_chunk(self, kc):
        g = []
        for m in range(3):
            g.append([f's_add_u32 m0, {s(sXL)}, {12288 * (kc & 1) + 4096 * m}', f's_add_u32 {s(sSO)}, {s(sXK)}, {36864 * m}',
                      self.dma(vXV, SRD_X, s(sSO), 0, self.c.x_nt, ('X', kc))])
        if not self.c.fake_w:
          g.append([f's_add_u32 {s(sXK)}, {s(sXK)}, 128', f's_cmp_eq_u32 {s(sXK)}, 1152', f's_cselect_b32 {s(sXK)}, 0, {s(sXK)}'])
        return g

    def a_reads(self, u, k):
        r = QA + 4 * k
        if self.c.q32:
            return [f'ds_read_b64_tr_b16 {v(r + 2 * e_, 2)}, {v(vWA + k)} offset:{4096 * ((u + 4) & 7) + 1024 * e_}' for e_ in range(2)]
        return [f'ds_read_b64_tr_b16 {v(r + 2 * e_, 2)}, {v(vWA + (k >> 1))} offset:{(4096 + 4 * self.c.wpad) * ((u + 4) & 7) + 512 * e_ + 8 * (k & 1)}' for e_ in range(2)]

    def b_read(self, st, t):
        if self.c.q32:
            return f'ds_read_b128 {a(QB + 12 * (st & 1) + 4 * t, 4)}, {v(vXA + (st & 3))} offset:{12288 * ((st >> 2) & 1) + 4096 * t}'
        kc = st >> 1
        return f'ds_read_b128 {a(QB + 24 * (st & 1) + 4 * t, 4)}, {v(vXA + (st & 1))} offset:{12288 * (kc & 1) + 2048 * t}'

    def qproj(self):
        c = self.c
        if c.trace:
            self.emit([f'v_writelane_b32 {v(vTRa)}, s98, 0', f'v_writelane_b32 {v(vTRb)}, s100, 0'])
            self.ntr = 1
            self.trnames.append('start')
        if c.trace_h:
            self.tr(name='sld')
        e = flat(self.x_chunk(0)) + flat(self.wq_unit(0)) + flat(self.wq_unit(1))
        if c.init_u >= 3:
            e += flat(self.x_chunk(1))
        for u in range(2, min(c.init_u, 4)):
            e += flat(self.wq_unit(u))
        if c.warm_code and not c.cw_late:
            e += self.code_warm()
        e += self.late_setup
        for u in range(4, c.init_u):
            e += flat(self.wq_unit(u))
        if c.trace_h:
            self.emit(e); e = []
            self.tr(name='iss')
            self.emit([self.wvm([('X', 0), ('U', 0)])])
            self.tr(name='land')
        e += [self.wvm([('X', 0), ('U', 0)]), 's_barrier']
        for t in range(3 if c.q32 else 6):
            e.append(self.b_read(0, t))
        for k in range(3):
            e += self.a_reads(0, k)
        self.emit(e, 'qpre')
        self.tr(name='first')
        mf, fl, dm = [], [], []
        NU = 36
        kvg = self.kv_stage()
        D = 12 if c.q32 else 24
        sc = lambda x: x * D // 24
        if c.init_u < 3:
            for k, g in enumerate(self.x_chunk(1)):
                dm.append(Filler(g, rel=sc(c.x1_at) + 2 * k, dl=sc(c.x1_at) + 1 + 2 * k, pos=sc(c.x1_at) + 0.7))
        for q in range(c.init_u, NU):
            if q < 4:
                x = sc(c.early[q - 2])
            else:
                x = max(D * (q - 8) + sc(18), sc(c.ramp) * (q - max(c.init_u, 4)) + (sc(c.u4_at) if c.init_u < 4 else 0))
            steady = x == D * (q - 8) + sc(18)
            nxt_x = ((q - 7) & 3) == (3 if c.q32 else 2)
            sp = sc(c.wq_sp) if steady and not nxt_x else sc(2)
            if steady and nxt_x and c.q32:
                sp = 1.5
            for k, g in enumerate(self.wq_unit(q)):
                dm.append(Filler(g, rel=x + int(sp * k), dl=x + 1 + int(sp * k), pos=x + 0.5))
        if c.warm_code and c.cw_late:
            dm.append(Filler(self.code_warm(), rel=D + sc(8), dl=D + sc(10)))
        dm.append(Filler(self.flag_clear(), rel=D * 2 + sc(6), dl=D * 2 + sc(16)))
        for u in range(NU):
            st, hf = u >> 1, u & 1
            g0 = D * u
            if c.q32:
                for ct in range(4):
                    for t in range(3):
                        acc = v((ct * 3 + t) * 16, 16)
                        mf.append(I(f'{MF32} {acc}, {v(QA + 4 * ct, 4)}, {a(QB + 12 * (u & 1) + 4 * t, 4)}, {acc if u else 0}'))
            else:
                for k in range(4):
                    ct = 4 * hf + k
                    for t in range(6):
                        acc = v((ct * 6 + t) * 4, 4)
                        mf.append(I(f'{MF} {acc}, {v(QA + 4 * k, 4)}, {a(QB + 24 * (st & 1) + 4 * t, 4)}, {acc if st else 0}'))
            fl.append(Filler(self.a_reads(u, 3), rel=g0, dl=g0 + sc(4), stream='a', pos=g0 + sc(18) - 0.5))
            if u + 1 < NU:
                fl.append(Filler(self.wvm(('U', u + 1)), rel=g0 + sc(5), dl=g0 + sc(8), stream='a'))
                for k in range(3):
                    fl.append(Filler(self.a_reads(u + 1, k), rel=g0 + sc(6 * k + 6), dl=g0 + sc(6 * k + 10), stream='a', pos=g0 + D + sc(6 * k) - 0.5))
            xu = (u & 3 == 3) if c.q32 else (u & 3 == 2)
            if xu and u + 1 < NU:
                kc = u >> 2
                if kc < 8:
                    fl.append(Filler([self.wvm(('X', kc + 1)), 's_barrier'], rel=g0 + sc(6) - (1 if c.q32 else 0), dl=g0 + sc(8) - (1 if c.q32 else 0), stream='b'))
                if kc + 2 <= 8:
                    for k, g in enumerate(self.x_chunk(kc + 2)):
                        dm.append(Filler(g, rel=g0 + sc(9 + 3 * k), dl=g0 + sc(10 + 3 * k), pos=g0 + sc(9) + 0.5))
                if kc == c.xtouch:
                    dm.append(Filler(self.x_touch(kc + 3), rel=g0 + sc(17), dl=g0 + sc(18), pos=g0 + sc(17) + 0.2))
            if u in c.touch_at:
                dm.append(Filler(self.kv_touch(c.touch_at.index(u)), rel=g0 + sc(16), dl=g0 + sc(18), pos=g0 + sc(16) + 0.6))
            if c.warm_wo and not c.warm_it and u in c.warm_at:
                dm.append(Filler(self.warm_wo(c.warm_at.index(u)), rel=g0 + sc(16), dl=g0 + sc(18), pos=g0 + sc(16) + 0.5))
            if c.q32 and u + 1 < NU:
                for t in range(3):
                    fl.append(Filler(self.b_read(u + 1, t), rel=g0 + 4 + t, dl=g0 + 7 + t, stream='b', pos=g0 + 11.5))
            if not c.q32 and hf == 0 and st + 1 < 18:
                for t in range(6):
                    fl.append(Filler(self.b_read(st + 1, t), rel=g0 + 9 + 5 * t, dl=g0 + 30 + t, stream='b', pos=g0 + 47.5))
            if u % 4 == 3 and u < 35:
                self.tr_filler(fl, g0 + D - 1, 'q')
        i = 0
        while kvg:
            x = int(D * c.kv_from + sc(4) + c.kv_sp * i * D / 24)
            if x > D * NU - 2:
                break
            fl.append(Filler(kvg.pop(0), rel=x, dl=x + 1, stream='kv')); i += 1
        assert i >= 16
        dm.sort(key=lambda f: f.pos)
        for f in dm:
            f.stream = 'dma'
        fl += dm
        puts = [(tl, n) for tl in range(c.n_stage) for n in range(8)]
        for k in range(c.put_q):
            tl, n = puts.pop(0)
            sl = (tl * TS + 1088 * n + 1023) // (4096 + 4 * c.wpad)
            x = min(max(D * (28 + min(sl, 7)) + sc(18), D * NU - sc(4) * (c.put_q - k)), D * NU - 1)
            fl.append(Filler(self.kv_put(tl, n), rel=x, dl=x + sc(2), stream='put'))
        if c.q32:
            seq = interleave(mf, fl, 24, c.verbose, 'qproj', rate=float(c.q32_budget), cap=40)
        else:
            seq = interleave(mf, fl, 8, c.verbose, 'qproj', rate=c.q_rate, cap=(c.cap if c.split else 24), split=c.split,
                             reserve=(set(range(5, len(mf), 6)) if c.reserve else ()))
        self.emit(seq, 'qproj')
        self.tr(name='q')
        e = []
        for t3 in ((2, 0, 1) if c.q32 else ()):
            for ct in range(4):
                b = (ct * 3 + t3) * 16
                e += [f'v_pk_mul_f32 {v(b + i, 2)}, {v(b + i, 2)}, {s(sC, 2)}' for i in range(0, 16, 2)]
                dst = [Q45 + 16 * (i >> 2) + 4 * ct + (i & 3) if t3 == 2 else b + i for i in range(8)]
                e += [f'v_cvt_pk_bf16_f32 {v(dst[i])}, {v(b + 2 * i)}, {v(b + 2 * i + 1)}' for i in range(8)]
                e += [f'v_permlane16_swap_b32 {v(dst[j])}, {v(dst[4 + j])}' for j in range(4)]
                if t3 < 2:
                    e += [f'v_accvgpr_write_b32 {a(192 + 16 * (2 * t3 + (i >> 2)) + 4 * ct + (i & 3))}, {v(dst[i])}' for i in range(8)]
        for t in (() if c.q32 else (4, 5, 0, 1, 2, 3)):
            for ct in range(8):
                b = (ct * 6 + t) * 4
                e += [f'v_pk_mul_f32 {v(b, 2)}, {v(b, 2)}, {s(sC, 2)}', f'v_pk_mul_f32 {v(b + 2, 2)}, {v(b + 2, 2)}, {s(sC, 2)}']
            for ct in range(8):
                b = (ct * 6 + t) * 4
                ks, uu = ct >> 1, ct & 1
                for h2 in range(2):
                    d = Q45 + 16 * (t - 4) + 4 * ks + 2 * uu + h2 if t >= 4 else b + h2
                    e.append(f'v_cvt_pk_bf16_f32 {v(d)}, {v(b + 2 * h2)}, {v(b + 2 * h2 + 1)}')
            if t < 4:
                for ct in range(8):
                    b = (ct * 6 + t) * 4
                    ks, uu = ct >> 1, ct & 1
                    for h2 in range(2):
                        e.append(f'v_accvgpr_write_b32 {a(192 + 16 * t + 4 * ks + 2 * uu + h2)}, {v(b + h2)}')
        nput = 16 - c.put_q
        for k in range(nput):
            tl, n = puts.pop(0)
            x = (k + 1) * (len(e) // (nput + 1))
            e[x:x] = self.kv_put(tl, n)
        self.puts = puts
        gs = [kvg.pop(0) for _ in range(min(c.kv_nc, len(kvg)))]
        self.kvg = kvg
        if c.n_stage == 2:
            t3 = [[f's_lshl_b32 {s(SRD_KV + 2)}, {s(sKL)}, 18']] + self.kv_tile(3, None)[:-1]
            t3 += [[f's_mov_b32 {s(SRD_KV + 2)}, 262144', f's_lshl_b32 {s(sT3)}, {s(sKL)}, 13', f's_add_u32 {s(sOFF)}, {s(sOFF)}, {s(sT3)}',
                    f's_and_b32 {s(sOFF)}, {s(sOFF)}, 0x3ffff', f's_add_u32 {s(sOFF2)}, {s(sOFF)}, 4096']]
            gs = self.kv_tile(2, None)
            if c.t3_late:
                self.kvg = t3
            else:
                gs += t3
        step = len(e) // (len(gs) + 1)
        for k in range(len(gs) - 1, -1, -1):
            e[k * step + 4:k * step + 4] = gs[k]
        e += ['s_waitcnt lgkmcnt(0)', 's_barrier']
        self.emit(e, 'qconv')
        self.tr(name='conv')

    def kv_reload(self):
        e = flat(self.kv_tile(0, None)) + flat(self.kv_tile(1, None)) + flat(self.kv_tile(2, None))
        e += [f's_cmp_lg_u32 {s(sHH)}, 0', 's_cbranch_scc1 L_skip_t3'] + flat(self.kv_tile(3, None)) + ['L_skip_t3:', 's_waitcnt vmcnt(0)', 's_barrier']
        self.emit(e)

    def frag_reads(self, phi, kslot, vslot):
        r = FR + 4 * (phi & 3)
        if phi < 8:
            c_, ks = phi >> 2, phi & 3
            return [f'ds_read_b128 {v(r, 4)}, {v(vKA)} offset:{kslot * TS + 4352 * c_ + 64 * ks}']
        dt = phi - 8
        reg = vVA + (dt & 1) + 2 * (dt >> 2)
        return [f'ds_read_b64_tr_b16 {v(r + 2 * e_, 2)}, {v(reg)} offset:{vslot * TS + 4352 * e_ + 64 * ((dt >> 1) & 1)}' for e_ in range(2)]

    def qk_mfmas(self, buf, czero=False):
        mf = []
        for c_ in range(2):
            for ks in range(4):
                for t in range(6):
                    d = v(Sr(buf, c_, t), 4)
                    cc = d if ks else ('0' if czero else v(NM + 4 * t, 4))
                    mf.append(I(f'{MF} {d}, {v(FR + 4 * ks, 4)}, {Qfrag(t, ks)}, {cc}'))
        return mf

    def pv_mfmas(self, czero=False, sumfirst=False):
        mf, first = [], []
        for dt in range(8):
            first.append(len(mf))
            for t in range(6):
                o = a(Oacc(dt, t), 4)
                mf.append(I(f'{MF} {o}, {v(FR + 4 * (dt & 3), 4)}, {v(P_ + 4 * t, 4)}, {0 if czero else o}'))
            if sumfirst and dt == 0:
                for t in range(6):
                    l = v(L_ + 4 * t, 4)
                    mf.append(I(f'{MF} {l}, {v(ONES, 4)}, {v(P_ + 4 * t, 4)}, {l}'))
            if dt < 6 and not self.c.vsum and not self.c.nosum and not sumfirst:
                l = v(L_ + 4 * dt, 4)
                if self.c.summode.startswith('m16'):
                    mf.append(I(f'{MF} {l}, {v(ONES, 4)}, {v(P_ + 4 * dt, 4)}, {0 if czero else l}'))
                elif self.c.summode == 'm4':
                    mf.insert(len(mf) - 3, I(f'v_mfma_f32_4x4x4_16b_bf16 {l}, {v(ONES, 2)}, {v(P_ + 4 * dt, 2)}, {0 if czero else l}'))
                    mf.append(I(f'v_mfma_f32_4x4x4_16b_bf16 {l}, {v(ONES, 2)}, {v(P_ + 4 * dt + 2, 2)}, {l}'))
        return mf, first

    def exp_order(self):
        return [(c_, t, i) for c_ in range(2) for t in range(6) for i in range(4)]

    def xlane_max(self, m, m2):
        return [f'v_mov_b32 {m2}, {m}', f'v_permlane32_swap_b32 {m}, {m2}', f'v_max_f32 {m}, {m}, {m2}',
                f'v_mov_b32 {m2}, {m}', f'v_permlane16_swap_b32 {m}, {m2}', f'v_max_f32 {m}, {m}, {m2}']

    def attn_pre(self, safe, lab):
        c = self.c
        self.emit(self.frag_reads(0, 0, 0) + self.frag_reads(1, 0, 0))
        fl = []
        for phi in range(2, 8):
            fl.append(Filler(self.frag_reads(phi, 0, 0), rel=max(6 * phi - 18, -1), dl=6 * phi - 10, stream='fr', pos=6 * phi - 0.5))
        for phi in range(2):
            fl.append(Filler(self.frag_reads(phi, 1, 0), rel=6 * (phi + 8) - 14, dl=6 * (phi + 8) - 10, stream='fr', pos=60))
        mask = {'m16': 0, 'dot': 0, 'm16z': 3, 'm4': 3, 'm16zz': 15}[c.summode]
        fl.append(Filler([f'v_and_b32 {v(ONES)}, {mask}, {v(vLANE)}', f'v_cmp_eq_u32 vcc, 0, {v(ONES)}', f'v_mov_b32 {v(ONES + 1)}, 0x3f803f80', 's_nop 0',
                          f'v_cndmask_b32 {v(ONES)}, 0, {v(ONES + 1)}, vcc'], rel=0, dl=4, stream='i'))
        for i in range(1, 4):
            fl.append(Filler(f'v_mov_b32 {v(ONES + i)}, {v(ONES)}', rel=0, dl=20, stream='i'))
        if c.summode == 'dot':
            for t in range(6):
                fl.append(Filler(f'v_mov_b32 {v(L_ + 4 * t)}, 0', rel=0, dl=20, stream='i'))
        for k, g in enumerate(self.kvg):
            x = 1 + k * (21 if c.pre_fast and not safe else 44) // max(len(self.kvg), 1)
            fl.append(Filler(g, rel=x, dl=x + 1, stream='kv'))
        self.kvg = []
        if not safe and c.pre_fast:
            mf = self.qk_mfmas(0, True)
            for t in range(6):
                d = v(Sr(0, 1, t), 4)
                mf[24 + t] = I(f'{MF} {d}, {v(FR, 4)}, {Qfrag(t, 0)}, {v(NM + 4 * t, 4)}')
            rows = []
            for t in range(6):
                m, m2 = v(S_[1] + 2 * t), v(S_[1] + 2 * t + 1)
                r = [Sr(0, 0, t) + i for i in range(4)]
                rows.append([f'v_max3_f32 {m}, {v(r[0])}, {v(r[1])}, {v(r[2])}', f'v_max_f32 {m}, {m}, {v(r[3])}'] + self.xlane_max(m, m2) +
                            [f'v_sub_f32 {v(NM + 4 * t + i)}, 0, {m}' for i in range(4)])
            for z in zip(*rows):
                for x in z:
                    fl.append(Filler(x, rel=23, dl=23, stream='m', pos=23.5))
            for t in range(6):
                for i in range(4):
                    x = v(Sr(0, 0, t) + i)
                    fl.append(Filler(f'v_add_f32 {x}, {x}, {v(NM + 4 * t)}', rel=24 + 4 * t, dl=24 + 4 * t + i // 4, stream='e', pos=23.6))
                for i in range(4):
                    x = v(Sr(0, 0, t) + i)
                    fl.append(Filler(f'v_exp_f32 {x}, {x}', rel=24 + 4 * t, dl=min(25 + 4 * t + (3 * i) // 4, 47), stream='e', pos=23.6))
            self.emit(interleave(mf, fl, 8, c.verbose, 'qk0', rate=12.0), 'qk0')
            e = [f'v_exp_f32 {v(Sr(0, c_, t) + i)}, {v(Sr(0, c_, t) + i)}' for (c_, t, i) in self.exp_order()[24:c.npart1]]
            self.emit(e + ['s_waitcnt lgkmcnt(0)', 's_barrier'], 'max0')
            return
        self.emit(interleave(self.qk_mfmas(0, True), fl, 8, c.verbose, 'qk0', rate=8.0), 'qk0')
        e = []
        for t0 in (0, 3):
            ms = [(v(vMX + 2 * k), v(vMX + 2 * k + 1)) for k in range(3)]
            rows = []
            for k in range(3):
                t = t0 + k
                m, m2 = ms[k]
                r = [Sr(0, 0, t) + i for i in range(4)] + [Sr(0, 1, t) + i for i in range(4)]
                row = [f'v_max3_f32 {m}, {v(r[0])}, {v(r[1])}, {v(r[2])}', f'v_max3_f32 {m}, {m}, {v(r[3])}, {v(r[4])}',
                       f'v_max3_f32 {m}, {m}, {v(r[5])}, {v(r[6])}', f'v_max_f32 {m}, {m}, {v(r[7])}'] + self.xlane_max(m, m2)
                row += [f'v_sub_f32 {v(NM + 4 * t + i)}, 0, {m}' for i in range(4)]
                row += [f'v_sub_f32 {v(x)}, {v(x)}, {m}' for x in r]
                rows.append(row)
            for z in zip(*rows):
                e += list(z)
        if not safe:
            for (c_, t, i) in self.exp_order()[:c.npart1]:
                x = v(Sr(0, c_, t) + i)
                e.append(f'v_exp_f32 {x}, {x}')
        nput = min(c.put_m, len(self.puts))
        for k in range(nput):
            x = (k + 1) * (len(e) // (nput + 1))
            e[x:x] = self.kv_put(*self.puts.pop(0))
        e += ['s_waitcnt lgkmcnt(0)', 's_barrier']
        self.emit(e, 'max0')

    def cvt_fillers(self, cur, base, todo, rel0):
        fl = []
        todo = list(todo)
        for t in range(6):
            for c_ in range(2):
                for h2 in range(2):
                    b = Sr(cur, c_, t) + 2 * h2
                    for i in (2 * h2, 2 * h2 + 1):
                        if (c_, t, i) in todo:
                            fl.append(Filler(f'v_exp_f32 {v(Sr(cur, c_, t) + i)}, {v(Sr(cur, c_, t) + i)}', rel=rel0, dl=base + t - 4, stream='e', pos=-3))
                    fl.append(Filler(f'v_cvt_pk_bf16_f32 {v(P_ + 4 * t + 2 * c_ + h2)}, {v(b)}, {v(b + 1)}', rel=rel0, dl=base + t - 3,
                                     stream='c', pos=-2.5))
                    if self.c.summode == 'dot':
                        fl.append(Filler(I(f'v_dot2c_f32_bf16 {v(L_ + 4 * t)}, {v(ONES)}, {v(P_ + 4 * t + 2 * c_ + h2)}', cost=self.c.dot_cost), rel=max(rel0, base - 2), dl=base + 36,
                                         stream='s', pos=-2.4))
                    if self.c.vsum:
                        for i in range(2):
                            fl.append(Filler(f'v_add_f32 {v(L_ + 4 * t)}, {v(L_ + 4 * t)}, {v(b + i)}', rel=rel0, dl=base + 40, stream='s', pos=-2.4))
        return fl

    def attn_iter(self, j, safe, dma='kv', xwait='s_waitcnt vmcnt(8)', nextk=True, site=None, extra=(), win=None, npart=None):
        c = self.c
        cur, new = j & 1, (j + 1) & 1
        pv, first = self.pv_mfmas(j == 0)
        mf = self.qk_mfmas(new) + pv
        n = len(mf)
        need = [6 * phi for phi in range(8)] + [48 + x for x in first] + [n, n + 6]
        fl = []
        for phi in range(2, 18):
            if phi >= 16:
                if not nextk: continue
                r = self.frag_reads(phi - 16, (j + 2) & 3, 0)
            else:
                r = self.frag_reads(phi, (j + 1) & 3, j & 3)
            fl.append(Filler(r, rel=max(need[phi] - 15, 0), dl=need[phi] - 10, stream='fr', pos=need[phi] - 0.5))
        order = self.exp_order()
        if safe:
            fl += self.cvt_fillers(cur, 48, order, 0)
            regs = [S_[new] + i for i in range(48)]
            m = v(vMX)
            fl.append(Filler(f'v_max3_f32 {m}, {v(regs[0])}, {v(regs[1])}, {v(regs[2])}', rel=52, dl=n - 4, stream='m', pos=200))
            for k in range(3, 48, 2):
                r2 = regs[min(k + 1, 47)]
                fl.append(Filler(f'v_max3_f32 {m}, {m}, {v(regs[k])}, {v(r2)}', rel=52, dl=n - 4, stream='m', pos=200))
            fl.append(Filler(f'v_cmp_lt_f32 vcc, {s(sTHR)}, {m}', rel=52, dl=n - 3, stream='m', pos=200))
        else:
            fl += self.cvt_fillers(cur, 48, order[c.npart1:], 0)
            for (c_, t, i) in order[:npart or c.npart1]:
                x = v(Sr(new, c_, t) + i)
                fl.append(Filler(f'v_exp_f32 {x}, {x}', rel=((30 if npart else 46) if c_ == 0 else 52), dl=n - 1, stream='e2', pos=200))
        if dma == 'kv':
            gs = self.kv_groups(sTB + (j & 3), 0, None, c.win if win is None else win)
            if j == 4:
                gs[0] = [f's_cmp_eq_u32 {s(sLOOP)}, {s(sKL)}', f's_cselect_b32 {s(SRD_KV + 2)}, 0, {s(SRD_KV + 2)}'] + gs[0]
            for k, g in enumerate(gs):
                n = k - 1
                x = 2 + 11 * (n - n % c.burst) + c.bsp * (n % c.burst) if 0 <= n < 8 else (0 if n < 0 else 88)
                fl.append(Filler(g, rel=x, dl=min(x + (6 if c.burst == 1 else 1), 90) if k else 1, stream='dma'))
        for f in extra:
            if f.stream == 'fr0':
                f.rel = f.dl = need[16] - 17
        fl += list(extra)
        if c.noexp:
            fl = [f for f in fl if not f.ins[0].op.startswith('v_exp')]
        xg = need[15]
        fl.append(Filler([xwait, 's_barrier'] if isinstance(xwait, str) else xwait + ['s_barrier'], rel=xg, dl=xg, stream='x'))
        seq = interleave(mf, fl, 8, c.verbose, f'iter{j}', rate=((c.a_rate if j else 12.0) if not safe else 10.0), cap=((c.cap if c.split and not safe else 20) if j else (16 if c.split else 28)), split=c.split,
                         reserve=({x - 1 for x in need} if c.reserve and not safe else ()))
        if safe:
            seq.append(I(f's_cbranch_vccnz L_rare_{site}'))
            seq.append(I(f'L_back_{site}:'))
            self.sites.append((site, new))
        return seq

    def warm_wo(self, part, tmp=vH + 4):
        L = v(vLANE)
        per = -(-72 // len(self.c.warm_at))
        assert per <= 64
        t0, t1 = v(tmp), v(tmp + 1)
        e = []
        if self.c.warm_it:
            t0 = v(vWM)
        elif part == 0:
            e += [f'v_lshlrev_b32 {t0}, 7, {L}', f'v_mov_b32 {t1}, {OOB}', f'v_cmp_gt_u32 vcc, {per}, {L}', 's_nop 1', f'v_cndmask_b32 {t0}, {t1}, {t0}, vcc']
        e += [f's_lshl_b32 {s(sT1)}, {s(sB)}, 2', f's_add_u32 {s(sT1)}, {s(sT1)}, {s(sW)}', f's_mul_i32 {s(sT1)}, {s(sT1)}, 9216',
              f's_add_u32 {s(sT1)}, {s(sT1)}, {128 * per * part}',
              I(f'buffer_load_dword {v(vF) if self.c.warm_it else v(253)}, {t0}, {s(SRD_WO, 4)}, {s(sT1)} offen{self.c.warm_nt}', tag='W', cost=self.c.dma_cost)]
        return e

    def attention(self, safe):
        c = self.c
        lab = 's' if safe else 'f'
        self.emit([f's_mov_b32 {s(sLOOP)}, 7'])
        self.attn_pre(safe, lab)
        self.tr(name='pre')
        assert c.n_stage == 2
        tc = [Filler(g, rel=4 + 3 * k, dl=(8 + 3 * k if safe else 90), stream='tc') for k, g in enumerate(self.tail_consts())]
        if self.puts:
            ex = [Filler(self.kv_put(tl, n), rel=int(k * c.put_sp), dl=int(k * c.put_sp) + 1, stream='put', pos=-1) for k, (tl, n) in enumerate(self.puts)]
            ex.append(Filler(['s_waitcnt lgkmcnt(0)', 's_barrier'], rel=84, dl=84, stream='put'))
            self.puts = []
            self.emit(self.attn_iter(0, safe, dma=None, site='0', extra=ex), 'iter0')
        else:
            self.emit(self.attn_iter(0, safe, site='0', extra=[Filler(['s_waitcnt vmcnt(8)', 's_barrier'], rel=84, dl=84, stream='fr0')] + tc), 'iter0')
        self.vm_reset()
        self.tr(name='it')
        entry = [set(x) for x in self.lg]
        phases = [(c.win, 0)] if (safe or c.win_b is None) else [(c.win, 7 - c.n1), (c.win_b, 0)]
        if len(phases) == 2 and c.win_c is not None:
            phases = [(c.win, 7 - c.n1), (c.win_b, 7 - c.n1 - c.n2), (c.win_c, 0)]
        for ph, (win, stop) in enumerate(phases):
            self.raw(['.p2align 3', f'L_loop{lab}{ph}:'])
            start = len(self.out)
            for j in range(1, 5):
                self.emit(self.attn_iter(j, safe, site=f'{j}', win=win), f'iter{j}')
                self.tr(dyn=True, name='it')
            assert [set(x) for x in self.lg] == entry, (self.lg, entry)
            self.emit([f's_sub_u32 {s(sLOOP)}, {s(sLOOP)}, 1', f's_cmp_lg_u32 {s(sLOOP)}, {stop}', f's_cbranch_scc1 L_loop{lab}{ph}'])
            rep = []
            pad_hazards(self.out[start:start + 40], history=self.out[-40:], report=rep)
            assert not rep, rep
            if ph and c.trace and not c.trace_o and not c.trace_h:
                self.ntr -= 4
                self.trnames = self.trnames[:-4]
        self.vm_reset()
        if c.trace and not c.trace_o and not c.trace_h:
            self.ntr += 24
            self.trnames += ['it'] * 24
        ex = [Filler(self.clear_done(), rel=2, dl=6)] + [Filler(self.flag_touch(), rel=12, dl=16)]
        nt = 0
        if c.tlb:
            tl = [[f'v_min_u32 {v(vT + 1)}, 8, {v(vLANE)}', f'v_mul_u32_u24 {v(vT + 1)}, 98304, {v(vT + 1)}',
                   I(f'buffer_load_dword {v(vF)}, {v(vT + 1)}, {s(SRD_WS, 4)}, 0 offen', cost=c.dma_cost)],
                  [I(f'buffer_load_dword {v(vF)}, {v(vOO)}, {s(SRD_OUT, 4)}, {s(sOO)} offen', cost=c.dma_cost)],
                  [f's_add_u32 {s(sT1)}, {s(sOO)}, {80 * 2304}', I(f'buffer_load_dword {v(vF)}, {v(vOO)}, {s(SRD_OUT, 4)}, {s(sT1)} offen', cost=c.dma_cost)]]
            ex += [Filler(g, rel=20 + 6 * k, dl=24 + 6 * k, stream='tlb') for k, g in enumerate(tl)]
            nt = 3
        wm = [Filler(self.warm_wo(k, vMX + 6), rel=8 + 4 * k, dl=12 + 4 * k, stream='wm') for k in range(len(c.warm_at))] if c.warm_wo and c.warm_it else []
        n29 = len(wm) if c.warm_it == 29 else 0
        n30 = len(wm) if c.warm_it in (29, 30) else 0
        self.emit(self.attn_iter(29, safe, dma=None, xwait=f's_waitcnt vmcnt({10 + n29 + nt})', site='29', extra=ex + (wm if n29 else [])), 'iter29')
        self.tr(name='it')
        self.emit(self.attn_iter(30, safe, dma=None, xwait=f's_waitcnt vmcnt({2 + n30 + nt})', nextk=False, site='30',
                                 extra=(wm if c.warm_it == 30 else []), npart=(48 if c.last_opt else None)), 'iter30')
        self.last_extra = wm if c.warm_it == 31 else []
        self.tr(name='it')
        self.vm_reset()
        self.attn_last(safe)

    def tail_consts(self):
        L = v(vLANE)
        t0, t1, t2 = v(vT), v(vT + 1), v(vT + 2)
        per = -(-72 // len(self.c.warm_at))
        g = [[f'v_lshrrev_b32 {t0}, 3, {L}', f'v_and_b32 {t1}, 7, {L}', f'v_and_b32 {t2}, 6, {t0}', f'v_xor_b32 {t1}, {t1}, {t2}'],
             [f's_lshl_b32 {s(sT1)}, {s(sW)}, 3', f'v_add_u32 {t0}, {s(sT1)}, {t0}', f'v_mul_u32_u24 {t0}, 1152, {t0}', f'v_lshl_add_u32 {v(vOV)}, {t1}, 4, {t0}'],
             [f'v_bfe_u32 {t0}, {L}, 2, 3', f'v_lshrrev_b32 {t1}, 1, {t0}', f'v_xor_b32 {t1}, {s(sW)}, {t1}', f'v_lshlrev_b32 {t1}, 5, {t1}'],
             [f'v_lshl_add_u32 {t0}, {t0}, 7, {t1}', f'v_and_b32 {t1}, 3, {L}', f'v_lshl_add_u32 {t0}, {t1}, 3, {t0}'],
             [f'v_lshrrev_b32 {t1}, 5, {L}', f'v_lshl_add_u32 {v(vOA)}, {t1}, 10, {t0}', f'v_add_u32 {v(vOA2)}, 65536, {v(vOA)}', f'v_lshlrev_b32 {v(vPS)}, 4, {L}']]
        for k in range(4):
            g.append([f's_mul_hi_u32 {s(sT1)}, {s(sH + k)}, {(2 ** 32 + 5) // 6}', f's_add_u32 {s(sT1)}, {s(sT1)}, {OB}', f'v_add_u32 {v(vBA + k)}, {s(sT1)}, {v(vPS)}'])
        g += [[f's_mul_i32 {s(sT1)}, {s(sW)}, 24576', f's_add_u32 {s(sT1)}, {s(sT1)}, {OB}', f'v_add_u32 {v(vOW)}, {s(sT1)}, {v(vPS)}'],
              [f'v_mov_b32 {t2}, {OOB}', f'v_cmp_eq_u32 vcc, 0, {L}', f's_cmp_eq_u32 {s(sW)}, 0', f's_cselect_b32 {s(sT1)}, 1, 0', f'v_cndmask_b32 {v(vL0)}, {t2}, {L}, vcc'],
              [f'v_cmp_gt_u32 vcc, {s(sT1)}, {L}', f'v_lshlrev_b32 {t0}, 7, {L}', 's_nop 0', f'v_cndmask_b32 {v(vSG)}, {t2}, {L}, vcc'],
              [f'v_cmp_gt_u32 vcc, {per}, {L}', 's_nop 1', f'v_cndmask_b32 {v(vWM)}, {t2}, {t0}, vcc'],
              [f'v_subrev_u32 {t0}, 7, {L}', f'v_sub_u32 {t1}, {s(sJ)}, {t0}', f'v_and_b32 {t1}, 7, {t1}', f'v_lshlrev_b32 {t1}, 12, {t1}'],
              [f'v_lshl_add_u32 {t1}, {t0}, 7, {t1}', f'v_cmp_gt_u32 vcc, 15, {L}', f'v_lshlrev_b32 {t0}, 12, {L}', 's_nop 0', f'v_cndmask_b32 {t1}, 0, {t1}, vcc'],
              [f'v_cmp_gt_u32 vcc, 8, {L}', 's_nop 1', f'v_cndmask_b32 {v(vPA)}, {t1}, {t0}, vcc'],
              [f'v_and_b32 {t0}, 15, {L}', f'v_mul_u32_u24 {t0}, 2304, {t0}', f'v_lshrrev_b32 {t1}, 4, {L}', f'v_lshl_add_u32 {v(vOO)}, {t1}, 3, {t0}'],
              [f'v_bfe_u32 {t0}, {L}, 2, 2', f'v_cmp_eq_u32 vcc, {t0}, {t1}', f'v_and_b32 {t0}, 1, {L}', f'v_lshlrev_b32 {t0}, 4, {t0}',
               f'v_lshlrev_b32_e64 {t0}, {t0}, 1', f'v_mul_u32_u24 {t0}, 0x3f80, {t0}', f'v_cndmask_b32 {t0}, 0, {t0}, vcc'],
              [f'v_and_b32 {t1}, 2, {L}', f'v_cmp_eq_u32 vcc, 0, {t1}', f'v_mov_b32 {v(SEL)}, 0', f'v_mov_b32 {v(SEL + 1)}, 0',
               f'v_cndmask_b32 {v(SEL + 2)}, 0, {t0}, vcc', f'v_sub_u32 {v(SEL + 3)}, {t0}, {v(SEL + 2)}'],
              [f'v_mov_b32 {v(SEL + 4)}, 0', f'v_mov_b32 {v(SEL + 5)}, 0', f's_lshl_b32 {s(sFA)}, {s(sW)}, 10']]
        return g

    def dbg_load(self):
        r = OPK + 4 if self.c.dbg_early else LDB
        return f'buffer_load_dwordx2 {v(r, 2)}, {v(SEL)}, {s(SRD_DBG, 4)}, {s(sDA)} offen sc1'

    def flag_touch(self):
        return [I(f'buffer_load_dword {v(vF)}, {v(vPA)}, {s(SRD_FL, 4)}, {s(sFA)} offen{self.c.fl_mod}', cost=self.c.dma_cost)]

    def check(self, reg, want, reload, name, allanes=False, two=False):
        k = len(self.spins)
        if two:
            test = [f'v_and_b32 {v(reg)}, {v(reg)}, {v(reg + 1)}', 's_nop 0', f'v_readfirstlane_b32 {s(sT3)}, {v(reg)}', 's_nop 1', f's_cmp_eq_u32 {s(sT3)}, {want}']
        elif allanes:
            test = [f'v_cmp_eq_u32 vcc, 0, {v(reg)}', 's_nop 1', f's_and_b32 {s(sT3)}, vcc_lo, {want:#x}', f's_cmp_eq_u32 {s(sT3)}, 0']
        else:
            test = [f'v_readfirstlane_b32 {s(sT3)}, {v(reg)}', 's_nop 1', f's_cmp_lg_u32 {s(sT3)}, 0']
        self.spins.append((k, reload, test))
        return test + [f's_cbranch_scc0 L_spin{k}', f'L_spun{k}:']

    def spin_blocks(self):
        for k, reload, test in self.spins:
            self.raw([f'L_spin{k}:', f's_mov_b32 {s(sSPIN)}, {self.c.spin_max}', f'L_spinl{k}:', 's_sleep 1', reload, 's_waitcnt vmcnt(0)'] + test +
                     ([f's_cbranch_scc0 L_spinc{k}', f's_sub_u32 {s(sSPIN)}, {self.c.spin_max + 1}, {s(sSPIN)}', f'v_writelane_b32 v254, {s(sSPIN)}, {58 + k}',
                       f's_branch L_spun{k}', f'L_spinc{k}:'] if self.c.trace else []) +
                     [f's_cbranch_scc1 L_spun{k}', f's_sub_u32 {s(sSPIN)}, {s(sSPIN)}, 1', f's_cmp_lg_u32 {s(sSPIN)}, 0', f's_cbranch_scc1 L_spinl{k}',
                      f's_branch L_spun{k}'])

    def plan_wo(self):
        big = self.c.big_from
        self.bars = [g for g in range(1, 36) if g < big or (g - big) % 2 == 0]
        self.slot_of = {0: 0, 1: 1, 2: 2}
        self.issue_at = {}
        self.publish = {}
        free = [3]
        nxt = 3
        freed = 0
        opened = False
        for i, sg in enumerate(self.bars):
            end = self.bars[i + 1] if i + 1 < len(self.bars) else 36
            end2 = self.bars[i + 2] if i + 2 < len(self.bars) else 36
            self.publish[sg] = end - 1
            assert nxt >= end, (sg, nxt, end)
            while freed <= sg - 2:
                free.append(self.slot_of[freed]); freed += 1
            if sg >= 5 and not opened:
                free += list(range(4, self.c.oring)); opened = True
            todo = []
            while nxt < 36 and free and (len(todo) < (end - sg) + 1 or nxt < end2):
                self.slot_of[nxt] = free.pop(0)
                todo.append(nxt); nxt += 1
            self.issue_at[sg] = todo

    def wo_slot(self, n):
        return 16384 * self.slot_of[n >> 2] + 4096 * (n & 3)

    def wo_unit(self, n):
        p, kk = n >> 4, n & 15
        g = [f's_add_u32 m0, {s(sWOL)}, {self.wo_slot(n)}']
        if kk == 0:
            if p == 0:
                g += [f's_mov_b32 {s(sCG)}, 1024']
            else:
                g += [f's_add_u32 {s(sCG)}, {s(sJ)}, {p}', f's_and_b32 {s(sCG)}, {s(sCG)}, 7', f's_lshl_b32 {s(sCG)}, {s(sCG)}, 7']
        elif kk & 3 == 0:
            g += [f's_add_u32 {s(sCG)}, {s(sCG)}, 36864']
        g += [f's_add_u32 {s(sSO)}, {s(sH + (kk & 3))}, {s(sCG)}']
        g.append(self.dma(vOV, SRD_WO, s(sSO), 0, self.c.wo_nt, ('O', n)))
        return g

    def attn_last(self, safe):
        c = self.c
        cur = 1
        e = self.frag_reads(8, 0, 3) + self.frag_reads(9, 0, 3)
        self.emit(e, 'last0')
        sf = c.last_opt and c.summode.startswith('m16')
        pv, first = self.pv_mfmas(sumfirst=sf)
        fl = []
        for phi in range(10, 16):
            nd = first[phi - 8]
            fl.append(Filler(self.frag_reads(phi, 0, 3), rel=max(nd - 18, -1), dl=nd - 10, stream='fr', pos=nd - 0.5))
        order = self.exp_order()
        fl += self.cvt_fillers(cur, 0, order if safe else order[(48 if c.last_opt else c.npart1):], -1)
        for n in range(12):
            fl.append(Filler(self.wo_unit(n), rel=3 * n, dl=3 * n + 8, stream='dma'))
        for k, f in enumerate(self.last_extra):
            f.rel = 38 + 4 * k
            f.dl = f.rel + 6
            f.pos = f.rel + 0.5
            f.stream = 'dma'
            fl.append(f)
        if c.dbg_early:
            fl.append(Filler([f's_lshl_b32 {s(sDA)}, {s(sGRP)}, 3', I(self.dbg_load(), tag='DBG', cost=c.dma_cost)], rel=46, dl=50, stream='dma'))
        fl.append(Filler('s_barrier', rel=first[7], dl=first[7], stream='x'))
        if c.summode in ('m4', 'dot', 'm16zz'):
            rows = []
            for t in range(6):
                m, m2 = v(L_ + 4 * t), v(L_ + 4 * t + 1)
                rows.append([x.replace('v_max_f32', 'v_add_f32') for x in self.xlane_max(m, m2)])
            for z in zip(*rows):
                for x in z:
                    fl.append(Filler(x, rel=(16 if sf else first[6] + 2), dl=60, stream='r', pos=99))
        for t in range(6):
            fl.append(Filler(f'v_rcp_f32 {v(vR + 2 * t)}, {v(L_ + 4 * t)}', rel=(16 if sf else first[min(t + 2, 7)] + 3), dl=60, stream='r', pos=100))
        self.emit(interleave(pv, fl, 8, c.verbose, 'last', rate=9.0, cap=(12 if c.split else None), split=c.split), 'last')

    def ofrag(self, k, tb, pk=True):
        u, t = divmod(k, 6)
        e = [[f'v_accvgpr_read_b32 {v(tb + i)}, {a(Oacc(2 * u + (i >> 2), t) + (i & 3))}'] for i in range(8)]
        if pk:
            e += [[f'v_pk_mul_f32 {v(tb + i, 2)}, {v(tb + i, 2)}, {v(vR + 2 * t, 2)} op_sel_hi:[1,0]'] for i in range(0, 8, 2)]
        else:
            e += [[f'v_mul_f32 {v(tb + i)}, {v(tb + i)}, {v(vR + 2 * t)}'] for i in range(8)]
        e += [[f'v_cvt_pk_bf16_f32 {v(tb + i)}, {v(tb + 2 * i)}, {v(tb + 2 * i + 1)}'] for i in range(4)]
        e.append([I(f'ds_write_b128 {v(vOW)}, {v(tb, 4)} offset:{1024 * k}', cost=12)])
        return e

    def onorm(self):
        return flat(flat(self.ofrag(k, 8 * (k % 6), self.c.norm_pk) for k in range(self.c.npre)))

    def oproj(self):
        c = self.c
        NS = 144

        def aread(n):
            r = OA_ + 4 * (n & 3)
            ad = self.wo_slot(n)
            return [f'ds_read_b64_tr_b16 {v(r + 2 * e_, 2)}, {v((vOA, vOA2)[ad >> 16])} offset:{(ad & 65535) + 2048 * e_}' for e_ in range(2)]

        def bread(kk, t):
            phi = 6 * kk + t
            return f'ds_read_b128 {Bfrag(phi)}, {v(vBA + (kk & 3))} offset:{1024 * (6 * (kk >> 2) + t)}'

        def prod(p, sd):
            return [f's_sub_u32 {s(sd)}, {s(sJ)}, {p}', f's_and_b32 {s(sd)}, {s(sd)}, 7', f's_lshl_b32 {s(sd)}, {s(sd)}, 2',
                    f's_add_u32 {s(sd)}, {s(sd)}, {s(sW)}']

        def fload(p):
            return f'buffer_load_dword {v(vF)}, {v(SEL)}, {s(SRD_FL, 4)}, {s(sFA)} offen offset:{128 * p}{c.fl_mod}'

        def poll(p):
            return prod(p, sFA) + [f's_lshl_b32 {s(sFA)}, {s(sFA)}, 10', I(fload(p), tag=('F', p), cost=c.dma_cost)]

        def dloads(p, dst):
            g = []
            for z in range(3):
                o = f' offset:{1024 * z}' if z else ''
                g.append([I(f'buffer_load_dwordx4 {dst(z)}, {v(vPS)}, {s(SRD_WS, 4)}, {s(sDAt[p])} offen{o}{c.d_mod}', tag=('D', p), cost=c.dma_cost)])
            return g

        def adds(src, first=False):
            r = []
            for z in range(3):
                for h in range(2):
                    acc = v(RR + 8 * z + 4 * h, 4)
                    r.append(I(f'{MF} {acc}, {v(SEL + 2 - 2 * h, 4)}, {src(z)}, {0 if first else acc}'))
            return r

        def signal(p):
            return [self.wvm(('P', p)),
                    I(f'buffer_store_dword {v(vOA2)}, {v(vL0)}, {s(SRD_FL, 4)}, {s(sFS)} offen offset:{128 * p}{c.fl_mod}', tag=('S', p), cost=c.dma_cost)]

        ldb = lambda z: v(LDB + 4 * z, 4)
        bufs = [ldb, lambda z: v(4 * z, 4), lambda z: v(12 + 4 * z, 4)] + [(lambda k: (lambda z: v(HB + 8 + 12 * k + 4 * z, 4)))(k) for k in range(4)]
        e = [bread(0, t) for t in range(6)] + aread(0) + aread(1) + [bread(1, t) for t in range(3)] + self.fb_check + [bread(1, 3)]
        self.emit(e, 'opre')
        mf, fl = [], []
        G = []
        A = {}
        SH = {}
        hreg = lambda i: v(RR + 8 + 4 * i, 4) if i < 4 else (v(LDB + 4 * (i - 4), 4) if i < 7 else v(RR + 8, 4))
        for n in range(NS):
            p, kk = n >> 4, n & 15
            for k, nn in enumerate(c.add_at):
                if n == nn:
                    A[k] = len(mf)
                    for q in ((0,), (0,), (0,), (1, 2))[k]:
                        mf += adds(bufs[q], k == 0)
            if c.sh_early and n in c.sh_pos[2:]:
                k = c.sh_pos[2:].index(n)
                SH[k] = len(mf)
                for i in (range(7) if k == 0 else (7,)):
                    for h in range(2):
                        acc = v(RR + 4 * h, 4)
                        mf.append(I(f'{MF} {acc}, {v(SEL + 2 - 2 * h, 4)}, {hreg(i)}, {acc if i else 0}'))
            G.append(len(mf))
            for t in range(6):
                acc = v((RR if p == 8 else OACC[p & 1]) + 4 * t, 4)
                mf.append(I(f'{MF} {acc}, {v(OA_ + 4 * (n & 3), 4)}, {Bfrag(6 * kk + t)}, {acc if kk or p == 8 else 0}'))
        G.append(len(mf))
        at = lambda p, x: min(G[16 * p + x // 6] + x % 6, len(mf) - 1) if 16 * p + x // 6 < NS else len(mf) - 1
        for t in range(4, 6):
            fl.append(Filler(bread(1, t), rel=0, dl=1, stream='b', pos=5.5))
        for n in range(NS):
            p, kk = n >> 4, n & 15
            g0 = G[n]
            m = n + 2
            if m < NS:
                if m % 4 == 0 and m // 4 in self.bars:
                    sg = m // 4
                    pub = sg < 4 and 6 * (sg + 1) > c.npre
                    fl.append(Filler([self.wvm(('O', 4 * self.publish[sg] + 3))] + (['s_waitcnt lgkmcnt(0)'] if pub else []) + ['s_barrier'], rel=g0 - 1, dl=g0,
                                     stream='a', pos=g0 - 0.4))
                    if sg < 4:
                        ks = [k for k in range(6 * sg, 6 * sg + 6) if k >= c.npre]
                        items = flat(self.ofrag(k, 24 + 8 * (k % 3), False) for k in ks)
                        lo, hi = max(g0 - 24, 0), g0 - 2
                        for q, it in enumerate(items):
                            x = lo + q * (hi - lo) // len(items)
                            fl.append(Filler(it, rel=x, dl=x, stream='cv', pos=lo - 0.6 + 1e-4 * q))
                    units = [4 * q + k for q in self.issue_at[sg] for k in range(4)]
                    for k, uu in enumerate(units):
                        sp = 24 * (self.publish[sg] - sg + 1) // max(len(units), 1)
                        fl.append(Filler(self.wo_unit(uu), rel=g0 + 2 + sp * k, dl=g0 + 3 + sp * k, stream='dma'))
                fl.append(Filler(aread(m), rel=g0, dl=g0 + 2, stream='a', pos=G[m] - 0.5))
                if m < 16:
                    for t in range(6):
                        fl.append(Filler(bread(m, t), rel=g0 + 1 + t, dl=g0 + 5 + t, stream='b', pos=G[m] - 0.5))
            if kk == 15 or (c.trace_o and kk & 3 == 3):
                self.tr_filler(fl, g0 + 5, 'o')
            if kk == 15 and p < 8:
                for z in range(3):
                    for i in range(4):
                        b = OACC[p & 1] + 8 * z + 2 * i
                        fl.append(Filler(f'v_cvt_pk_bf16_f32 {v(OPK + 4 * z + i)}, {v(b)}, {v(b + 1)}', rel=g0 + 10 + 3 * z, dl=g0 + 11 + 3 * z + (i >> 1),
                                         stream='st', pos=g0 + 5.5))
                    o = f' offset:{1024 * z}' if z else ''
                    fl.append(Filler(I(f'buffer_store_dwordx4 {v(OPK + 4 * z, 4)}, {v(vPS)}, {s(SRD_WS, 4)}, {s(sPSt[p])} offen{o}{c.st_mod}',
                                       tag=('P', p), cost=c.dma_cost), rel=g0 + 10 + 3 * z, dl=g0 + 13 + 3 * z, stream='st', pos=g0 + 5.5))
                sgm = c.sig[0] if p <= 4 else (c.sig[1] if p <= 6 else c.sig[2])
                x = min(g0 + 6 + sgm, len(mf) - 1)
                fl.append(Filler(signal(p), rel=x, dl=x, stream='sig'))
        red = []
        dbgl = self.dbg_load()
        if c.dbg_early:
            x = at(0, 88)
            red.append(Filler([self.wvm('DBG')] + self.check(OPK + 4, 0x01010101, dbgl, 'dbg', two=True), rel=x, dl=x + 2))
        else:
            x = at(1, 84) if c.sh_early else at(3, 62)
            red.append(Filler([f's_lshl_b32 {s(sDA)}, {s(sGRP)}, 3', I(dbgl, tag='DBG', cost=c.dma_cost)], rel=x, dl=x + 2))
            x = at(2, 80) if c.sh_early else at(4, 56)
            red.append(Filler([self.wvm('DBG')] + self.check(LDB, 0x01010101, dbgl, 'dbg', two=True), rel=x, dl=x + 2))
        pal = f'buffer_load_dword {v(vF)}, {v(vPA)}, {s(SRD_FL, 4)}, {s(sFA)} offen{c.fl_mod}'

        def place(gs, x, sp=2):
            for k, g in enumerate(gs):
                red.append(Filler(g, rel=x + sp * k, dl=x + 2 + sp * k, pos=x + 0.5 + sp * k))
            return x + sp * len(gs)
        if c.prepoll:
            x = at(3, 64)
            red.append(Filler([f's_lshl_b32 {s(sFA)}, {s(sW)}, 10', I(pal, tag='F_', cost=c.dma_cost)], rel=x, dl=x + 2))
        if c.sh_early:
            hl = lambda i: [I(f'buffer_load_dwordx4 {hreg(i)}, {v(vPS)}, {s(SRD_WS, 4)}, {s(sDAt[0])} offen{c.d_mod}', tag=('H', i), cost=c.dma_cost)] + \
                ([f's_add_u32 {s(sDAt[0])}, {s(sDAt[0])}, 12288'] if i < 7 else [])
            x = at(3, 10)
            red.append(Filler([I(pal, tag='F0', cost=c.dma_cost)], rel=x, dl=x + 2))
            x = at(3, c.sh_pos[0])
            red.append(Filler([self.wvm('F0')] + self.check(vF, 0xff, pal, 'f0', allanes=True), rel=x, dl=x + 2))
            place([hl(i) for i in range(7)], x + 1, 3)
            red.append(Filler(self.wvm(('H', 6)), rel=SH[0] - 1, dl=SH[0] - 1))
            place([hl(7)], SH[0] + 4)
            red.append(Filler(self.wvm(('H', 7)), rel=SH[1] - 1, dl=SH[1] - 1))
            x = SH[1] + 12
            place([[f'v_cvt_pk_bf16_f32 {v(RR + 8 + i)}, {v(RR + 2 * i)}, {v(RR + 2 * i + 1)}'] for i in range(4)], x, 1)
            st = [I(f'buffer_store_dwordx2 {v(RR + 8 + 2 * h, 2)}, {v(vOO)}, {s(SRD_OUT, 4)}, {s((sPS, sT3)[h])} offen{c.out_mod}', tag='UNCOUNTED') for h in range(2)]
            red.append(Filler([f's_mul_i32 {s(sPS)}, {s(sJ)}, {32 * 2304}', f's_add_u32 {s(sPS)}, {s(sPS)}, {s(sOO)}', f's_add_u32 {s(sPS)}, {s(sPS)}, 1024',
                               f's_add_u32 {s(sT3)}, {s(sPS)}, {16 * 2304}', f's_cmp_lt_u32 {s(sJ)}, 3', 's_cbranch_scc0 L_nosh'] + st + ['L_nosh:'],
                              rel=x + 5, dl=x + 7, pos=x + 5.5))
        x = at(5, c.pa[0])
        red.append(Filler([f's_lshl_b32 {s(sFA)}, {s(sW)}, 10', I(pal, tag='FA', cost=c.dma_cost)], rel=x, dl=x + 2))
        x = at(5, c.pa[1])
        red.append(Filler([self.wvm('FA')] + self.check(vF, 0x700, pal, 'fa', allanes=True), rel=x, dl=x + 2))
        place(dloads(1, ldb), x + 1)
        for k in range(3):
            red.append(Filler(self.wvm(('D', k + 1)), rel=A[k] - 1, dl=A[k] - 1))
            if k < 2:
                place(dloads(k + 2, ldb), A[k] + 6)
        x = at(7, c.pa[2])
        red.append(Filler([I(pal, tag='FB', cost=c.dma_cost)], rel=x, dl=x + 2))
        x = at(7, c.pa[3])
        red.append(Filler([self.wvm('FB')] + self.check(vF, 0x1800 if c.sh_early else 0x18ff, pal, 'fb', allanes=True), rel=x, dl=x + 2))
        place(dloads(4, bufs[1]) + dloads(5, bufs[2]), x + 1)
        x = at(8, c.pb[0])
        red.append(Filler(poll(6), rel=x, dl=x + 2))
        red.append(Filler(self.wvm(('D', 5)), rel=A[3] - 1, dl=A[3] - 1))
        x = G[128 + c.sh_at]
        k = 0
        g = []
        for i in range(0 if c.sh_early else 8):
            g.append(I(f'buffer_load_dwordx4 {v(HB + 4 * i, 4)}, {v(vPS)}, {s(SRD_WS, 4)}, {s(sDAt[0])} offen{c.d_mod}', tag=('H', i), cost=c.dma_cost))
            if i < 7:
                g.append(f's_add_u32 {s(sDAt[0])}, {s(sDAt[0])}, 12288')
            red.append(Filler(g, rel=x + 2 * k, dl=x + 3 + 2 * k, pos=x + 0.5 + 2 * k)); k += 1
            g = []
        x = max(at(8, c.pb[1]), x + 2 * k)
        red.append(Filler([self.wvm(('F', 6))] + self.check(vF, 1, fload(6), 'f6'), rel=x, dl=x + 2))
        x = place(dloads(6, bufs[5]), x + 1)
        x = max(at(8, c.pb[2]), x)
        red.append(Filler(poll(7), rel=x, dl=x + 2))
        if c.pc is not None:
            x = len(mf) - 1 - c.pc
            red.append(Filler([self.wvm(('F', 7))] + self.check(vF, 1, fload(7), 'f7'), rel=x, dl=x))
            place(dloads(7, bufs[6]), x + 1, 1)
        if c.red_off:
            red = []
            self.spins = []
            fl = [f for f in fl if f.stream != 'sig']
        if c.st_off:
            fl = [f for f in fl if not (f.stream == 'st' and f.ins[0].kind == 'vst')]
        for f in fl:
            if f.stream == 'red':
                red.append(f)
        fl = [f for f in fl if f.stream != 'red']
        red.sort(key=lambda f: f.rel)
        for f in red:
            f.stream = 'red'
        fl += red
        for f in fl:
            f.rel = min(f.rel, len(mf) - 1)
        self.emit(interleave(mf, fl, 8, c.verbose, 'oproj', rate=c.o_rate, cap=(c.cap if c.split else 24), split=c.split,
                             reserve=({x - 1 for x in G[16:]} if c.reserve else ())), 'oproj')
        if c.red_off:
            return
        e = []
        if c.pc is None:
            e += [self.wvm(('F', 7))] + self.check(vF, 1, fload(7), 'f7') + flat(dloads(7, bufs[6]))
        for i in range(0 if c.sh_early else 8):
            e.append(self.wvm(('H', i)))
            for h in range(2):
                acc = v(4 * h, 4)
                e.append(f'{MF} {acc}, {v(SEL + 2 - 2 * h, 4)}, {v(HB + 4 * i, 4)}, {acc if i else 0}')
        e += [self.wvm(('D', 6))] + adds(bufs[5])
        if not c.sh_early:
            e += [f's_mul_i32 {s(sPS)}, {s(sJ)}, {32 * 2304}', f's_add_u32 {s(sPS)}, {s(sPS)}, {s(sOO)}', f's_add_u32 {s(sPS)}, {s(sPS)}, 1024',
                  f's_add_u32 {s(sT3)}, {s(sPS)}, {16 * 2304}']
            e += [f'v_cvt_pk_bf16_f32 {v(8 + i)}, {v(2 * i)}, {v(2 * i + 1)}' for i in range(4)]
            e += [f's_cmp_lt_u32 {s(sJ)}, 3', 's_cbranch_scc0 L_nosh']
            self.emit(e, 'otail')
            self.raw([f'buffer_store_dwordx2 {v(8, 2)}, {v(vOO)}, {s(SRD_OUT, 4)}, {s(sPS)} offen{c.out_mod}',
                      f'buffer_store_dwordx2 {v(10, 2)}, {v(vOO)}, {s(SRD_OUT, 4)}, {s(sT3)} offen{c.out_mod}', 'L_nosh:'])
            e = []
        e += [f's_lshl_b32 {s(sPS)}, {s(sJ)}, 7', f's_add_u32 {s(sPS)}, {s(sPS)}, {s(sOO)}']
        e += [self.wvm(('D', 7))] + adds(bufs[6])
        for t in range(6):
            e += [f'v_cvt_pk_bf16_f32 {v(12 + 2 * t + i)}, {v(RR + 4 * t + 2 * i)}, {v(RR + 4 * t + 2 * i + 1)}' for i in range(2)]
            e.append(I(f'buffer_store_dwordx2 {v(12 + 2 * t, 2)}, {v(vOO)}, {s(SRD_OUT, 4)}, {s(sPS)} offen{c.out_mod}', tag='Z'))
            if t < 5:
                e.append(f's_add_u32 {s(sPS)}, {s(sPS)}, {16 * 2304}')
        self.emit(e, 'otail')

    def rare_paths(self):
        for site, new in self.sites:
            self.raw([f'L_rare_{site}:', f's_call_b64 {s(sRET, 2)}, L_rescale_{new}', f's_branch L_back_{site}'])
        if not self.sites:
            return
        for new in range(2):
            e = []
            self.raw([f'L_rescale_{new}:', 's_nop 15'])
            m, m2, f = v(vT), v(vT + 1), v(vT + 2)
            for t in range(6):
                r = [Sr(new, 0, t) + i for i in range(4)] + [Sr(new, 1, t) + i for i in range(4)]
                e += [f'v_max3_f32 {m}, {v(r[0])}, {v(r[1])}, {v(r[2])}', f'v_max3_f32 {m}, {m}, {v(r[3])}, {v(r[4])}',
                      f'v_max3_f32 {m}, {m}, {v(r[5])}, {v(r[6])}', f'v_max3_f32 {m}, {m}, {v(r[7])}, 0'] + self.xlane_max(m, m2)
                e += [f'v_exp_f32 {f}, -{m}']
                e += [f'v_sub_f32 {v(NM + 4 * t + i)}, {v(NM + 4 * t + i)}, {m}' for i in range(4)]
                e += [f'v_sub_f32 {v(x)}, {v(x)}, {m}' for x in r]
                e += [f'v_mul_f32 {v(L_ + 4 * t + i)}, {v(L_ + 4 * t + i)}, {f}' for i in range(4)]
                for dt in range(8):
                    for i in range(0, 4, 2):
                        o = Oacc(dt, t) + i
                        e += [f'v_accvgpr_read_b32 {v(vMX)}, {a(o)}', f'v_accvgpr_read_b32 {v(vMX + 1)}, {a(o + 1)}',
                              f'v_mul_f32 {v(vMX)}, {v(vMX)}, {f}', f'v_mul_f32 {v(vMX + 1)}, {v(vMX + 1)}, {f}',
                              f'v_accvgpr_write_b32 {a(o)}, {v(vMX)}', f'v_accvgpr_write_b32 {a(o + 1)}, {v(vMX + 1)}']
            e += ['s_nop 1', f's_setpc_b64 {s(sRET, 2)}']
            self.out += pad_hazards([mk(x) for x in e])

    def finish(self):
        self.raw(['L_end:', 's_endpgm'])

    def trace_move(self):
        if self.c.trace:
            self.tr(name='norm')
            self.emit([f'v_writelane_b32 v254, 0, {58 + k}' for k in range(6)])

    def trace_out(self):
        if not self.c.trace:
            return
        self.tr(name='tail')
        self.emit(['s_waitcnt vmcnt(0)'])
        self.tr(name='drain')
        e = [f's_add_u32 s12, s58, {STAMP_OFF + 0x80000}', 's_addc_u32 s13, s59, 0', 's_mov_b32 s14, 0x80000', 's_mov_b32 s15, 0x20000',
             f's_lshl_b32 {s(sT1)}, s2, 2', f's_add_u32 {s(sT1)}, {s(sT1)}, {s(sW)}', f's_lshl_b32 {s(sT1)}, {s(sT1)}, 9',
             f'v_lshrrev_b32 v40, 1, {v(vPS)}', I(f'buffer_store_dwordx2 v[254:255], v40, s[12:15], {s(sT1)} offen', tag='TR')]
        if self.c.dbgout:
            names = self.trnames
            last = lambda n: len(names) - 1 - names[::-1].index(n)
            its = [i for i, n in enumerate(names) if n == 'it']
            sel = [last('first'), names.index('q'), last('q'), last('conv'), last('pre'), its[4], its[12], its[20], its[27], its[-1], last('last'), last('norm'),
                   last('o') - 4, last('o'), last('tail'), last('drain')]
            e += ['s_waitcnt vmcnt(0)', 's_or_b32 s4, s2, s3', 's_cmp_lg_u32 s4, 0', 's_cbranch_scc1 L_end', 'v_readlane_b32 s5, v254, 0', 'v_mov_b32 v41, 0']
            for k, i in enumerate(sel):
                e += [f'v_readlane_b32 s4, v254, {i}', 's_nop 1', 's_sub_u32 s4, s4, s5', f'v_writelane_b32 v41, s4, {k}']
            e += [f'v_lshrrev_b32 v40, 2, {v(vPS)}', 's_mov_b64 exec, 0xffff', f'buffer_store_dword v41, v40, {s(SRD_DBG, 4)}, 0 offen']
        self.emit(e)

    def kernel1(self):
        c = self.c
        self.setup()
        self.qproj()
        self.attention(c.mode == 'safe')
        self.tr(name='last')
        vm_join = list(self.vm)
        self.raw(['L_norm:'])
        e = []
        if c.mode == 'fast':
            m = v(vT)
            e += [f'v_max3_f32 {m}, {v(L_)}, {v(L_ + 4)}, {v(L_ + 8)}', f'v_max3_f32 {m}, {m}, {v(L_ + 12)}, {v(L_ + 16)}',
                  f'v_max_f32 {m}, {m}, {v(L_ + 20)}', f'v_cmp_nge_f32 vcc, {s(sLTHR)}, {m}',
                  's_nop 1', 's_cmp_lg_u64 vcc, 0', f's_cselect_b32 {s(sT1)}, 1, 0', f's_andn2_b32 {s(sT1)}, {s(sT1)}, {s(sSAFE)}',
                  f'v_mov_b32 {v(vT + 1)}, {s(sT1)}', f's_lshl_b32 {s(sT1)}, {s(sW)}, 2', f's_add_u32 {s(sT1)}, {s(sT1)}, {49152}',
                  f'v_mov_b32 {v(vT + 2)}, {s(sT1)}', f'ds_write_b32 {v(vT + 2)}, {v(vT + 1)}']
        e += self.onorm()
        e += [self.wvm(('O', 3)), 's_waitcnt lgkmcnt(0)', 's_barrier']
        self.fb_check = []
        if c.mode == 'fast':
            e += [f'ds_read_b128 {v(OPK, 4)}, {v(SEL)} offset:49152']
            self.fb_check = [f'v_or3_b32 {v(OPK)}, {v(OPK)}, {v(OPK + 1)}, {v(OPK + 2)}', f'v_or_b32 {v(OPK)}, {v(OPK)}, {v(OPK + 3)}',
                             f'v_readfirstlane_b32 {s(sT1)}, {v(OPK)}', f's_cmp_lg_u32 {s(sT1)}, 0', 's_cbranch_scc1 L_fallback']
        self.emit(e, 'onorm')
        self.trace_move()
        self.oproj()
        self.trace_out()
        self.finish()
        if c.mode == 'fast':
            self.raw(['L_fallback:'])
            self.lg = []; self.vm = []
            tr = c.trace
            c.trace = False
            e = ['s_waitcnt vmcnt(0) lgkmcnt(0)', 's_barrier', f's_mov_b32 {s(sSAFE)}, 1', f's_mov_b32 {s(sOFF)}, {s(sOFF0)}',
                 f's_add_u32 {s(sOFF2)}, {s(sOFF)}, 4096', f's_mov_b32 {s(SRD_KV + 2)}, 262144']
            self.emit(e)
            self.kv_reload()
            self.attention(True)
            assert [x[0] for x in self.vm] == [x[0] for x in vm_join], (self.vm, vm_join)
            self.emit(['s_waitcnt lgkmcnt(0)', 's_nop 15', 's_branch L_norm'])
            c.trace = tr
        self.rare_paths()
        self.spin_blocks()
        return self.out


def descriptor(name, vg, acc, sg=102):
    d = ['.section .rodata,"a"', '.p2align 6', f'.amdhsa_kernel {name}']
    for k, x in dict(next_free_vgpr=vg, next_free_sgpr=sg, accum_offset=acc, group_segment_fixed_size=0, kernarg_size=104,
                     user_sgpr_count=2, user_sgpr_kernarg_segment_ptr=1, system_sgpr_workgroup_id_x=1).items():
        d.append(f'  .amdhsa_{k} {x}')
    d.append('.end_amdhsa_kernel')
    return d


def build(cfg, path):
    g = Gen(cfg)
    k1 = g.kernel1()
    L = ['; @launch grid=(256,1,1) block=(256,1,1) lds=163840',
         '; Two GQA blocks, one launch.  Workgroup = (block, batch, 4 query heads / 2 kv heads), one wave per query head.',
         ';   1. Q^T = wq^T x^T (wq, x staged by LDS-DMA; wq read with the transposing LDS load), scaled by log2(e)/sqrt(128), kept in registers',
         ';   2. flash attention over 32 blocks of 32 keys, S^T = K Q^T - m and O^T += V^T P^T on 16x16x32 MFMAs; K/V stream through LDS rings,',
         ';      the number of loads in flight is bounded by counted vmcnt waits.  m is the row maximum of the first keys; a row sum beyond 2^40',
         ';      (or not finite) sends the workgroup to L_fallback, which redoes the loop with a running maximum and rescaling',
         ';   3. out^T partial = wo^T O^T over the 512 local features, nine groups of 64 columns, own group last; bf16 partials go to d_ws',
         ';      (sc1 stores, then a flag), the owner polls the flags (cleared at entry, confirmed through d_debug) and adds them with MFMAs',
         '; Generated by a script of the author (instruction placement between MFMAs, wait counts and wait states are computed there).',
         '.amdgcn_target "amdgcn-amd-amdhsa--gfx950"', '.text']
    L += [f'.globl {K1}', '.p2align 8', f'.type {K1},@function', f'{K1}:']
    L += [('' if x.kind in ('label', 'dir') else '    ') + x.text for x in k1]
    if cfg.trace:
        assert g.ntr == len(g.trnames) <= 58, (g.ntr, len(g.trnames))
        L += ['; trnames ' + ' '.join(g.trnames)]
    L += descriptor(K1, 512, 256)
    open(path, 'w').write('\n'.join(L) + '\n')
    return g

if __name__ == '__main__':
    kw = {}
    path = sys.argv[1]
    for x in sys.argv[2:]:
        k, val = x.split('=', 1)
        try:
            val = eval(val)
        except Exception:
            pass
        kw[k] = val
    build(Cfg(**kw), path)
```

```python
import sys, math, struct
from asmlib import *

NAME = 'concat_heads__gqa_block_cached__gqa_block_cached__near_ridge'
K1 = NAME + '_kernel'
K2 = 'reduce_partials_kernel'


def f2u(x):
    return struct.unpack('<I', struct.pack('<f', x))[0]


class Cfg:
    trace = False
    dma_cost = 8
    rot = True
    krot = True
    warm_wo = True
    warm_stride = 128
    kv_nt = ' nt'
    w_nt = ''
    x_nt = ''
    wo_nt = ''
    st_mod = ' sc1'
    fl_mod = ' sc1'
    d_mod = ' sc1'
    out_mod = ''
    thr = 8.0
    lthr = 2.0 ** 40
    last_opt = True
    verbose = False
    kv_from = 26
    kv_sp = 12
    t3_late = True
    win_c = 5
    n2 = 1
    npre = 24
    split = True
    reserve = True
    cap = 8
    pre_fast = True
    norm_pk = True
    kv_nc = 9
    put_sp = 4
    put_m = 8
    kv_gap = 0
    put_q = 8
    win = (3, 4, 4)
    fake_kv = False
    mode = 'fast'
    force_fb = False
    q_rate = 8.0
    a_rate = 8.3
    o_rate = 8.0
    npart1 = 30
    oring = 6
    big_from = 99
    tlb = 0
    dbg_early = False
    sig = (70, 60, 40)
    pa = (30, 70, 30, 70)
    pb = (10, 50, 68)
    add_at = (101, 111, 122, 138)
    sh_at = 4
    sh_early = False
    sh_pos = (58, 78, 4 * 16 + 5, 4 * 16 + 14)
    pc = 15
    wpad = 8
    burst = 1
    bsp = 2
    prepoll = False
    spin_max = 2000000
    n_stage = 2
    trace_h = False
    win_b = 4
    n1 = 4
    dbgout = False
    q32 = False
    wq_sp = 6
    q32_budget = 24
    xtouch = -1
    warm_it = 30
    vsum = False
    summode = 'm16zz'
    dot_cost = 8
    nosum = False
    noexp = False
    drop = ()
    krot_m = 9
    red2 = True
    warm_code = True
    trace_o = False
    red_off = False
    st_off = False
    warm_nt = ''
    warm_at = (0, 1)
    init_u = 4
    ramp = 18
    touch_at = ()
    early = (0, 8)
    x1_at = 16
    u4_at = 24
    touch_nt = ''
    cw_late = False
    cw_piece = 8192
    cw_n = 9
    fake_w = False

    def __init__(self, **kw):
        for k, x in kw.items():
            assert hasattr(self, k), k
            setattr(self, k, x)


TS = 8704
RING = 4 * TS
XB = 4 * RING
OB = 65536
GRP = 9 * 8 * 12288
FL_OFF = 32 * GRP
STAMP_OFF = 256 * 122880
assert FL_OFF + 32 * 32768 <= STAMP_OFF
OOB = 0x7ffffff0

sW = 3
sB, sJ, sBLK = 4, 5, 6
SRD_KV, SRD_WQ, SRD_X, SRD_WO, SRD_WS = 8, 12, 16, 20, 24
SRD_FL, SRD_DBG, SRD_OUT = 60, 64, 68
sRING = 28
sOFF, sOFF2 = 29, 30
sHH = 31
sLOOP = 32
sT0, sT1, sT2 = 33, 34, 35
sTB = 40
sH = 44
sWK, sXK = 48, 49
sOFF0 = 50
sSAFE = 51
sTR = 52
sSPIN = 53
sTM = 54
sXL, sSO = 72, 73
sC = 74
sTHR, sLTHR = 76, 77
sRET = 78
sFS = 90
sC1152 = 91
sWOL, sCG, sPS, sPSB, sKL, sFA, sDA, sT3, sGRP, sOO = 80, 81, 82, 83, 84, 85, 86, 87, 88, 89

S_ = [0, 48]
NM = 96
L_ = 120
P_ = 144
FR = 168
ONES = 184
vT = 188
vKA = 192
vVA = 193
vKV = 197
vLANE = 198
vKW = 199
Q45 = 200
vMX = 232
vKW4 = 233
vTRa, vTRb = 254, 255
QA = 200
vWA = 216
vXA = 244
vWV = 220
vXV = 224
vH = 226
QB = 192
OACC = [0, 24]
OA_ = 48
OPK = 64
RR = 76
vR = 80
LDB = 228
vBA = 234
vOW = 238
vWM = 239
vOV, vOA, vOA2, vPS, vF, vOO, vL0, vPA = 240, 241, 242, 243, 244, 245, 246, 247
vSG = 199
SEL = 248
OBV = 100
HB = 100

MF = 'v_mfma_f32_16x16x32_bf16'
MF32 = 'v_mfma_f32_32x32x16_bf16'


def Sr(buf, c, t):
    return S_[buf] + (c * 6 + t) * 4


def Qfrag(t, ks):
    return a(192 + 16 * t + 4 * ks, 4) if t < 4 else v(Q45 + 16 * (t - 4) + 4 * ks, 4)


def Oacc(dt, t):
    return (dt * 6 + t) * 4


def Bfrag(phi):
    if phi < 32:
        return v(OBV + 4 * phi, 4)
    if phi < 48:
        return a(192 + 4 * (phi - 32), 4)
    return a(4 * (phi - 48), 4)


sPSt = [0, 1, 36, 37, 38, 39, 92, 93]
sDAt = [94, 95, 96, 97, 98, 99, 100, 101]

flat = lambda gs: [x for g in gs for x in g]


class Gen:
    def __init__(self, cfg):
        self.c = cfg
        self.out = []
        self.lg = []
        self.vm = []
        self.spins = []
        self.sites = []
        self.ntr = 0
        self.trreg = (vTRa, vTRb)
        self.trnames = []
        self.plan_wo()

    def emit(self, seq, name=''):
        seq = [mk(x) for x in seq]
        seq, self.lg = auto_lgkm(seq, self.lg)
        seq = self.resolve_vm(seq)
        rep = []
        seq = pad_hazards(seq, history=self.out[-40:], report=rep)
        if rep and self.c.verbose:
            for r in rep:
                if 'm0' not in r[1]:
                    print(f'  nop[{name}]', r)
        self.out.extend(seq)

    def raw(self, seq):
        self.out.extend(mk(x) for x in seq)

    def vm_reset(self):
        self.vm = [x for x in self.vm if x[1]]

    def resolve_vm(self, seq):
        out = []
        for ins in seq:
            if ins.kind == 'wait' and 'vmcnt(?)' in ins.text:
                tags = ins.tag if isinstance(ins.tag, list) else [ins.tag]
                idx = -1
                for k, t in enumerate(self.vm):
                    if t[0] in tags:
                        idx = k
                if idx < 0:
                    continue
                n = min(len(self.vm) - 1 - idx, 63)
                self.vm = self.vm[len(self.vm) - n:] if n else []
                out.append(I(f's_waitcnt vmcnt({n})'))
                continue
            if ins.kind == 'wait':
                m = re.search(r'vmcnt\((\d+)\)', ins.text)
                if m:
                    n = int(m.group(1))
                    if n < len(self.vm):
                        self.vm = self.vm[len(self.vm) - n:] if n else []
            touched = set(ins.rd) | (set(ins.wr) if ins.kind != 'vld' else set())
            for t in self.vm:
                assert not (t[1] & touched), f'register of an outstanding load touched: {ins.text} / {t}'
            if ins.kind in ('dma', 'vld', 'vst') and ins.tag != 'UNCOUNTED':
                self.vm.append((ins.tag, set(ins.wr) if ins.kind == 'vld' else set()))
            out.append(ins)
        return out

    def wvm(self, tags):
        return I('s_waitcnt vmcnt(?)', tag=tags)

    def dma(self, vreg, srd, soff, imm, mod, tag):
        o = f' offset:{imm}' if imm else ''
        return I(f'buffer_load_dwordx4 {v(vreg)}, {s(srd, 4)}, {soff} offen{o}{mod} lds', tag=tag, cost=self.c.dma_cost)

    def tr_code(self, dyn=False):
        k = self.ntr
        self.ntr += 1
        ra, rb = self.trreg
        e = ['s_waitcnt lgkmcnt(0)', f's_memrealtime {s(sTM, 2)}', f's_memtime {s(sTM + 2, 2)}', 's_waitcnt lgkmcnt(0)']
        if dyn:
            e += [f's_mov_b32 m0, {s(sTR)}', 's_nop 3', f'v_writelane_b32 {v(ra)}, {s(sTM)}, m0',
                  f'v_writelane_b32 {v(rb)}, {s(sTM + 2)}, m0', f's_add_u32 {s(sTR)}, {s(sTR)}, 1']
        else:
            e += [f'v_writelane_b32 {v(ra)}, {s(sTM)}, {k}', f'v_writelane_b32 {v(rb)}, {s(sTM + 2)}, {k}', f's_mov_b32 {s(sTR)}, {k + 1}']
        return e

    def tr(self, dyn=False, name=''):
        if not self.c.trace or ((self.c.trace_o or self.c.trace_h) and name == 'it'):
            return
        self.trnames.append(name)
        sv = [set(x) for x in self.lg]
        self.emit(self.tr_code(dyn))
        self.lg = sv

    def tr_filler(self, fl, g, name=''):
        if self.c.trace:
            self.trnames.append(name)
            fl.append(Filler(self.tr_code(), rel=g, dl=g, stream='tr', cost=0))

    def kv_groups(self, sb, base, tag, win=None):
        m0 = lambda n: f's_add_u32 m0, {s(sb)}, {base + 1088 * n - 1024 * (n & 3)}'
        groups = [[m0(0)]]
        for n in range(8):
            bu = self.c.burst
            g = [f's_waitcnt vmcnt({win[(n // bu) % len(win)] if isinstance(win, tuple) else win})'] if win is not None and n % bu == 0 else []
            g.append(self.dma(vKV, SRD_KV, s(sOFF if n < 4 else sOFF2), 1024 * (n & 3), self.c.kv_nt, tag))
            if n < 7:
                g.append(m0(n + 1))
            groups.append(g)
        groups.append([f's_add_u32 {s(sOFF)}, {s(sOFF)}, 8192', f's_and_b32 {s(sOFF)}, {s(sOFF)}, 0x3ffff',
                       f's_add_u32 {s(sOFF2)}, {s(sOFF)}, 4096'])
        return groups

    def kv_tile(self, slot, tag):
        return self.kv_groups(sRING, slot * TS, tag)

    def kv_stage(self):
        groups = []
        for tl in range(self.c.n_stage):
            for n in range(8):
                g = []
                so = sOFF if n < 4 else sOFF2
                if tl == self.c.n_stage - 1 and tl >= 3 and n == 0:
                    g += [f's_lshl_b32 {s(SRD_KV + 2)}, {s(sKL)}, 18']
                o = f' offset:{1024 * (n & 3)}' if n & 3 else ''
                g.append(I(f'buffer_load_dwordx4 {a(32 * tl + 4 * n, 4)}, {v(vKV)}, {s(SRD_KV, 4)}, {s(so)} offen{o}{self.c.kv_nt}',
                           tag=('T', tl, n), cost=self.c.dma_cost))
                if n == 7:
                    if tl == self.c.n_stage - 1 and tl >= 3:
                        g += [f's_mov_b32 {s(SRD_KV + 2)}, 262144', f's_lshl_b32 {s(sT3)}, {s(sKL)}, 13', f's_add_u32 {s(sOFF)}, {s(sOFF)}, {s(sT3)}']
                    else:
                        g += [f's_add_u32 {s(sOFF)}, {s(sOFF)}, 8192']
                    g += [f's_and_b32 {s(sOFF)}, {s(sOFF)}, 0x3ffff', f's_add_u32 {s(sOFF2)}, {s(sOFF)}, 4096']
                groups.append(g)
        return groups

    def kv_put(self, tl, n):
        ad = (vKW, tl * TS) if tl < 3 else (vKW4, 0)
        return [self.wvm(('T', tl, n)), I(f'ds_write_b128 {v(ad[0])}, {a(32 * tl + 4 * n, 4)} offset:{ad[1] + 1088 * n}', cost=12)]

    def code_warm(self):
        L = v(vLANE)
        return ['s_getpc_b64 s[96:97]', f's_lshl_b32 {s(sT1)}, s7, 2', f's_add_u32 {s(sT1)}, {s(sT1)}, {s(sW)}',
                f's_and_b32 {s(sT1)}, {s(sT1)}, 15', f's_min_u32 {s(sT1)}, {s(sT1)}, {self.c.cw_n - 1 if self.c.mode == "fast" else 5}', f's_mul_i32 {s(sT1)}, {s(sT1)}, {self.c.cw_piece}',
                f'v_mul_u32_u24 {v(vH + 2)}, {self.c.cw_piece // 64}, {L}',
                f'v_add_u32 {v(vH + 2)}, {s(sT1)}, {v(vH + 2)}', I(f'global_load_dword v253, {v(vH + 2)}, s[96:97]', tag='CW')]

    def x_touch(self, kc_now):
        L = v(vLANE)
        t0, t1 = v(vH + 2), v(vH + 3)
        d = 128 * (7 - kc_now)
        return [f'v_and_b32 {t0}, 1, {L}', f'v_lshlrev_b32 {t0}, 7, {t0}', f's_add_u32 {s(sT1)}, {s(sXK)}, {d}', f'v_add_u32 {t0}, {s(sT1)}, {t0}',
                f'v_subrev_u32 {t1}, 1152, {t0}', f'v_min_u32 {t0}, {t0}, {t1}',
                f'v_lshrrev_b32 {t1}, 1, {L}', f'v_min_u32 {t1}, 23, {t1}', f's_mul_i32 {s(sT1)}, {s(sW)}, {24 * 1152}',
                f'v_mad_u32_u24 {t0}, {t1}, {s(sC1152)}, {t0}',
                I(f'buffer_load_dword v239, {t0}, {s(SRD_X, 4)}, {s(sT1)} offen{self.c.x_nt}', tag='W', cost=self.c.dma_cost)]

    def kv_touch(self, k):
        e = []
        if k == 0:
            e += [f'v_lshlrev_b32 {v(vH + 4)}, 7, {v(vLANE)}', f's_add_u32 {s(sFA)}, {s(sKL)}, 3', f's_lshl_b32 {s(sFA)}, {s(sFA)}, 13',
                  f's_add_u32 {s(sFA)}, {s(sFA)}, {s(sOFF0)}']
        else:
            e += [f's_add_u32 {s(sFA)}, {s(sFA)}, 8192']
        e += [f's_and_b32 {s(sFA)}, {s(sFA)}, 0x3ffff',
              I(f'buffer_load_dword v238, {v(vH + 4)}, {s(SRD_KV, 4)}, {s(sFA)} offen{self.c.touch_nt}', tag='W', cost=self.c.dma_cost)]
        return e

    def flag_clear(self):
        L = v(vLANE)
        t0, t1 = v(vH), v(vH + 1)
        return [f'v_lshlrev_b32 {t0}, 7, {L}', f'v_mov_b32 {t1}, {OOB}', f's_cmp_eq_u32 {s(sW)}, 0', f's_cselect_b32 {s(sT3)}, 32, 0',
                f'v_cmp_gt_u32 vcc, {s(sT3)}, {L}', f's_lshl_b32 {s(sT3)}, {s(sJ)}, 12',
                's_nop 0', f'v_cndmask_b32 {t0}, {t1}, {t0}, vcc', f'v_mov_b32 {t1}, 0',
                I(f'buffer_store_dword {t1}, {t0}, {s(SRD_FL, 4)}, {s(sT3)} offen{self.c.fl_mod}', tag='CLR')]

    def clear_done(self):
        return [f'v_mov_b32 {v(vT)}, 1', f's_lshl_b32 {s(sT3)}, {s(sGRP)}, 3', f's_add_u32 {s(sT3)}, {s(sT3)}, {s(sJ)}',
                I(f'buffer_store_byte {v(vT)}, {v(vSG)}, {s(SRD_DBG, 4)}, {s(sT3)} offen sc1', tag='SIG', cost=self.c.dma_cost)]

    def setup(self):
        c = self.c
        e = ['s_cmp_ge_u32 s2, 256', 's_cbranch_scc1 L_end']
        if c.trace:
            e += [f's_memrealtime {s(98, 2)}', f's_memtime {s(100, 2)}']
        e += ['s_load_dwordx8 s[36:43], s[0:1], 0', 's_load_dwordx2 s[44:45], s[0:1], 32',
              's_load_dwordx8 s[48:55], s[0:1], 40', 's_load_dwordx2 s[56:57], s[0:1], 72',
              's_load_dwordx2 s[58:59], s[0:1], 96', 's_load_dwordx4 s[92:95], s[0:1], 80']
        e += ['v_lshrrev_b32 v1, 6, v0', f'v_and_b32 {v(vLANE)}, 63, v0', f'v_readfirstlane_b32 {s(sW)}, v1']
        e += ['s_lshr_b32 s7, s2, 3', f's_and_b32 {s(sB)}, s7, 15', f's_lshr_b32 {s(sJ)}, s7, 4', 's_and_b32 s6, s2, 3',
              's_lshl_b32 s6, s6, 1', f's_add_u32 {s(sJ)}, {s(sJ)}, s6', f's_bfe_u32 {s(sBLK)}, s2, 0x10002']
        e += [f's_and_b32 {s(sHH)}, {s(sW)}, 1', f's_lshr_b32 {s(sT0)}, {s(sW)}, 1']
        e += [f's_lshl_b32 {s(sT1)}, {s(sHH)}, 1', f's_add_u32 {s(sT1)}, {s(sT1)}, {s(sT0)}',
              f's_mul_i32 {s(sRING)}, {s(sT1)}, {RING}',
              f's_lshl_b32 {s(sWOL)}, {s(sW)}, 10', f's_add_u32 {s(sXL)}, {s(sWOL)}, {XB}']
        if c.rot == 2:
            e += [f's_and_b32 {s(sOFF)}, s7, 3', f's_lshl_b32 {s(sOFF)}, {s(sOFF)}, 16']
        elif c.rot == 3:
            e += [f's_and_b32 {s(sOFF)}, s2, 7', f's_lshl_b32 {s(sOFF)}, {s(sOFF)}, 15']
        elif c.rot == 4:
            e += [f's_lshl_b32 {s(sOFF)}, {s(sT0)}, 4', f's_add_u32 {s(sOFF)}, {s(sOFF)}, s7', f's_and_b32 {s(sOFF)}, {s(sOFF)}, 31', f's_lshl_b32 {s(sOFF)}, {s(sOFF)}, 13']
        elif c.rot:
            e += [f's_and_b32 {s(sOFF)}, s7, 31', f's_lshl_b32 {s(sOFF)}, {s(sOFF)}, 13']
        else:
            e += [f's_mov_b32 {s(sOFF)}, 0']
        e += [f's_add_u32 {s(sOFF2)}, {s(sOFF)}, 4096']
        L = v(vLANE)
        e += [f'v_lshrrev_b32 v1, 4, {L}',
              f'v_and_b32 v2, 15, {L}',
              f'v_lshrrev_b32 v5, 2, v2',
              f'v_and_b32 v6, 3, {L}',
              f'v_lshrrev_b32 v8, 3, {L}', f'v_and_b32 v9, 7, {L}',
              'v_lshrrev_b32 v10, 1, v8']
        e += ['v_xor_b32 v11, v9, v10', f's_lshl_b32 {s(sT1)}, {s(sHH)}, 2', f'v_xor_b32 v11, {s(sT1)}, v11', 'v_lshlrev_b32 v11, 4, v11',
              f's_lshl_b32 {s(sT1)}, {s(sW)}, 3', f'v_add_u32 v12, {s(sT1)}, v8', 'v_mul_u32_u24 v12, 1152, v12',
              f'v_add_u32 {v(vXV)}, v12, v11']
        if c.q32:
            e += ['v_lshlrev_b32 v11, 2, v1', 'v_xor_b32 v11, v2, v11', 'v_lshlrev_b32 v11, 4, v11', 'v_lshl_add_u32 v11, v1, 13, v11']
        else:
            e += ['v_and_b32 v11, 1, v10', 'v_lshlrev_b32 v11, 2, v11', 'v_xor_b32 v11, v9, v11', 'v_lshlrev_b32 v11, 4, v11',
                  'v_lshl_add_u32 v11, v8, 13, v11']
        e += [f's_lshl_b32 {s(sT1)}, {s(sJ)}, 2', f's_add_u32 {s(sT1)}, {s(sT1)}, {s(sW)}', f's_lshl_b32 {s(sT1)}, {s(sT1)}, 8',
              f'v_add_u32 {v(vWV)}, {s(sT1)}, v11']
        for n in range(1, 4):
            e += [f'v_add_u32 {v(vWV + n)}, {(31744 if c.q32 else 64512 - c.wpad) * n}, {v(vWV)}']
        e += ['s_waitcnt lgkmcnt(0)']
        e += [f's_cmp_eq_u32 {s(sBLK)}, 0']
        for d in range(10):
            e += [f's_cselect_b32 s{36 + d}, s{36 + d}, s{48 + d}']
        e += [f's_mul_i32 {s(sT1)}, {s(sB)}, 110592', f's_add_u32 {s(SRD_X)}, s36, {s(sT1)}', f's_addc_u32 {s(SRD_X + 1)}, s37, 0',
              f's_mov_b32 {s(SRD_X + 2)}, 110592', f's_mov_b32 {s(SRD_X + 3)}, 0x20000']
        e += [f's_mov_b32 {s(SRD_WQ)}, s42', f's_mov_b32 {s(SRD_WQ + 1)}, s43', f's_mov_b32 {s(SRD_WQ + 2)}, 4718592',
              f's_mov_b32 {s(SRD_WQ + 3)}, 0x20000']
        if c.krot and c.krot_m > 1:
            m = c.krot_m
            e += [f's_mul_hi_u32 {s(sT1)}, {s(sB)}, {(2 ** 32 + m - 1) // m}', f's_mul_i32 {s(sT1)}, {s(sT1)}, {m}', f's_sub_u32 {s(sT1)}, {s(sB)}, {s(sT1)}',
                  f's_mul_i32 {s(sT1)}, {s(sT1)}, {9 // m}', f's_lshl_b32 {s(sXK)}, {s(sT1)}, 7', f's_lshl_b32 {s(sWK)}, {s(sT1)}, 19']
        else:
            e += [f's_mov_b32 {s(sXK)}, 0', f's_mov_b32 {s(sWK)}, 0']
        self.emit(e, 'setup')
        e = self.late_setup = []
        e += [f's_cmp_eq_u32 {s(sHH)}, 0', 's_cselect_b32 s38, s38, s40', 's_cselect_b32 s39, s39, s41',
              f's_lshl_b32 {s(sT1)}, {s(sB)}, 4', f's_lshl_b32 {s(sT2)}, {s(sJ)}, 1', f's_add_u32 {s(sT1)}, {s(sT1)}, {s(sT2)}',
              f's_add_u32 {s(sT1)}, {s(sT1)}, {s(sT0)}',
              f's_lshl_b32 {s(sT1)}, {s(sT1)}, 18' if not c.fake_kv else f's_lshl_b32 {s(sT1)}, {s(sT0)}, 18',
              f's_add_u32 {s(SRD_KV)}, s38, {s(sT1)}', f's_addc_u32 {s(SRD_KV + 1)}, s39, 0',
              f's_mov_b32 {s(SRD_KV + 2)}, 262144', f's_mov_b32 {s(SRD_KV + 3)}, 0x20000']
        e += ['v_and_b32 v11, 1, v1', 'v_lshlrev_b32 v11, 1, v11', 'v_lshrrev_b32 v12, 1, v1', 'v_lshl_or_b32 v11, v12, 3, v11',
              f's_cmp_eq_u32 {s(sHH)}, 0', 's_cselect_b64 vcc, -1, 0', 's_nop 1', 'v_cndmask_b32 v11, v11, v1, vcc',
              'v_xor_b32 v11, v2, v11', 'v_lshlrev_b32 v11, 4, v11', f'v_lshl_add_u32 {v(vKV)}, v1, 8, v11']
        e += [f's_mul_i32 {s(sT1)}, {s(sJ)}, 589824', f's_add_u32 {s(SRD_WO)}, s44, {s(sT1)}', f's_addc_u32 {s(SRD_WO + 1)}, s45, 0',
              f's_mov_b32 {s(SRD_WO + 2)}, 589824', f's_mov_b32 {s(SRD_WO + 3)}, 0x20000']
        e += [f's_lshl_b32 {s(sGRP)}, {s(sBLK)}, 4', f's_add_u32 {s(sGRP)}, {s(sGRP)}, {s(sB)}', f's_lshl_b32 {s(sT1)}, {s(sGRP)}, 15',
              f's_add_u32 {s(sT1)}, {s(sT1)}, {FL_OFF}', f's_add_u32 {s(SRD_FL)}, s58, {s(sT1)}', f's_addc_u32 {s(SRD_FL + 1)}, s59, 0',
              f's_mov_b32 {s(SRD_FL + 2)}, 32768', f's_mov_b32 {s(SRD_FL + 3)}, 0x20000',
              f's_mov_b32 {s(SRD_DBG)}, s94', f's_mov_b32 {s(SRD_DBG + 1)}, s95', f's_mov_b32 {s(SRD_DBG + 2)}, 256', f's_mov_b32 {s(SRD_DBG + 3)}, 0x20000',
              f's_mov_b32 {s(SRD_OUT)}, s92', f's_mov_b32 {s(SRD_OUT + 1)}, s93', f's_mov_b32 {s(SRD_OUT + 2)}, 3538944', f's_mov_b32 {s(SRD_OUT + 3)}, 0x20000',
              f's_lshl_b32 {s(sPSB)}, {s(sJ)}, 2', f's_add_u32 {s(sPSB)}, {s(sPSB)}, {s(sW)}',
              f's_xor_b32 {s(sKL)}, {s(sHH)}, 1', f'v_lshlrev_b32 {v(vKW)}, 4, {L}', f's_add_u32 {s(sT1)}, {s(sRING)}, {3 * TS}', f's_cmp_eq_u32 {s(sHH)}, 0', f's_cselect_b32 {s(sT1)}, {s(sT1)}, {XB}', f'v_add_u32 {v(vKW4)}, {s(sT1)}, {v(vKW)}',
              f'v_add_u32 {v(vKW)}, {s(sRING)}, {v(vKW)}']
        e += [f's_mul_i32 {s(sT1)}, {s(sGRP)}, {GRP}',
              f's_add_u32 {s(SRD_WS)}, s58, {s(sT1)}', f's_addc_u32 {s(SRD_WS + 1)}, s59, 0',
              f's_mov_b32 {s(SRD_WS + 2)}, {GRP}', f's_mov_b32 {s(SRD_WS + 3)}, 0x20000']
        cs = f2u(math.log2(math.e) / math.sqrt(128.0))
        e += [f's_mov_b32 {s(sC)}, {cs:#x}', f's_mov_b32 {s(sC + 1)}, {cs:#x}', f's_mov_b32 {s(sTHR)}, {f2u(c.thr):#x}',
              f's_mov_b32 {s(sLTHR)}, {f2u(c.lthr if not c.force_fb else 1.0):#x}', f's_mov_b32 {s(sSAFE)}, 0', f's_mov_b32 {s(sC1152)}, 1152',
              f's_mov_b32 {s(sOFF0)}, {s(sOFF)}']
        if c.q32:
            e += [f'v_lshrrev_b32 v3, 5, {L}', 'v_and_b32 v4, 1, v1', 'v_lshlrev_b32 v11, 11, v3', 'v_lshl_add_u32 v11, v5, 8, v11',
                  'v_lshl_add_u32 v11, v4, 4, v11', 'v_and_b32 v12, 1, v6', 'v_lshl_add_u32 v11, v12, 5, v11', 'v_lshrrev_b32 v12, 1, v6',
                  'v_lshl_add_u32 v11, v12, 3, v11', f'v_add_u32 v11, {s(sRING)}, v11']
            for ct in range(4):
                e += [f'v_xor_b32 v12, {ct}, v5', f'v_lshl_add_u32 {v(vWA + ct)}, v12, 6, v11']
            e += [f'v_and_b32 v14, 31, {L}', 'v_lshrrev_b32 v11, 3, v14', 'v_and_b32 v12, 7, v14',
                  'v_lshlrev_b32 v13, 10, v11', 'v_lshl_add_u32 v13, v12, 7, v13', f'v_add_u32 v13, {XB}, v13',
                  'v_lshrrev_b32 v12, 1, v12', 'v_and_b32 v11, 1, v11', 'v_lshlrev_b32 v11, 2, v11', 'v_xor_b32 v12, v12, v11', 'v_xor_b32 v12, v12, v3']
            for k in range(4):
                e += [f'v_xor_b32 v11, {2 * k}, v12', f'v_lshl_add_u32 {v(vXA + k)}, v11, 4, v13']
        else:
            e += [f'v_mul_u32_u24 v11, {1024 + c.wpad}, v1', 'v_lshl_add_u32 v11, v5, 7, v11', 'v_lshl_add_u32 v11, v6, 4, v11',
                  f'v_add_u32 v11, {s(sRING)}, v11', 'v_lshrrev_b32 v12, 1, v5', f'v_lshl_add_u32 {v(vWA)}, v12, 6, v11',
                  'v_xor_b32 v12, 1, v12', f'v_lshl_add_u32 {v(vWA + 1)}, v12, 6, v11']
            e += ['v_lshrrev_b32 v11, 3, v2', 'v_and_b32 v12, 7, v2', 'v_lshlrev_b32 v13, 10, v11', 'v_lshl_add_u32 v13, v12, 7, v13',
                  f'v_add_u32 v13, {XB}, v13', 'v_lshrrev_b32 v12, 1, v12', 'v_lshlrev_b32 v11, 2, v11', 'v_xor_b32 v12, v12, v11',
                  'v_xor_b32 v12, v12, v1', f'v_lshl_add_u32 {v(vXA)}, v12, 4, v13', 'v_xor_b32 v12, 4, v12',
                  f'v_lshl_add_u32 {v(vXA + 1)}, v12, 4, v13']
        e += [f's_mul_i32 {s(sT1)}, {s(sT0)}, {RING}', 'v_mul_u32_u24 v11, 1088, v5', 'v_lshl_add_u32 v11, v6, 8, v11',
              'v_xor_b32 v12, v1, v6', 'v_lshl_add_u32 v11, v12, 4, v11', f'v_add_u32 {v(vKA)}, {s(sT1)}, v11']
        e += [f's_add_u32 {s(sT1)}, {s(sT1)}, {2 * RING}',
              'v_mul_u32_u24 v11, 1088, v1', 'v_lshl_add_u32 v11, v5, 8, v11', 'v_lshl_add_u32 v11, v6, 3, v11',
              f'v_add_u32 v11, {s(sT1)}, v11',
              'v_and_b32 v12, 1, v5', 'v_lshrrev_b32 v13, 1, v5', 'v_lshl_or_b32 v12, v13, 2, v12']
        for k, d in enumerate((0, 1, 4, 5)):
            e += [f'v_xor_b32 v13, {d}, v12', f'v_lshl_add_u32 {v(vVA + k)}, v13, 5, v11']
        for k in range(4):
            e += [f's_sub_u32 {s(sT1)}, {k}, {s(sHH)}', f's_and_b32 {s(sT1)}, {s(sT1)}, 3', f's_mul_i32 {s(sT1)}, {s(sT1)}, {TS}',
                  f's_add_u32 {s(sTB + k)}, {s(sRING)}, {s(sT1)}']
        e += [f's_mul_i32 {s(sT2)}, {s(sPSB)}, 3072', f's_add_u32 {s(sPSt[0])}, {s(sT2)}, {8 * 98304}', f's_mul_i32 {s(sT3)}, {s(sJ)}, 98304',
              f's_mul_i32 {s(sSO)}, {s(sW)}, 3072', f's_add_u32 {s(sT3)}, {s(sT3)}, {s(sSO)}']
        for p in range(1, 8):
            e += [f's_add_u32 {s(sT1)}, {s(sJ)}, {p}', f's_and_b32 {s(sT1)}, {s(sT1)}, 7', f's_mul_i32 {s(sT1)}, {s(sT1)}, 98304',
                  f's_add_u32 {s(sPSt[p])}, {s(sT1)}, {s(sT2)}',
                  f's_sub_u32 {s(sT1)}, {s(sJ)}, {p}', f's_and_b32 {s(sT1)}, {s(sT1)}, 7', f's_mul_i32 {s(sT1)}, {s(sT1)}, 12288',
                  f's_add_u32 {s(sDAt[p])}, {s(sT1)}, {s(sT3)}']
        e += [f's_lshl_b32 {s(sT1)}, {s(sJ)}, 10', f's_add_u32 {s(sT1)}, {s(sT1)}, {s(sSO)}', f's_add_u32 {s(sT1)}, {s(sT1)}, {8 * 98304}',
              f's_cmp_lt_u32 {s(sJ)}, 3', f's_cselect_b32 {s(sDAt[0])}, {s(sT1)}, {GRP}',
              f's_lshl_b32 {s(sFS)}, {s(sPSB)}, 10', f's_mul_i32 {s(sOO)}, {s(sB)}, {96 * 2304}', f's_mul_i32 {s(sT3)}, {s(sBLK)}, 1152',
              f's_add_u32 {s(sOO)}, {s(sOO)}, {s(sT3)}', f's_lshl_b32 {s(sT3)}, {s(sW)}, 5', f's_add_u32 {s(sOO)}, {s(sOO)}, {s(sT3)}']
        for k in range(4):
            e += [f's_add_u32 {s(sT1)}, {s(sB)}, {k}' if c.krot else f's_mov_b32 {s(sT1)}, {k}', f's_and_b32 {s(sT1)}, {s(sT1)}, 3',
                  f's_mul_i32 {s(sH + k)}, {s(sT1)}, 147456']

    def wq_unit(self, u):
        hf = u & 1
        pre = [f's_add_u32 m0, {s(sRING)}, {(4096 + 4 * self.c.wpad) * ((u + 4) & 7)}', f's_add_u32 {s(sSO)}, {s(sWK)}, {(131072 if self.c.q32 else 128) * hf}']
        g = [pre + [self.dma(vWV, SRD_WQ, s(sSO), 0, self.c.w_nt, ('U', u))]]
        for n in range(1, 4):
            g.append([self.dma(vWV + n, SRD_WQ, s(sSO), (1024 + self.c.wpad) * n, self.c.w_nt, ('U', u))])
        if hf and not self.c.fake_w:
            g.append([f's_add_u32 {s(sWK)}, {s(sWK)}, 262144', f's_cmp_eq_u32 {s(sWK)}, 4718592', f's_cselect_b32 {s(sWK)}, 0, {s(sWK)}'])
        return g

    def x_chunk(self, kc):
        g = []
        for m in range(3):
            g.append([f's_add_u32 m0, {s(sXL)}, {12288 * (kc & 1) + 4096 * m}', f's_add_u32 {s(sSO)}, {s(sXK)}, {36864 * m}',
                      self.dma(vXV, SRD_X, s(sSO), 0, self.c.x_nt, ('X', kc))])
        if not self.c.fake_w:
          g.append([f's_add_u32 {s(sXK)}, {s(sXK)}, 128', f's_cmp_eq_u32 {s(sXK)}, 1152', f's_cselect_b32 {s(sXK)}, 0, {s(sXK)}'])
        return g

    def a_reads(self, u, k):
        r = QA + 4 * k
        if self.c.q32:
            return [f'ds_read_b64_tr_b16 {v(r + 2 * e_, 2)}, {v(vWA + k)} offset:{4096 * ((u + 4) & 7) + 1024 * e_}' for e_ in range(2)]
        return [f'ds_read_b64_tr_b16 {v(r + 2 * e_, 2)}, {v(vWA + (k >> 1))} offset:{(4096 + 4 * self.c.wpad) * ((u + 4) & 7) + 512 * e_ + 8 * (k & 1)}' for e_ in range(2)]

    def b_read(self, st, t):
        if self.c.q32:
            return f'ds_read_b128 {a(QB + 12 * (st & 1) + 4 * t, 4)}, {v(vXA + (st & 3))} offset:{12288 * ((st >> 2) & 1) + 4096 * t}'
        kc = st >> 1
        return f'ds_read_b128 {a(QB + 24 * (st & 1) + 4 * t, 4)}, {v(vXA + (st & 1))} offset:{12288 * (kc & 1) + 2048 * t}'

    def qproj(self):
        c = self.c
        if c.trace:
            self.emit([f'v_writelane_b32 {v(vTRa)}, s98, 0', f'v_writelane_b32 {v(vTRb)}, s100, 0'])
            self.ntr = 1
            self.trnames.append('start')
        if c.trace_h:
            self.tr(name='sld')
        e = flat(self.x_chunk(0)) + flat(self.wq_unit(0)) + flat(self.wq_unit(1))
        if c.init_u >= 3:
            e += flat(self.x_chunk(1))
        for u in range(2, min(c.init_u, 4)):
            e += flat(self.wq_unit(u))
        if c.warm_code and not c.cw_late:
            e += self.code_warm()
        e += self.late_setup
        for u in range(4, c.init_u):
            e += flat(self.wq_unit(u))
        if c.trace_h:
            self.emit(e); e = []
            self.tr(name='iss')
            self.emit([self.wvm([('X', 0), ('U', 0)])])
            self.tr(name='land')
        e += [self.wvm([('X', 0), ('U', 0)]), 's_barrier']
        for t in range(3 if c.q32 else 6):
            e.append(self.b_read(0, t))
        for k in range(3):
            e += self.a_reads(0, k)
        self.emit(e, 'qpre')
        self.tr(name='first')
        mf, fl, dm = [], [], []
        NU = 36
        kvg = self.kv_stage()
        D = 12 if c.q32 else 24
        sc = lambda x: x * D // 24
        if c.init_u < 3:
            for k, g in enumerate(self.x_chunk(1)):
                dm.append(Filler(g, rel=sc(c.x1_at) + 2 * k, dl=sc(c.x1_at) + 1 + 2 * k, pos=sc(c.x1_at) + 0.7))
        for q in range(c.init_u, NU):
            if q < 4:
                x = sc(c.early[q - 2])
            else:
                x = max(D * (q - 8) + sc(18), sc(c.ramp) * (q - max(c.init_u, 4)) + (sc(c.u4_at) if c.init_u < 4 else 0))
            steady = x == D * (q - 8) + sc(18)
            nxt_x = ((q - 7) & 3) == (3 if c.q32 else 2)
            sp = sc(c.wq_sp) if steady and not nxt_x else sc(2)
            if steady and nxt_x and c.q32:
                sp = 1.5
            for k, g in enumerate(self.wq_unit(q)):
                dm.append(Filler(g, rel=x + int(sp * k), dl=x + 1 + int(sp * k), pos=x + 0.5))
        if c.warm_code and c.cw_late:
            dm.append(Filler(self.code_warm(), rel=D + sc(8), dl=D + sc(10)))
        dm.append(Filler(self.flag_clear(), rel=D * 2 + sc(6), dl=D * 2 + sc(16)))
        for u in range(NU):
            st, hf = u >> 1, u & 1
            g0 = D * u
            if c.q32:
                for ct in range(4):
                    for t in range(3):
                        acc = v((ct * 3 + t) * 16, 16)
                        mf.append(I(f'{MF32} {acc}, {v(QA + 4 * ct, 4)}, {a(QB + 12 * (u & 1) + 4 * t, 4)}, {acc if u else 0}'))
            else:
                for k in range(4):
                    ct = 4 * hf + k
                    for t in range(6):
                        acc = v((ct * 6 + t) * 4, 4)
                        mf.append(I(f'{MF} {acc}, {v(QA + 4 * k, 4)}, {a(QB + 24 * (st & 1) + 4 * t, 4)}, {acc if st else 0}'))
            fl.append(Filler(self.a_reads(u, 3), rel=g0, dl=g0 + sc(4), stream='a', pos=g0 + sc(18) - 0.5))
            if u + 1 < NU:
                fl.append(Filler(self.wvm(('U', u + 1)), rel=g0 + sc(5), dl=g0 + sc(8), stream='a'))
                for k in range(3):
                    fl.append(Filler(self.a_reads(u + 1, k), rel=g0 + sc(6 * k + 6), dl=g0 + sc(6 * k + 10), stream='a', pos=g0 + D + sc(6 * k) - 0.5))
            xu = (u & 3 == 3) if c.q32 else (u & 3 == 2)
            if xu and u + 1 < NU:
                kc = u >> 2
                if kc < 8:
                    fl.append(Filler([self.wvm(('X', kc + 1)), 's_barrier'], rel=g0 + sc(6) - (1 if c.q32 else 0), dl=g0 + sc(8) - (1 if c.q32 else 0), stream='b'))
                if kc + 2 <= 8:
                    for k, g in enumerate(self.x_chunk(kc + 2)):
                        dm.append(Filler(g, rel=g0 + sc(9 + 3 * k), dl=g0 + sc(10 + 3 * k), pos=g0 + sc(9) + 0.5))
                if kc == c.xtouch:
                    dm.append(Filler(self.x_touch(kc + 3), rel=g0 + sc(17), dl=g0 + sc(18), pos=g0 + sc(17) + 0.2))
            if u in c.touch_at:
                dm.append(Filler(self.kv_touch(c.touch_at.index(u)), rel=g0 + sc(16), dl=g0 + sc(18), pos=g0 + sc(16) + 0.6))
            if c.warm_wo and not c.warm_it and u in c.warm_at:
                dm.append(Filler(self.warm_wo(c.warm_at.index(u)), rel=g0 + sc(16), dl=g0 + sc(18), pos=g0 + sc(16) + 0.5))
            if c.q32 and u + 1 < NU:
                for t in range(3):
                    fl.append(Filler(self.b_read(u + 1, t), rel=g0 + 4 + t, dl=g0 + 7 + t, stream='b', pos=g0 + 11.5))
            if not c.q32 and hf == 0 and st + 1 < 18:
                for t in range(6):
                    fl.append(Filler(self.b_read(st + 1, t), rel=g0 + 9 + 5 * t, dl=g0 + 30 + t, stream='b', pos=g0 + 47.5))
            if u % 4 == 3 and u < 35:
                self.tr_filler(fl, g0 + D - 1, 'q')
        i = 0
        while kvg:
            x = int(D * c.kv_from + sc(4) + c.kv_sp * i * D / 24)
            if x > D * NU - 2:
                break
            fl.append(Filler(kvg.pop(0), rel=x, dl=x + 1, stream='kv')); i += 1
        assert i >= 16
        dm.sort(key=lambda f: f.pos)
        for f in dm:
            f.stream = 'dma'
        fl += dm
        puts = [(tl, n) for tl in range(c.n_stage) for n in range(8)]
        for k in range(c.put_q):
            tl, n = puts.pop(0)
            sl = (tl * TS + 1088 * n + 1023) // (4096 + 4 * c.wpad)
            x = min(max(D * (28 + min(sl, 7)) + sc(18), D * NU - sc(4) * (c.put_q - k)), D * NU - 1)
            fl.append(Filler(self.kv_put(tl, n), rel=x, dl=x + sc(2), stream='put'))
        if c.q32:
            seq = interleave(mf, fl, 24, c.verbose, 'qproj', rate=float(c.q32_budget), cap=40)
        else:
            seq = interleave(mf, fl, 8, c.verbose, 'qproj', rate=c.q_rate, cap=(c.cap if c.split else 24), split=c.split,
                             reserve=(set(range(5, len(mf), 6)) if c.reserve else ()))
        self.emit(seq, 'qproj')
        self.tr(name='q')
        e = []
        for t3 in ((2, 0, 1) if c.q32 else ()):
            for ct in range(4):
                b = (ct * 3 + t3) * 16
                e += [f'v_pk_mul_f32 {v(b + i, 2)}, {v(b + i, 2)}, {s(sC, 2)}' for i in range(0, 16, 2)]
                dst = [Q45 + 16 * (i >> 2) + 4 * ct + (i & 3) if t3 == 2 else b + i for i in range(8)]
                e += [f'v_cvt_pk_bf16_f32 {v(dst[i])}, {v(b + 2 * i)}, {v(b + 2 * i + 1)}' for i in range(8)]
                e += [f'v_permlane16_swap_b32 {v(dst[j])}, {v(dst[4 + j])}' for j in range(4)]
                if t3 < 2:
                    e += [f'v_accvgpr_write_b32 {a(192 + 16 * (2 * t3 + (i >> 2)) + 4 * ct + (i & 3))}, {v(dst[i])}' for i in range(8)]
        for t in (() if c.q32 else (4, 5, 0, 1, 2, 3)):
            for ct in range(8):
                b = (ct * 6 + t) * 4
                e += [f'v_pk_mul_f32 {v(b, 2)}, {v(b, 2)}, {s(sC, 2)}', f'v_pk_mul_f32 {v(b + 2, 2)}, {v(b + 2, 2)}, {s(sC, 2)}']
            for ct in range(8):
                b = (ct * 6 + t) * 4
                ks, uu = ct >> 1, ct & 1
                for h2 in range(2):
                    d = Q45 + 16 * (t - 4) + 4 * ks + 2 * uu + h2 if t >= 4 else b + h2
                    e.append(f'v_cvt_pk_bf16_f32 {v(d)}, {v(b + 2 * h2)}, {v(b + 2 * h2 + 1)}')
            if t < 4:
                for ct in range(8):
                    b = (ct * 6 + t) * 4
                    ks, uu = ct >> 1, ct & 1
                    for h2 in range(2):
                        e.append(f'v_accvgpr_write_b32 {a(192 + 16 * t + 4 * ks + 2 * uu + h2)}, {v(b + h2)}')
        nput = 16 - c.put_q
        for k in range(nput):
            tl, n = puts.pop(0)
            x = (k + 1) * (len(e) // (nput + 1))
            e[x:x] = self.kv_put(tl, n)
        self.puts = puts
        gs = [kvg.pop(0) for _ in range(min(c.kv_nc, len(kvg)))]
        self.kvg = kvg
        if c.n_stage == 2:
            t3 = [[f's_lshl_b32 {s(SRD_KV + 2)}, {s(sKL)}, 18']] + self.kv_tile(3, None)[:-1]
            t3 += [[f's_mov_b32 {s(SRD_KV + 2)}, 262144', f's_lshl_b32 {s(sT3)}, {s(sKL)}, 13', f's_add_u32 {s(sOFF)}, {s(sOFF)}, {s(sT3)}',
                    f's_and_b32 {s(sOFF)}, {s(sOFF)}, 0x3ffff', f's_add_u32 {s(sOFF2)}, {s(sOFF)}, 4096']]
            gs = self.kv_tile(2, None)
            if c.t3_late:
                self.kvg = t3
            else:
                gs += t3
        step = len(e) // (len(gs) + 1)
        for k in range(len(gs) - 1, -1, -1):
            e[k * step + 4:k * step + 4] = gs[k]
        e += ['s_waitcnt lgkmcnt(0)', 's_barrier']
        self.emit(e, 'qconv')
        self.tr(name='conv')

    def kv_reload(self):
        e = flat(self.kv_tile(0, None)) + flat(self.kv_tile(1, None)) + flat(self.kv_tile(2, None))
        e += [f's_cmp_lg_u32 {s(sHH)}, 0', 's_cbranch_scc1 L_skip_t3'] + flat(self.kv_tile(3, None)) + ['L_skip_t3:', 's_waitcnt vmcnt(0)', 's_barrier']
        self.emit(e)

    def frag_reads(self, phi, kslot, vslot):
        r = FR + 4 * (phi & 3)
        if phi < 8:
            c_, ks = phi >> 2, phi & 3
            return [f'ds_read_b128 {v(r, 4)}, {v(vKA)} offset:{kslot * TS + 4352 * c_ + 64 * ks}']
        dt = phi - 8
        reg = vVA + (dt & 1) + 2 * (dt >> 2)
        return [f'ds_read_b64_tr_b16 {v(r + 2 * e_, 2)}, {v(reg)} offset:{vslot * TS + 4352 * e_ + 64 * ((dt >> 1) & 1)}' for e_ in range(2)]

    def qk_mfmas(self, buf, czero=False):
        mf = []
        for c_ in range(2):
            for ks in range(4):
                for t in range(6):
                    d = v(Sr(buf, c_, t), 4)
                    cc = d if ks else ('0' if czero else v(NM + 4 * t, 4))
                    mf.append(I(f'{MF} {d}, {v(FR + 4 * ks, 4)}, {Qfrag(t, ks)}, {cc}'))
        return mf

    def pv_mfmas(self, czero=False, sumfirst=False):
        mf, first = [], []
        for dt in range(8):
            first.append(len(mf))
            for t in range(6):
                o = a(Oacc(dt, t), 4)
                mf.append(I(f'{MF} {o}, {v(FR + 4 * (dt & 3), 4)}, {v(P_ + 4 * t, 4)}, {0 if czero else o}'))
            if sumfirst and dt == 0:
                for t in range(6):
                    l = v(L_ + 4 * t, 4)
                    mf.append(I(f'{MF} {l}, {v(ONES, 4)}, {v(P_ + 4 * t, 4)}, {l}'))
            if dt < 6 and not self.c.vsum and not self.c.nosum and not sumfirst:
                l = v(L_ + 4 * dt, 4)
                if self.c.summode.startswith('m16'):
                    mf.append(I(f'{MF} {l}, {v(ONES, 4)}, {v(P_ + 4 * dt, 4)}, {0 if czero else l}'))
                elif self.c.summode == 'm4':
                    mf.insert(len(mf) - 3, I(f'v_mfma_f32_4x4x4_16b_bf16 {l}, {v(ONES, 2)}, {v(P_ + 4 * dt, 2)}, {0 if czero else l}'))
                    mf.append(I(f'v_mfma_f32_4x4x4_16b_bf16 {l}, {v(ONES, 2)}, {v(P_ + 4 * dt + 2, 2)}, {l}'))
        return mf, first

    def exp_order(self):
        return [(c_, t, i) for c_ in range(2) for t in range(6) for i in range(4)]

    def xlane_max(self, m, m2):
        return [f'v_mov_b32 {m2}, {m}', f'v_permlane32_swap_b32 {m}, {m2}', f'v_max_f32 {m}, {m}, {m2}',
                f'v_mov_b32 {m2}, {m}', f'v_permlane16_swap_b32 {m}, {m2}', f'v_max_f32 {m}, {m}, {m2}']

    def attn_pre(self, safe, lab):
        c = self.c
        self.emit(self.frag_reads(0, 0, 0) + self.frag_reads(1, 0, 0))
        fl = []
        for phi in range(2, 8):
            fl.append(Filler(self.frag_reads(phi, 0, 0), rel=max(6 * phi - 18, -1), dl=6 * phi - 10, stream='fr', pos=6 * phi - 0.5))
        for phi in range(2):
            fl.append(Filler(self.frag_reads(phi, 1, 0), rel=6 * (phi + 8) - 14, dl=6 * (phi + 8) - 10, stream='fr', pos=60))
        mask = {'m16': 0, 'dot': 0, 'm16z': 3, 'm4': 3, 'm16zz': 15}[c.summode]
        fl.append(Filler([f'v_and_b32 {v(ONES)}, {mask}, {v(vLANE)}', f'v_cmp_eq_u32 vcc, 0, {v(ONES)}', f'v_mov_b32 {v(ONES + 1)}, 0x3f803f80', 's_nop 0',
                          f'v_cndmask_b32 {v(ONES)}, 0, {v(ONES + 1)}, vcc'], rel=0, dl=4, stream='i'))
        for i in range(1, 4):
            fl.append(Filler(f'v_mov_b32 {v(ONES + i)}, {v(ONES)}', rel=0, dl=20, stream='i'))
        if c.summode == 'dot':
            for t in range(6):
                fl.append(Filler(f'v_mov_b32 {v(L_ + 4 * t)}, 0', rel=0, dl=20, stream='i'))
        for k, g in enumerate(self.kvg):
            x = 1 + k * (21 if c.pre_fast and not safe else 44) // max(len(self.kvg), 1)
            fl.append(Filler(g, rel=x, dl=x + 1, stream='kv'))
        self.kvg = []
        if not safe and c.pre_fast:
            mf = self.qk_mfmas(0, True)
            for t in range(6):
                d = v(Sr(0, 1, t), 4)
                mf[24 + t] = I(f'{MF} {d}, {v(FR, 4)}, {Qfrag(t, 0)}, {v(NM + 4 * t, 4)}')
            rows = []
            for t in range(6):
                m, m2 = v(S_[1] + 2 * t), v(S_[1] + 2 * t + 1)
                r = [Sr(0, 0, t) + i for i in range(4)]
                rows.append([f'v_max3_f32 {m}, {v(r[0])}, {v(r[1])}, {v(r[2])}', f'v_max_f32 {m}, {m}, {v(r[3])}'] + self.xlane_max(m, m2) +
                            [f'v_sub_f32 {v(NM + 4 * t + i)}, 0, {m}' for i in range(4)])
            for z in zip(*rows):
                for x in z:
                    fl.append(Filler(x, rel=23, dl=23, stream='m', pos=23.5))
            for t in range(6):
                for i in range(4):
                    x = v(Sr(0, 0, t) + i)
                    fl.append(Filler(f'v_add_f32 {x}, {x}, {v(NM + 4 * t)}', rel=24 + 4 * t, dl=24 + 4 * t + i // 4, stream='e', pos=23.6))
                for i in range(4):
                    x = v(Sr(0, 0, t) + i)
                    fl.append(Filler(f'v_exp_f32 {x}, {x}', rel=24 + 4 * t, dl=min(25 + 4 * t + (3 * i) // 4, 47), stream='e', pos=23.6))
            for k in range(min(c.put_m, len(self.puts))):
                fl.append(Filler(self.kv_put(*self.puts.pop(0)), rel=2 + 2 * k, dl=3 + 2 * k, stream='put'))
            self.emit(interleave(mf, fl, 8, c.verbose, 'qk0', rate=12.0), 'qk0')
            e = [f'v_exp_f32 {v(Sr(0, c_, t) + i)}, {v(Sr(0, c_, t) + i)}' for (c_, t, i) in self.exp_order()[24:c.npart1]]
            self.emit(e + ['s_waitcnt lgkmcnt(0)', 's_barrier'], 'max0')
            return
        self.emit(interleave(self.qk_mfmas(0, True), fl, 8, c.verbose, 'qk0', rate=8.0), 'qk0')
        e = []
        for t0 in (0, 3):
            ms = [(v(vMX + 2 * k), v(vMX + 2 * k + 1)) for k in range(3)]
            rows = []
            for k in range(3):
                t = t0 + k
                m, m2 = ms[k]
                r = [Sr(0, 0, t) + i for i in range(4)] + [Sr(0, 1, t) + i for i in range(4)]
                row = [f'v_max3_f32 {m}, {v(r[0])}, {v(r[1])}, {v(r[2])}', f'v_max3_f32 {m}, {m}, {v(r[3])}, {v(r[4])}',
                       f'v_max3_f32 {m}, {m}, {v(r[5])}, {v(r[6])}', f'v_max_f32 {m}, {m}, {v(r[7])}'] + self.xlane_max(m, m2)
                row += [f'v_sub_f32 {v(NM + 4 * t + i)}, 0, {m}' for i in range(4)]
                row += [f'v_sub_f32 {v(x)}, {v(x)}, {m}' for x in r]
                rows.append(row)
            for z in zip(*rows):
                e += list(z)
        if not safe:
            for (c_, t, i) in self.exp_order()[:c.npart1]:
                x = v(Sr(0, c_, t) + i)
                e.append(f'v_exp_f32 {x}, {x}')
        nput = min(c.put_m, len(self.puts))
        for k in range(nput):
            x = (k + 1) * (len(e) // (nput + 1))
            e[x:x] = self.kv_put(*self.puts.pop(0))
        e += ['s_waitcnt lgkmcnt(0)', 's_barrier']
        self.emit(e, 'max0')

    def cvt_fillers(self, cur, base, todo, rel0):
        fl = []
        todo = list(todo)
        for t in range(6):
            for c_ in range(2):
                for h2 in range(2):
                    b = Sr(cur, c_, t) + 2 * h2
                    for i in (2 * h2, 2 * h2 + 1):
                        if (c_, t, i) in todo:
                            fl.append(Filler(f'v_exp_f32 {v(Sr(cur, c_, t) + i)}, {v(Sr(cur, c_, t) + i)}', rel=rel0, dl=base + t - 4, stream='e', pos=-3))
                    fl.append(Filler(f'v_cvt_pk_bf16_f32 {v(P_ + 4 * t + 2 * c_ + h2)}, {v(b)}, {v(b + 1)}', rel=rel0, dl=base + t - 3,
                                     stream='c', pos=-2.5))
                    if self.c.summode == 'dot':
                        fl.append(Filler(I(f'v_dot2c_f32_bf16 {v(L_ + 4 * t)}, {v(ONES)}, {v(P_ + 4 * t + 2 * c_ + h2)}', cost=self.c.dot_cost), rel=max(rel0, base - 2), dl=base + 36,
                                         stream='s', pos=-2.4))
                    if self.c.vsum:
                        for i in range(2):
                            fl.append(Filler(f'v_add_f32 {v(L_ + 4 * t)}, {v(L_ + 4 * t)}, {v(b + i)}', rel=rel0, dl=base + 40, stream='s', pos=-2.4))
        return fl

    def attn_iter(self, j, safe, dma='kv', xwait='s_waitcnt vmcnt(8)', nextk=True, site=None, extra=(), win=None, npart=None):
        c = self.c
        cur, new = j & 1, (j + 1) & 1
        pv, first = self.pv_mfmas(j == 0)
        mf = self.qk_mfmas(new) + pv
        n = len(mf)
        need = [6 * phi for phi in range(8)] + [48 + x for x in first] + [n, n + 6]
        fl = []
        for phi in range(2, 18):
            if phi >= 16:
                if not nextk: continue
                r = self.frag_reads(phi - 16, (j + 2) & 3, 0)
            else:
                r = self.frag_reads(phi, (j + 1) & 3, j & 3)
            fl.append(Filler(r, rel=max(need[phi] - 15, 0), dl=need[phi] - 10, stream='fr', pos=need[phi] - 0.5))
        order = self.exp_order()
        if safe:
            fl += self.cvt_fillers(cur, 48, order, 0)
            regs = [S_[new] + i for i in range(48)]
            m = v(vMX)
            fl.append(Filler(f'v_max3_f32 {m}, {v(regs[0])}, {v(regs[1])}, {v(regs[2])}', rel=52, dl=n - 4, stream='m', pos=200))
            for k in range(3, 48, 2):
                r2 = regs[min(k + 1, 47)]
                fl.append(Filler(f'v_max3_f32 {m}, {m}, {v(regs[k])}, {v(r2)}', rel=52, dl=n - 4, stream='m', pos=200))
            fl.append(Filler(f'v_cmp_lt_f32 vcc, {s(sTHR)}, {m}', rel=52, dl=n - 3, stream='m', pos=200))
        else:
            fl += self.cvt_fillers(cur, 48, order[c.npart1:], 0)
            for (c_, t, i) in order[:npart or c.npart1]:
                x = v(Sr(new, c_, t) + i)
                fl.append(Filler(f'v_exp_f32 {x}, {x}', rel=((30 if npart else 46) if c_ == 0 else 52), dl=n - 1, stream='e2', pos=200))
        if dma == 'kv':
            gs = self.kv_groups(sTB + (j & 3), 0, None, c.win if win is None else win)
            if j == 4:
                gs[0] = [f's_cmp_eq_u32 {s(sLOOP)}, {s(sKL)}', f's_cselect_b32 {s(SRD_KV + 2)}, 0, {s(SRD_KV + 2)}'] + gs[0]
            for k, g in enumerate(gs):
                n = k - 1
                x = 2 + 11 * (n - n % c.burst) + c.bsp * (n % c.burst) if 0 <= n < 8 else (0 if n < 0 else 88)
                fl.append(Filler(g, rel=x, dl=min(x + (6 if c.burst == 1 else 1), 90) if k else 1, stream='dma'))
        for f in extra:
            if f.stream == 'fr0':
                f.rel = f.dl = need[16] - 17
        fl += list(extra)
        if c.drop and 1 <= j <= 4:
            fl = [f for f in fl if not (any(f.ins[0].op.startswith(d) for d in c.drop) and f.rel < 80)]
        if c.noexp:
            fl = [f for f in fl if not f.ins[0].op.startswith('v_exp')]
        xg = need[15]
        fl.append(Filler([xwait, 's_barrier'] if isinstance(xwait, str) else xwait + ['s_barrier'], rel=xg, dl=xg, stream='x'))
        seq = interleave(mf, fl, 8, c.verbose, f'iter{j}', rate=((c.a_rate if j else 12.0) if not safe else 10.0), cap=((c.cap if c.split and not safe else 20) if j else (16 if c.split else 28)), split=c.split,
                         reserve=({x - 1 for x in need} if c.reserve and not safe else ()))
        if safe:
            seq.append(I(f's_cbranch_vccnz L_rare_{site}'))
            seq.append(I(f'L_back_{site}:'))
            self.sites.append((site, new))
        return seq

    def warm_wo(self, part, tmp=vH + 4):
        L = v(vLANE)
        per = -(-72 // len(self.c.warm_at))
        assert per <= 64
        t0, t1 = v(tmp), v(tmp + 1)
        e = []
        if self.c.warm_it:
            t0 = v(vWM)
        elif part == 0:
            e += [f'v_lshlrev_b32 {t0}, 7, {L}', f'v_mov_b32 {t1}, {OOB}', f'v_cmp_gt_u32 vcc, {per}, {L}', 's_nop 1', f'v_cndmask_b32 {t0}, {t1}, {t0}, vcc']
        e += [f's_lshl_b32 {s(sT1)}, {s(sB)}, 2', f's_add_u32 {s(sT1)}, {s(sT1)}, {s(sW)}', f's_mul_i32 {s(sT1)}, {s(sT1)}, 9216',
              f's_add_u32 {s(sT1)}, {s(sT1)}, {128 * per * part}',
              I(f'buffer_load_dword {v(vF) if self.c.warm_it else v(253)}, {t0}, {s(SRD_WO, 4)}, {s(sT1)} offen{self.c.warm_nt}', tag='W', cost=self.c.dma_cost)]
        return e

    def attention(self, safe):
        c = self.c
        lab = 's' if safe else 'f'
        self.emit([f's_mov_b32 {s(sLOOP)}, 7'])
        self.attn_pre(safe, lab)
        self.tr(name='pre')
        assert c.n_stage in (2, 4) and (c.n_stage == 2 or (c.pre_fast and c.mode == 'fast'))
        tc = [Filler(g, rel=4 + 3 * k, dl=(8 + 3 * k if safe else 90), stream='tc') for k, g in enumerate(self.tail_consts())]
        ex = [Filler(self.kv_put(tl, n), rel=int(k * c.put_sp), dl=int(k * c.put_sp) + 2, stream='put', pos=-1) for k, (tl, n) in enumerate(self.puts)]
        pub = ['s_waitcnt lgkmcnt(0)'] if self.puts else []
        self.puts = []
        self.emit(self.attn_iter(0, safe, site='0', extra=[Filler(['s_waitcnt vmcnt(8)'] + pub + ['s_barrier'], rel=84, dl=84, stream='fr0')] + tc + ex), 'iter0')
        self.vm_reset()
        self.tr(name='it')
        entry = [set(x) for x in self.lg]
        phases = [(c.win, 0)] if (safe or c.win_b is None) else [(c.win, 7 - c.n1), (c.win_b, 0)]
        if len(phases) == 2 and c.win_c is not None:
            phases = [(c.win, 7 - c.n1), (c.win_b, 7 - c.n1 - c.n2), (c.win_c, 0)]
        for ph, (win, stop) in enumerate(phases):
            self.raw(['.p2align 3', f'L_loop{lab}{ph}:'])
            start = len(self.out)
            for j in range(1, 5):
                self.emit(self.attn_iter(j, safe, site=f'{j}', win=win), f'iter{j}')
                self.tr(dyn=True, name='it')
            assert [set(x) for x in self.lg] == entry, (self.lg, entry)
            self.emit([f's_sub_u32 {s(sLOOP)}, {s(sLOOP)}, 1', f's_cmp_lg_u32 {s(sLOOP)}, {stop}', f's_cbranch_scc1 L_loop{lab}{ph}'])
            rep = []
            pad_hazards(self.out[start:start + 40], history=self.out[-40:], report=rep)
            assert not rep, rep
            if ph and c.trace and not c.trace_o and not c.trace_h:
                self.ntr -= 4
                self.trnames = self.trnames[:-4]
        self.vm_reset()
        if c.trace and not c.trace_o and not c.trace_h:
            self.ntr += 24
            self.trnames += ['it'] * 24
        ex = [Filler(self.clear_done(), rel=2, dl=6)] + [Filler(self.flag_touch(), rel=12, dl=16)]
        nt = 0
        if c.tlb:
            tl = [[f'v_min_u32 {v(vT + 1)}, 8, {v(vLANE)}', f'v_mul_u32_u24 {v(vT + 1)}, 98304, {v(vT + 1)}',
                   I(f'buffer_load_dword {v(vF)}, {v(vT + 1)}, {s(SRD_WS, 4)}, 0 offen', cost=c.dma_cost)],
                  [I(f'buffer_load_dword {v(vF)}, {v(vOO)}, {s(SRD_OUT, 4)}, {s(sOO)} offen', cost=c.dma_cost)],
                  [f's_add_u32 {s(sT1)}, {s(sOO)}, {80 * 2304}', I(f'buffer_load_dword {v(vF)}, {v(vOO)}, {s(SRD_OUT, 4)}, {s(sT1)} offen', cost=c.dma_cost)]]
            ex += [Filler(g, rel=20 + 6 * k, dl=24 + 6 * k, stream='tlb') for k, g in enumerate(tl)]
            nt = 3
        wm = [Filler(self.warm_wo(k, vMX + 6), rel=8 + 4 * k, dl=12 + 4 * k, stream='wm') for k in range(len(c.warm_at))] if c.warm_wo and c.warm_it else []
        n29 = len(wm) if c.warm_it == 29 else 0
        n30 = len(wm) if c.warm_it in (29, 30) else 0
        self.emit(self.attn_iter(29, safe, dma=None, xwait=f's_waitcnt vmcnt({10 + n29 + nt})', site='29', extra=ex + (wm if n29 else [])), 'iter29')
        self.tr(name='it')
        self.emit(self.attn_iter(30, safe, dma=None, xwait=f's_waitcnt vmcnt({2 + n30 + nt})', nextk=False, site='30',
                                 extra=(wm if c.warm_it == 30 else []), npart=(48 if c.last_opt else None)), 'iter30')
        self.last_extra = wm if c.warm_it == 31 else []
        self.tr(name='it')
        self.vm_reset()
        self.attn_last(safe)

    def tail_consts(self):
        L = v(vLANE)
        t0, t1, t2 = v(vT), v(vT + 1), v(vT + 2)
        per = -(-72 // len(self.c.warm_at))
        g = [[f'v_lshrrev_b32 {t0}, 3, {L}', f'v_and_b32 {t1}, 7, {L}', f'v_and_b32 {t2}, 6, {t0}', f'v_xor_b32 {t1}, {t1}, {t2}'],
             [f's_lshl_b32 {s(sT1)}, {s(sW)}, 3', f'v_add_u32 {t0}, {s(sT1)}, {t0}', f'v_mul_u32_u24 {t0}, 1152, {t0}', f'v_lshl_add_u32 {v(vOV)}, {t1}, 4, {t0}'],
             [f'v_bfe_u32 {t0}, {L}, 2, 3', f'v_lshrrev_b32 {t1}, 1, {t0}', f'v_xor_b32 {t1}, {s(sW)}, {t1}', f'v_lshlrev_b32 {t1}, 5, {t1}'],
             [f'v_lshl_add_u32 {t0}, {t0}, 7, {t1}', f'v_and_b32 {t1}, 3, {L}', f'v_lshl_add_u32 {t0}, {t1}, 3, {t0}'],
             [f'v_lshrrev_b32 {t1}, 5, {L}', f'v_lshl_add_u32 {v(vOA)}, {t1}, 10, {t0}', f'v_add_u32 {v(vOA2)}, 65536, {v(vOA)}', f'v_lshlrev_b32 {v(vPS)}, 4, {L}']]
        for k in range(4):
            g.append([f's_mul_hi_u32 {s(sT1)}, {s(sH + k)}, {(2 ** 32 + 5) // 6}', f's_add_u32 {s(sT1)}, {s(sT1)}, {OB}', f'v_add_u32 {v(vBA + k)}, {s(sT1)}, {v(vPS)}'])
        g += [[f's_mul_i32 {s(sT1)}, {s(sW)}, 24576', f's_add_u32 {s(sT1)}, {s(sT1)}, {OB}', f'v_add_u32 {v(vOW)}, {s(sT1)}, {v(vPS)}'],
              [f'v_mov_b32 {t2}, {OOB}', f'v_cmp_eq_u32 vcc, 0, {L}', f's_cmp_eq_u32 {s(sW)}, 0', f's_cselect_b32 {s(sT1)}, 1, 0', f'v_cndmask_b32 {v(vL0)}, {t2}, {L}, vcc'],
              [f'v_cmp_gt_u32 vcc, {s(sT1)}, {L}', f'v_lshlrev_b32 {t0}, 7, {L}', 's_nop 0', f'v_cndmask_b32 {v(vSG)}, {t2}, {L}, vcc'],
              [f'v_cmp_gt_u32 vcc, {per}, {L}', 's_nop 1', f'v_cndmask_b32 {v(vWM)}, {t2}, {t0}, vcc'],
              [f'v_subrev_u32 {t0}, 7, {L}', f'v_sub_u32 {t1}, {s(sJ)}, {t0}', f'v_and_b32 {t1}, 7, {t1}', f'v_lshlrev_b32 {t1}, 12, {t1}'],
              [f'v_lshl_add_u32 {t1}, {t0}, 7, {t1}', f'v_cmp_gt_u32 vcc, 15, {L}', f'v_lshlrev_b32 {t0}, 12, {L}', 's_nop 0', f'v_cndmask_b32 {t1}, 0, {t1}, vcc'],
              [f'v_cmp_gt_u32 vcc, 8, {L}', 's_nop 1', f'v_cndmask_b32 {v(vPA)}, {t1}, {t0}, vcc'],
              [f'v_and_b32 {t0}, 15, {L}', f'v_mul_u32_u24 {t0}, 2304, {t0}', f'v_lshrrev_b32 {t1}, 4, {L}', f'v_lshl_add_u32 {v(vOO)}, {t1}, 3, {t0}'],
              [f'v_bfe_u32 {t0}, {L}, 2, 2', f'v_cmp_eq_u32 vcc, {t0}, {t1}', f'v_and_b32 {t0}, 1, {L}', f'v_lshlrev_b32 {t0}, 4, {t0}',
               f'v_lshlrev_b32_e64 {t0}, {t0}, 1', f'v_mul_u32_u24 {t0}, 0x3f80, {t0}', f'v_cndmask_b32 {t0}, 0, {t0}, vcc'],
              [f'v_and_b32 {t1}, 2, {L}', f'v_cmp_eq_u32 vcc, 0, {t1}', f'v_mov_b32 {v(SEL)}, 0', f'v_mov_b32 {v(SEL + 1)}, 0',
               f'v_cndmask_b32 {v(SEL + 2)}, 0, {t0}, vcc', f'v_sub_u32 {v(SEL + 3)}, {t0}, {v(SEL + 2)}'],
              [f'v_mov_b32 {v(SEL + 4)}, 0', f'v_mov_b32 {v(SEL + 5)}, 0', f's_lshl_b32 {s(sFA)}, {s(sW)}, 10']]
        return g

    def dbg_load(self):
        r = OPK + 4 if self.c.dbg_early else LDB
        return f'buffer_load_dwordx2 {v(r, 2)}, {v(SEL)}, {s(SRD_DBG, 4)}, {s(sDA)} offen sc1'

    def flag_touch(self):
        return [I(f'buffer_load_dword {v(vF)}, {v(vPA)}, {s(SRD_FL, 4)}, {s(sFA)} offen{self.c.fl_mod}', cost=self.c.dma_cost)]

    def check(self, reg, want, reload, name, allanes=False, two=False):
        k = len(self.spins)
        if two:
            test = [f'v_and_b32 {v(reg)}, {v(reg)}, {v(reg + 1)}', 's_nop 0', f'v_readfirstlane_b32 {s(sT3)}, {v(reg)}', 's_nop 1', f's_cmp_eq_u32 {s(sT3)}, {want}']
        elif allanes:
            test = [f'v_cmp_eq_u32 vcc, 0, {v(reg)}', 's_nop 1', f's_and_b32 {s(sT3)}, vcc_lo, {want:#x}', f's_cmp_eq_u32 {s(sT3)}, 0']
        else:
            test = [f'v_readfirstlane_b32 {s(sT3)}, {v(reg)}', 's_nop 1', f's_cmp_lg_u32 {s(sT3)}, 0']
        self.spins.append((k, reload, test))
        return test + [f's_cbranch_scc0 L_spin{k}', f'L_spun{k}:']

    def spin_blocks(self):
        for k, reload, test in self.spins:
            self.raw([f'L_spin{k}:', f's_mov_b32 {s(sSPIN)}, {self.c.spin_max}', f'L_spinl{k}:', 's_sleep 1', reload, 's_waitcnt vmcnt(0)'] + test +
                     ([f's_cbranch_scc0 L_spinc{k}', f's_sub_u32 {s(sSPIN)}, {self.c.spin_max + 1}, {s(sSPIN)}', f'v_writelane_b32 v254, {s(sSPIN)}, {58 + k}',
                       f's_branch L_spun{k}', f'L_spinc{k}:'] if self.c.trace else []) +
                     [f's_cbranch_scc1 L_spun{k}', f's_sub_u32 {s(sSPIN)}, {s(sSPIN)}, 1', f's_cmp_lg_u32 {s(sSPIN)}, 0', f's_cbranch_scc1 L_spinl{k}',
                      f's_branch L_spun{k}'])

    def plan_wo(self):
        big = self.c.big_from
        self.bars = [g for g in range(1, 36) if g < big or (g - big) % 2 == 0]
        self.slot_of = {0: 0, 1: 1, 2: 2}
        self.issue_at = {}
        self.publish = {}
        free = [3]
        nxt = 3
        freed = 0
        opened = False
        for i, sg in enumerate(self.bars):
            end = self.bars[i + 1] if i + 1 < len(self.bars) else 36
            end2 = self.bars[i + 2] if i + 2 < len(self.bars) else 36
            self.publish[sg] = end - 1
            assert nxt >= end, (sg, nxt, end)
            while freed <= sg - 2:
                free.append(self.slot_of[freed]); freed += 1
            if sg >= 5 and not opened:
                free += list(range(4, self.c.oring)); opened = True
            todo = []
            while nxt < 36 and free and (len(todo) < (end - sg) + 1 or nxt < end2):
                self.slot_of[nxt] = free.pop(0)
                todo.append(nxt); nxt += 1
            self.issue_at[sg] = todo

    def wo_slot(self, n):
        return 16384 * self.slot_of[n >> 2] + 4096 * (n & 3)

    def wo_unit(self, n):
        p, kk = n >> 4, n & 15
        g = [f's_add_u32 m0, {s(sWOL)}, {self.wo_slot(n)}']
        if kk == 0:
            if p == 0:
                g += [f's_mov_b32 {s(sCG)}, 1024']
            else:
                g += [f's_add_u32 {s(sCG)}, {s(sJ)}, {p}', f's_and_b32 {s(sCG)}, {s(sCG)}, 7', f's_lshl_b32 {s(sCG)}, {s(sCG)}, 7']
        elif kk & 3 == 0:
            g += [f's_add_u32 {s(sCG)}, {s(sCG)}, 36864']
        g += [f's_add_u32 {s(sSO)}, {s(sH + (kk & 3))}, {s(sCG)}']
        g.append(self.dma(vOV, SRD_WO, s(sSO), 0, self.c.wo_nt, ('O', n)))
        return g

    def attn_last(self, safe):
        c = self.c
        cur = 1
        e = self.frag_reads(8, 0, 3) + self.frag_reads(9, 0, 3)
        self.emit(e, 'last0')
        sf = c.last_opt and c.summode.startswith('m16')
        pv, first = self.pv_mfmas(sumfirst=sf)
        fl = []
        for phi in range(10, 16):
            nd = first[phi - 8]
            fl.append(Filler(self.frag_reads(phi, 0, 3), rel=max(nd - 18, -1), dl=nd - 10, stream='fr', pos=nd - 0.5))
        order = self.exp_order()
        fl += self.cvt_fillers(cur, 0, order if safe else order[(48 if c.last_opt else c.npart1):], -1)
        for n in range(12):
            fl.append(Filler(self.wo_unit(n), rel=3 * n, dl=3 * n + 8, stream='dma'))
        for k, f in enumerate(self.last_extra):
            f.rel = 38 + 4 * k
            f.dl = f.rel + 6
            f.pos = f.rel + 0.5
            f.stream = 'dma'
            fl.append(f)
        if c.dbg_early:
            fl.append(Filler([f's_lshl_b32 {s(sDA)}, {s(sGRP)}, 3', I(self.dbg_load(), tag='DBG', cost=c.dma_cost)], rel=46, dl=50, stream='dma'))
        fl.append(Filler('s_barrier', rel=first[7], dl=first[7], stream='x'))
        if c.summode in ('m4', 'dot', 'm16zz'):
            rows = []
            for t in range(6):
                m, m2 = v(L_ + 4 * t), v(L_ + 4 * t + 1)
                rows.append([x.replace('v_max_f32', 'v_add_f32') for x in self.xlane_max(m, m2)])
            for z in zip(*rows):
                for x in z:
                    fl.append(Filler(x, rel=(16 if sf else first[6] + 2), dl=60, stream='r', pos=99))
        for t in range(6):
            fl.append(Filler(f'v_rcp_f32 {v(vR + 2 * t)}, {v(L_ + 4 * t)}', rel=(16 if sf else first[min(t + 2, 7)] + 3), dl=60, stream='r', pos=100))
        self.emit(interleave(pv, fl, 8, c.verbose, 'last', rate=9.0, cap=(12 if c.split else None), split=c.split), 'last')

    def ofrag(self, k, tb, pk=True):
        u, t = divmod(k, 6)
        e = [[f'v_accvgpr_read_b32 {v(tb + i)}, {a(Oacc(2 * u + (i >> 2), t) + (i & 3))}'] for i in range(8)]
        if pk:
            e += [[f'v_pk_mul_f32 {v(tb + i, 2)}, {v(tb + i, 2)}, {v(vR + 2 * t, 2)} op_sel_hi:[1,0]'] for i in range(0, 8, 2)]
        else:
            e += [[f'v_mul_f32 {v(tb + i)}, {v(tb + i)}, {v(vR + 2 * t)}'] for i in range(8)]
        e += [[f'v_cvt_pk_bf16_f32 {v(tb + i)}, {v(tb + 2 * i)}, {v(tb + 2 * i + 1)}'] for i in range(4)]
        e.append([I(f'ds_write_b128 {v(vOW)}, {v(tb, 4)} offset:{1024 * k}', cost=12)])
        return e

    def onorm(self):
        return flat(flat(self.ofrag(k, 8 * (k % 6), self.c.norm_pk) for k in range(self.c.npre)))

    def oproj(self):
        c = self.c
        NS = 144

        def aread(n):
            r = OA_ + 4 * (n & 3)
            ad = self.wo_slot(n)
            return [f'ds_read_b64_tr_b16 {v(r + 2 * e_, 2)}, {v((vOA, vOA2)[ad >> 16])} offset:{(ad & 65535) + 2048 * e_}' for e_ in range(2)]

        def bread(kk, t):
            phi = 6 * kk + t
            return f'ds_read_b128 {Bfrag(phi)}, {v(vBA + (kk & 3))} offset:{1024 * (6 * (kk >> 2) + t)}'

        def prod(p, sd):
            return [f's_sub_u32 {s(sd)}, {s(sJ)}, {p}', f's_and_b32 {s(sd)}, {s(sd)}, 7', f's_lshl_b32 {s(sd)}, {s(sd)}, 2',
                    f's_add_u32 {s(sd)}, {s(sd)}, {s(sW)}']

        def fload(p):
            return f'buffer_load_dword {v(vF)}, {v(SEL)}, {s(SRD_FL, 4)}, {s(sFA)} offen offset:{128 * p}{c.fl_mod}'

        def poll(p):
            return prod(p, sFA) + [f's_lshl_b32 {s(sFA)}, {s(sFA)}, 10', I(fload(p), tag=('F', p), cost=c.dma_cost)]

        def dloads(p, dst):
            g = []
            for z in range(3):
                o = f' offset:{1024 * z}' if z else ''
                g.append([I(f'buffer_load_dwordx4 {dst(z)}, {v(vPS)}, {s(SRD_WS, 4)}, {s(sDAt[p])} offen{o}{c.d_mod}', tag=('D', p), cost=c.dma_cost)])
            return g

        def adds(src, first=False):
            r = []
            for z in range(3):
                for h in range(2):
                    acc = v(RR + 8 * z + 4 * h, 4)
                    r.append(I(f'{MF} {acc}, {v(SEL + 2 - 2 * h, 4)}, {src(z)}, {0 if first else acc}'))
            return r

        def signal(p):
            return [self.wvm(('P', p)),
                    I(f'buffer_store_dword {v(vOA2)}, {v(vL0)}, {s(SRD_FL, 4)}, {s(sFS)} offen offset:{128 * p}{c.fl_mod}', tag=('S', p), cost=c.dma_cost)]

        ldb = lambda z: v(LDB + 4 * z, 4)
        bufs = [ldb, lambda z: v(4 * z, 4), lambda z: v(12 + 4 * z, 4)] + [(lambda k: (lambda z: v(HB + 8 + 12 * k + 4 * z, 4)))(k) for k in range(4)]
        e = [bread(0, t) for t in range(6)] + aread(0) + aread(1) + [bread(1, t) for t in range(3)] + self.fb_check + [bread(1, 3)]
        self.emit(e, 'opre')
        mf, fl = [], []
        G = []
        A = {}
        SH = {}
        hreg = lambda i: v(RR + 8 + 4 * i, 4) if i < 4 else (v(LDB + 4 * (i - 4), 4) if i < 7 else v(RR + 8, 4))
        for n in range(NS):
            p, kk = n >> 4, n & 15
            for k, nn in enumerate(c.add_at):
                if n == nn:
                    A[k] = len(mf)
                    for q in ((0,), (0,), (0,), (1, 2))[k]:
                        mf += adds(bufs[q], k == 0)
            if c.sh_early and n in c.sh_pos[2:]:
                k = c.sh_pos[2:].index(n)
                SH[k] = len(mf)
                for i in (range(7) if k == 0 else (7,)):
                    for h in range(2):
                        acc = v(RR + 4 * h, 4)
                        mf.append(I(f'{MF} {acc}, {v(SEL + 2 - 2 * h, 4)}, {hreg(i)}, {acc if i else 0}'))
            G.append(len(mf))
            for t in range(6):
                acc = v((RR if p == 8 else OACC[p & 1]) + 4 * t, 4)
                mf.append(I(f'{MF} {acc}, {v(OA_ + 4 * (n & 3), 4)}, {Bfrag(6 * kk + t)}, {acc if kk or p == 8 else 0}'))
        G.append(len(mf))
        at = lambda p, x: min(G[16 * p + x // 6] + x % 6, len(mf) - 1) if 16 * p + x // 6 < NS else len(mf) - 1
        for t in range(4, 6):
            fl.append(Filler(bread(1, t), rel=0, dl=1, stream='b', pos=5.5))
        for n in range(NS):
            p, kk = n >> 4, n & 15
            g0 = G[n]
            m = n + 2
            if m < NS:
                if m % 4 == 0 and m // 4 in self.bars:
                    sg = m // 4
                    pub = sg < 4 and 6 * (sg + 1) > c.npre
                    fl.append(Filler([self.wvm(('O', 4 * self.publish[sg] + 3))] + (['s_waitcnt lgkmcnt(0)'] if pub else []) + ['s_barrier'], rel=g0 - 1, dl=g0,
                                     stream='a', pos=g0 - 0.4))
                    if sg < 4:
                        ks = [k for k in range(6 * sg, 6 * sg + 6) if k >= c.npre]
                        items = flat(self.ofrag(k, 24 + 8 * (k % 3), False) for k in ks)
                        lo, hi = max(g0 - 24, 0), g0 - 2
                        for q, it in enumerate(items):
                            x = lo + q * (hi - lo) // len(items)
                            fl.append(Filler(it, rel=x, dl=x, stream='cv', pos=lo - 0.6 + 1e-4 * q))
                    units = [4 * q + k for q in self.issue_at[sg] for k in range(4)]
                    for k, uu in enumerate(units):
                        sp = 24 * (self.publish[sg] - sg + 1) // max(len(units), 1)
                        fl.append(Filler(self.wo_unit(uu), rel=g0 + 2 + sp * k, dl=g0 + 3 + sp * k, stream='dma'))
                fl.append(Filler(aread(m), rel=g0, dl=g0 + 2, stream='a', pos=G[m] - 0.5))
                if m < 16:
                    for t in range(6):
                        fl.append(Filler(bread(m, t), rel=g0 + 1 + t, dl=g0 + 5 + t, stream='b', pos=G[m] - 0.5))
            if kk == 15 or (c.trace_o and kk & 3 == 3):
                self.tr_filler(fl, g0 + 5, 'o')
            if kk == 15 and p < 8:
                for z in range(3):
                    for i in range(4):
                        b = OACC[p & 1] + 8 * z + 2 * i
                        fl.append(Filler(f'v_cvt_pk_bf16_f32 {v(OPK + 4 * z + i)}, {v(b)}, {v(b + 1)}', rel=g0 + 10 + 3 * z, dl=g0 + 11 + 3 * z + (i >> 1),
                                         stream='st', pos=g0 + 5.5))
                    o = f' offset:{1024 * z}' if z else ''
                    fl.append(Filler(I(f'buffer_store_dwordx4 {v(OPK + 4 * z, 4)}, {v(vPS)}, {s(SRD_WS, 4)}, {s(sPSt[p])} offen{o}{c.st_mod}',
                                       tag=('P', p), cost=c.dma_cost), rel=g0 + 10 + 3 * z, dl=g0 + 13 + 3 * z, stream='st', pos=g0 + 5.5))
                sgm = c.sig[0] if p <= 4 else (c.sig[1] if p <= 6 else c.sig[2])
                x = min(g0 + 6 + sgm, len(mf) - 1)
                fl.append(Filler(signal(p), rel=x, dl=x, stream='sig'))
        red = []
        dbgl = self.dbg_load()
        if c.dbg_early:
            x = at(0, 88)
            red.append(Filler([self.wvm('DBG')] + self.check(OPK + 4, 0x01010101, dbgl, 'dbg', two=True), rel=x, dl=x + 2))
        else:
            x = at(1, 84) if c.sh_early else at(3, 62)
            red.append(Filler([f's_lshl_b32 {s(sDA)}, {s(sGRP)}, 3', I(dbgl, tag='DBG', cost=c.dma_cost)], rel=x, dl=x + 2))
            x = at(2, 80) if c.sh_early else at(4, 56)
            red.append(Filler([self.wvm('DBG')] + self.check(LDB, 0x01010101, dbgl, 'dbg', two=True), rel=x, dl=x + 2))
        pal = f'buffer_load_dword {v(vF)}, {v(vPA)}, {s(SRD_FL, 4)}, {s(sFA)} offen{c.fl_mod}'

        def place(gs, x, sp=2):
            for k, g in enumerate(gs):
                red.append(Filler(g, rel=x + sp * k, dl=x + 2 + sp * k, pos=x + 0.5 + sp * k))
            return x + sp * len(gs)
        if c.prepoll:
            x = at(3, 64)
            red.append(Filler([f's_lshl_b32 {s(sFA)}, {s(sW)}, 10', I(pal, tag='F_', cost=c.dma_cost)], rel=x, dl=x + 2))
        if c.sh_early:
            hl = lambda i: [I(f'buffer_load_dwordx4 {hreg(i)}, {v(vPS)}, {s(SRD_WS, 4)}, {s(sDAt[0])} offen{c.d_mod}', tag=('H', i), cost=c.dma_cost)] + \
                ([f's_add_u32 {s(sDAt[0])}, {s(sDAt[0])}, 12288'] if i < 7 else [])
            x = at(3, 10)
            red.append(Filler([I(pal, tag='F0', cost=c.dma_cost)], rel=x, dl=x + 2))
            x = at(3, c.sh_pos[0])
            red.append(Filler([self.wvm('F0')] + self.check(vF, 0xff, pal, 'f0', allanes=True), rel=x, dl=x + 2))
            place([hl(i) for i in range(7)], x + 1, 3)
            red.append(Filler(self.wvm(('H', 6)), rel=SH[0] - 1, dl=SH[0] - 1))
            place([hl(7)], SH[0] + 4)
            red.append(Filler(self.wvm(('H', 7)), rel=SH[1] - 1, dl=SH[1] - 1))
            x = SH[1] + 12
            place([[f'v_cvt_pk_bf16_f32 {v(RR + 8 + i)}, {v(RR + 2 * i)}, {v(RR + 2 * i + 1)}'] for i in range(4)], x, 1)
            st = [I(f'buffer_store_dwordx2 {v(RR + 8 + 2 * h, 2)}, {v(vOO)}, {s(SRD_OUT, 4)}, {s((sPS, sT3)[h])} offen{c.out_mod}', tag='UNCOUNTED') for h in range(2)]
            red.append(Filler([f's_mul_i32 {s(sPS)}, {s(sJ)}, {32 * 2304}', f's_add_u32 {s(sPS)}, {s(sPS)}, {s(sOO)}', f's_add_u32 {s(sPS)}, {s(sPS)}, 1024',
                               f's_add_u32 {s(sT3)}, {s(sPS)}, {16 * 2304}', f's_cmp_lt_u32 {s(sJ)}, 3', 's_cbranch_scc0 L_nosh'] + st + ['L_nosh:'],
                              rel=x + 5, dl=x + 7, pos=x + 5.5))
        x = at(5, c.pa[0])
        red.append(Filler([f's_lshl_b32 {s(sFA)}, {s(sW)}, 10', I(pal, tag='FA', cost=c.dma_cost)], rel=x, dl=x + 2))
        x = at(5, c.pa[1])
        red.append(Filler([self.wvm('FA')] + self.check(vF, 0x700, pal, 'fa', allanes=True), rel=x, dl=x + 2))
        place(dloads(1, ldb), x + 1)
        for k in range(3):
            red.append(Filler(self.wvm(('D', k + 1)), rel=A[k] - 1, dl=A[k] - 1))
            if k < 2:
                place(dloads(k + 2, ldb), A[k] + 6)
        x = at(7, c.pa[2])
        red.append(Filler([I(pal, tag='FB', cost=c.dma_cost)], rel=x, dl=x + 2))
        x = at(7, c.pa[3])
        red.append(Filler([self.wvm('FB')] + self.check(vF, 0x1800 if c.sh_early else 0x18ff, pal, 'fb', allanes=True), rel=x, dl=x + 2))
        place(dloads(4, bufs[1]) + dloads(5, bufs[2]), x + 1)
        x = at(8, c.pb[0])
        red.append(Filler(poll(6), rel=x, dl=x + 2))
        red.append(Filler(self.wvm(('D', 5)), rel=A[3] - 1, dl=A[3] - 1))
        x = G[128 + c.sh_at]
        k = 0
        g = []
        for i in range(0 if c.sh_early else 8):
            g.append(I(f'buffer_load_dwordx4 {v(HB + 4 * i, 4)}, {v(vPS)}, {s(SRD_WS, 4)}, {s(sDAt[0])} offen{c.d_mod}', tag=('H', i), cost=c.dma_cost))
            if i < 7:
                g.append(f's_add_u32 {s(sDAt[0])}, {s(sDAt[0])}, 12288')
            red.append(Filler(g, rel=x + 2 * k, dl=x + 3 + 2 * k, pos=x + 0.5 + 2 * k)); k += 1
            g = []
        x = max(at(8, c.pb[1]), x + 2 * k)
        red.append(Filler([self.wvm(('F', 6))] + self.check(vF, 1, fload(6), 'f6'), rel=x, dl=x + 2))
        x = place(dloads(6, bufs[5]), x + 1)
        x = max(at(8, c.pb[2]), x)
        red.append(Filler(poll(7), rel=x, dl=x + 2))
        if c.pc is not None:
            x = len(mf) - 1 - c.pc
            red.append(Filler([self.wvm(('F', 7))] + self.check(vF, 1, fload(7), 'f7'), rel=x, dl=x))
            place(dloads(7, bufs[6]), x + 1, 1)
        if c.red_off:
            red = []
            self.spins = []
            fl = [f for f in fl if f.stream != 'sig']
        if c.st_off:
            fl = [f for f in fl if not (f.stream == 'st' and f.ins[0].kind == 'vst')]
        for f in fl:
            if f.stream == 'red':
                red.append(f)
        fl = [f for f in fl if f.stream != 'red']
        red.sort(key=lambda f: f.rel)
        for f in red:
            f.stream = 'red'
        fl += red
        for f in fl:
            f.rel = min(f.rel, len(mf) - 1)
        self.emit(interleave(mf, fl, 8, c.verbose, 'oproj', rate=c.o_rate, cap=(c.cap if c.split else 24), split=c.split,
                             reserve=({x - 1 for x in G[16:]} if c.reserve else ())), 'oproj')
        if c.red_off:
            return
        e = []
        if c.pc is None:
            e += [self.wvm(('F', 7))] + self.check(vF, 1, fload(7), 'f7') + flat(dloads(7, bufs[6]))
        for i in range(0 if c.sh_early else 8):
            e.append(self.wvm(('H', i)))
            for h in range(2):
                acc = v(4 * h, 4)
                e.append(f'{MF} {acc}, {v(SEL + 2 - 2 * h, 4)}, {v(HB + 4 * i, 4)}, {acc if i else 0}')
        e += [self.wvm(('D', 6))] + adds(bufs[5])
        if not c.sh_early:
            e += [f's_mul_i32 {s(sPS)}, {s(sJ)}, {32 * 2304}', f's_add_u32 {s(sPS)}, {s(sPS)}, {s(sOO)}', f's_add_u32 {s(sPS)}, {s(sPS)}, 1024',
                  f's_add_u32 {s(sT3)}, {s(sPS)}, {16 * 2304}']
            e += [f'v_cvt_pk_bf16_f32 {v(8 + i)}, {v(2 * i)}, {v(2 * i + 1)}' for i in range(4)]
            e += [f's_cmp_lt_u32 {s(sJ)}, 3', 's_cbranch_scc0 L_nosh']
            self.emit(e, 'otail')
            self.raw([f'buffer_store_dwordx2 {v(8, 2)}, {v(vOO)}, {s(SRD_OUT, 4)}, {s(sPS)} offen{c.out_mod}',
                      f'buffer_store_dwordx2 {v(10, 2)}, {v(vOO)}, {s(SRD_OUT, 4)}, {s(sT3)} offen{c.out_mod}', 'L_nosh:'])
            e = []
        e += [f's_lshl_b32 {s(sPS)}, {s(sJ)}, 7', f's_add_u32 {s(sPS)}, {s(sPS)}, {s(sOO)}']
        e += [self.wvm(('D', 7))] + adds(bufs[6])
        for t in range(6):
            e += [f'v_cvt_pk_bf16_f32 {v(12 + 2 * t + i)}, {v(RR + 4 * t + 2 * i)}, {v(RR + 4 * t + 2 * i + 1)}' for i in range(2)]
            e.append(I(f'buffer_store_dwordx2 {v(12 + 2 * t, 2)}, {v(vOO)}, {s(SRD_OUT, 4)}, {s(sPS)} offen{c.out_mod}', tag='Z'))
            if t < 5:
                e.append(f's_add_u32 {s(sPS)}, {s(sPS)}, {16 * 2304}')
        self.emit(e, 'otail')

    def rare_paths(self):
        for site, new in self.sites:
            self.raw([f'L_rare_{site}:', f's_call_b64 {s(sRET, 2)}, L_rescale_{new}', f's_branch L_back_{site}'])
        if not self.sites:
            return
        for new in range(2):
            e = []
            self.raw([f'L_rescale_{new}:', 's_nop 15'])
            m, m2, f = v(vT), v(vT + 1), v(vT + 2)
            for t in range(6):
                r = [Sr(new, 0, t) + i for i in range(4)] + [Sr(new, 1, t) + i for i in range(4)]
                e += [f'v_max3_f32 {m}, {v(r[0])}, {v(r[1])}, {v(r[2])}', f'v_max3_f32 {m}, {m}, {v(r[3])}, {v(r[4])}',
                      f'v_max3_f32 {m}, {m}, {v(r[5])}, {v(r[6])}', f'v_max3_f32 {m}, {m}, {v(r[7])}, 0'] + self.xlane_max(m, m2)
                e += [f'v_exp_f32 {f}, -{m}']
                e += [f'v_sub_f32 {v(NM + 4 * t + i)}, {v(NM + 4 * t + i)}, {m}' for i in range(4)]
                e += [f'v_sub_f32 {v(x)}, {v(x)}, {m}' for x in r]
                e += [f'v_mul_f32 {v(L_ + 4 * t + i)}, {v(L_ + 4 * t + i)}, {f}' for i in range(4)]
                for dt in range(8):
                    for i in range(0, 4, 2):
                        o = Oacc(dt, t) + i
                        e += [f'v_accvgpr_read_b32 {v(vMX)}, {a(o)}', f'v_accvgpr_read_b32 {v(vMX + 1)}, {a(o + 1)}',
                              f'v_mul_f32 {v(vMX)}, {v(vMX)}, {f}', f'v_mul_f32 {v(vMX + 1)}, {v(vMX + 1)}, {f}',
                              f'v_accvgpr_write_b32 {a(o)}, {v(vMX)}', f'v_accvgpr_write_b32 {a(o + 1)}, {v(vMX + 1)}']
            e += ['s_nop 1', f's_setpc_b64 {s(sRET, 2)}']
            self.out += pad_hazards([mk(x) for x in e])

    def finish(self):
        self.raw(['L_end:', 's_endpgm'])

    def trace_move(self):
        if self.c.trace:
            self.tr(name='norm')
            self.emit([f'v_writelane_b32 v254, 0, {58 + k}' for k in range(6)])

    def trace_out(self):
        if not self.c.trace:
            return
        self.tr(name='tail')
        self.emit(['s_waitcnt vmcnt(0)'])
        self.tr(name='drain')
        e = [f's_add_u32 s12, s58, {STAMP_OFF + 0x80000}', 's_addc_u32 s13, s59, 0', 's_mov_b32 s14, 0x80000', 's_mov_b32 s15, 0x20000',
             f's_lshl_b32 {s(sT1)}, s2, 2', f's_add_u32 {s(sT1)}, {s(sT1)}, {s(sW)}', f's_lshl_b32 {s(sT1)}, {s(sT1)}, 9',
             f'v_lshrrev_b32 v40, 1, {v(vPS)}', I(f'buffer_store_dwordx2 v[254:255], v40, s[12:15], {s(sT1)} offen', tag='TR')]
        if self.c.dbgout:
            names = self.trnames
            last = lambda n: len(names) - 1 - names[::-1].index(n)
            its = [i for i, n in enumerate(names) if n == 'it']
            sel = [last('first'), names.index('q'), last('q'), last('conv'), last('pre'), its[4], its[12], its[20], its[27], its[-1], last('last'), last('norm'),
                   last('o') - 4, last('o'), last('tail'), last('drain')]
            e += ['s_waitcnt vmcnt(0)', 's_or_b32 s4, s2, s3', 's_cmp_lg_u32 s4, 0', 's_cbranch_scc1 L_end', 'v_readlane_b32 s5, v254, 0', 'v_mov_b32 v41, 0']
            for k, i in enumerate(sel):
                e += [f'v_readlane_b32 s4, v254, {i}', 's_nop 1', 's_sub_u32 s4, s4, s5', f'v_writelane_b32 v41, s4, {k}']
            e += [f'v_lshrrev_b32 v40, 2, {v(vPS)}', 's_mov_b64 exec, 0xffff', f'buffer_store_dword v41, v40, {s(SRD_DBG, 4)}, 0 offen']
        self.emit(e)

    def kernel1(self):
        c = self.c
        self.setup()
        self.qproj()
        self.attention(c.mode == 'safe')
        self.tr(name='last')
        vm_join = list(self.vm)
        self.raw(['L_norm:'])
        e = []
        if c.mode == 'fast':
            m = v(vT)
            e += [f'v_max3_f32 {m}, {v(L_)}, {v(L_ + 4)}, {v(L_ + 8)}', f'v_max3_f32 {m}, {m}, {v(L_ + 12)}, {v(L_ + 16)}',
                  f'v_max_f32 {m}, {m}, {v(L_ + 20)}', f'v_cmp_nge_f32 vcc, {s(sLTHR)}, {m}',
                  's_nop 1', 's_cmp_lg_u64 vcc, 0', f's_cselect_b32 {s(sT1)}, 1, 0', f's_andn2_b32 {s(sT1)}, {s(sT1)}, {s(sSAFE)}',
                  f'v_mov_b32 {v(vT + 1)}, {s(sT1)}', f's_lshl_b32 {s(sT1)}, {s(sW)}, 2', f's_add_u32 {s(sT1)}, {s(sT1)}, {49152}',
                  f'v_mov_b32 {v(vT + 2)}, {s(sT1)}', f'ds_write_b32 {v(vT + 2)}, {v(vT + 1)}']
        e += self.onorm()
        e += [self.wvm(('O', 3)), 's_waitcnt lgkmcnt(0)', 's_barrier']
        self.fb_check = []
        if c.mode == 'fast':
            e += [f'ds_read_b128 {v(OPK, 4)}, {v(SEL)} offset:49152']
            self.fb_check = [f'v_or3_b32 {v(OPK)}, {v(OPK)}, {v(OPK + 1)}, {v(OPK + 2)}', f'v_or_b32 {v(OPK)}, {v(OPK)}, {v(OPK + 3)}',
                             f'v_readfirstlane_b32 {s(sT1)}, {v(OPK)}', f's_cmp_lg_u32 {s(sT1)}, 0', 's_cbranch_scc1 L_fallback']
        self.emit(e, 'onorm')
        self.trace_move()
        self.oproj()
        self.trace_out()
        self.finish()
        if c.mode == 'fast':
            self.raw(['L_fallback:'])
            self.lg = []; self.vm = []
            tr = c.trace
            c.trace = False
            e = ['s_waitcnt vmcnt(0) lgkmcnt(0)', 's_barrier', f's_mov_b32 {s(sSAFE)}, 1', f's_mov_b32 {s(sOFF)}, {s(sOFF0)}',
                 f's_add_u32 {s(sOFF2)}, {s(sOFF)}, 4096', f's_mov_b32 {s(SRD_KV + 2)}, 262144']
            self.emit(e)
            self.kv_reload()
            self.attention(True)
            assert [x[0] for x in self.vm] == [x[0] for x in vm_join], (self.vm, vm_join)
            self.emit(['s_waitcnt lgkmcnt(0)', 's_nop 15', 's_branch L_norm'])
            c.trace = tr
        self.rare_paths()
        self.spin_blocks()
        return self.out


def descriptor(name, vg, acc, sg=102):
    d = ['.section .rodata,"a"', '.p2align 6', f'.amdhsa_kernel {name}']
    for k, x in dict(next_free_vgpr=vg, next_free_sgpr=sg, accum_offset=acc, group_segment_fixed_size=0, kernarg_size=104,
                     user_sgpr_count=2, user_sgpr_kernarg_segment_ptr=1, system_sgpr_workgroup_id_x=1).items():
        d.append(f'  .amdhsa_{k} {x}')
    d.append('.end_amdhsa_kernel')
    return d


def build(cfg, path):
    g = Gen(cfg)
    k1 = g.kernel1()
    L = ['; @launch grid=(256,1,1) block=(256,1,1) lds=163840',
         '; Two GQA blocks, one launch.  Workgroup = (block, batch, 4 query heads / 2 kv heads), one wave per query head.',
         ';   1. Q^T = wq^T x^T (wq, x staged by LDS-DMA; wq read with the transposing LDS load), scaled by log2(e)/sqrt(128), kept in registers',
         ';   2. flash attention over 32 blocks of 32 keys, S^T = K Q^T - m and O^T += V^T P^T on 16x16x32 MFMAs; K/V stream through LDS rings,',
         ';      the number of loads in flight is bounded by counted vmcnt waits.  m is the row maximum of the first keys; a row sum beyond 2^40',
         ';      (or not finite) sends the workgroup to L_fallback, which redoes the loop with a running maximum and rescaling',
         ';   3. out^T partial = wo^T O^T over the 512 local features, nine groups of 64 columns, own group last; bf16 partials go to d_ws',
         ';      (sc1 stores, then a flag), the owner polls the flags (cleared at entry, confirmed through d_debug) and adds them with MFMAs',
         '; Generated by a script of the author (instruction placement between MFMAs, wait counts and wait states are computed there).',
         '.amdgcn_target "amdgcn-amd-amdhsa--gfx950"', '.text']
    L += [f'.globl {K1}', '.p2align 8', f'.type {K1},@function', f'{K1}:']
    L += [('' if x.kind in ('label', 'dir') else '    ') + x.text for x in k1]
    if cfg.trace:
        assert g.ntr == len(g.trnames) <= 58, (g.ntr, len(g.trnames))
        L += ['; trnames ' + ' '.join(g.trnames)]
    L += descriptor(K1, 512, 256)
    open(path, 'w').write('\n'.join(L) + '\n')
    return g

if __name__ == '__main__':
    kw = {}
    path = sys.argv[1]
    for x in sys.argv[2:]:
        k, val = x.split('=', 1)
        try:
            val = eval(val)
        except Exception:
            pass
        kw[k] = val
    build(Cfg(**kw), path)
```
